```python
import torch

def _softmax(x, axis=-1):
    return torch.softmax(x, dim=axis)
def _gelu(x):
    return torch.nn.functional.gelu(x, approximate="tanh")
def _silu(x):
    return torch.nn.functional.silu(x)
def _sigmoid(x):
    return torch.sigmoid(x)
def _layernorm(x, axis=-1, eps=1e-5):
    m = x.mean(dim=axis, keepdim=True)
    v = x.var(dim=axis, keepdim=True, unbiased=False)
    return (x - m) / torch.sqrt(v + eps)
def _scatter_add(tgt, idx, src, axis=0):
    return tgt.clone().index_add_(axis, idx, src)
def _segment_sum(src, seg, n):
    out = torch.zeros((n,) + src.shape[1:], dtype=src.dtype)
    return out.index_add_(0, seg, src)
def _pad(x, pw):
    flat = tuple(v for pair in reversed(pw) for v in pair)
    return torch.nn.functional.pad(x, flat)

kernel_name = 'concat_heads__sliding_block__ssm_conv_h3__prompt'

def setup_inputs():

    _w = (lambda a: (lambda t: t.to(torch.bfloat16) if t.is_floating_point() else t)(torch.as_tensor(a)))
    def _A_setup():
        B, S, D = 1, 2048, 640
        return {
            "x": _w((lambda *s: torch.randn(*s, dtype=torch.bfloat16) * 0.2)(B, S, D)),
            "wqkv": _w((lambda *s: torch.randn(*s, dtype=torch.bfloat16) * 0.2)(D, 3 * D)),
            "wo": _w((lambda *s: torch.randn(*s, dtype=torch.bfloat16) * 0.05)(D, D)),
        }
    _A_in = _A_setup()

    def _B_setup():
        B, S, D = 1, 2048, 640
        ks = 4
        return {
            "q": _w((lambda *s: torch.randn(*s, dtype=torch.bfloat16) * 0.05)(B, S, D)),
            "k": _w((lambda *s: torch.randn(*s, dtype=torch.bfloat16) * 0.8)(B, S, D)),
            "v": _w((lambda *s: torch.randn(*s, dtype=torch.bfloat16) * 0.8)(B, S, D)),
            "shift_k": _w((lambda *s: torch.randn(*s, dtype=torch.bfloat16) * 0.8)(D, ks) * 0.5),
            "ssm_k": _w((lambda *s: torch.randn(*s, dtype=torch.bfloat16) * 3.2)(D, S) * (1.0 / S ** 0.5)),
            "ssm_D": _w((lambda *s: torch.randn(*s, dtype=torch.bfloat16) * 0.8)(D)),
        }
    _B_in = _B_setup()

    return {
        "A_x": _A_in["x"],
        "A_wqkv": _A_in["wqkv"],
        "A_wo": _A_in["wo"],
        "B_q": _B_in["q"],
        "B_k": _B_in["k"],
        "B_v": _B_in["v"],
        "B_shift_k": _B_in["shift_k"],
        "B_ssm_k": _B_in["ssm_k"],
        "B_ssm_D": _B_in["ssm_D"],
    }

def reference(A_x, A_wqkv, A_wo, B_q, B_k, B_v, B_shift_k, B_ssm_k, B_ssm_D):
    def _A_ref(x, wqkv, wo):
        B, S, D = x.shape
        H = 32; Dh = D // H; W = 256
        qkv = (lambda x, *d: x.permute(*d))((x @ wqkv).reshape(B, S, 3, H, Dh), 2, 0, 3, 1, 4)
        q, k, v = qkv[0], qkv[1], qkv[2]
        scores = torch.einsum("bhqd,bhkd->bhqk", q, k) * (Dh ** -0.5)
        idx = torch.arange(S)
        mask = (idx[:, None] - idx[None, :] >= 0) & (idx[:, None] - idx[None, :] < W)
        scores = torch.where(mask[None, None], scores, -1e9)
        p = _softmax(scores, axis=-1)
        o = torch.einsum("bhqk,bhkd->bhqd", p, v)
        return (lambda x, *d: x.permute(*d))(o, 0, 2, 1, 3).reshape(B, S, D) @ wo

    def _B_ref(q, k, v, shift_k, ssm_k, ssm_D):
        B, S, D = q.shape
        ks = shift_k.shape[-1]
        k_pad = _pad(k, ((0, 0), (ks - 1, 0), (0, 0)))
        k_shift = torch.zeros_like(k)
        for t in range(ks):
            k_shift = k_shift + k_pad[:, t:t + S, :] * shift_k[:, ks - 1 - t][None, None, :]
        kv = k_shift * v
        L = 2 * S
        kv_pad = _pad(kv, ((0, 0), (0, S), (0, 0)))
        kf_pad = _pad(ssm_k, ((0, 0), (0, S)))
        kv_f = (lambda x, axes=(-2,-1): torch.fft.rfft2(x.float(), dim=axes))(kv_pad[:, None, :, :], axes=(1, 2))
        kf_f = (lambda x, axes=(-2,-1): torch.fft.rfft2(x.float(), dim=axes))(kf_pad[:, None, :], axes=(1, 2))
        kf_f = (lambda x, *d: x.permute(*d))(kf_f, 1, 2, 0)
        y_f = kv_f * kf_f[None, :, :, :]
        y = (lambda x, s, axes=(-2,-1): torch.fft.irfft2(x, s=s, dim=axes).to(torch.bfloat16))(y_f, (1, L), axes=(1, 2))[:, 0, :S, :]
        y = y + kv * ssm_D[None, None, :]
        return q * y

    a = _A_ref(A_x, A_wqkv, A_wo)
    b = _B_ref(B_q, B_k, B_v, B_shift_k, B_ssm_k, B_ssm_D)
    return torch.concatenate([a, b], axis=-1)
```

```python
import re

TRANS = ("v_exp_f32", "v_log_f32", "v_rcp_f32", "v_rsq_f32", "v_sqrt_f32", "v_sin_f32", "v_cos_f32", "v_rcp_iflag_f32")

def regs_of(tok):
    tok = tok.strip()
    tok = re.sub(r"^-", "", tok)
    m = re.match(r"^abs\((.*)\)$", tok) or re.match(r"^\|(.*)\|$", tok)
    if m: tok = m.group(1)
    m = re.match(r"^([vsa])(\d+)$", tok)
    if m: return {(m.group(1), int(m.group(2)))}
    m = re.match(r"^([vsa])\[(\d+):(\d+)\]$", tok)
    if m: return {(m.group(1), i) for i in range(int(m.group(2)), int(m.group(3)) + 1)}
    if tok in ("vcc", "vcc_lo", "vcc_hi"): return {("x", "vcc")}
    if tok in ("exec", "exec_lo", "exec_hi"): return {("x", "exec")}
    if tok == "m0": return {("x", "m0")}
    return set()

class Ins:
    def __init__(self, text):
        self.text = text
        t = text.split(";")[0].strip()
        self.label = None
        self.op = ""
        self.dst = set(); self.src = set()
        self.A = set(); self.B = set(); self.C = set()
        self.states = 1
        if t.endswith(":"):
            self.label = t[:-1]; self.states = 0; return
        if t.startswith("."):
            self.op = "."; self.states = 0; return
        parts = t.split(None, 1)
        op = self.op = parts[0]
        rest = parts[1] if len(parts) > 1 else ""
        ops = [o.strip() for o in re.split(r",(?![^\[]*\])(?![^\(]*\))", rest)] if rest else []
        mods = []
        if ops:
            sp = ops[-1].split()
            if sp:
                ops[-1] = sp[0]; mods = sp[1:]
        self.ops = ops; self.mods = mods
        R = [regs_of(o) for o in ops]
        self.is_mfma = op.startswith("v_mfma")
        self.is_valu = op.startswith("v_") and not self.is_mfma
        self.is_trans = any(op.startswith(x) for x in TRANS)
        self.is_vmem = op.startswith("buffer_") or op.startswith("global_")
        self.is_ds = op.startswith("ds_")
        self.is_salu = op.startswith("s_")
        self.is_dma = self.is_vmem and "lds" in mods
        self.is_dpp = any(m.startswith(("quad_perm", "row_", "wave_")) for m in mods) or op.endswith("_dpp")
        self.is_sdwa = op.endswith("_sdwa") or any(m.startswith("op_sel") or m.startswith("dst_sel") for m in mods)
        self.wide_store = False
        if op == "s_nop":
            self.states = int(ops[0], 0) + 1
        if self.is_mfma:
            self.dst = R[0]; self.A = R[1]; self.B = R[2]; self.C = R[3]; self.src = R[1] | R[2] | R[3]
            self.passes = 8 if "32x32" in op else 4
        elif self.is_valu:
            if op.startswith("v_permlane") and "swap" in op:
                self.dst = R[0] | R[1]; self.src = R[0] | R[1]
            elif op.startswith("v_cmp"):
                self.dst = set(R[0]); self.src = set().union(*R[1:])
                if op.startswith("v_cmpx"): self.dst |= {("x", "exec")}
            elif re.match(r"v_(add|sub|subrev)_co_u32|v_(addc|subb|subbrev)_co_u32|v_div_scale|v_mad_u64_u32", op):
                self.dst = R[0] | R[1]; self.src = set().union(*R[2:])
            else:
                self.dst = set(R[0]); self.src = set().union(*R[1:]) if len(R) > 1 else set()
                if op.startswith(("v_fmac", "v_pk_fmac", "v_writelane", "v_dot2c")) or self.is_dpp or self.is_sdwa: self.src |= R[0]
        elif self.is_ds:
            if op.startswith(("ds_read", "ds_bpermute", "ds_permute", "ds_swizzle")) or "_rtn" in op:
                self.dst = R[0]; self.src = set().union(*R[1:])
                if "d16" in op: self.src |= R[0]
            else:
                self.src = set().union(*R)
        elif self.is_vmem:
            if "load" in op and not self.is_dma:
                self.dst = R[0]; self.src = set().union(*R[1:])
            else:
                self.src = set().union(*R)
                if self.is_dma: self.src |= {("x", "m0")}
                if "store" in op and ("x4" in op or "x3" in op):
                    self.wide_store = True
                    self.sdata = R[0] if op.startswith("buffer_") else R[1]
                if "atomic" in op and "sc0" in mods: self.dst = R[0]
        elif self.is_salu:
            if op.startswith(("s_cmp", "s_waitcnt", "s_barrier", "s_branch", "s_cbranch", "s_nop", "s_setprio", "s_sleep", "s_endpgm", "s_bitcmp")):
                self.src = set().union(*R) if R else set()
                if op.startswith("s_cbranch_vcc"): self.src |= {("x", "vcc")}
            else:
                self.dst = set(R[0]) if R else set(); self.src = set().union(*R[1:]) if len(R) > 1 else set()
                if "saveexec" in op: self.dst |= {("x", "exec")}

def vonly(s): return {r for r in s if r[0] in "va"}
def sonly(s): return {r for r in s if r[0] == "s" or r == ("x", "vcc")}

def need(p, c):
    n = 0
    if p.label or c.label or p.op == "." or c.op == ".": return 0
    if p.is_valu:
        pv = vonly(p.dst); ps = sonly(p.dst)
        if c.is_mfma and pv & c.src: n = max(n, 2)
        if c.is_valu:
            if p.is_trans and not c.is_trans and pv & c.src: n = max(n, 1)
            if p.is_trans and c.is_trans and pv & c.src: n = max(n, 1)
            if c.op.startswith("v_permlane") and pv & c.src: n = max(n, 2)
            if c.op.startswith(("v_readfirstlane", "v_readlane")) and pv & c.src: n = max(n, 1)
            if c.is_dpp and pv & c.src: n = max(n, 2)
            if p.is_sdwa and pv & (c.src | c.dst): n = max(n, 1)
            if ps & c.src:
                n = max(n, 4 if c.op.startswith(("v_readlane", "v_writelane", "v_div_fmas")) else 2)
            if ("x", "exec") in p.dst: n = max(n, 5)
        if (c.is_vmem or c.is_ds) and p.is_trans and pv & c.src: n = max(n, 1)
        if c.is_vmem and ps & c.src: n = max(n, 5)
        if c.is_mfma and ("x", "exec") in p.dst: n = max(n, 4)
        if c.is_salu and ps & c.src: n = max(n, 1)
    if p.is_mfma:
        big = 12 if p.passes == 8 else 8
        if c.is_mfma:
            if p.dst & (c.A | c.B): n = max(n, big)
            if p.dst & c.C and not (p.dst == c.C and p.passes == c.passes): n = max(n, big - 2)
            if p.dst & c.dst and not (p.dst == c.C and p.passes == c.passes) and not (p.dst & c.C): n = max(n, big - 2)
        elif c.is_valu:
            if p.dst & (c.src | c.dst): n = max(n, big)
            if p.C & c.dst: n = max(n, 7 if p.passes == 8 else 3)
        elif c.is_vmem or c.is_ds:
            if p.dst & (c.src | c.dst): n = max(n, big)
            if p.C & c.dst: n = max(n, 1)
    if p.is_salu and ("x", "m0") in p.dst and c.is_dma: n = max(n, 1)
    if p.wide_store and p.sdata & c.dst:
        n = max(n, 2 if c.is_valu or c.is_mfma else 1)
    return n

class Asm:
    def __init__(self):
        self.ins = []
        self.nlab = 0
    def __call__(self, text):
        for line in text.split("\n"):
            line = line.strip()
            if not line or line.startswith(";"): continue
            self.ins.append(Ins(line))
    def lab(self, base="L"):
        self.nlab += 1
        return f"{base}_{self.nlab}"
    def finish(self):
        out = []
        W = 14
        for c in self.ins:
            req = 0; dist = 0
            for p in reversed(out[-40:]):
                if p.op in ("s_branch", "s_endpgm"): break
                n = need(p, c)
                if n > dist: req = max(req, n - dist)
                dist += p.states
                if dist >= W: break
            if req > 0:
                out.append(Ins(f"s_nop {req-1}"))
            out.append(c)
        labels = {c.label: i for i, c in enumerate(out) if c.label}
        errs = []
        for i, b in enumerate(out):
            if b.op == "s_branch" or b.op.startswith("s_cbranch"):
                tgt = labels[b.ops[0]]
                d2 = 0
                for c in out[tgt:tgt + 40]:
                    dist = d2
                    for p in reversed(out[max(0, i - 40):i + 1]):
                        n = need(p, c)
                        if n > dist: errs.append(f"hazard across branch {b.text} : {p.text} -> {c.text} need {n} have {dist}")
                        dist += p.states
                        if dist >= W: break
                    d2 += c.states
                    if d2 >= W or c.op in ("s_branch", "s_endpgm"): break
        if errs:
            raise SystemExit("\n".join(errs))
        self.out = out
        return "\n".join(("" if c.label else "    ") + c.text for c in out) + "\n"
```

```python
import sys, math, struct
from asmdsl import Asm

NAME = "concat_heads__sliding_block__ssm_conv_h3__prompt"

class Cfg:
    stamps = False
    cyc = False
    stop = 99
    nt_in = ""
    nt_xw = ""
    fstr = 8
    force_fb = False

WS_G = 0x0; WS_U = 0x800000; WS_Z = 0xB00000; WS_O = 0xE00000; WS_O8 = 0x1000000
WS_FG = 0x1100000; WS_FU = 0x1140000; WS_FZ = 0x1180000; WS_FO = 0x11C0000; WS_T = 0x1200000
WS_SIZE = 0x1400000
L_KB = 131072; L_VB = L_KB + 11024
L_H = 131072; HSTR = 8320; HODD = 4160
L_U = 0; USTR = 4608
L_Q = 65536; L_V = 81152; VSTR = 8256; L_ONES = L_V + 24768; L_K = 106496
L_WO2 = 131072
L_Z = 81152; ZSTR = 1040; L_O16 = 0; L_O8 = 92160; L_ST = 108544
SX, SW, SWO, SQ, SK, SV, SSH, SH, SD, SOUT, SDBG, SWS = [8 + 4 * i for i in range(12)]
def srd(b): return f"s[{b}:{b+3}]"
sWV, sXC, sJ = 56, 57, 58
sHW = 59
sN = 60
sR64, sC80 = 62, 63
sRB, sCT = 64, 65
sCH = 66
sCHV = 67
sHD, sQB = 68, 69
sT0, sT1, sT2, sT3, sT4, sT5 = 70, 71, 72, 73, 74, 75
sCNT = 76
sNV = 77
sFB = 78
sEX = 80
sA, sB = 82, 83
sSTAMP = 84
BIGNEG = 0xf149f2ca
vCZ, vCD, vCF = 208, 224, 240

def f2u(x): return struct.unpack("<I", struct.pack("<f", x))[0]
def vr(b, n): return f"v[{b}:{b+n-1}]" if n > 1 else f"v{b}"

def gen(cfg):
    a = Asm()
    FS = cfg.fstr
    nstamp = [0]
    def stamp(i):
        if cfg.stamps:
            a(f"{'s_memtime' if cfg.cyc else 's_memrealtime'} s[{sSTAMP+2*i}:{sSTAMP+2*i+1}]\ns_waitcnt lgkmcnt(0)")
    def dma(vaddr, s, soff, m0, flags=""):
        if isinstance(m0, int): a(f"s_mov_b32 m0, {m0}")
        else: a(m0)
        a(f"buffer_load_dwordx4 v{vaddr}, {srd(s)}, {soff} offen {flags} lds")
    def poll(vaddr, t, wide=False):
        L = a.lab("L_poll"); D = a.lab("L_polld")
        a(f"s_mov_b32 s{sCNT}, 0\n{L}:")
        if wide:
            a(f"buffer_load_dwordx4 v[{t}:{t+3}], v{vaddr}, {srd(SWS)}, 0 offen sc1\ns_waitcnt vmcnt(0)")
            a(f"v_cmp_ne_u64 vcc, s[{sN}:{sN+1}], v[{t}:{t+1}]\nv_cmp_ne_u64 s[{sEX}:{sEX+1}], s[{sN}:{sN+1}], v[{t+2}:{t+3}]\ns_or_b64 vcc, vcc, s[{sEX}:{sEX+1}]")
        else:
            a(f"buffer_load_dwordx2 v[{t}:{t+1}], v{vaddr}, {srd(SWS)}, 0 offen sc1\ns_waitcnt vmcnt(0)")
            a(f"v_cmp_ne_u64 vcc, s[{sN}:{sN+1}], v[{t}:{t+1}]")
        a(f"s_cbranch_vccz {D}\ns_add_u32 s{sCNT}, s{sCNT}, 1\ns_cmp_lt_u32 s{sCNT}, 0x40000\ns_cbranch_scc0 {D}\ns_sleep 1\ns_branch {L}\n{D}:")
    def publish(soff_sgpr, t):
        a(f"v_mov_b32 v{t}, s{sN}\nv_mov_b32 v{t+1}, s{sN+1}\nv_mov_b32 v{t+2}, s{soff_sgpr}")
        a(f"s_mov_b64 exec, 1\nbuffer_store_dwordx2 v[{t}:{t+1}], v{t+2}, {srd(SWS)}, 0 offen sc1\ns_mov_b64 exec, -1")
    def nonce_issue(t):
        a(f"v_mov_b32 v{t+2}, 0\nbuffer_load_dwordx2 v[{t}:{t+1}], v{t+2}, {srd(SDBG)}, 0 offen sc1")
    def nonce_take(t):
        L = a.lab("L_non"); D = a.lab("L_nond")
        a(f"s_mov_b32 s{sCNT}, 0\n{L}:\nv_readfirstlane_b32 s{sN}, v{t}\nv_readfirstlane_b32 s{sN+1}, v{t+1}")
        a(f"s_cmp_lg_u32 s{sN}, 0\ns_cbranch_scc1 {D}\ns_add_u32 s{sCNT}, s{sCNT}, 1\ns_cmp_lt_u32 s{sCNT}, 0x40000\ns_cbranch_scc0 {D}")
        a(f"buffer_load_dwordx2 v[{t}:{t+1}], v{t+2}, {srd(SDBG)}, 0 offen sc1\ns_waitcnt vmcnt(0)\ns_branch {L}\n{D}:")

    a("s_cmp_ge_u32 s2, 256\ns_cbranch_scc1 L_end")
    stamp(0)
    order = [(SK, 4), (SV, 5), (SX, 0), (SW, 1), (SSH, 6), (SH, 7), (SD, 8), (SWS, 11), (SDBG, 10), (SWO, 2), (SQ, 3), (SOUT, 9)]
    for s, slot in order:
        a(f"s_load_dwordx2 s[{s}:{s+1}], s[0:1], {slot*8}")
    sizes = {SX: 2621440, SW: 2457600, SWO: 819200, SQ: 2621440, SK: 2621440, SV: 2621440, SSH: 5120, SH: 2621440, SD: 1280, SOUT: 5242880, SDBG: 256, SWS: WS_SIZE}
    for s, n in sizes.items():
        a(f"s_mov_b32 s{s+2}, {n}\ns_mov_b32 s{s+3}, 0x20000")
    a(f"""
    v_lshrrev_b32 v2, 6, v0
    v_and_b32 v1, 63, v0
    s_and_b32 s{sXC}, s2, 7
    s_lshr_b32 s{sJ}, s2, 3
    v_readfirstlane_b32 s{sWV}, v2
    s_and_b32 s{sT0}, s{sJ}, 3
    s_lshl_b32 s{sR64}, s{sXC}, 2
    s_add_u32 s{sR64}, s{sR64}, s{sT0}
    s_lshr_b32 s{sC80}, s{sJ}, 2
    s_mov_b32 s{sHD}, s{sR64}
    s_mov_b32 s{sQB}, s{sC80}
    s_and_b32 s{sHW}, s{sWV}, 3
    """)
    a(f"""
    v_mul_u32_u24 v2, 26, v1
    v_lshrrev_b32 v2, 8, v2
    v_mul_u32_u24 v3, 10, v2
    v_sub_u32 v3, v1, v3
    v_mul_u32_u24 v2, 1280, v2
    v_lshl_add_u32 v2, v3, 4, v2
    s_mul_i32 s{sT0}, s{sR64}, {64*1280}
    s_mul_i32 s{sT1}, s{sC80}, 160
    s_add_u32 s{sT0}, s{sT0}, s{sT1}
    s_mul_i32 s{sT1}, s{sWV}, {8*1280}
    s_add_u32 s{sT1}, s{sT1}, s{sT0}
    s_add_u32 s{sT2}, s{sT1}, {4*1280}
    s_mul_i32 s{sT3}, s{sWV}, 1296
    s_sub_u32 s{sT0}, s{sT0}, {4*1280}
    v_add_u32 v3, s{sT0}, v2
    """)
    a(f"""
    v_lshrrev_b32 v4, 3, v0
    v_lshlrev_b32 v4, 4, v4
    s_mul_i32 s{sT4}, s{sC80}, 640
    s_mov_b32 exec_hi, 0xff
    s_waitcnt lgkmcnt(0)
    """)
    dma(2, SK, f"s{sT1}", f"s_add_u32 m0, s{sT3}, {L_KB+656}", cfg.nt_in)
    dma(2, SV, f"s{sT1}", f"s_add_u32 m0, s{sT3}, {L_VB}", cfg.nt_in)
    dma(2, SK, f"s{sT2}", f"s_add_u32 m0, s{sT3}, {L_KB+656+640}", cfg.nt_in)
    dma(2, SV, f"s{sT2}", f"s_add_u32 m0, s{sT3}, {L_VB+640}", cfg.nt_in)
    a(f"s_cmp_lg_u32 s{sWV}, 0\ns_cbranch_scc1 L_nohalo")
    dma(3, SK, "0", L_KB, cfg.nt_in)
    a(f"""
    s_cmp_lg_u32 s2, 0
    s_cbranch_scc1 L_nohalo
    s_memrealtime s[{sN}:{sN+1}]
    s_waitcnt lgkmcnt(0)
    s_or_b32 s{sN}, s{sN}, 1
    v_mov_b32 v6, s{sN}
    v_mov_b32 v7, s{sN+1}
    v_mov_b32 v8, 0
    s_mov_b64 exec, 1
    buffer_store_dwordx2 v[6:7], v8, {srd(SDBG)}, 0 offen sc1
    L_nohalo:
    s_mov_b64 exec, -1
    buffer_load_dwordx4 v[128:131], v4, {srd(SSH)}, s{sT4} offen
    """)
    a(f"""
    s_and_b32 s{sT0}, s{sXC}, 1
    s_mul_i32 s{sT0}, s{sT0}, 30
    s_add_u32 s{sT0}, s{sT0}, s{sJ}
    s_lshr_b32 s{sCT}, s{sT0}, 2
    s_and_b32 s{sT0}, s{sT0}, 3
    s_lshr_b32 s{sRB}, s{sXC}, 1
    s_lshl_b32 s{sRB}, s{sRB}, 2
    s_add_u32 s{sRB}, s{sRB}, s{sT0}
    s_cmp_lt_u32 s{sWV}, 4
    s_cbranch_scc1 L_pro_c
    """)
    vX = 16; vW = 20; vD = 21; vNH = 22; vHA = 64; vHB = 80
    a(f"""
    v_lshrrev_b32 v2, 3, v1
    v_lshrrev_b32 v3, 4, v1
    v_xor_b32 v4, v3, v1
    v_and_b32 v4, 7, v4
    v_mul_u32_u24 v2, 1280, v2
    v_lshl_add_u32 v{vX}, v4, 4, v2
    v_xor_b32 v4, 4, v4
    v_lshl_add_u32 v{vX+1}, v4, 4, v2
    v_add_u32 v{vX+1}, {8*1280}, v{vX+1}
    v_add_u32 v{vX+2}, {16*1280}, v{vX}
    v_add_u32 v{vX+3}, {16*1280}, v{vX+1}
    v_lshlrev_b32 v4, 2, v3
    v_xor_b32 v4, v4, v1
    v_and_b32 v4, 15, v4
    v_mul_u32_u24 v3, 3840, v3
    v_lshl_add_u32 v{vW}, v4, 4, v3
    s_mul_i32 s{sA}, s{sRB}, {128*1280}
    s_mul_i32 s{sT0}, s{sHW}, {32*1280}
    s_add_u32 s{sA}, s{sA}, s{sT0}
    s_lshl_b32 s{sB}, s{sCT}, 8
    s_mul_i32 s{sT0}, s{sHW}, {16*3840}
    s_add_u32 s{sB}, s{sB}, s{sT0}
    s_lshl_b32 s{sT5}, s{sHW}, 12
    """)
    def ring_issue(c):
        slot = (c % 4) * 32768
        a(f"s_add_u32 s{sT0}, s{sA}, {c*128}")
        for i in range(4):
            dma(vX + i, SX, f"s{sT0}", f"s_add_u32 m0, s{sT5}, {slot + i*1024}", cfg.nt_xw)
        for i in range(4):
            a(f"s_add_u32 s{sT0}, s{sB}, {(c*64 + i*4)*3840}")
            dma(vW, SW, f"s{sT0}", f"s_add_u32 m0, s{sT5}, {slot + 16384 + i*1024}", cfg.nt_xw)
    a(f"s_cmp_ge_u32 s{sJ}, 30\ns_cbranch_scc1 L_noring")
    for c in range(4): ring_issue(c)
    a("L_noring:")
    a(f"""
    s_mul_i32 s{sT0}, s{sJ}, 3
    s_lshl_b32 s{sT1}, s{sJ}, 1
    s_add_u32 s{sT1}, s{sT1}, 16
    s_cmp_lt_u32 s{sJ}, 16
    s_cselect_b32 s{sT0}, s{sT0}, s{sT1}
    s_cselect_b32 s{sT1}, 3, 2
    s_cmp_lt_u32 s{sHW}, s{sT1}
    s_cselect_b32 s{sCHV}, 1, 0
    s_cselect_b32 s{sT1}, s{sHW}, 0
    s_add_u32 s{sT0}, s{sT0}, s{sT1}
    s_mul_i32 s{sCH}, s{sXC}, 80
    s_add_u32 s{sCH}, s{sCH}, s{sT0}
    s_lshl_b32 s{sT0}, s{sCH}, 12
    v_lshlrev_b32 v2, 4, v1
    v_add_u32 v2, s{sT0}, v2
    s_lshl_b32 s{sT0}, s{sCH}, 1
    v_mov_b32 v4, s{sT0}
    """)
    for i in range(4):
        a(f"buffer_load_dwordx4 v[{vHA+4*i}:{vHA+4*i+3}], v2, {srd(SH)}, 0 offen offset:{1024*i} {cfg.nt_in}")
    for i in range(4):
        a(f"buffer_load_dwordx4 v[{vHB+4*i}:{vHB+4*i+3}], v2, {srd(SH)}, 0 offen offset:{1024*i+4} {cfg.nt_in}")
    a(f"buffer_load_ushort v{vD}, v4, {srd(SD)}, 0 offen")
    a("L_pro_c:")
    a(f"""
    v_and_b32 v2, 31, v1
    v_lshrrev_b32 v3, 5, v1
    v_lshlrev_b32 v3, 2, v3
    v_sub_u32 v2, v2, v3
    v_mov_b32 v3, {BIGNEG:#x}
    """)
    def build_masks(vbase_neg):
        for r in range(16):
            m0 = 8 * (r >> 2) + (r & 3)
            a(f"v_cmp_le_i32 vcc, {m0}, v2\nv_mov_b32 v{vCZ+r}, {vbase_neg}\nv_cndmask_b32 v{vCD+r}, v3, v{vCZ+r}, vcc\nv_cndmask_b32 v{vCF+r}, v{vCZ+r}, v3, vcc")
    build_masks("0")
    a(f"""
    s_cmp_lt_u32 s{sWV}, 4
    s_cbranch_scc1 L_w0
    s_cmp_ge_u32 s{sJ}, 30
    s_cbranch_scc1 L_w1
    s_waitcnt vmcnt(41)
    s_branch L_w2
    L_w1:
    s_waitcnt vmcnt(9)
    s_branch L_w2
    L_w0:
    s_waitcnt vmcnt(0)
    L_w2:
    s_barrier
    """)
    stamp(1)
    vNC = 60
    a(f"s_cmp_ge_u32 s{sWV}, 4\ns_cbranch_scc1 L_b1_nn")
    nonce_issue(vNC)
    a(f"L_b1_nn:\ns_cmp_ge_u32 s{sWV}, 5\ns_cbranch_scc1 L_b1_done")
    kr = 132; vv = 143; ku = 152; vu = 174; tp = 190; acc = 198
    a(f"""
    v_and_b32 v2, 7, v0
    v_lshrrev_b32 v3, 3, v0
    v_mul_u32_u24 v4, 1296, v2
    v_lshl_add_u32 v4, v3, 2, v4
    v_add_u32 v4, {L_KB}, v4
    """)
    for i in range(-3, 8):
        a(f"ds_read_b32 v{kr+3+i}, v4 offset:{(640 if i < 0 else 656) + 160*i}")
    for i in range(8):
        a(f"ds_read_b32 v{vv+i}, v4 offset:{11024 + 160*i}")
    a(f"""
    v_lshlrev_b32 v{tp+0}, 16, v128
    v_lshlrev_b32 v{tp+1}, 16, v130
    v_and_b32 v{tp+2}, 0xffff0000, v128
    v_and_b32 v{tp+3}, 0xffff0000, v130
    v_lshlrev_b32 v{tp+4}, 16, v129
    v_lshlrev_b32 v{tp+5}, 16, v131
    v_and_b32 v{tp+6}, 0xffff0000, v129
    v_and_b32 v{tp+7}, 0xffff0000, v131
    s_mul_i32 s{sT0}, s{sC80}, {80*4096}
    s_lshl_b32 s{sT1}, s{sR64}, 7
    s_sub_u32 s{sT0}, s{sT0}, s{sT1}
    s_add_u32 s{sT0}, s{sT0}, {WS_U + 4080 - 112}
    v_lshlrev_b32 v3, 13, v3
    v_sub_u32 v2, 7, v2
    v_lshl_add_u32 v3, v2, 4, v3
    s_add_u32 s{sT1}, s{sT0}, 4096
    s_waitcnt lgkmcnt(8)
    """)
    for i in range(11):
        a(f"v_lshlrev_b32 v{ku+2*i}, 16, v{kr+i}\nv_and_b32 v{ku+2*i+1}, 0xffff0000, v{kr+i}")
    a("s_waitcnt lgkmcnt(0)")
    for i in range(8):
        a(f"v_lshlrev_b32 v{vu+2*i}, 16, v{vv+i}\nv_and_b32 v{vu+2*i+1}, 0xffff0000, v{vv+i}")
    def pr(b): return f"v[{b}:{b+1}]"
    rs = 132
    for i in range(8):
        a(f"v_pk_mul_f32 {pr(rs+2*i)}, {pr(ku+2*(i+3))}, {pr(tp)}")
    for j in range(1, 4):
        for i in range(8):
            a(f"v_pk_fma_f32 {pr(rs+2*i)}, {pr(ku+2*(i+3-j))}, {pr(tp+2*j)}, {pr(rs+2*i)}")
    for i in range(8):
        a(f"v_pk_mul_f32 {pr(rs+2*i)}, {pr(rs+2*i)}, {pr(vu+2*i)}")
    for ch in range(2):
        for d in range(4):
            a(f"v_cvt_pk_bf16_f32 v{152+4*ch+d}, v{rs+2*(7-2*d)+ch}, v{rs+2*(6-2*d)+ch}")
    a(f"buffer_store_dwordx4 v[152:155], v3, {srd(SWS)}, s{sT0} offen sc1")
    a(f"buffer_store_dwordx4 v[156:159], v3, {srd(SWS)}, s{sT1} offen sc1")
    a("L_b1_done:")
    def publish_u(t):
        a(f"s_mul_i32 s{sT0}, s{sC80}, 5\ns_add_u32 s{sT0}, s{sT0}, s{sWV}\ns_lshl_b32 s{sT0}, s{sT0}, 5\ns_add_u32 s{sT0}, s{sT0}, s{sR64}\ns_mul_i32 s{sT0}, s{sT0}, {FS}\ns_add_u32 s{sT0}, s{sT0}, {WS_FU}")
        publish(sT0, t)
    a(f"s_cmp_ge_u32 s{sWV}, 4\ns_cbranch_scc1 L_H")

    a(f"s_cmp_ge_u32 s{sJ}, 30\ns_cbranch_scc0 L_c_a1")
    a("s_waitcnt vmcnt(0)")
    nonce_take(vNC); publish_u(2)
    a("s_barrier\ns_branch L_c_post\nL_c_a1:")
    FA, FB = 16, 32; AX = 48; AW = 56; ACC = 64
    a(f"""
    s_and_b32 s{sT0}, s{sWV}, 1
    s_lshr_b32 s{sT1}, s{sWV}, 1
    v_and_b32 v2, 31, v1
    v_lshrrev_b32 v3, 5, v1
    v_lshrrev_b32 v4, 1, v2
    v_and_b32 v4, 7, v4
    v_xor_b32 v4, v4, v3
    s_lshl_b32 s{sT2}, s{sT1}, 13
    v_lshlrev_b32 v5, 7, v2
    v_add_u32 v5, s{sT2}, v5
    """)
    for ks in range(4):
        a(f"v_xor_b32 v6, {2*ks}, v4\nv_lshl_add_u32 v{AX+ks}, v6, 4, v5\nv_add_u32 v{AX+4+ks}, 0x10000, v{AX+ks}")
    a(f"""
    v_lshrrev_b32 v4, 2, v1
    v_and_b32 v4, 3, v4
    v_lshl_add_u32 v5, v3, 3, v4
    v_lshlrev_b32 v5, 8, v5
    v_and_b32 v6, 3, v1
    v_lshl_add_u32 v5, v6, 3, v5
    v_and_b32 v6, 16, v1
    v_lshl_add_u32 v5, v6, 1, v5
    v_add_u32 v5, 16384, v5
    s_lshl_b32 s{sT2}, s{sT0}, 1
    """)
    for mt in range(2):
        a(f"s_add_u32 s{sT3}, s{sT2}, {mt}\nv_xor_b32 v6, s{sT3}, v4\nv_lshl_add_u32 v{AW+mt}, v6, 6, v5\nv_add_u32 v{AW+2+mt}, 0x10000, v{AW+mt}")
    def a1_reads(c, ks, F):
        slot = c % 4; hi = slot >> 1; o = (slot & 1) * 32768
        for mt in range(2):
            for t in range(2):
                a(f"ds_read_b64_tr_b16 v[{F+4*mt+2*t}:{F+4*mt+2*t+1}], v{AW+2*hi+mt} offset:{o + (16*ks+4*t)*256}")
        for nt in range(2):
            a(f"ds_read_b128 v[{F+8+4*nt}:{F+8+4*nt+3}], v{AX+4*hi+ks} offset:{o + nt*4096}")
    def a1_mfma(F, first):
        for mt in range(2):
            for nt in range(2):
                d = ACC + 16 * (2 * mt + nt)
                a(f"v_mfma_f32_32x32x16_bf16 v[{d}:{d+15}], v[{F+4*mt}:{F+4*mt+3}], v[{F+8+4*nt}:{F+8+4*nt+3}], " + ("0" if first else f"v[{d}:{d+15}]"))
    for c in range(10):
        if c == 3:
            a("s_waitcnt vmcnt(0)")
            nonce_take(vNC); publish_u(2)
        a("s_barrier")
        a1_reads(c, 0, FA)
        if c > 0: a1_mfma(FB, False)
        a1_reads(c, 1, FB); a("s_waitcnt lgkmcnt(6)"); a1_mfma(FA, c == 0)
        a1_reads(c, 2, FA); a("s_waitcnt lgkmcnt(6)"); a1_mfma(FB, False)
        a1_reads(c, 3, FB); a("s_waitcnt lgkmcnt(6)"); a1_mfma(FA, False)
        a("s_waitcnt lgkmcnt(0)")
    a1_mfma(FB, False)
    stamp(2)
    qs = f2u(20 ** -0.5 * math.log2(math.e))
    a(f"""
    s_and_b32 s{sT0}, s{sWV}, 1
    s_lshr_b32 s{sT1}, s{sWV}, 1
    s_lshl_b32 s{sT2}, s{sCT}, 1
    s_add_u32 s{sT2}, s{sT2}, s{sT0}
    s_lshl_b32 s{sT3}, s{sRB}, 1
    s_add_u32 s{sT3}, s{sT3}, s{sT1}
    s_lshl_b32 s{sA}, s{sT2}, 18
    s_lshl_b32 s{sT4}, s{sT3}, 10
    s_add_u32 s{sA}, s{sA}, s{sT4}
    s_lshl_b32 s{sB}, s{sT2}, 5
    s_add_u32 s{sB}, s{sB}, s{sT3}
    s_mul_i32 s{sB}, s{sB}, {FS}
    s_add_u32 s{sB}, s{sB}, {WS_FG}
    v_and_b32 v2, 31, v1
    v_lshrrev_b32 v3, 5, v1
    v_lshlrev_b32 v2, 4, v2
    v_lshl_add_u32 v2, v3, 15, v2
    s_cmp_lt_u32 s{sCT}, 5
    s_cbranch_scc0 L_noscale
    s_mov_b32 s{sT0}, {qs:#x}
    s_mov_b32 s{sT1}, {qs:#x}
    """)
    for i in range(32):
        a(f"v_pk_mul_f32 {pr(ACC+2*i)}, {pr(ACC+2*i)}, s[{sT0}:{sT1}]")
    a("L_noscale:\ns_nop 7")
    P = 16
    n = 0
    for mt in range(2):
        for i in (0, 2):
            a(f"s_add_u32 s{sT0}, s{sA}, {(4*mt+i)*32768}")
            for nt in range(2):
                d = ACC + 16 * (2 * mt + nt) + 4 * i
                p = P + 4 * (n % 8); n += 1
                for q in range(4):
                    a(f"v_cvt_pk_bf16_f32 v{p+q}, v{d+2*q}, v{d+2*q+1}")
                a(f"v_permlane32_swap_b32 v{p}, v{p+2}\nv_permlane32_swap_b32 v{p+1}, v{p+3}")
                a(f"buffer_store_dwordx4 v[{p}:{p+3}], v2, {srd(SWS)}, s{sT0} offen offset:{nt*512} sc1")
    a("s_waitcnt vmcnt(0)")
    publish(sB, 4)
    a("L_c_post:")
    stamp(3)
    if cfg.stop <= 1: a("s_branch L_fin")
    a(f"""
    v_mov_b32 v4, 0x3f803f80
    v_mov_b32 v5, 0x3f803f80
    v_lshlrev_b32 v2, 3, v1
    v_add_u32 v2, {L_ONES}, v2
    ds_write_b64 v2, v[4:5]
    s_lshr_b32 s{sT0}, s{sHD}, 1
    s_mul_i32 s{sT0}, s{sT0}, 5
    s_and_b32 s{sT1}, s{sHD}, 1
    s_lshl_b32 s{sT2}, s{sT1}, 1
    s_add_u32 s{sT2}, s{sT2}, s{sT0}
    s_add_u32 s{sT3}, s{sT2}, 2
    s_lshr_b32 s{sT2}, s{sT2}, 3
    s_lshr_b32 s{sT3}, s{sT3}, 3
    v_lshrrev_b32 v2, 1, v1
    v_min_u32 v2, 4, v2
    v_cmp_le_u32 vcc, 3, v2
    v_subrev_u32 v3, 2, v2
    v_cndmask_b32 v2, v2, v3, vcc
    s_cmp_eq_u32 s{sQB}, 0
    s_cselect_b32 s{sT4}, 0, 4
    v_mov_b32 v3, s{sT4}
    v_cndmask_b32 v3, 0, v3, vcc
    v_mul_u32_u24 v2, 10, v2
    v_and_b32 v4, 1, v1
    v_cmp_eq_u32 vcc, 1, v4
    v_mov_b32 v4, s{sT2}
    v_mov_b32 v5, s{sT3}
    v_cndmask_b32 v4, v4, v5, vcc
    v_add_u32 v2, v2, v4
    v_lshlrev_b32 v2, 5, v2
    s_lshl_b32 s{sT4}, s{sQB}, 2
    s_add_u32 s{sT4}, s{sT4}, s{sWV}
    v_add_u32 v2, s{sT4}, v2
    v_sub_u32 v2, v2, v3
    v_mul_u32_u24 v2, {FS}, v2
    v_add_u32 v2, {WS_FG}, v2
    s_mul_i32 s{sT1}, s{sT1}, 3
    s_add_u32 s{sA}, s{sT0}, s{sT1}
    s_add_u32 s{sB}, s{sT0}, 2
    s_lshl_b32 s{sA}, s{sA}, 15
    s_lshl_b32 s{sB}, s{sB}, 15
    s_lshl_b32 s{sT4}, s{sT4}, 10
    s_add_u32 s{sA}, s{sA}, s{sT4}
    s_add_u32 s{sB}, s{sB}, s{sT4}
    v_lshlrev_b32 v6, 4, v1
    v_bfrev_b32 v7, 1
    s_cmp_eq_u32 s{sQB}, 0
    s_cselect_b64 vcc, -1, 0
    v_cndmask_b32 v7, v6, v7, vcc
    s_lshl_b32 s{sT5}, s{sWV}, 10
    """)
    poll(2, 8)
    stamp(4)
    for slot in range(3):
        base = (sA, 32768 * slot) if slot < 2 else (sB, 0)
        for sec, lds, lstr in ((1, L_K, 8192), (2, L_V, VSTR), (0, L_Q, 4096)):
            off = base[1] + sec * 80 * 32768
            if sec:
                a(f"s_add_u32 s{sT0}, s{base[0]}, {off}")
                dma(6, SWS, f"s{sT0}", f"s_add_u32 m0, s{sT5}, {lds + slot*lstr + 4096}", "sc1")
                a(f"s_add_u32 s{sT0}, s{base[0]}, {off - 4096}")
                dma(7, SWS, f"s{sT0}", f"s_add_u32 m0, s{sT5}, {lds + slot*lstr}", "sc1")
            else:
                a(f"s_add_u32 s{sT0}, s{base[0]}, {off}")
                dma(6, SWS, f"s{sT0}", f"s_add_u32 m0, s{sT5}, {lds + slot*lstr}", "sc1")
    a("s_waitcnt vmcnt(0) lgkmcnt(0)\ns_branch L_join_a")

    a("L_H:")
    def hcopies():
        a(f"""
        s_mul_i32 s{sT0}, s{sHW}, {HSTR}
        s_add_u32 s{sT0}, s{sT0}, {L_H}
        v_lshlrev_b32 v2, 4, v1
        v_add_u32 v2, s{sT0}, v2
        v_readfirstlane_b32 s{sT1}, v{vHA}
        v_mov_b32 v4, 0
        v_mov_b32 v5, 0
        v_mov_b32 v6, 0
        v_mov_b32 v7, 0
        v_mov_b32 v8, 0
        v_mov_b32 v9, 0
        v_mov_b32 v10, 0
        s_lshl_b32 s{sT1}, s{sT1}, 16
        v_cmp_eq_u32 vcc, 1, v1
        v_mov_b32 v11, s{sT1}
        v_cndmask_b32 v11, 0, v11, vcc
        """)
        for i in range(16):
            a(f"v_alignbit_b32 v{vHB+i}, v{vHB+i}, v{vHA+i}, 16")
        L = a.lab("L_hskip")
        a(f"s_cmp_eq_u32 s{sCHV}, 0\ns_cbranch_scc1 {L}")
        for i in range(4):
            a(f"ds_write_b128 v2, v[{vHA+4*i}:{vHA+4*i+3}] offset:{32+1024*i}")
            a(f"ds_write_b128 v2, v[{vHB+4*i}:{vHB+4*i+3}] offset:{HODD+32+1024*i}")
        a(f"s_mov_b64 exec, 3\nds_write_b128 v2, v[4:7]\nds_write_b128 v2, v[8:11] offset:{HODD}\ns_mov_b64 exec, -1\n{L}:")
    def h_pub_u():
        L = a.lab("L_hpu")
        nonce_take(vNH)
        a(f"s_cmp_lg_u32 s{sWV}, 4\ns_cbranch_scc1 {L}")
        publish_u(2)
        a(f"{L}:")
    a(f"s_cmp_ge_u32 s{sJ}, 30\ns_cbranch_scc0 L_h_a1")
    nonce_issue(vNH)
    a("s_waitcnt vmcnt(0)")
    h_pub_u()
    a("s_barrier")
    hcopies()
    a("s_branch L_h_post\nL_h_a1:")
    a("s_waitcnt vmcnt(33)\ns_barrier")
    nonce_issue(vNH)
    waits = {1: 16 + 9 + 1, 2: 8 + 9 + 1 + 8, 3: 9 + 1 + 16, 4: 16, 5: 16, 6: 16, 7: 16, 8: 8, 9: 0}
    for c in range(1, 10):
        a(f"s_waitcnt vmcnt({waits[c]})\ns_barrier")
        if c + 3 <= 9: ring_issue(c + 3)
        if c == 4:
            h_pub_u()
            hcopies()
    a("L_h_post:")
    stamp(2)
    if cfg.stop <= 1: a("s_branch L_fin")
    a(f"s_cmp_eq_u32 s{sCHV}, 0\ns_cbranch_scc1 L_join_a")
    a(f"""
    s_mul_i32 s{sT0}, s{sXC}, 80
    s_sub_u32 s{sT0}, s{sCH}, s{sT0}
    s_lshr_b32 s{sT0}, s{sT0}, 4
    s_mul_i32 s{sT1}, s{sXC}, 5
    s_add_u32 s{sT0}, s{sT0}, s{sT1}
    s_lshl_b32 s{sT0}, s{sT0}, 5
    v_and_b32 v2, 31, v1
    v_add_u32 v2, s{sT0}, v2
    v_mul_u32_u24 v2, {FS}, v2
    v_add_u32 v2, {WS_FU}, v2
    s_mul_i32 s{sT5}, s{sHW}, {USTR}
    v_lshlrev_b32 v6, 4, v1
    s_lshl_b32 s{sA}, s{sCH}, 12
    s_add_u32 s{sA}, s{sA}, {WS_U}
    """)
    poll(2, 8)
    for i in range(4):
        a(f"s_add_u32 s{sT0}, s{sA}, {1024*i}")
        dma(6, SWS, f"s{sT0}", f"s_add_u32 m0, s{sT5}, {L_U + 1024*i}", "sc1")
    AA = 24; AB = 28; BACC = 96; BF = 128; AF = 192
    a(f"""
    v_lshlrev_b32 v2, 3, v1
    v_add_u32 v2, s{sT5}, v2
    v_mov_b32 v4, 0
    v_mov_b32 v5, 0
    ds_write_b64 v2, v[4:5] offset:{L_U + 4096}
    v_and_b32 v2, 15, v1
    v_lshrrev_b32 v3, 4, v1
    v_add_u32 v4, 1, v2
    v_lshrrev_b32 v4, 1, v4
    v_lshl_add_u32 v4, v3, 2, v4
    v_lshlrev_b32 v4, 2, v4
    v_and_b32 v5, 1, v2
    v_cmp_eq_u32 vcc, 0, v5
    v_mov_b32 v5, {HODD}
    v_cndmask_b32 v5, 0, v5, vcc
    s_mul_i32 s{sT0}, s{sHW}, {HSTR}
    s_add_u32 s{sT0}, s{sT0}, {L_H}
    v_add3_u32 v{AA}, v4, v5, s{sT0}
    v_add_u32 v{AA+1}, 1024, v{AA}
    v_add_u32 v{AA+2}, 2048, v{AA}
    v_add_u32 v{AA+3}, 3072, v{AA}
    v_sub_u32 v4, 15, v2
    v_lshlrev_b32 v4, 5, v4
    v_lshl_add_u32 v4, v3, 4, v4
    v_add_u32 v{AB}, s{sT5}, v4
    s_waitcnt vmcnt(0) lgkmcnt(0)
    """)
    stamp(3)
    def b_read(r, nn, st):
        w = 8 * nn - r
        d = BF + 32 * st + 4 * nn
        a(f"ds_read_b128 v[{d}:{d+3}], v{AB} offset:{L_U + 2*(1792 - 32*w)}")
    def a_read(kap, slot):
        d = AF + 4 * slot; o = 16 * (kap % 16)
        a(f"ds_read2_b32 v[{d}:{d+1}], v{AA + kap//16} offset0:{o} offset1:{o+1}")
        a(f"ds_read2_b32 v[{d+2}:{d+3}], v{AA + kap//16} offset0:{o+2} offset1:{o+3}")
    groups = [(r, mu) for r in range(8) for mu in range(8)]
    q = []
    def issue(tag, n): q.extend([tag] * n)
    def wait_for(tags):
        last = max((i for i, t in enumerate(q) if t in tags), default=-1)
        if last >= 0:
            rem = len(q) - 1 - last
            a(f"s_waitcnt lgkmcnt({min(rem,15)})")
            del q[:last + 1]
    for nn in range(8):
        b_read(0, nn, 0); issue(("B", 0, nn), 1)
    for gi in range(3):
        r, mu = groups[gi]; a_read(8 * mu + r, gi % 4); issue(("A", gi), 2)
    for gi, (r, mu) in enumerate(groups):
        if gi + 3 < 64:
            r2, mu2 = groups[gi + 3]; a_read(8 * mu2 + r2, (gi + 3) % 4); issue(("A", gi + 3), 2)
        if r < 7 and mu < 4:
            for nn in (2 * mu, 2 * mu + 1):
                b_read(r + 1, nn, (r + 1) & 1); issue(("B", r + 1, nn), 1)
        wait_for({("A", gi)} | {("B", r, nn) for nn in range(8)})
        for i in range(mu, 8):
            d = BACC + 4 * i; f = BF + 32 * (r & 1) + 4 * (i - mu); s = AF + 4 * (gi % 4)
            a(f"v_mfma_f32_16x16x32_bf16 v[{d}:{d+3}], v[{s}:{s+3}], v[{f}:{f+3}], " + ("0" if gi == 0 else f"v[{d}:{d+3}]"))
    stamp(4)
    a(f"""
    v_and_b32 v2, 15, v1
    v_lshrrev_b32 v3, 4, v1
    v_lshlrev_b32 v4, 5, v2
    v_lshl_add_u32 v4, v3, 3, v4
    v_sub_u32 v5, {2*(2044-1792)}, v4
    v_add_u32 v5, s{sT5}, v5
    """)
    for i in range(8):
        a(f"ds_read_b64 v[{128+2*i}:{129+2*i}], v5 offset:{L_U + 512*(7-i)}")
    a(f"""
    s_mul_i32 s{sT0}, s{sHW}, {HSTR}
    s_add_u32 s{sT0}, s{sT0}, {L_H}
    v_add_u32 v4, s{sT0}, v4
    v_add_u32 v7, s{sT0}, v6
    v_lshlrev_b32 v{vD}, 16, v{vD}
    s_lshl_b32 s{sA}, s{sCH}, 12
    s_add_u32 s{sA}, s{sA}, {WS_Z}
    s_waitcnt lgkmcnt(0)
    """)
    for i in range(8):
        u = 128 + 2 * i; t = 144 + 4 * (i % 2); d = BACC + 4 * i; p = 152 + 2 * i
        a(f"""
        v_and_b32 v{t}, 0xffff0000, v{u+1}
        v_lshlrev_b32 v{t+1}, 16, v{u+1}
        v_and_b32 v{t+2}, 0xffff0000, v{u}
        v_lshlrev_b32 v{t+3}, 16, v{u}
        v_fmac_f32 v{d}, v{vD}, v{t}
        v_fmac_f32 v{d+1}, v{vD}, v{t+1}
        v_fmac_f32 v{d+2}, v{vD}, v{t+2}
        v_fmac_f32 v{d+3}, v{vD}, v{t+3}
        v_cvt_pk_bf16_f32 v{p}, v{d}, v{d+1}
        v_cvt_pk_bf16_f32 v{p+1}, v{d+2}, v{d+3}
        ds_write_b64 v4, v[{p}:{p+1}] offset:{512*i}
        """)
    a("s_waitcnt lgkmcnt(0)")
    for i in range(4):
        a(f"ds_read_b128 v[{168+4*i}:{171+4*i}], v7 offset:{1024*i}")
    for i in range(4):
        a(f"s_waitcnt lgkmcnt({3-i})\nbuffer_store_dwordx4 v[{168+4*i}:{171+4*i}], v6, {srd(SWS)}, s{sA} offen offset:{1024*i} sc1")

    a("L_join_a:")
    Q0, Q1 = 16, 20; KF = 24; VF = 40; AK0, AK1, AV, AVD, AV0 = 56, 57, 58, 59, 60; S = 64; PP = 96; O = 112
    WOV = 128; QT = 40
    a(f"""
    s_lshl_b32 s{sT0}, s{sWV}, 9
    v_and_b32 v2, 31, v1
    v_lshrrev_b32 v3, 5, v1
    v_lshl_add_u32 v4, v2, 4, s{sT0}
    v_lshl_add_u32 v5, v3, 12, v4
    v_add_u32 v5, {L_Q}, v5
    v_add_u32 v8, {L_Q + 8192}, v4
    v_lshl_add_u32 v{AK0}, v3, 13, v4
    v_add_u32 v{AK0}, {L_K}, v{AK0}
    v_add_u32 v{AK1}, {L_K + 16384}, v4
    v_lshrrev_b32 v4, 2, v1
    v_and_b32 v4, 3, v4
    v_lshl_add_u32 v4, v3, 2, v4
    v_lshlrev_b32 v4, 4, v4
    v_and_b32 v9, 3, v1
    v_lshrrev_b32 v10, 1, v9
    v_mul_u32_u24 v10, {VSTR}, v10
    v_and_b32 v11, 1, v1
    v_lshl_add_u32 v10, v11, 3, v10
    s_and_b32 s{sT1}, s{sHD}, 1
    s_lshl_b32 s{sT2}, s{sT1}, 3
    s_add_u32 s{sT2}, s{sT2}, {2*VSTR}
    v_mov_b32 v11, s{sT2}
    v_and_b32 v12, 16, v1
    v_cmp_ne_u32 vcc, 0, v12
    v_cndmask_b32 v10, v10, v11, vcc
    s_add_u32 s{sT0}, s{sT0}, {L_V + 4096}
    v_add3_u32 v10, v10, v4, s{sT0}
    v_add_u32 v11, {L_ONES}, v4
    v_and_b32 v12, 19, v1
    v_cmp_lt_u32 vcc, 16, v12
    v_cndmask_b32 v{AV0}, v10, v11, vcc
    v_mov_b32 v10, 512
    v_cndmask_b32 v{AVD}, v10, 0, vcc
    s_add_u32 s{sT0}, s{sWV}, 1
    s_cmp_eq_u32 s{sQB}, 0
    s_cselect_b32 s{sNV}, s{sT0}, 99
    s_mov_b32 s{sFB}, 0
    """)
    for i in range(5):
        a(f"""
        v_add_u32 v10, {64*i}, v1
        v_mul_u32_u24 v11, 205, v10
        v_lshrrev_b32 v11, 11, v11
        v_mul_u32_u24 v12, 10, v11
        v_sub_u32 v10, v10, v12
        v_mul_u32_u24 v11, 1280, v11
        v_lshl_add_u32 v{WOV+i}, v10, 4, v11
        """)
    a("s_barrier")
    stamp(5)
    if cfg.stop <= 2: a("s_branch L_fin")
    a(f"""
    ds_read_b128 v[{Q0}:{Q0+3}], v5
    ds_read_b128 v[{Q1}:{Q1+3}], v8
    s_cmp_eq_u32 s{sT1}, 0
    s_cselect_b32 s{sT2}, -1, 0
    s_cselect_b32 s{sT3}, 0, -1
    v_cmp_eq_u32 vcc, 0, v3
    v_mov_b32 v10, s{sT2}
    v_mov_b32 v11, s{sT3}
    v_cndmask_b32 v10, 0, v10, vcc
    v_cndmask_b32 v11, 0, v11, vcc
    s_waitcnt lgkmcnt(0)
    s_barrier
    v_and_b32 v{Q1}, v10, v{Q1}
    v_and_b32 v{Q1+1}, v10, v{Q1+1}
    v_and_b32 v{Q1+2}, v11, v{Q1+2}
    v_and_b32 v{Q1+3}, v11, v{Q1+3}
    """)
    def wo_setup(k):
        a(f"""
        s_add_u32 s{sT0}, s{sWV}, {8*k}
        s_mul_i32 s{sA}, s{sT0}, {32*1280}
        s_mul_i32 s{sT2}, s{sC80}, 160
        s_add_u32 s{sA}, s{sA}, s{sT2}
        s_mul_i32 s{sB}, s{sT0}, 5120
        s_cmp_ge_u32 s{sT0}, 15
        s_cselect_b32 s{sT2}, {L_WO2 - 15*5120}, 0
        s_add_u32 s{sB}, s{sB}, s{sT2}
        """)
    def wo_dma(i):
        dma(WOV + i, SWO, f"s{sA}", f"s_add_u32 m0, s{sB}, {1024*i}", cfg.nt_xw)
    def k_read(b):
        f = KF + 8 * (b & 1); o = (8 - b) * 512
        a(f"ds_read_b128 v[{f}:{f+3}], v{AK0} offset:{o}\nds_read_b128 v[{f+4}:{f+7}], v{AK1} offset:{o}")
    def v_read(b):
        f = VF + 8 * (b & 1)
        for s in range(2):
            for t in range(2):
                a(f"ds_read_b64_tr_b16 v[{f+4*s+2*t}:{f+4*s+2*t+1}], v{AV} offset:{(16*s+8*t)*16}")
        a(f"v_sub_u32 v{AV}, v{AV}, v{AVD}")
    def hook(b):
        L = a.lab("L_hook")
        a(f"s_cmp_lg_u32 s{sNV}, {b}\ns_cbranch_scc1 {L}\ns_nop 7")
        for r in range(16): a(f"v_mov_b32 v{vCZ+r}, {BIGNEG:#x}\nv_mov_b32 v{vCF+r}, {BIGNEG:#x}")
        a(f"s_nop 1\n{L}:")
    def qk(b):
        f = KF + 8 * (b & 1); d = S + 16 * (b & 1)
        c = vCD if b == 0 else (vCF if b == 8 else vCZ)
        a(f"v_mfma_f32_32x32x16_bf16 v[{d}:{d+15}], v[{f}:{f+3}], v[{Q0}:{Q0+3}], v[{c}:{c+15}]")
        a(f"v_mfma_f32_32x32x16_bf16 v[{d}:{d+15}], v[{f+4}:{f+7}], v[{Q1}:{Q1+3}], v[{d}:{d+15}]")
    a("L_a2_start:")
    a(f"v_mov_b32 v{AV}, v{AV0}")
    k_read(0); k_read(1); v_read(0)
    a("s_waitcnt lgkmcnt(6)")
    qk(0)
    for b in range(9):
        d = S + 16 * (b & 1); p = PP + 8 * (b & 1); f = VF + 8 * (b & 1)
        if b < 8:
            hook(b + 1)
            a("s_waitcnt lgkmcnt(4)")
            qk(b + 1)
        if b < 7: k_read(b + 2)
        if b < 8: v_read(b + 1)
        L = a.lab("L_side")
        a(f"s_cmp_lg_u32 s{sFB}, 0\ns_cbranch_scc1 {L}")
        if b == 0: wo_setup(0); wo_dma(0); wo_dma(1); wo_dma(2)
        if b == 1: wo_dma(3); wo_dma(4)
        if b == 2: wo_setup(1); wo_dma(0); wo_dma(1); wo_dma(2)
        if b == 3: wo_dma(3); wo_dma(4)
        if b == 4:
            L2 = a.lab("L_sideh")
            a(f"s_cmp_ge_u32 s{sWV}, 4\ns_cbranch_scc1 {L2}")
            wo_setup(2)
            for i in range(5): wo_dma(i)
            a(f"s_branch {L}\n{L2}:")
            a(f"s_cmp_eq_u32 s{sCHV}, 0\ns_cbranch_scc1 {L}\ns_waitcnt vmcnt(10)")
            a(f"s_lshl_b32 s{sT0}, s{sCH}, 3\ns_add_u32 s{sT0}, s{sT0}, {WS_FZ}")
            publish(sT0, 4)
        a(f"{L}:")
        for s in range(2):
            for i in range(8): a(f"v_exp_f32 v{d+8*s+i}, v{d+8*s+i}")
            for i in range(4): a(f"v_cvt_pk_bf16_f32 v{p+4*s+i}, v{d+8*s+2*i}, v{d+8*s+2*i+1}")
            if s == 0:
                n_after = (2 if b < 7 else 0) + (4 if b < 8 else 0)
                a(f"s_waitcnt lgkmcnt({n_after})")
            a(f"v_mfma_f32_32x32x16_bf16 v[{O}:{O+15}], v[{f+4*s}:{f+4*s+3}], v[{p+4*s}:{p+4*s+3}], " + ("0" if (b == 0 and s == 0) else f"v[{O}:{O+15}]"))
    lo = f2u(2.0 ** -24); hi = f2u(2.0 ** 40); fin = f2u(3.0e38)
    a(f"""
    v_rcp_f32 v2, v{O+12}
    v_max3_f32 v4, abs(v{O}), abs(v{O+1}), abs(v{O+2})
    v_max3_f32 v5, abs(v{O+3}), abs(v{O+4}), abs(v{O+5})
    v_max3_f32 v4, v4, abs(v{O+6}), abs(v{O+7})
    v_max3_f32 v5, v5, abs(v{O+8}), abs(v{O+9})
    v_max3_f32 v4, v4, abs(v{O+10}), abs(v{O+11})
    v_max_f32 v4, v4, v5
    v_cmp_nle_f32 vcc, {lo:#x}, v{O+12}
    s_mov_b64 s[{sEX}:{sEX+1}], vcc
    v_cmp_nge_f32 vcc, {hi:#x}, v{O+12}
    s_or_b64 s[{sEX}:{sEX+1}], s[{sEX}:{sEX+1}], vcc
    v_cmp_nge_f32 vcc, {fin:#x}, v4
    s_or_b64 vcc, s[{sEX}:{sEX+1}], vcc
    """)
    if cfg.force_fb: a("s_mov_b64 vcc, -1")
    a(f"""
    s_cbranch_vccz L_a2_ok
    s_cmp_lg_u32 s{sFB}, 0
    s_cbranch_scc1 L_a2_ok
    """)
    a(f"""
    s_mov_b32 s{sFB}, 1
    v_and_b32 v2, 31, v1
    v_lshrrev_b32 v3, 5, v1
    v_lshlrev_b32 v3, 2, v3
    v_sub_u32 v2, v2, v3
    v_mov_b32 v3, {BIGNEG:#x}
    """)
    build_masks("0")
    a(f"v_mov_b32 v4, {BIGNEG:#x}")
    for b in range(9):
        if b > 0: hook(b)
        k_read(b); a("s_waitcnt lgkmcnt(0)"); qk(b)
        d = S + 16 * (b & 1)
        for i in range(8): a(f"v_max3_f32 v4, v4, v{d+2*i}, v{d+2*i+1}")
    a(f"""
    v_mov_b32 v5, v4
    v_permlane32_swap_b32 v4, v5
    v_max_f32 v4, v4, v5
    v_sub_f32 v4, 0, v4
    """)
    build_masks("v4")
    a("s_nop 1\ns_branch L_a2_start\nL_a2_ok:")
    for i in range(12): a(f"v_mul_f32 v{O+i}, v{O+i}, v2")
    for i in range(6): a(f"v_cvt_pk_bf16_f32 v{24+i}, v{O+2*i}, v{O+2*i+1}")
    a(f"""
    s_lshl_b32 s{sT0}, s{sQB}, 3
    s_add_u32 s{sT0}, s{sT0}, s{sWV}
    s_lshl_b32 s{sT1}, s{sHD}, 16
    s_lshl_b32 s{sT2}, s{sT0}, 9
    s_add_u32 s{sT1}, s{sT1}, s{sT2}
    s_add_u32 s{sT1}, s{sT1}, {WS_O}
    s_lshl_b32 s{sT2}, s{sHD}, 14
    s_lshl_b32 s{sT3}, s{sT0}, 8
    s_add_u32 s{sT2}, s{sT2}, s{sT3}
    s_add_u32 s{sT2}, s{sT2}, {WS_O8}
    s_lshl_b32 s{sA}, s{sT0}, 5
    s_add_u32 s{sA}, s{sA}, s{sHD}
    s_mul_i32 s{sA}, s{sA}, {FS}
    s_add_u32 s{sA}, s{sA}, {WS_FO}
    v_and_b32 v2, 31, v1
    v_lshrrev_b32 v3, 5, v1
    v_lshlrev_b32 v4, 4, v2
    v_lshl_add_u32 v4, v3, 15, v4
    v_lshlrev_b32 v5, 3, v2
    buffer_store_dwordx4 v[24:27], v4, {srd(SWS)}, s{sT1} offen sc1
    s_mov_b32 exec_hi, 0
    buffer_store_dwordx2 v[28:29], v5, {srd(SWS)}, s{sT2} offen sc1
    s_mov_b32 exec_hi, -1
    """)
    stamp(6)
    WA, WA2, WA3, WB, WB3, OA, OB = 52, 53, 54, 55, 56, 57, 58
    RO = 59
    a(f"""
    v_lshrrev_b32 v2, 4, v1
    v_lshrrev_b32 v3, 2, v1
    v_and_b32 v3, 3, v3
    v_and_b32 v4, 3, v1
    s_cmp_ge_u32 s{sWV}, 4
    s_cselect_b32 s{sT0}, 96, 0
    v_lshl_add_u32 v4, v4, 3, s{sT0}
    v_lshrrev_b32 v5, 1, v2
    v_mul_u32_u24 v5, 24, v5
    v_and_b32 v6, 1, v2
    v_lshl_add_u32 v5, v6, 2, v5
    v_add_u32 v5, v5, v3
    v_mul_u32_u24 v5, 160, v5
    v_add_u32 v{WA}, v5, v4
    v_add_u32 v{WA2}, {6*6400}, v{WA}
    v_add_u32 v{WA3}, {L_WO2}, v{WA}
    v_mul_u32_u24 v5, 40, v2
    v_add3_u32 v5, v5, v3, 16
    v_mul_u32_u24 v5, 160, v5
    v_add_u32 v{WB}, v5, v4
    v_add_u32 v{WB3}, {L_WO2}, v{WB}
    v_and_b32 v5, 15, v1
    s_lshl_b32 s{sT0}, s{sHW}, 4
    v_add_u32 v5, s{sT0}, v5
    v_lshlrev_b32 v6, 10, v2
    v_lshl_add_u32 v{OA}, v5, 4, v6
    v_lshl_add_u32 v{OB}, v5, 3, v6
    v_add_u32 v{OB}, {L_O8}, v{OB}
    s_waitcnt vmcnt(2)
    s_barrier
    """)
    def wo_frag(step, ct, d):
        for t in range(2):
            if step < 6: r, o = WA, (40 * step + 8 * t) * 160
            elif step < 12: r, o = WA2, (40 * (step - 6) + 8 * t) * 160
            elif step < 16: r, o = WA3, (40 * (step - 12) + 8 * t) * 160
            elif step < 19: r, o = WB, (160 * (step - 16) + 4 * t) * 160
            else: r, o = WB3, 4 * t * 160
            a(f"ds_read_b64_tr_b16 v[{d+2*t}:{d+2*t+1}], v{r} offset:{o + 32*ct}")
    def o_frag(step, d):
        if step < 16:
            a(f"ds_read_b128 v[{d}:{d+3}], v{OA} offset:{L_O16 + 4096*step}"); return 1
        for t in range(2):
            a(f"ds_read_b64 v[{d+2*t}:{d+2*t+1}], v{OB} offset:{4096*(step-16) + 512*t}")
        return 2
    def rounds():
        for k in range(3):
            a(f"""
            s_lshl_b32 s{sT0}, s{sHW}, 6
            s_add_u32 s{sT0}, s{sT0}, {256*k}
            v_add_u32 v2, s{sT0}, v1
            v_mul_u32_u24 v3, 205, v2
            v_lshrrev_b32 v3, 11, v3
            v_mul_u32_u24 v4, 10, v3
            v_sub_u32 v4, v2, v4
            v_mul_u32_u24 v5, 2560, v3
            v_lshl_add_u32 v{RO+k}, v4, 4, v5
            """)
            yield k
    a(f"s_cmp_ge_u32 s{sWV}, 4\ns_cbranch_scc1 L_g2_h")
    csteps = list(range(12)) + [16, 17, 18, 19]
    cfr = {}
    for n, st in enumerate(csteps):
        for ct in range(3):
            cfr[(st, ct)] = 64 + 4 * (3 * n + ct)
            wo_frag(st, ct, cfr[(st, ct)])
        if n == 7:
            a("s_waitcnt vmcnt(0)"); publish(sA, 4)
    for k in rounds(): pass
    a(f"""
    s_lshl_b32 s{sT0}, s{sR64}, 6
    v_add_u32 v8, s{sT0}, v1
    v_mul_u32_u24 v8, {FS}, v8
    v_add_u32 v8, {WS_FO}, v8
    v_lshlrev_b32 v6, 4, v1
    v_and_b32 v7, 31, v1
    v_lshrrev_b32 v9, 5, v1
    v_lshlrev_b32 v7, 4, v7
    v_lshl_add_u32 v7, v9, 14, v7
    s_lshl_b32 s{sA}, s{sWV}, 19
    s_lshl_b32 s{sT0}, s{sR64}, 10
    s_add_u32 s{sA}, s{sA}, s{sT0}
    s_lshl_b32 s{sB}, s{sWV}, 17
    s_lshl_b32 s{sT0}, s{sR64}, 9
    s_add_u32 s{sB}, s{sB}, s{sT0}
    s_lshl_b32 s{sT4}, s{sWV}, 14
    s_lshl_b32 s{sT5}, s{sWV}, 12
    s_waitcnt lgkmcnt(0)
    s_barrier
    """)
    poll(8, 10)
    stamp(7)
    for i in range(16):
        a(f"s_add_u32 s{sT0}, s{sA}, {WS_O + 32768*i}")
        dma(6, SWS, f"s{sT0}", f"s_add_u32 m0, s{sT4}, {L_O16 + 1024*i}", "sc1")
    for i in range(4):
        a(f"s_add_u32 s{sT0}, s{sB}, {WS_O8 + 32768*i}")
        dma(7, SWS, f"s{sT0}", f"s_add_u32 m0, s{sT5}, {L_O8 + 1024*i}", "sc1")
    a("s_waitcnt vmcnt(0)\ns_barrier")
    def a3_loop(nct, fr, ct0):
        ACC3 = 16; OF = 28; LF = 40
        q.clear()
        order = list(range(20))
        def pre(st):
            n = o_frag(st, OF + 4 * (st % 3)); issue(("O", st), n)
        pre(0); pre(1)
        for st in order:
            if st + 2 < 20: pre(st + 2)
            late = [(ct, LF + 4 * ct) for ct in range(nct) if (st, ct) not in fr]
            for ct, d in late:
                wo_frag(st, ct, d); issue(("W", st), 2)
            wait_for({("O", st), ("W", st)})
            for ct in range(nct):
                w = fr.get((st, ct), LF + 4 * ct); d = ACC3 + 4 * ct; o = OF + 4 * (st % 3)
                a(f"v_mfma_f32_16x16x32_bf16 v[{d}:{d+3}], v[{w}:{w+3}], v[{o}:{o+3}], " + ("0" if st == 0 else f"v[{d}:{d+3}]"))
        a(f"""
        v_and_b32 v2, 15, v1
        s_lshl_b32 s{sT0}, s{sHW}, 4
        v_add_u32 v2, s{sT0}, v2
        v_mul_u32_u24 v2, 160, v2
        v_lshrrev_b32 v3, 4, v1
        v_lshl_add_u32 v2, v3, 3, v2
        v_add_u32 v2, {L_ST + 32*ct0}, v2
        """)
        for ct in range(nct):
            d = ACC3 + 4 * ct
            a(f"v_cvt_pk_bf16_f32 v{28+2*ct}, v{d}, v{d+1}\nv_cvt_pk_bf16_f32 v{29+2*ct}, v{d+2}, v{d+3}\nds_write_b64 v2, v[{28+2*ct}:{29+2*ct}] offset:{32*ct}")
        a("s_waitcnt lgkmcnt(0)\ns_barrier")
    a3_loop(3, cfr, 0)
    a(f"""
    s_lshl_b32 s{sT0}, s{sHW}, 10
    s_add_u32 s{sT0}, s{sT0}, {L_ST}
    v_add_u32 v2, s{sT0}, v6
    ds_read_b128 v[16:19], v2
    ds_read_b128 v[20:23], v2 offset:4096
    ds_read_b128 v[24:27], v2 offset:8192
    s_mul_i32 s{sT0}, s{sR64}, {64*2560}
    s_mul_i32 s{sT1}, s{sC80}, 160
    s_add_u32 s{sT0}, s{sT0}, s{sT1}
    s_waitcnt lgkmcnt(2)
    buffer_store_dwordx4 v[16:19], v{RO}, {srd(SOUT)}, s{sT0} offen
    s_waitcnt lgkmcnt(1)
    buffer_store_dwordx4 v[20:23], v{RO+1}, {srd(SOUT)}, s{sT0} offen
    s_cmp_ge_u32 s{sHW}, 2
    s_cbranch_scc1 L_fin
    s_waitcnt lgkmcnt(0)
    buffer_store_dwordx4 v[24:27], v{RO+2}, {srd(SOUT)}, s{sT0} offen
    s_branch L_fin
    """)
    a("L_g2_h:")
    hfr = {}
    QV = 64; ZA = 76; ZV = 80
    a(f"s_mul_i32 s{sT2}, s{sR64}, {64*1280}\ns_mul_i32 s{sT1}, s{sC80}, 160\ns_add_u32 s{sT2}, s{sT2}, s{sT1}")
    for k in rounds():
        a(f"""
        v_mul_u32_u24 v5, 1280, v3
        v_lshl_add_u32 v5, v4, 4, v5
        v_mul_u32_u24 v4, {ZSTR}, v4
        v_lshl_add_u32 v4, v3, 1, v4
        v_add_u32 v{ZA+k}, {L_Z}, v4
        v_add_u32 v5, s{sT2}, v5
        buffer_load_dwordx4 v[{QV+4*k}:{QV+4*k+3}], v5, {srd(SQ)}, 0 offen {cfg.nt_in}
        """)
    for st in range(20):
        for ct in range(2):
            hfr[(st, ct)] = 96 + 4 * (2 * st + ct)
            wo_frag(st, ct, hfr[(st, ct)])
        if st == 11:
            a("s_waitcnt vmcnt(3)"); publish(sA, 4)
    a(f"""
    s_mul_i32 s{sT0}, s{sC80}, 640
    s_add_u32 s{sT0}, s{sT0}, {WS_FZ}
    v_min_u32 v8, 39, v1
    v_lshl_add_u32 v8, v8, 4, s{sT0}
    v_lshrrev_b32 v6, 3, v1
    v_and_b32 v7, 7, v1
    v_lshlrev_b32 v6, 12, v6
    v_lshl_add_u32 v6, v7, 4, v6
    s_mul_i32 s{sA}, s{sC80}, {80*4096}
    s_lshl_b32 s{sT0}, s{sR64}, 7
    s_add_u32 s{sA}, s{sA}, s{sT0}
    s_lshl_b32 s{sT0}, s{sHW}, 15
    s_add_u32 s{sA}, s{sA}, s{sT0}
    s_mul_i32 s{sT5}, s{sHW}, {ZSTR}
    s_waitcnt lgkmcnt(0)
    s_barrier
    """)
    poll(8, 12, wide=True)
    stamp(7)
    for k in range(3):
        if k == 2: a(f"s_cmp_ge_u32 s{sHW}, 2\ns_cbranch_scc1 L_z2")
        a(f"s_add_u32 s{sT0}, s{sA}, {WS_Z + 4*32768*k}")
        dma(6, SWS, f"s{sT0}", f"s_add_u32 m0, s{sT5}, {L_Z + 4*ZSTR*k}", "sc1")
    a("L_z2:\ns_waitcnt vmcnt(0)\ns_barrier")
    a(f"s_mul_i32 s{sT2}, s{sR64}, {64*2560}\ns_mul_i32 s{sT1}, s{sC80}, 160\ns_add_u32 s{sT2}, s{sT2}, s{sT1}\ns_add_u32 s{sT2}, s{sT2}, 1280")
    for k in range(3):
        if k == 2: a(f"s_cmp_ge_u32 s{sHW}, 2\ns_cbranch_scc1 L_b3d")
        for j in range(8): a(f"v_mov_b32 v{ZV+j}, 0")
        for j in range(8): a(f"ds_read_u16_d16_hi v{ZV+j}, v{ZA+k} offset:{128*j}")
        for j in range(4):
            a(f"v_lshlrev_b32 v{88+2*j}, 16, v{QV+4*k+j}\nv_and_b32 v{89+2*j}, 0xffff0000, v{QV+4*k+j}")
        a("s_waitcnt lgkmcnt(0)")
        for j in range(8): a(f"v_mul_f32 v{88+j}, v{88+j}, v{ZV+j}")
        for j in range(4): a(f"v_cvt_pk_bf16_f32 v{QV+4*k+j}, v{88+2*j}, v{89+2*j}")
        a(f"buffer_store_dwordx4 v[{QV+4*k}:{QV+4*k+3}], v{RO+k}, {srd(SOUT)}, s{sT2} offen")
    a("L_b3d:")
    a3_loop(2, hfr, 3)
    a("L_fin:")
    if cfg.stamps:
        a("s_waitcnt vmcnt(0)")
        stamp(8)
        a(f"s_lshl_b32 s{sT0}, s2, 3\ns_add_u32 s{sT0}, s{sT0}, s{sWV}\ns_lshl_b32 s{sT0}, s{sT0}, 7\ns_add_u32 s{sT0}, s{sT0}, {WS_T}\nv_mov_b32 v2, s{sT0}\ns_mov_b64 exec, 1")
        for i in range(9):
            a(f"v_mov_b32 v4, s{sSTAMP+2*i}\nv_mov_b32 v5, s{sSTAMP+2*i+1}\nbuffer_store_dwordx2 v[4:5], v2, {srd(SWS)}, 0 offen offset:{8*i}\ns_waitcnt vmcnt(0)")
    a("L_end:\ns_endpgm")
    body = a.finish()
    hdr = open("cdna_kernels/" + NAME + ".s.ref").read().split("; Override launch")[0]
    src = hdr + f"""; Single persistent kernel, one 512-thread workgroup per CU; generated by the author's own script.
; @launch grid=(256,1,1) block=(512,1,1) lds=163840
.amdgcn_target "amdgcn-amd-amdhsa--gfx950"
.text
.globl {NAME}_kernel
.p2align 8
.type {NAME}_kernel,@function
{NAME}_kernel:
{body}.section .rodata,"a"
.p2align 6
.amdhsa_kernel {NAME}_kernel
  .amdhsa_next_free_vgpr 256
  .amdhsa_next_free_sgpr 102
  .amdhsa_accum_offset 256
  .amdhsa_group_segment_fixed_size 0
  .amdhsa_kernarg_size 96
  .amdhsa_user_sgpr_count 2
  .amdhsa_user_sgpr_kernarg_segment_ptr 1
  .amdhsa_system_sgpr_workgroup_id_x 1
.end_amdhsa_kernel
"""
    return src

if __name__ == "__main__":
    cfg = Cfg()
    out = sys.argv[1]
    for kv in sys.argv[2:]:
        k, v = kv.split("=")
        old = getattr(cfg, k)
        setattr(cfg, k, (v == "1") if isinstance(old, bool) else (int(v) if isinstance(old, int) else v))
    open(out, "w").write(gen(cfg))
```

```python
import sys, math, struct
from asmdsl import Asm

NAME = "concat_heads__sliding_block__ssm_conv_h3__prompt"

class Cfg:
    stamps = False
    grp = ""
    stop = 99
    nt_in = ""
    fstr = 128
    slp = 1
    force_fb = False
    ncls = 10
    b1a = -1
    b1b = -1
    b1c = -1
    map2 = "head"
    outa = ""
    outb = ""
    zpub = 4
    fzn = 14
    prio = 0
    ufs = 8
    wopre = 8
    noread = False; nomfma = False; nowo = False

WS_G = 0x0; WS_U = 0x800000; WS_Z = 0xB00000; WS_O = 0xE00000; WS_O8 = 0x1000000
WS_FG = 0x1100000; WS_FU = 0x1140000; WS_FZ = 0x1180000; WS_FO = 0x11C0000; WS_T = 0x1200000
WS_SIZE = 0x1400000
L_KB = 98304; L_VB = L_KB + 11024
L_H = 119808; HSTR = 8320; HODD = 4160
L_U = 144768; USTR = 4608
L_V = 32768; VSTR = 8256; L_ONES = L_V + 24768; L_K = 58112; L_Q = 82688
L_WO1 = 82688
L_WO2 = 0
L_Z = 32768; ZSTR = 1040; L_O8 = 43264; L_ST = 59648; L_O16 = 98304
SX, SW, SWO, SQ, SK, SV, SSH, SH, SD, SOUT, SDBG, SWS = [8 + 4 * i for i in range(12)]
def srd(b): return f"s[{b}:{b+3}]"
sWON, sC160 = 6, 7
sWV, sXC, sJ, sHW = 56, 57, 58, 59
sN = 60
sR64, sC80, sRB, sCT, sCH, sCHV, sHD, sQB = 62, 63, 64, 65, 66, 67, 68, 69
sT0, sT1, sT2, sT3, sT4, sT5 = 70, 71, 72, 73, 74, 75
sCNT, sNV, sFB, sKC = 76, 77, 78, 79
sEX = 80
sA, sB = 82, 83
sSTAMP = 84
WOM = list(range(24, 36)) + [sWON]
BIGNEG = 0xf149f2ca
vCZ, vCD, vCF = 208, 224, 240
QV = 152; ROH = 164; ZA = 167; FZA = 170; ZD = 171; FZR = 172; QA = 174; ZT = 174
WOV = 184; AK0, AK1, AVD, AV0, QAD0, QAD1, QM0, QM1, OS0, OS1 = 197, 198, 199, 200, 201, 202, 203, 204, 205, 206

def f2u(x): return struct.unpack("<I", struct.pack("<f", x))[0]
def pr(b): return f"v[{b}:{b+1}]"

def gen(cfg):
    a = Asm()
    FS = cfg.fstr
    ool = []
    def stamp(i, grp=""):
        if cfg.stamps and (grp == cfg.grp or i in (0, 8) and grp == ""):
            a(f"s_memrealtime s[{sSTAMP+2*i}:{sSTAMP+2*i+1}]\ns_memtime s[4:5]\ns_waitcnt lgkmcnt(0)\ns_mov_b32 s{sSTAMP+2*i+1}, s4")
    def dma(vaddr, s, soff, m0, flags=""):
        if isinstance(m0, int): a(f"s_mov_b32 m0, {m0}")
        else: a(m0)
        a(f"buffer_load_dwordx4 v{vaddr}, {srd(s)}, {soff} offen {flags} lds")
    def poll(vaddr, t):
        L = a.lab("L_poll"); D = a.lab("L_polld")
        a(f"s_mov_b32 s{sCNT}, 0\n{L}:")
        a(f"buffer_load_dwordx2 v[{t}:{t+1}], v{vaddr}, {srd(SWS)}, 0 offen sc1\ns_waitcnt vmcnt(0)")
        a(f"v_cmp_ne_u64 vcc, s[{sN}:{sN+1}], v[{t}:{t+1}]")
        a(f"s_cbranch_vccz {D}\ns_add_u32 s{sCNT}, s{sCNT}, 1\ns_cmp_lt_u32 s{sCNT}, 0x40000\ns_cbranch_scc0 {D}\ns_sleep {cfg.slp}\ns_branch {L}\n{D}:")
    def check_or_poll(vaddr, t):
        L = a.lab("L_cp"); R = a.lab("L_cpr")
        a(f"v_cmp_ne_u64 vcc, s[{sN}:{sN+1}], v[{t}:{t+1}]\ns_cbranch_vccnz {L}\n{R}:")
        def body():
            a(f"{L}:"); poll(vaddr, t); a(f"s_branch {R}")
        ool.append(body)
    def publish(soff_sgpr, t):
        a(f"v_mov_b32 v{t}, s{sN}\nv_mov_b32 v{t+1}, s{sN+1}\nv_mov_b32 v{t+2}, s{soff_sgpr}")
        a(f"s_mov_b64 exec, 1\nbuffer_store_dwordx2 v[{t}:{t+1}], v{t+2}, {srd(SWS)}, 0 offen sc1\ns_mov_b64 exec, -1")
    def nonce_issue(t):
        a(f"v_mov_b32 v{t+2}, 0\nbuffer_load_dwordx2 v[{t}:{t+1}], v{t+2}, {srd(SDBG)}, 0 offen sc1")
    def nonce_take(t):
        L = a.lab("L_non"); R = a.lab("L_nonr"); D = a.lab("L_nond")
        a(f"s_mov_b32 s{sCNT}, 0\n{R}:\nv_readfirstlane_b32 s{sN}, v{t}\nv_readfirstlane_b32 s{sN+1}, v{t+1}")
        a(f"s_cmp_eq_u32 s{sN}, 0\ns_cbranch_scc1 {L}\n{D}:")
        def body():
            a(f"{L}:\ns_add_u32 s{sCNT}, s{sCNT}, 1\ns_cmp_lt_u32 s{sCNT}, 0x40000\ns_cbranch_scc0 {D}")
            a(f"buffer_load_dwordx2 v[{t}:{t+1}], v{t+2}, {srd(SDBG)}, 0 offen sc1\ns_waitcnt vmcnt(0)\ns_branch {R}")
        ool.append(body)
    def build_masks(val):
        a(f"v_and_b32 v2, 31, v1\nv_lshrrev_b32 v3, 5, v1\nv_lshlrev_b32 v3, 2, v3\nv_sub_u32 v2, v2, v3\nv_mov_b32 v3, {BIGNEG:#x}")
        for r in range(16):
            m0 = 8 * (r >> 2) + (r & 3)
            a(f"v_cmp_le_i32 vcc, {m0}, v2\nv_mov_b32 v{vCZ+r}, {val}\nv_cndmask_b32 v{vCD+r}, v3, v{vCZ+r}, vcc\nv_cndmask_b32 v{vCF+r}, v{vCZ+r}, v3, vcc")
    q = []
    def issue(tag, n): q.extend([tag] * n)
    def wait_for(tags):
        last = max((i for i, t in enumerate(q) if t in tags), default=-1)
        if last >= 0:
            a(f"s_waitcnt lgkmcnt({min(len(q) - 1 - last, 15)})")
            del q[:last + 1]

    def b1_compute(B):
        kr = B; rs = B; vv = B + 16; ku = B + 24; tp = B + 46; vu = ku; pk = B + 16
        a(f"""
        v_and_b32 v2, 7, v0
        v_lshrrev_b32 v3, 3, v0
        v_mul_u32_u24 v4, 1296, v2
        v_lshl_add_u32 v4, v3, 2, v4
        v_add_u32 v4, {L_KB}, v4
        """)
        for i in range(-3, 8): a(f"ds_read_b32 v{kr+3+i}, v4 offset:{(640 if i < 0 else 656) + 160*i}")
        for i in range(8): a(f"ds_read_b32 v{vv+i}, v4 offset:{11024 + 160*i}")
        a(f"""
        v_lshlrev_b32 v{tp+0}, 16, v8
        v_lshlrev_b32 v{tp+1}, 16, v10
        v_and_b32 v{tp+2}, 0xffff0000, v8
        v_and_b32 v{tp+3}, 0xffff0000, v10
        v_lshlrev_b32 v{tp+4}, 16, v9
        v_lshlrev_b32 v{tp+5}, 16, v11
        v_and_b32 v{tp+6}, 0xffff0000, v9
        v_and_b32 v{tp+7}, 0xffff0000, v11
        s_mul_i32 s{sT0}, s{sC80}, {80*4096}
        s_lshl_b32 s{sT1}, s{sR64}, 7
        s_sub_u32 s{sT0}, s{sT0}, s{sT1}
        s_add_u32 s{sT0}, s{sT0}, {WS_U + 4080 - 112}
        v_lshlrev_b32 v3, 13, v3
        v_sub_u32 v2, 7, v2
        v_lshl_add_u32 v3, v2, 4, v3
        s_add_u32 s{sT1}, s{sT0}, 4096
        s_waitcnt lgkmcnt(8)
        """)
        for i in range(11): a(f"v_lshlrev_b32 v{ku+2*i}, 16, v{kr+i}\nv_and_b32 v{ku+2*i+1}, 0xffff0000, v{kr+i}")
        for i in range(8): a(f"v_pk_mul_f32 {pr(rs+2*i)}, {pr(ku+2*(i+3))}, {pr(tp)}")
        for j in range(1, 4):
            for i in range(8): a(f"v_pk_fma_f32 {pr(rs+2*i)}, {pr(ku+2*(i+3-j))}, {pr(tp+2*j)}, {pr(rs+2*i)}")
        a("s_waitcnt lgkmcnt(0)")
        for i in range(8): a(f"v_lshlrev_b32 v{vu+2*i}, 16, v{vv+i}\nv_and_b32 v{vu+2*i+1}, 0xffff0000, v{vv+i}")
        for i in range(8): a(f"v_pk_mul_f32 {pr(rs+2*i)}, {pr(rs+2*i)}, {pr(vu+2*i)}")
        for ch in range(2):
            for d in range(4): a(f"v_cvt_pk_bf16_f32 v{pk+4*ch+d}, v{rs+2*(7-2*d)+ch}, v{rs+2*(6-2*d)+ch}")
        a(f"buffer_store_dwordx4 v[{pk}:{pk+3}], v3, {srd(SWS)}, s{sT0} offen sc1")
        a(f"buffer_store_dwordx4 v[{pk+4}:{pk+7}], v3, {srd(SWS)}, s{sT1} offen sc1")
    def shift_load():
        a(f"v_lshrrev_b32 v4, 3, v0\nv_lshlrev_b32 v4, 4, v4\ns_mul_i32 s{sT4}, s{sC80}, 640\nbuffer_load_dwordx4 v[8:11], v4, {srd(SSH)}, s{sT4} offen")
    def publish_u(t):
        a(f"s_mul_i32 s{sT0}, s{sC80}, 5\ns_add_u32 s{sT0}, s{sT0}, s{sWV}\ns_lshl_b32 s{sT0}, s{sT0}, 5\ns_add_u32 s{sT0}, s{sT0}, s{sR64}\ns_mul_i32 s{sT0}, s{sT0}, {cfg.ufs}\ns_add_u32 s{sT0}, s{sT0}, {WS_FU}")
        publish(sT0, t)
    def rounds(RO):
        for k in range(3):
            a(f"""
            s_lshl_b32 s{sT0}, s{sHW}, 6
            s_add_u32 s{sT0}, s{sT0}, {256*k}
            v_add_u32 v2, s{sT0}, v1
            v_mul_u32_u24 v3, 205, v2
            v_lshrrev_b32 v3, 11, v3
            v_mul_u32_u24 v4, 10, v3
            v_sub_u32 v4, v2, v4
            v_mul_u32_u24 v5, 2560, v3
            v_lshl_add_u32 v{RO+k}, v4, 4, v5
            """)
            yield k
    def a2_setup():
        a(f"""
        s_lshl_b32 s{sT0}, s{sWV}, 9
        v_and_b32 v2, 31, v1
        v_lshrrev_b32 v3, 5, v1
        v_lshlrev_b32 v{OS1}, 3, v2
        v_lshlrev_b32 v4, 4, v2
        v_lshl_add_u32 v{OS0}, v3, 15, v4
        v_add_u32 v4, s{sT0}, v4
        v_lshl_add_u32 v5, v3, 12, v4
        v_add_u32 v{QAD0}, {L_Q}, v5
        v_add_u32 v{QAD1}, {L_Q + 8192}, v4
        v_lshl_add_u32 v{AK0}, v3, 13, v4
        v_add_u32 v{AK0}, {L_K}, v{AK0}
        v_add_u32 v{AK1}, {L_K + 16384}, v4
        v_bfe_u32 v4, v1, 2, 2
        v_lshl_add_u32 v4, v3, 2, v4
        v_lshlrev_b32 v4, 4, v4
        v_bfe_u32 v5, v1, 1, 1
        v_mul_u32_u24 v5, {VSTR}, v5
        v_and_b32 v6, 1, v1
        v_lshl_add_u32 v5, v6, 3, v5
        s_and_b32 s{sT1}, s{sHD}, 1
        s_lshl_b32 s{sT2}, s{sT1}, 3
        s_add_u32 s{sT2}, s{sT2}, {2*VSTR}
        v_mov_b32 v6, s{sT2}
        v_and_b32 v7, 16, v1
        v_cmp_ne_u32 vcc, 0, v7
        v_cndmask_b32 v5, v5, v6, vcc
        s_add_u32 s{sT0}, s{sT0}, {L_V + 4096}
        v_add3_u32 v5, v5, v4, s{sT0}
        v_add_u32 v6, {L_ONES}, v4
        v_and_b32 v7, 19, v1
        v_cmp_lt_u32 vcc, 16, v7
        v_cndmask_b32 v{AV0}, v5, v6, vcc
        v_mov_b32 v5, 512
        v_cndmask_b32 v{AVD}, v5, 0, vcc
        s_add_u32 s{sT0}, s{sWV}, 1
        s_cmp_eq_u32 s{sQB}, 0
        s_cselect_b32 s{sNV}, s{sT0}, 99
        s_mov_b32 s{sFB}, 0
        s_cmp_eq_u32 s{sT1}, 0
        s_cselect_b32 s{sT2}, -1, 0
        s_cselect_b32 s{sT3}, 0, -1
        v_cmp_eq_u32 vcc, 0, v3
        v_mov_b32 v5, s{sT2}
        v_mov_b32 v6, s{sT3}
        v_cndmask_b32 v{QM0}, 0, v5, vcc
        v_cndmask_b32 v{QM1}, 0, v6, vcc
        s_and_b32 s{sT2}, s{sJ}, 3
        s_mul_i32 s{sT2}, s{sT2}, 25
        s_and_b32 s{sT3}, s{sC80}, 1
        s_mul_i32 s{sT3}, s{sT3}, 12
        s_add_u32 s{sT2}, s{sT2}, s{sT3}
        s_add_u32 s{sT2}, s{sT2}, s{sWV}
        s_lshl_b32 s{sWON}, s{sT2}, 10
        s_mov_b32 s{sT4}, 6554
        """)
        for i in range(13):
            a(f"""
            s_lshl_b32 s{sT3}, s{sT2}, 6
            v_add_u32 v2, s{sT3}, v1
            v_mul_u32_u24 v3, s{sT4}, v2
            v_lshrrev_b32 v3, 16, v3
            v_mul_u32_u24 v3, 1120, v3
            v_lshl_add_u32 v{WOV+i}, v2, 4, v3
            s_add_u32 s{sT2}, s{sT2}, 8
            s_cmp_ge_u32 s{sT2}, 100
            s_cselect_b32 s{sT3}, 100, 0
            s_sub_u32 s{sT2}, s{sT2}, s{sT3}
            """)

    def wom_setup():
        for i in range(13):
            a(f"s_add_u32 s{sT0}, s{sWON}, {L_WO1}\ns_sub_u32 s{sT1}, s{sWON}, 76800")
            if i < 12: a(f"s_add_u32 s{sWON}, s{sWON}, 8192\ns_sub_u32 s{WOM[i]}, s{sWON}, 102400\ns_min_u32 s{sWON}, s{sWON}, s{WOM[i]}")
            a(f"s_min_u32 s{WOM[i]}, s{sT0}, s{sT1}")

    order = [(SX, 0), (SW, 1), (SK, 4), (SV, 5), (SSH, 6), (SDBG, 10), (SWS, 11), (SH, 7), (SD, 8), (SWO, 2), (SQ, 3), (SOUT, 9)]
    a("s_cmp_ge_u32 s2, 256\ns_cbranch_scc1 L_exit")
    stamp(0)
    for s, slot in order: a(f"s_load_dwordx2 s[{s}:{s+1}], s[0:1], {slot*8}")
    a(f"""
    v_lshrrev_b32 v2, 6, v0
    v_and_b32 v1, 63, v0
    s_and_b32 s{sXC}, s2, 7
    v_readfirstlane_b32 s{sWV}, v2
    s_lshr_b32 s{sJ}, s2, 3
    """)
    sizes = {SX: 2621440, SW: 2457600, SWO: 819200, SQ: 2621440, SK: 2621440, SV: 2621440, SSH: 5120, SH: 2621440, SD: 1280, SOUT: 5242880, SDBG: 256, SWS: WS_SIZE}
    for s, n in sizes.items(): a(f"s_mov_b32 s{s+2}, {n}\ns_mov_b32 s{s+3}, 0x20000")
    a(f"""
    s_and_b32 s{sT0}, s{sJ}, 3
    s_lshl_b32 s{sR64}, s{sXC}, 2
    s_add_u32 s{sR64}, s{sR64}, s{sT0}
    s_lshr_b32 s{sC80}, s{sJ}, 2
    s_mul_i32 s{sC160}, s{sC80}, 160
    s_and_b32 s{sHW}, s{sWV}, 3
    s_and_b32 s{sT0}, s{sXC}, 1
    s_mul_i32 s{sT0}, s{sT0}, 30
    s_add_u32 s{sT0}, s{sT0}, s{sJ}
    s_lshr_b32 s{sCT}, s{sT0}, 2
    s_and_b32 s{sT0}, s{sT0}, 3
    s_lshr_b32 s{sRB}, s{sXC}, 1
    s_lshl_b32 s{sRB}, s{sRB}, 2
    s_add_u32 s{sRB}, s{sRB}, s{sT0}
    """)
    if cfg.map2 == "head": a(f"s_mov_b32 s{sHD}, s{sR64}\ns_mov_b32 s{sQB}, s{sC80}")
    else: a(f"s_mov_b32 s{sHD}, s{sJ}\ns_mov_b32 s{sQB}, s{sXC}")
    a(f"s_cmp_lt_u32 s{sWV}, 4\ns_cbranch_scc1 L_C")

    vX = 16; vW = 20; vD = 21; vNH = 22; vHA = 64; vHB = 80
    a(f"""
    v_lshrrev_b32 v2, 3, v1
    v_lshrrev_b32 v3, 4, v1
    v_xor_b32 v4, v3, v1
    v_and_b32 v4, 7, v4
    v_mul_u32_u24 v2, 1280, v2
    v_lshl_add_u32 v{vX}, v4, 4, v2
    v_xor_b32 v4, 4, v4
    v_lshl_add_u32 v{vX+1}, v4, 4, v2
    v_add_u32 v{vX+1}, {8*1280}, v{vX+1}
    v_add_u32 v{vX+2}, {16*1280}, v{vX}
    v_add_u32 v{vX+3}, {16*1280}, v{vX+1}
    v_lshlrev_b32 v4, 2, v3
    v_xor_b32 v4, v4, v1
    v_and_b32 v4, 15, v4
    v_mul_u32_u24 v3, 3840, v3
    v_lshl_add_u32 v{vW}, v4, 4, v3
    s_mul_i32 s{sA}, s{sRB}, {128*1280}
    s_mul_i32 s{sT0}, s{sHW}, {32*1280}
    s_add_u32 s{sA}, s{sA}, s{sT0}
    s_lshl_b32 s{sB}, s{sCT}, 8
    s_mul_i32 s{sT0}, s{sHW}, {16*3840}
    s_add_u32 s{sB}, s{sB}, s{sT0}
    s_lshl_b32 s{sT5}, s{sHW}, 12
    """)
    if cfg.ncls == 10:
        a(f"s_and_b32 s{sT0}, s{sRB}, 3\ns_mul_i32 s{sT0}, s{sT0}, 5\ns_add_u32 s{sT0}, s{sT0}, 1\ns_lshr_b32 s{sT0}, s{sT0}, 1\ns_lshr_b32 s{sT1}, s{sRB}, 2\ns_add_u32 s{sT0}, s{sT0}, s{sT1}\ns_add_u32 s{sKC}, s{sT0}, s{sCT}")
    elif cfg.ncls == 2:
        a(f"s_add_u32 s{sT0}, s{sRB}, s{sCT}\ns_and_b32 s{sT0}, s{sT0}, 1\ns_mul_i32 s{sT0}, s{sT0}, 5\ns_add_u32 s{sKC}, s{sT0}, s{sXC}")
    elif cfg.ncls == 4:
        a(f"s_add_u32 s{sT0}, s{sRB}, s{sCT}\ns_and_b32 s{sT0}, s{sT0}, 3\ns_mul_i32 s{sT0}, s{sT0}, 5\ns_add_u32 s{sT0}, s{sT0}, 1\ns_lshr_b32 s{sT0}, s{sT0}, 1\ns_add_u32 s{sKC}, s{sT0}, s{sXC}")
    elif cfg.ncls == 3:
        a(f"s_add_u32 s{sT0}, s{sRB}, s{sCT}\ns_mul_i32 s{sT1}, s{sT0}, 86\ns_lshr_b32 s{sT1}, s{sT1}, 8\ns_mul_i32 s{sT1}, s{sT1}, 3\ns_sub_u32 s{sT0}, s{sT0}, s{sT1}\ns_mul_i32 s{sT0}, s{sT0}, 7\ns_lshr_b32 s{sT0}, s{sT0}, 1\ns_add_u32 s{sKC}, s{sT0}, s{sXC}")
    else:
        a(f"s_mov_b32 s{sKC}, s{sXC}")
    a(f"s_mul_i32 s{sT0}, s{sKC}, 205\ns_lshr_b32 s{sT0}, s{sT0}, 11\ns_mul_i32 s{sT0}, s{sT0}, 10\ns_sub_u32 s{sKC}, s{sKC}, s{sT0}")
    def ring_issue(c):
        slot = (c % 3) * 32768
        a(f"s_lshl_b32 s{sT0}, s{sKC}, 7\ns_add_u32 s{sT0}, s{sT0}, s{sA}\ns_mul_i32 s{sT1}, s{sKC}, {64*3840}\ns_add_u32 s{sT1}, s{sT1}, s{sB}")
        for i in range(4):
            dma(vX + i, SX, f"s{sT0}", f"s_add_u32 m0, s{sT5}, {slot + i*1024}")
            dma(vW, SW, f"s{sT1}", f"s_add_u32 m0, s{sT5}, {slot + 16384 + i*1024}")
            if i < 3: a(f"s_add_u32 s{sT1}, s{sT1}, {4*3840}")
        a(f"s_add_u32 s{sKC}, s{sKC}, 1\ns_cmp_eq_u32 s{sKC}, 10\ns_cselect_b32 s{sKC}, 0, s{sKC}")
    def h_chan():
        a(f"""
        s_mul_i32 s{sT0}, s{sJ}, 3
        s_lshl_b32 s{sT1}, s{sJ}, 1
        s_add_u32 s{sT1}, s{sT1}, 16
        s_cmp_lt_u32 s{sJ}, 16
        s_cselect_b32 s{sT0}, s{sT0}, s{sT1}
        s_cselect_b32 s{sT1}, 3, 2
        s_cmp_lt_u32 s{sHW}, s{sT1}
        s_cselect_b32 s{sCHV}, 1, 0
        s_cselect_b32 s{sT1}, s{sHW}, 0
        s_add_u32 s{sT0}, s{sT0}, s{sT1}
        s_mul_i32 s{sCH}, s{sXC}, 80
        s_add_u32 s{sCH}, s{sCH}, s{sT0}
        s_lshr_b32 s{sT0}, s{sT0}, 4
        s_mul_i32 s{sT1}, s{sXC}, 5
        s_add_u32 s{sT0}, s{sT0}, s{sT1}
        s_lshl_b32 s{sT0}, s{sT0}, 5
        v_and_b32 v12, 31, v1
        v_add_u32 v12, s{sT0}, v12
        v_mul_u32_u24 v12, {cfg.ufs}, v12
        v_add_u32 v12, {WS_FU}, v12
        """)
    def h_loads():
        a(f"""
        buffer_load_dwordx2 v[14:15], v12, {srd(SWS)}, 0 offen sc1
        s_lshl_b32 s{sT0}, s{sCH}, 12
        v_lshlrev_b32 v2, 4, v1
        v_add_u32 v2, s{sT0}, v2
        s_lshl_b32 s{sT0}, s{sCH}, 1
        v_mov_b32 v4, s{sT0}
        """)
        for i in range(4):
            a(f"buffer_load_dwordx4 v[{vHA+4*i}:{vHA+4*i+3}], v2, {srd(SH)}, 0 offen offset:{1024*i} {cfg.nt_in}")
            a(f"buffer_load_dwordx4 v[{vHB+4*i}:{vHB+4*i+3}], v2, {srd(SH)}, 0 offen offset:{1024*i+4} {cfg.nt_in}")
        a(f"buffer_load_ushort v{vD}, v4, {srd(SD)}, 0 offen")
    def h_b1():
        L = a.lab("L_hb1")
        a(f"s_cmp_lg_u32 s{sWV}, 4\ns_cbranch_scc1 {L}")
        b1_compute(64)
        a(f"{L}:")
    def h_pub_u():
        L = a.lab("L_hpu")
        nonce_take(vNH)
        a(f"s_cmp_lg_u32 s{sWV}, 4\ns_cbranch_scc1 {L}")
        publish_u(2)
        a(f"{L}:")
    AA = 26; AB = 30; BACC = 96; BF = 32; AF = 128; NAF = 5; DF = 148
    def h_setup():
        a(f"s_mul_i32 s{sT2}, s{sR64}, {64*1280}\ns_add_u32 s{sT2}, s{sT2}, s{sC160}")
        for k in rounds(ROH):
            a(f"""
            v_mul_u32_u24 v5, 1280, v3
            v_lshl_add_u32 v5, v4, 4, v5
            v_mul_u32_u24 v4, {ZSTR}, v4
            v_lshl_add_u32 v4, v3, 1, v4
            v_add_u32 v{ZA+k}, {L_Z}, v4
            v_add_u32 v{QA+k}, s{sT2}, v5
            """)
        a(f"""
        s_cmp_ge_u32 s{sHW}, 2
        s_cselect_b32 s{sT2}, 15, 23
        v_min_u32 v2, s{sT2}, v1
        v_lshrrev_b32 v3, 3, v2
        v_and_b32 v2, 7, v2
        v_lshl_add_u32 v2, v3, 5, v2
        s_mul_i32 s{sT0}, s{sC80}, 80
        s_lshl_b32 s{sT2}, s{sHW}, 3
        s_add_u32 s{sT0}, s{sT0}, s{sT2}
        v_add_u32 v2, s{sT0}, v2
        v_mul_u32_u24 v2, {FS}, v2
        v_add_u32 v{FZA}, {WS_FZ}, v2
        v_lshrrev_b32 v2, 3, v1
        v_and_b32 v3, 7, v1
        v_lshlrev_b32 v2, 12, v2
        v_lshl_add_u32 v{ZD}, v3, 4, v2
        v_and_b32 v2, 15, v1
        v_lshrrev_b32 v3, 4, v1
        v_add_u32 v4, 1, v2
        v_lshrrev_b32 v4, 1, v4
        v_lshl_add_u32 v4, v3, 2, v4
        v_lshlrev_b32 v4, 2, v4
        v_and_b32 v5, 1, v2
        v_cmp_eq_u32 vcc, 0, v5
        v_mov_b32 v5, {HODD}
        v_cndmask_b32 v5, 0, v5, vcc
        s_min_u32 s{sT1}, s{sHW}, 2
        s_mul_i32 s{sT0}, s{sT1}, {HSTR}
        s_add_u32 s{sT0}, s{sT0}, {L_H}
        v_add3_u32 v{AA}, v4, v5, s{sT0}
        v_add_u32 v{AA+1}, 1024, v{AA}
        v_add_u32 v{AA+2}, 2048, v{AA}
        v_add_u32 v{AA+3}, 3072, v{AA}
        v_lshlrev_b32 v13, 4, v1
        v_add_u32 v25, s{sT0}, v13
        v_lshlrev_b32 v4, 5, v2
        v_lshl_add_u32 v4, v3, 3, v4
        v_add_u32 v31, s{sT0}, v4
        v_sub_u32 v4, 15, v2
        v_lshlrev_b32 v4, 5, v4
        v_lshl_add_u32 v4, v3, 4, v4
        s_mul_i32 s{sT1}, s{sT1}, {USTR}
        s_add_u32 s{sT1}, s{sT1}, {L_U}
        v_add_u32 v{AB}, s{sT1}, v4
        v_lshl_add_u32 v2, v1, 3, s{sT1}
        v_mov_b32 v4, 0
        v_mov_b32 v5, 0
        v_mov_b32 v6, 0
        v_mov_b32 v7, 0
        ds_write_b64 v2, v[4:5] offset:4096
        s_mov_b64 exec, 3
        ds_write_b128 v25, v[4:7]
        s_mov_b64 exec, -1
        """)
    a(f"s_cmp_ge_u32 s{sJ}, 30\ns_cbranch_scc1 L_h_idle\ns_waitcnt lgkmcnt(0)")
    shift_load()
    ring_issue(0)
    h_chan()
    build_masks("0")
    h_setup(); a2_setup(); wom_setup()
    if cfg.b1c < 0:
        a("s_barrier")
        stamp(1)
        a("s_waitcnt vmcnt(8)")
        h_b1()
    nonce_issue(vNH)
    ring_issue(1)
    pubc = min(max(cfg.b1c, -1) + 3, 8)
    for c in range(10):
        w = {0: 9, 9: 10}.get(c, 8)
        a(f"s_waitcnt vmcnt({w})")
        if c in (0, 1, 2, 3, 5, 7, 9): stamp(1 + (0, 1, 2, 3, 5, 7, 9).index(c), "a1")
        a("s_barrier")
        if c == cfg.b1c:
            stamp(1); h_b1()
        if c + 2 <= 9: ring_issue(c + 2)
        if c == pubc: h_pub_u()
        if c == 8:
            a(f"s_cmp_eq_u32 s{sCHV}, 0\ns_cbranch_scc1 L_h_nob2a")
            h_loads()
    a("L_h_post:")
    def h_idle():
        a("L_h_idle:\ns_waitcnt lgkmcnt(0)")
        shift_load(); h_chan(); build_masks("0")
        h_setup(); a2_setup(); wom_setup()
        a("s_waitcnt vmcnt(0)\ns_barrier")
        nonce_issue(vNH)
        h_b1()
        a("s_waitcnt vmcnt(0)")
        h_pub_u()
        a(f"s_cmp_eq_u32 s{sCHV}, 0\ns_cbranch_scc1 L_h_nob2")
        h_loads()
        a("s_branch L_h_post")
    ool.append(h_idle)
    stamp(2)
    if cfg.stop <= 1: a("s_branch L_fin")
    def q_loads():
        for k in range(3): a(f"buffer_load_dwordx4 v[{QV+4*k}:{QV+4*k+3}], v{QA+k}, {srd(SQ)}, 0 offen {cfg.nt_in}")
    def h_nob2():
        a("L_h_nob2a:\ns_waitcnt vmcnt(0)\ns_barrier\nL_h_nob2:")
        if cfg.stop <= 1: a("s_branch L_fin")
        q_loads(); a("s_branch L_join_a")
    ool.append(h_nob2)
    a(f"""
    s_mul_i32 s{sT5}, s{sHW}, {USTR}
    s_add_u32 s{sT5}, s{sT5}, {L_U}
    s_lshl_b32 s{sA}, s{sCH}, 12
    s_add_u32 s{sA}, s{sA}, {WS_U}
    s_waitcnt vmcnt(9)
    """)
    check_or_poll(12, 14)
    for i in range(4):
        a(f"s_add_u32 s{sT0}, s{sA}, {1024*i}")
        dma(13, SWS, f"s{sT0}", f"s_add_u32 m0, s{sT5}, {1024*i}", "sc1")
    a(f"""
    s_add_u32 s{sA}, s{sA}, {WS_Z - WS_U}
    v_mov_b32 v8, 0
    v_mov_b32 v9, 0
    v_mov_b32 v10, 0
    v_and_b32 v2, 15, v1
    v_sub_u32 v2, 15, v2
    v_lshrrev_b32 v3, 4, v1
    v_lshlrev_b32 v3, 2, v3
    v_lshrrev_b32 v4, 1, v2
    v_sub_u32 v4, v4, v3
    v_and_b32 v2, 1, v2
    v_lshlrev_b32 v2, 4, v2
    s_waitcnt vmcnt(4)
    v_readfirstlane_b32 s{sT1}, v{vHA}
    v_cmp_eq_u32 vcc, 1, v1
    s_lshl_b32 s{sT1}, s{sT1}, 16
    v_mov_b32 v11, s{sT1}
    v_cndmask_b32 v11, 0, v11, vcc
    """)
    for i in range(4):
        a(f"ds_write_b128 v25, v[{vHA+4*i}:{vHA+4*i+3}] offset:{32+1024*i}")
        for j in range(4): a(f"v_alignbit_b32 v{vHB+4*i+j}, v{vHB+4*i+j}, v{vHA+4*i+j}, 16")
        a(f"ds_write_b128 v25, v[{vHB+4*i}:{vHB+4*i+3}] offset:{HODD+32+1024*i}")
    a(f"s_mov_b64 exec, 3\nds_write_b128 v25, v[8:11] offset:{HODD}\ns_mov_b64 exec, -1")
    a(f"v_lshlrev_b32 v2, v2, v{vD}")
    for rr in range(4): a(f"v_cmp_eq_u32 vcc, {rr}, v4\nv_cndmask_b32 v{DF+rr}, 0, v2, vcc")
    a("s_waitcnt vmcnt(0) lgkmcnt(0)")
    stamp(3)
    def b_read(r, nn):
        d = BF + 32 * (r & 1) + 4 * nn
        a(f"ds_read_b128 v[{d}:{d+3}], v{AB} offset:{2*(1792 - 32*(8*nn - r))}"); issue(("B", r, nn), 1)
    def a_read(gi):
        r, mu = groups[gi]; kap = 8 * mu + r
        d = AF + 4 * (gi % NAF); o = 16 * (kap % 16)
        a(f"ds_read2_b32 v[{d}:{d+1}], v{AA + kap//16} offset0:{o} offset1:{o+1}")
        a(f"ds_read2_b32 v[{d+2}:{d+3}], v{AA + kap//16} offset0:{o+2} offset1:{o+3}"); issue(("A", gi), 2)
    groups = [(r, mu) for r in range(7) for mu in (0, 7, 1, 6, 2, 5, 3, 4)] + [(7, mu) for mu in (7, 6, 5, 4, 3, 2, 1, 0)]
    q.clear()
    LA = NAF - 1
    for nn in range(8): b_read(0, nn)
    for gi in range(3): a_read(gi)
    q_loads()
    for i in range(8):
        wait_for({("B", 0, i)})
        d = BACC + 4 * i; f = BF + 4 * i
        a(f"v_mfma_f32_16x16x32_bf16 v[{d}:{d+3}], v[{DF}:{DF+3}], v[{f}:{f+3}], 0")
    for gi in range(3, LA): a_read(gi)
    PZ = 8
    for gi, (r, mu) in enumerate(groups):
        wait_for({("A", gi)} | {("B", r, nn) for nn in range(8 - mu)})
        pend = []
        if gi + LA < 64: pend.append(lambda g=gi + LA: a_read(g))
        if r < 7 and gi % 2 == 0:
            pend.append(lambda nn=gi % 8, r=r: b_read(r + 1, nn)); pend.append(lambda nn=gi % 8 + 1, r=r: b_read(r + 1, nn))
        tiles = list(range(mu, 8))
        for n, i in enumerate(tiles):
            d = BACC + 4 * i; f = BF + 32 * (r & 1) + 4 * (i - mu); s = AF + 4 * (gi % NAF)
            a(f"v_mfma_f32_16x16x32_bf16 v[{d}:{d+3}], v[{s}:{s+3}], v[{f}:{f+3}], v[{d}:{d+3}]")
            if pend: pend.pop(0)()
            if gi == 63 and n >= 3:
                j = n - 3; dd = BACC + 4 * j; p = PZ + 2 * (j & 1)
                a(f"v_cvt_pk_bf16_f32 v{p}, v{dd}, v{dd+1}\nv_cvt_pk_bf16_f32 v{p+1}, v{dd+2}, v{dd+3}\nds_write_b64 v31, v[{p}:{p+1}] offset:{512*j}")
        for f_ in pend: f_()
    stamp(4)
    for j in range(5, 8):
        dd = BACC + 4 * j; p = PZ + 2 * (j & 1)
        a(f"v_cvt_pk_bf16_f32 v{p}, v{dd}, v{dd+1}\nv_cvt_pk_bf16_f32 v{p+1}, v{dd+2}, v{dd+3}\nds_write_b64 v31, v[{p}:{p+1}] offset:{512*j}")
    for i in range(4): a(f"ds_read_b128 v[{32+4*i}:{35+4*i}], v25 offset:{1024*i}")
    for i in range(4):
        a(f"s_waitcnt lgkmcnt({3-i})\nbuffer_store_dwordx4 v[{32+4*i}:{35+4*i}], v13, {srd(SWS)}, s{sA} offen offset:{1024*i} sc1")
    a("s_branch L_join_a")

    a("L_C:")
    vNC = 60
    a(f"""
    s_getpc_b64 s[4:5]
    L_pc:
    s_sub_u32 s4, s4, L_pc-{NAME}_kernel
    s_subb_u32 s5, s5, 0
    s_mul_i32 s3, s{sJ}, 1280
    v_lshl_add_u32 v2, v0, 7, s3
    v_min_u32 v2, L_end-{NAME}_kernel, v2
    s_cmp_lg_u32 s{sWV}, 0
    s_cbranch_scc1 L_nocp
    s_mov_b64 exec, 0x3ff
    global_load_dword v63, v2, s[4:5]
    s_mov_b64 exec, -1
    L_nocp:
    s_mov_b32 s{sCHV}, 0
    s_mov_b32 s{sCH}, 0
    v_mul_u32_u24 v2, 26, v1
    v_lshrrev_b32 v2, 8, v2
    v_mul_u32_u24 v2, 1120, v2
    v_lshl_add_u32 v12, v1, 4, v2
    s_mul_i32 s{sA}, s{sR64}, {64*1280}
    s_add_u32 s{sA}, s{sA}, s{sC160}
    s_sub_u32 s{sT0}, s{sA}, {4*1280}
    v_add_u32 v13, s{sT0}, v12
    s_mul_i32 s{sT1}, s{sWV}, {8*1280}
    s_add_u32 s{sA}, s{sA}, s{sT1}
    s_mul_i32 s{sB}, s{sWV}, 1296
    """)

    def b1_loads(half):
        a(f"s_mov_b32 exec_hi, 0xff\ns_add_u32 s{sT1}, s{sA}, {half*32*1280}\ns_add_u32 s{sT2}, s{sT1}, {4*1280}")
        o = half * 4 * 1296
        dma(12, SK, f"s{sT1}", f"s_add_u32 m0, s{sB}, {L_KB+656+o}", cfg.nt_in)
        dma(12, SV, f"s{sT1}", f"s_add_u32 m0, s{sB}, {L_VB+o}", cfg.nt_in)
        dma(12, SK, f"s{sT2}", f"s_add_u32 m0, s{sB}, {L_KB+656+640+o}", cfg.nt_in)
        dma(12, SV, f"s{sT2}", f"s_add_u32 m0, s{sB}, {L_VB+640+o}", cfg.nt_in)
        if half == 0:
            L = a.lab("L_nh")
            a(f"s_cmp_lg_u32 s{sWV}, 0\ns_cbranch_scc1 {L}")
            dma(13, SK, "0", L_KB, cfg.nt_in)
            a(f"{L}:")
        a("s_mov_b32 exec_hi, -1")
    a(f"""
    s_waitcnt lgkmcnt(0)
    s_or_b32 s{sT0}, s2, s{sWV}
    s_cmp_lg_u32 s{sT0}, 0
    s_cbranch_scc1 L_nonon
    s_memrealtime s[{sN}:{sN+1}]
    s_waitcnt lgkmcnt(0)
    s_or_b32 s{sN}, s{sN}, 1
    v_mov_b32 v6, s{sN}
    v_mov_b32 v7, s{sN+1}
    v_mov_b32 v5, 0
    s_mov_b64 exec, 1
    buffer_store_dwordx2 v[6:7], v5, {srd(SDBG)}, 0 offen sc1
    s_mov_b64 exec, -1
    L_nonon:
    s_cmp_ge_u32 s{sJ}, 30
    s_cbranch_scc1 L_c_idle
    """)
    GFA = 207; sGA, sGB = 0, 1
    def qkv_addr():
        a(f"""
        s_lshr_b32 s{sT0}, s{sHD}, 1
        s_mul_i32 s{sT0}, s{sT0}, 5
        s_and_b32 s{sT1}, s{sHD}, 1
        s_lshl_b32 s{sT2}, s{sT1}, 1
        s_add_u32 s{sT2}, s{sT2}, s{sT0}
        s_add_u32 s{sT3}, s{sT2}, 2
        s_lshr_b32 s{sT2}, s{sT2}, 3
        s_lshr_b32 s{sT3}, s{sT3}, 3
        v_lshrrev_b32 v2, 1, v1
        v_min_u32 v2, 4, v2
        v_cmp_le_u32 vcc, 3, v2
        v_subrev_u32 v3, 2, v2
        v_cndmask_b32 v2, v2, v3, vcc
        s_cmp_eq_u32 s{sQB}, 0
        s_cselect_b32 s{sT4}, 0, 4
        v_mov_b32 v3, s{sT4}
        v_cndmask_b32 v3, 0, v3, vcc
        v_mul_u32_u24 v2, 10, v2
        v_and_b32 v4, 1, v1
        v_cmp_eq_u32 vcc, 1, v4
        v_mov_b32 v4, s{sT2}
        v_mov_b32 v5, s{sT3}
        v_cndmask_b32 v4, v4, v5, vcc
        v_add_u32 v2, v2, v4
        v_lshlrev_b32 v2, 5, v2
        s_lshl_b32 s{sT4}, s{sQB}, 2
        s_add_u32 s{sT4}, s{sT4}, s{sWV}
        v_add_u32 v2, s{sT4}, v2
        v_sub_u32 v2, v2, v3
        v_mul_u32_u24 v2, {FS}, v2
        v_add_u32 v{GFA}, {WS_FG}, v2
        s_mul_i32 s{sT1}, s{sT1}, 3
        s_add_u32 s{sGA}, s{sT0}, s{sT1}
        s_add_u32 s{sGB}, s{sT0}, 2
        s_lshl_b32 s{sGA}, s{sGA}, 15
        s_lshl_b32 s{sGB}, s{sGB}, 15
        s_lshl_b32 s{sT4}, s{sT4}, 10
        s_add_u32 s{sGA}, s{sGA}, s{sT4}
        s_add_u32 s{sGB}, s{sGB}, s{sT4}
        v_lshlrev_b32 v14, 4, v1
        v_bfrev_b32 v15, 1
        s_cmp_eq_u32 s{sQB}, 0
        s_cselect_b64 vcc, -1, 0
        v_cndmask_b32 v15, v14, v15, vcc
        s_lshl_b32 s{sT5}, s{sWV}, 10
        """)
    def c_idle():
        a("L_c_idle:")
        b1_loads(0); b1_loads(1); shift_load(); build_masks("0"); a2_setup(); qkv_addr(); wom_setup()
        a("s_waitcnt vmcnt(0)\ns_barrier")
        nonce_issue(vNC)
        b1_compute(128)
        a("s_waitcnt vmcnt(0)")
        nonce_take(vNC); publish_u(2)
        if cfg.wopre:
            a(f"""
            s_sub_u32 s{sT0}, s{sJ}, 30
            s_lshl_b32 s{sT0}, s{sT0}, 2
            s_add_u32 s{sT0}, s{sT0}, s{sWV}
            s_lshl_b32 s{sT0}, s{sT0}, 6
            s_mul_i32 s{sT1}, s{sXC}, 800
            s_add_u32 s{sT0}, s{sT0}, s{sT1}
            v_add_u32 v2, s{sT0}, v1
            v_lshlrev_b32 v2, 7, v2
            """)
            for i in range(cfg.wopre):
                a("s_waitcnt vmcnt(1)")
                a(f"v_subrev_u32 v3, {819200}, v2\nv_min_u32 v2, v2, v3\nbuffer_load_dword v63, v2, {srd(SWO)}, 0 offen\nv_add_u32 v2, {512*128}, v2")
        a("s_branch L_c_post")
    ool.append(c_idle)
    if cfg.b1a < 0: b1_loads(0)
    if cfg.b1b < 0: b1_loads(1)
    shift_load()
    AX = 48; AW = 56; ACC = 64
    FS4 = [128, 144, 16, 32]
    a(f"""
    s_and_b32 s{sT0}, s{sWV}, 1
    s_lshr_b32 s{sT1}, s{sWV}, 1
    v_and_b32 v2, 31, v1
    v_lshrrev_b32 v3, 5, v1
    v_bfe_u32 v4, v2, 1, 3
    v_xor_b32 v4, v4, v3
    s_lshl_b32 s{sT2}, s{sT1}, 13
    v_lshlrev_b32 v5, 7, v2
    v_add_u32 v5, s{sT2}, v5
    """)
    for ks in range(4):
        a(f"v_xor_b32 v6, {2*ks}, v4\nv_lshl_add_u32 v{AX+ks}, v6, 4, v5\nv_add_u32 v{AX+4+ks}, 0x10000, v{AX+ks}")
    a(f"""
    v_bfe_u32 v4, v1, 2, 2
    v_lshl_add_u32 v5, v3, 3, v4
    v_lshlrev_b32 v5, 8, v5
    v_and_b32 v6, 3, v1
    v_lshl_add_u32 v5, v6, 3, v5
    v_and_b32 v6, 16, v1
    v_lshl_add_u32 v5, v6, 1, v5
    v_add_u32 v5, 16384, v5
    s_lshl_b32 s{sT2}, s{sT0}, 1
    """)
    for mt in range(2):
        a(f"s_add_u32 s{sT3}, s{sT2}, {mt}\nv_xor_b32 v6, s{sT3}, v4\nv_lshl_add_u32 v{AW+mt}, v6, 6, v5\nv_add_u32 v{AW+2+mt}, 0x10000, v{AW+mt}")
    build_masks("0"); a2_setup(); qkv_addr()
    if cfg.b1b < 0: wom_setup()
    if cfg.b1c < 0:
        a("s_waitcnt vmcnt(0)\ns_barrier")
        stamp(1)
        nonce_issue(vNC)
        b1_compute(128)
    def a1_reads(c, ks):
        F = FS4[ks]
        slot = c % 3; hi = slot >> 1; o = (slot & 1) * 32768
        r = []
        for half in range(2):
            for t in range(2):
                r.append(f"ds_read_b64_tr_b16 v[{F+4*half+2*t}:{F+4*half+2*t+1}], v{AW+2*hi+half} offset:{o + (16*ks+4*t)*256}")
            r.append(f"ds_read_b128 v[{F+8+4*half}:{F+8+4*half+3}], v{AX+4*hi+ks} offset:{o + half*4096}")
        return [] if cfg.noread else r
    def a1_mfma(ks, first):
        F = FS4[ks]; r = []
        for mt, nt in ((0, 0), (1, 0), (1, 1), (0, 1)):
            d = ACC + 16 * (2 * mt + nt)
            r.append(f"v_mfma_f32_32x32x16_bf16 v[{d}:{d+15}], v[{F+4*mt}:{F+4*mt+3}], v[{F+8+4*nt}:{F+8+4*nt+3}], " + ("0" if first else f"v[{d}:{d+15}]"))
        return [] if cfg.nomfma else r
    def weave(reads, mf, per):
        reads = list(reads)
        for m in mf:
            for _ in range(per):
                if reads: a(reads.pop(0))
            a(m)
        for r in reads: a(r)
    for c in range(10):
        if c == cfg.b1c: a("s_waitcnt vmcnt(0)")
        if c == pubc + 1:
            a("s_waitcnt vmcnt(0)")
            nonce_take(vNC); publish_u(2)
        if c in (0, 1, 2, 3, 5, 7, 9): stamp(1 + (0, 1, 2, 3, 5, 7, 9).index(c), "a1")
        a("s_barrier")
        if c == cfg.b1a: b1_loads(0)
        if c == cfg.b1b: b1_loads(1); wom_setup()
        weave(a1_reads(c, 0) + a1_reads(c, 1), (a1_mfma(2, False) + a1_mfma(3, False)) if c > 0 else [], 2)
        a("s_waitcnt lgkmcnt(6)")
        m0 = a1_mfma(0, c == 0); m1 = a1_mfma(1, False); rd = a1_reads(c, 2) + a1_reads(c, 3)
        if cfg.nomfma or cfg.noread:
            weave(rd, m0 + m1, 2)
        else:
            a(m0[0]); weave(rd, m0[1:], 4)
            a("s_waitcnt lgkmcnt(12)")
            weave([], m1, 0)
        a("s_waitcnt lgkmcnt(0)")
        if c == cfg.b1c:
            stamp(1); nonce_issue(vNC); b1_compute(128)
    qs = f2u(20 ** -0.5 * math.log2(math.e))
    mlast = a1_mfma(2, False) + a1_mfma(3, False)
    weave([], mlast[:4], 0)
    a(f"""
    s_and_b32 s{sT0}, s{sWV}, 1
    s_lshr_b32 s{sT1}, s{sWV}, 1
    s_lshl_b32 s{sT2}, s{sCT}, 1
    s_add_u32 s{sT2}, s{sT2}, s{sT0}
    s_lshl_b32 s{sT3}, s{sRB}, 1
    s_add_u32 s{sT3}, s{sT3}, s{sT1}
    s_lshl_b32 s{sA}, s{sT2}, 18
    s_lshl_b32 s{sT4}, s{sT3}, 10
    s_add_u32 s{sA}, s{sA}, s{sT4}
    s_lshl_b32 s{sB}, s{sT2}, 5
    s_add_u32 s{sB}, s{sB}, s{sT3}
    s_mul_i32 s{sB}, s{sB}, {FS}
    s_add_u32 s{sB}, s{sB}, {WS_FG}
    v_and_b32 v2, 31, v1
    v_lshrrev_b32 v3, 5, v1
    v_lshlrev_b32 v2, 4, v2
    v_lshl_add_u32 v2, v3, 15, v2
    s_mov_b32 s{sT2}, {qs:#x}
    s_mov_b32 s{sT3}, {qs:#x}
    """)
    weave([], mlast[4:], 0)
    stamp(2)
    def a1_epi(scale):
        n = 0
        for mt, nt in ((0, 0), (1, 0), (1, 1), (0, 1)):
            for i in (0, 2):
                d = ACC + 16 * (2 * mt + nt) + 4 * i
                p = 128 + 4 * n; n += 1
                if scale:
                    for k in range(4): a(f"v_pk_mul_f32 {pr(d+2*k)}, {pr(d+2*k)}, s[{sT2}:{sT3}]")
                for k in range(4): a(f"v_cvt_pk_bf16_f32 v{p+k}, v{d+2*k}, v{d+2*k+1}")
                a(f"s_add_u32 s{sT0}, s{sA}, {(4*mt+i)*32768}")
                a(f"v_permlane32_swap_b32 v{p}, v{p+2}\nv_permlane32_swap_b32 v{p+1}, v{p+3}")
                a(f"buffer_store_dwordx4 v[{p}:{p+3}], v2, {srd(SWS)}, s{sT0} offen offset:{nt*512} sc1")
    a(f"s_cmp_ge_u32 s{sCT}, 5\ns_cbranch_scc1 L_epi_d")
    for mt, nt in ((0, 0), (1, 0), (1, 1), (0, 1)):
        for k in range(8):
            d = ACC + 16 * (2 * mt + nt) + 2 * k
            a(f"v_pk_mul_f32 {pr(d)}, {pr(d)}, s[{sT2}:{sT3}]")
    a("L_epi_d:\ns_nop 6")
    a1_epi(False)
    a("s_waitcnt vmcnt(0)")
    publish(sB, 4)
    a("L_c_post:")
    stamp(3)
    if cfg.stop <= 1: a("s_branch L_fin")
    a(f"""
    v_mov_b32 v8, 0x3f803f80
    v_mov_b32 v9, 0x3f803f80
    v_lshlrev_b32 v10, 3, v1
    ds_write_b64 v10, v[8:9] offset:{L_ONES}
    """)
    poll(GFA, 8)
    stamp(4)
    for half in (1, 0):
        for sec, lds, lstr in ((0, L_Q, 4096), (1, L_K, 8192), (2, L_V, VSTR)):
            if sec == 0 and half == 0: continue
            for slot in range(3):
                base = (sGA, 32768 * slot) if slot < 2 else (sGB, 0)
                off = base[1] + sec * 80 * 32768 - (0 if half else 4096)
                a(f"s_add_u32 s{sT0}, s{base[0]}, {off}")
                dma(14 if half else 15, SWS, f"s{sT0}", f"s_add_u32 m0, s{sT5}, {lds + slot*lstr + (4096 if (half and sec) else 0)}", "sc1")
    a("s_waitcnt vmcnt(0) lgkmcnt(0)")

    for r in (ROH, ROH + 1, ROH + 2, FZA, ZD): a(f"v_mov_b32 v{r}, 0")
    if cfg.prio: a("s_branch L_join_b\nL_join_a:\ns_setprio 1\nL_join_b:\ns_barrier")
    else: a("L_join_a:\ns_barrier")
    stamp(5)
    if cfg.stop <= 2: a("s_branch L_fin")
    Q0, Q1 = 16, 20; KF = 24; VF = 40; AV = 58; S = 64; PP = 96; O = 112
    def wo_dma(i):
        if cfg.nowo: return
        a(f"s_mov_b32 m0, s{WOM[i]}\nbuffer_load_dwordx4 v{WOV+i}, {srd(SWO)}, s{sC160} offen lds")
    def k_read(b):
        f = KF + 8 * (b & 1); o = (8 - b) * 512
        a(f"ds_read_b128 v[{f}:{f+3}], v{AK0} offset:{o}\nds_read_b128 v[{f+4}:{f+7}], v{AK1} offset:{o}")
    def v_read(b):
        f = VF + 8 * (b & 1)
        for s in range(2):
            for t in range(2):
                a(f"ds_read_b64_tr_b16 v[{f+4*s+2*t}:{f+4*s+2*t+1}], v{AV} offset:{(16*s+8*t)*16}")
        a(f"v_sub_u32 v{AV}, v{AV}, v{AVD}")
    def hook(b):
        L = a.lab("L_hook"); R = a.lab("L_hookr")
        a(f"s_cmp_eq_u32 s{sNV}, {b}\ns_cbranch_scc1 {L}\n{R}:")
        def body():
            a(f"{L}:\ns_nop 7")
            for r in range(16): a(f"v_mov_b32 v{vCZ+r}, {BIGNEG:#x}\nv_mov_b32 v{vCF+r}, v{vCZ+r}")
            a(f"s_nop 1\ns_branch {R}")
        ool.append(body)
    def qk(b, half=None):
        f = KF + 8 * (b & 1); d = S + 16 * (b & 1)
        c = vCD if b == 0 else (vCF if b == 8 else vCZ)
        if half in (None, 0): a(f"v_mfma_f32_32x32x16_bf16 v[{d}:{d+15}], v[{f}:{f+3}], v[{Q0}:{Q0+3}], v[{c}:{c+15}]")
        if half in (None, 1): a(f"v_mfma_f32_32x32x16_bf16 v[{d}:{d+15}], v[{f+4}:{f+7}], v[{Q1}:{Q1+3}], v[{d}:{d+15}]")
    def pv(b, s):
        p = PP + 8 * (b & 1); f = VF + 8 * (b & 1)
        a(f"v_mfma_f32_32x32x16_bf16 v[{O}:{O+15}], v[{f+4*s}:{f+4*s+3}], v[{p+4*s}:{p+4*s+3}], " + ("0" if (b == 0 and s == 0) else f"v[{O}:{O+15}]"))
    def cv(b, g):
        d = S + 16 * (b & 1) + 4 * g; p = PP + 8 * (b & 1) + 2 * g
        a(f"v_cvt_pk_bf16_f32 v{p}, v{d}, v{d+1}\nv_cvt_pk_bf16_f32 v{p+1}, v{d+2}, v{d+3}")
    def ex(b, g):
        d = S + 16 * (b & 1) + 4 * g
        a(f"v_exp_f32 v{d}, v{d}\nv_exp_f32 v{d+1}, v{d+1}")
        if g > 0: cv(b, g - 1)
        elif b > 0: cv(b - 1, 3)
        a(f"v_exp_f32 v{d+2}, v{d+2}\nv_exp_f32 v{d+3}, v{d+3}")
    def side(b, k):
        n = 2 * b + k - 1
        if n == 0:
            L = a.lab("L_side")
            a(f"s_cmp_lg_u32 s{sFB}, 0\ns_cbranch_scc1 {L}\ns_barrier\n{L}:")
        if n == cfg.zpub:
            L2 = a.lab("L_zp"); R = a.lab("L_zpr")
            a(f"s_cmp_lg_u32 s{sCHV}, 0\ns_cbranch_scc1 {L2}\n{R}:")
            def body():
                a(f"{L2}:\ns_waitcnt vmcnt({0 if cfg.nowo else n})")
                a(f"s_mul_i32 s{sT0}, s{sCH}, {FS}\ns_add_u32 s{sT0}, s{sT0}, {WS_FZ}")
                publish(sT0, 4)
                a(f"s_branch {R}")
            ool.append(body)
        if n == cfg.fzn:
            L = a.lab("L_side")
            a(f"s_cmp_lt_u32 s{sWV}, 4\ns_cbranch_scc1 {L}")
            a(f"buffer_load_dwordx2 v[{FZR}:{FZR+1}], v{FZA}, {srd(SWS)}, 0 offen sc1\n{L}:")
        if n == 12:
            L = a.lab("L_side")
            a(f"s_cmp_ge_u32 s{sWV}, 4\ns_cbranch_scc1 {L}")
            wo_dma(n); a(f"{L}:")
        elif 0 <= n < 12: wo_dma(n)
    a(f"ds_read_b128 v[{Q0}:{Q0+3}], v{QAD0}\nds_read_b128 v[{Q1}:{Q1+3}], v{QAD1}")
    stamp(1, "a2")
    a("L_a2_start:")
    a(f"v_mov_b32 v{AV}, v{AV0}")
    k_read(0); k_read(1)
    a(f"""
    s_lshl_b32 s{sT0}, s{sQB}, 3
    s_add_u32 s{sT0}, s{sT0}, s{sWV}
    s_lshl_b32 s{sT4}, s{sHD}, 16
    s_lshl_b32 s{sT2}, s{sT0}, 9
    s_add_u32 s{sT4}, s{sT4}, s{sT2}
    s_add_u32 s{sT4}, s{sT4}, {WS_O}
    s_lshl_b32 s{sT5}, s{sHD}, 14
    s_lshl_b32 s{sT3}, s{sT0}, 8
    s_add_u32 s{sT5}, s{sT5}, s{sT3}
    s_add_u32 s{sT5}, s{sT5}, {WS_O8}
    s_lshl_b32 s{sA}, s{sT0}, 5
    s_add_u32 s{sA}, s{sA}, s{sHD}
    s_mul_i32 s{sA}, s{sA}, {FS}
    s_add_u32 s{sA}, s{sA}, {WS_FO}
    s_waitcnt lgkmcnt(2)
    """)
    qk(0, 0)
    a(f"v_and_b32 v{Q1}, v{QM0}, v{Q1}\nv_and_b32 v{Q1+1}, v{QM0}, v{Q1+1}\nv_and_b32 v{Q1+2}, v{QM1}, v{Q1+2}\nv_and_b32 v{Q1+3}, v{QM1}, v{Q1+3}")
    qk(0, 1)
    for b in range(9):
        if b in (1, 3, 5, 7): stamp(2 + b // 2, "a2")
        if cfg.prio and b == cfg.prio: a("s_setprio 0")
        if b > 0:
            a("s_waitcnt lgkmcnt(0)")
            pv(b - 1, 0)
        v_read(b)
        if b < 7: k_read(b + 2)
        ex(b, 0)
        if b < 8:
            hook(b + 1)
            if b == 0: a("s_waitcnt lgkmcnt(6)")
            qk(b + 1, 0)
        else: pv(b - 1, 1)
        side(b, 0)
        ex(b, 1)
        if b < 8: qk(b + 1, 1)
        ex(b, 2)
        if 0 < b < 8: pv(b - 1, 1)
        if b == 8:
            a("s_waitcnt lgkmcnt(0)"); pv(8, 0)
        side(b, 1)
        ex(b, 3)
    cv(8, 3)
    pv(8, 1)
    stamp(6, "a2")
    lo = f2u(2.0 ** -24); hi = f2u(2.0 ** 40); fin = f2u(3.0e38)
    a(f"v_rcp_f32 v2, v{O+12}")
    a(f"v_cmp_nle_f32 vcc, {lo:#x}, v{O+12}\ns_mov_b64 s[{sEX}:{sEX+1}], vcc\nv_cmp_nge_f32 vcc, {hi:#x}, v{O+12}\ns_or_b64 s[{sEX}:{sEX+1}], s[{sEX}:{sEX+1}], vcc")
    for i in range(6): a(f"v_add_f32 v{4+i}, abs(v{O+2*i}), abs(v{O+2*i+1})")
    for i in range(12): a(f"v_mul_f32 v{O+i}, v{O+i}, v2")
    a("v_add_f32 v4, v4, v5\nv_add_f32 v6, v6, v7\nv_add_f32 v8, v8, v9\nv_add_f32 v4, v4, v6\nv_add_f32 v4, v4, v8")
    for i in range(6): a(f"v_cvt_pk_bf16_f32 v{24+i}, v{O+2*i}, v{O+2*i+1}")
    a(f"v_cmp_nge_f32 vcc, {fin:#x}, v4\ns_or_b64 vcc, s[{sEX}:{sEX+1}], vcc")
    if cfg.force_fb: a("s_mov_b64 vcc, -1")
    a("s_cbranch_vccnz L_a2_fb\nL_a2_ok:")
    def fallback():
        a(f"L_a2_fb:\ns_cmp_lg_u32 s{sFB}, 0\ns_cbranch_scc1 L_a2_ok\ns_mov_b32 s{sFB}, 1")
        build_masks("0")
        a(f"v_mov_b32 v4, {BIGNEG:#x}")
        for b in range(9):
            if b > 0: hook(b)
            k_read(b); a("s_waitcnt lgkmcnt(0)"); qk(b)
            d = S + 16 * (b & 1)
            for i in range(8): a(f"v_max3_f32 v4, v4, v{d+2*i}, v{d+2*i+1}")
        a("v_mov_b32 v5, v4\nv_permlane32_swap_b32 v4, v5\nv_max_f32 v4, v4, v5\nv_sub_f32 v4, 0, v4")
        build_masks("v4")
        a("s_nop 1\ns_branch L_a2_start")
    a(f"""
    buffer_store_dwordx4 v[24:27], v{OS0}, {srd(SWS)}, s{sT4} offen sc1
    s_mov_b32 exec_hi, 0
    buffer_store_dwordx2 v[28:29], v{OS1}, {srd(SWS)}, s{sT5} offen sc1
    s_mov_b32 exec_hi, -1
    """)
    stamp(6); stamp(7, "a2"); stamp(1, "g2")
    WA, WA2, WA3, WB, WB3, OA, OB = 52, 53, 54, 55, 56, 57, 58
    RO = 59; STA = 62
    a(f"""
    v_lshrrev_b32 v2, 4, v1
    v_bfe_u32 v3, v1, 2, 2
    v_and_b32 v4, 3, v1
    s_cmp_ge_u32 s{sWV}, 4
    s_cselect_b32 s{sT0}, 96, 0
    v_lshl_add_u32 v4, v4, 3, s{sT0}
    v_lshrrev_b32 v5, 1, v2
    v_mul_u32_u24 v5, 24, v5
    v_and_b32 v6, 1, v2
    v_lshl_add_u32 v5, v6, 2, v5
    v_add_u32 v5, v5, v3
    v_mul_u32_u24 v5, 160, v5
    v_add_u32 v{WA3}, v5, v4
    v_add_u32 v{WA2}, {L_WO1 + 6*6400}, v{WA3}
    v_add_u32 v{WA}, {L_WO1}, v{WA3}
    v_mul_u32_u24 v5, 40, v2
    v_add3_u32 v5, v5, v3, 16
    v_mul_u32_u24 v5, 160, v5
    v_add_u32 v{WB3}, v5, v4
    v_add_u32 v{WB}, {L_WO1}, v{WB3}
    s_waitcnt vmcnt(2)
    s_barrier
    """)
    def a3_addr():
        a(f"""
        v_lshrrev_b32 v2, 4, v1
        v_and_b32 v5, 15, v1
        s_lshl_b32 s{sT0}, s{sHW}, 4
        v_add_u32 v5, s{sT0}, v5
        v_lshlrev_b32 v6, 10, v2
        v_lshl_add_u32 v{OA}, v5, 4, v6
        v_add_u32 v{OA}, {L_O16}, v{OA}
        v_and_b32 v6, 1, v2
        v_lshlrev_b32 v6, 11, v6
        v_lshrrev_b32 v7, 1, v2
        v_lshl_add_u32 v6, v7, 9, v6
        v_lshl_add_u32 v{OB}, v5, 3, v6
        v_add_u32 v{OB}, {L_O8}, v{OB}
        v_mul_u32_u24 v5, 160, v5
        v_lshl_add_u32 v5, v2, 3, v5
        v_add_u32 v{STA}, {L_ST}, v5
        """)
    def wo_frag(step, ct, d):
        for t in range(2):
            if step < 6: r, o = WA, (40 * step + 8 * t) * 160
            elif step < 12: r, o = WA2, (40 * (step - 6) + 8 * t) * 160
            elif step < 16: r, o = WA3, (40 * (step - 12) + 8 * t) * 160
            elif step < 19: r, o = WB, (160 * (step - 16) + 4 * t) * 160
            else: r, o = WB3, 4 * t * 160
            a(f"ds_read_b64_tr_b16 v[{d+2*t}:{d+2*t+1}], v{r} offset:{o + 32*ct}")
    def o_frag(step, d):
        if step < 16:
            a(f"ds_read_b128 v[{d}:{d+3}], v{OA} offset:{4096*step}"); return 1
        for t in range(2):
            a(f"ds_read_b64 v[{d+2*t}:{d+2*t+1}], v{OB} offset:{4096*(step-16) + 1024*t}")
        return 2
    def a3_loop(nct, fr, ct0):
        ACC3 = 16; OF = 28
        q.clear()
        first = True
        for sg in range(4):
            steps = [4 * sg + k for k in range(4)] + [16 + sg]
            if nct == 3: a(f"s_waitcnt vmcnt({15 - 5*sg})")
            a("s_barrier"); stamp(3 + sg, "a3")
            for k, st in enumerate(steps):
                n = o_frag(st, OF + 4 * k); issue(("O", st), n)
            if nct == 3 and sg in (1, 2):
                for st in (12 + 2 * (sg - 1), 13 + 2 * (sg - 1)):
                    for ct in range(3): fr[(st, ct)] = fr[(st - 12, ct)]
            for k, st in enumerate(steps):
                wait_for({("O", st), ("W", st)})
                for ct in range(nct):
                    w = fr[(st, ct)]; d = ACC3 + 4 * ct; o = OF + 4 * k
                    a(f"v_mfma_f32_16x16x32_bf16 v[{d}:{d+3}], v[{w}:{w+3}], v[{o}:{o+3}], " + ("0" if first else f"v[{d}:{d+3}]"))
                first = False
                if nct == 3 and sg in (1, 2) and k in (1, 3):
                    st2 = 12 + 2 * (sg - 1) + (k >> 1)
                    for ct in range(3):
                        wo_frag(st2, ct, fr[(st2, ct)]); issue(("W", st2), 2)
        for ct in range(nct):
            d = ACC3 + 4 * ct
            a(f"v_cvt_pk_bf16_f32 v{2+2*ct}, v{d}, v{d+1}\nv_cvt_pk_bf16_f32 v{3+2*ct}, v{d+2}, v{d+3}\nds_write_b64 v{STA}, v[{2+2*ct}:{3+2*ct}] offset:{32*(ct+ct0)}")
        a("s_waitcnt lgkmcnt(0)\ns_barrier"); stamp(7, "a3")
    stamp(2, "g2")
    a(f"s_cmp_ge_u32 s{sWV}, 4\ns_cbranch_scc1 L_g2_h")
    csteps = list(range(12)) + [16, 17, 18, 19]
    cfr = {}
    for n, st in enumerate(csteps):
        for ct in range(3):
            cfr[(st, ct)] = 64 + 4 * (3 * n + ct)
            wo_frag(st, ct, cfr[(st, ct)])
        if n == 7:
            a("s_waitcnt vmcnt(0)"); publish(sA, 4); stamp(3, "g2")
    for k in rounds(RO): pass
    a3_addr()
    a(f"""
    s_lshl_b32 s{sT0}, s{sR64}, 6
    s_add_u32 s{sT0}, s{sT0}, s{sWV}
    v_and_b32 v8, 15, v1
    v_lshl_add_u32 v8, v8, 2, s{sT0}
    v_mul_u32_u24 v8, {FS}, v8
    v_add_u32 v8, {WS_FO}, v8
    v_lshlrev_b32 v12, 4, v1
    v_and_b32 v13, 31, v1
    v_lshrrev_b32 v9, 5, v1
    v_lshlrev_b32 v13, 4, v13
    v_lshl_add_u32 v13, v9, 16, v13
    s_lshl_b32 s{sA}, s{sWV}, 16
    s_lshl_b32 s{sT0}, s{sR64}, 10
    s_add_u32 s{sA}, s{sA}, s{sT0}
    s_lshl_b32 s{sB}, s{sWV}, 14
    s_lshl_b32 s{sT0}, s{sR64}, 9
    s_add_u32 s{sB}, s{sB}, s{sT0}
    s_lshl_b32 s{sT4}, s{sWV}, 11
    s_lshl_b32 s{sT5}, s{sWV}, 10
    s_add_u32 s{sT0}, s{sT5}, {L_ST}
    v_add_u32 v14, s{sT0}, v12
    s_mul_i32 s{sT3}, s{sR64}, {64*2560}
    s_add_u32 s{sT3}, s{sT3}, s{sC160}
    s_waitcnt lgkmcnt(0)
    s_barrier
    """)
    stamp(4, "g2")
    poll(8, 10)
    stamp(7); stamp(5, "g2"); stamp(1, "a3")
    for i in range(8):
        for hh in range(2):
            a(f"s_add_u32 s{sT0}, s{sA}, {WS_O + 32768*(8*i + hh)}")
            dma(12, SWS, f"s{sT0}", f"s_add_u32 m0, s{sT4}, {L_O16 + 1024*(8*i + hh)}", "sc1")
        if i & 1:
            a(f"s_add_u32 s{sT0}, s{sB}, {WS_O8 + 16384*8*(i >> 1)}")
            dma(13, SWS, f"s{sT0}", f"s_add_u32 m0, s{sT5}, {L_O8 + 4096*(i >> 1)}", "sc1")
    a3_loop(3, cfr, 0)
    a(f"""
    ds_read_b128 v[16:19], v14
    ds_read_b128 v[20:23], v14 offset:4096
    ds_read_b128 v[24:27], v14 offset:8192
    s_waitcnt lgkmcnt(2)
    buffer_store_dwordx4 v[16:19], v{RO}, {srd(SOUT)}, s{sT3} offen {cfg.outa}
    s_waitcnt lgkmcnt(1)
    buffer_store_dwordx4 v[20:23], v{RO+1}, {srd(SOUT)}, s{sT3} offen {cfg.outa}
    s_cmp_ge_u32 s{sHW}, 2
    s_cbranch_scc1 L_fin
    s_waitcnt lgkmcnt(0)
    buffer_store_dwordx4 v[24:27], v{RO+2}, {srd(SOUT)}, s{sT3} offen {cfg.outa}
    s_branch L_fin
    """)
    a("L_g2_h:")
    hfr = {}; ZV = 40
    a(f"""
    s_mul_i32 s{sB}, s{sC80}, {80*4096}
    s_lshl_b32 s{sT0}, s{sR64}, 7
    s_add_u32 s{sB}, s{sB}, s{sT0}
    s_add_u32 s{sB}, s{sB}, {WS_Z}
    """)
    check_or_poll(FZA, FZR)
    for k in range(3):
        a(f"s_add_u32 s{sT1}, s{sHW}, {4*k}\ns_min_u32 s{sT1}, s{sT1}, 9\ns_lshl_b32 s{sT0}, s{sT1}, 15\ns_add_u32 s{sT0}, s{sT0}, s{sB}\ns_mul_i32 s{sT1}, s{sT1}, {ZSTR}")
        dma(ZD, SWS, f"s{sT0}", f"s_add_u32 m0, s{sT1}, {L_Z}", "sc1")
    for st in range(20):
        for ct in range(2):
            i = 2 * st + ct
            hfr[(st, ct)] = 64 + 4 * i if i < 22 else 184 + 4 * (i - 22)
            wo_frag(st, ct, hfr[(st, ct)])
        if st == 11:
            a("s_waitcnt vmcnt(3)"); publish(sA, 4); stamp(3, "g2")
    a3_addr()
    a("s_waitcnt vmcnt(1) lgkmcnt(0)\ns_barrier")
    stamp(4, "g2"); stamp(7); stamp(1, "a3")
    a(f"s_mul_i32 s{sT2}, s{sR64}, {64*2560}\ns_add_u32 s{sT2}, s{sT2}, s{sC160}\ns_add_u32 s{sT2}, s{sT2}, 1280")
    for k in range(3):
        if k == 2: a(f"s_cmp_ge_u32 s{sHW}, 2\ns_cbranch_scc1 L_b3d")
        for j in range(8): a(f"v_mov_b32 v{ZV+j}, 0")
        for j in range(8): a(f"ds_read_u16_d16_hi v{ZV+j}, v{ZA+k} offset:{128*j}")
        for j in range(4):
            a(f"v_lshlrev_b32 v{ZT+2*j}, 16, v{QV+4*k+j}\nv_and_b32 v{ZT+1+2*j}, 0xffff0000, v{QV+4*k+j}")
        a("s_waitcnt lgkmcnt(0)")
        for j in range(8): a(f"v_mul_f32 v{ZT+j}, v{ZT+j}, v{ZV+j}")
        for j in range(4): a(f"v_cvt_pk_bf16_f32 v{QV+4*k+j}, v{ZT+2*j}, v{ZT+1+2*j}")
        a(f"buffer_store_dwordx4 v[{QV+4*k}:{QV+4*k+3}], v{ROH+k}, {srd(SOUT)}, s{sT2} offen {cfg.outb}")
    a("L_b3d:")
    stamp(5, "g2"); stamp(2, "a3")
    a3_loop(2, hfr, 3)
    a("L_fin:")
    if cfg.stamps:
        a("s_waitcnt vmcnt(0)")
        stamp(8)
        a(f"s_lshl_b32 s{sT0}, s2, 3\ns_add_u32 s{sT0}, s{sT0}, s{sWV}\ns_lshl_b32 s{sT0}, s{sT0}, 7\ns_add_u32 s{sT0}, s{sT0}, {WS_T}\nv_mov_b32 v2, s{sT0}\ns_mov_b64 exec, 1")
        for i in range(9):
            a(f"v_mov_b32 v4, s{sSTAMP+2*i}\nv_mov_b32 v5, s{sSTAMP+2*i+1}\nbuffer_store_dwordx2 v[4:5], v2, {srd(SWS)}, 0 offen offset:{8*i}\ns_waitcnt vmcnt(0)")
    a("L_exit:\ns_endpgm")
    i = 0
    while i < len(ool):
        ool[i](); i += 1
    a("L_end:")
    fallback()
    while i < len(ool):
        ool[i](); i += 1
    body = a.finish()
    hdr = open("cdna_kernels/" + NAME + ".s.ref").read().split("; Override launch")[0]
    src = hdr + f"""; Single persistent kernel, one 512-thread workgroup per CU; generated by the author's own script.
; @launch grid=(256,1,1) block=(512,1,1) lds=163840
.amdgcn_target "amdgcn-amd-amdhsa--gfx950"
.text
.globl {NAME}_kernel
.p2align 8
.type {NAME}_kernel,@function
{NAME}_kernel:
{body}.section .rodata,"a"
.p2align 6
.amdhsa_kernel {NAME}_kernel
  .amdhsa_next_free_vgpr 256
  .amdhsa_next_free_sgpr 102
  .amdhsa_accum_offset 256
  .amdhsa_group_segment_fixed_size 0
  .amdhsa_kernarg_size 96
  .amdhsa_user_sgpr_count 2
  .amdhsa_user_sgpr_kernarg_segment_ptr 1
  .amdhsa_system_sgpr_workgroup_id_x 1
.end_amdhsa_kernel
"""
    return src

if __name__ == "__main__":
    cfg = Cfg()
    out = sys.argv[1]
    for kv in sys.argv[2:]:
        k, v = kv.split("=")
        old = getattr(cfg, k)
        setattr(cfg, k, (v == "1") if isinstance(old, bool) else (int(v) if isinstance(old, int) else v))
    open(out, "w").write(gen(cfg))
```

```python
import sys, math, struct
from asmdsl import Asm

NAME = "concat_heads__sliding_block__ssm_conv_h3__prompt"

class Cfg:
    stamps = False
    grp = ""
    stop = 99
    nt_in = ""
    fstr = 128
    slp = 1
    force_fb = False
    ncls = 10
    b1a = -1
    b1b = -1
    b1c = -1
    map2 = "head"
    outa = "sc1"
    outb = "sc1"
    tlb = 0
    zpub = 4
    fzn = 14
    prio = 4
    ufs = 8
    wopre = 8
    noread = False; nomfma = False; nowo = False

WS_G = 0x0; WS_U = 0x800000; WS_Z = 0xB00000; WS_O = 0xE00000; WS_O8 = 0x1000000
WS_FG = 0x1100000; WS_FU = 0x1140000; WS_FZ = 0x1180000; WS_FO = 0x11C0000; WS_T = 0x1200000
WS_SIZE = 0x1400000
L_KB = 98304; L_VB = L_KB + 11024
L_H = 119808; HSTR = 8320; HODD = 4160
L_U = 144768; USTR = 4608
L_V = 32768; VSTR = 8256; L_ONES = L_V + 24768; L_K = 58112; L_Q = 82688
L_WO1 = 82688
L_WO2 = 0
L_Z = 32768; ZSTR = 1040; L_O8 = 43264; L_ST = 59648; L_O16 = 98304
SX, SW, SWO, SQ, SK, SV, SSH, SH, SD, SOUT, SDBG, SWS = [8 + 4 * i for i in range(12)]
def srd(b): return f"s[{b}:{b+3}]"
sWON, sC160 = 6, 7
sWV, sXC, sJ, sHW = 56, 57, 58, 59
sN = 60
sR64, sC80, sRB, sCT, sCH, sCHV, sHD, sQB = 62, 63, 64, 65, 66, 67, 68, 69
sT0, sT1, sT2, sT3, sT4, sT5 = 70, 71, 72, 73, 74, 75
sCNT, sNV, sFB, sKC = 76, 77, 78, 79
sEX = 80
sA, sB = 82, 83
sSTAMP = 84
WOM = list(range(24, 36)) + [sWON]
BIGNEG = 0xf149f2ca
vCZ, vCD, vCF = 208, 224, 240
QV = 152; ROH = 164; ZA = 167; FZA = 170; ZD = 171; FZR = 172; QA = 174; ZT = 174
WOV = 184; AK0, AK1, AVD, AV0, QAD0, QAD1, QM0, QM1, OS0, OS1 = 197, 198, 199, 200, 201, 202, 203, 204, 205, 206

def f2u(x): return struct.unpack("<I", struct.pack("<f", x))[0]
def pr(b): return f"v[{b}:{b+1}]"

def gen(cfg):
    a = Asm()
    FS = cfg.fstr
    ool = []
    def stamp(i, grp=""):
        if cfg.stamps and (grp == cfg.grp or i in (0, 8) and grp == ""):
            a(f"s_memrealtime s[{sSTAMP+2*i}:{sSTAMP+2*i+1}]\ns_memtime s[4:5]\ns_waitcnt lgkmcnt(0)\ns_mov_b32 s{sSTAMP+2*i+1}, s4")
    def dma(vaddr, s, soff, m0, flags=""):
        if isinstance(m0, int): a(f"s_mov_b32 m0, {m0}")
        else: a(m0)
        a(f"buffer_load_dwordx4 v{vaddr}, {srd(s)}, {soff} offen {flags} lds")
    def poll(vaddr, t):
        L = a.lab("L_poll"); D = a.lab("L_polld")
        a(f"s_mov_b32 s{sCNT}, 0\n{L}:")
        a(f"buffer_load_dwordx2 v[{t}:{t+1}], v{vaddr}, {srd(SWS)}, 0 offen sc1\ns_waitcnt vmcnt(0)")
        a(f"v_cmp_ne_u64 vcc, s[{sN}:{sN+1}], v[{t}:{t+1}]")
        a(f"s_cbranch_vccz {D}\ns_add_u32 s{sCNT}, s{sCNT}, 1\ns_cmp_lt_u32 s{sCNT}, 0x40000\ns_cbranch_scc0 {D}\ns_sleep {cfg.slp}\ns_branch {L}\n{D}:")
    def check_or_poll(vaddr, t):
        L = a.lab("L_cp"); R = a.lab("L_cpr")
        a(f"v_cmp_ne_u64 vcc, s[{sN}:{sN+1}], v[{t}:{t+1}]\ns_cbranch_vccnz {L}\n{R}:")
        def body():
            a(f"{L}:"); poll(vaddr, t); a(f"s_branch {R}")
        ool.append(body)
    def publish(soff_sgpr, t):
        a(f"v_mov_b32 v{t}, s{sN}\nv_mov_b32 v{t+1}, s{sN+1}\nv_mov_b32 v{t+2}, s{soff_sgpr}")
        a(f"s_mov_b64 exec, 1\nbuffer_store_dwordx2 v[{t}:{t+1}], v{t+2}, {srd(SWS)}, 0 offen sc1\ns_mov_b64 exec, -1")
    def nonce_issue(t):
        a(f"v_mov_b32 v{t+2}, 0\nbuffer_load_dwordx2 v[{t}:{t+1}], v{t+2}, {srd(SDBG)}, 0 offen sc1")
    def nonce_take(t):
        L = a.lab("L_non"); R = a.lab("L_nonr"); D = a.lab("L_nond")
        a(f"s_mov_b32 s{sCNT}, 0\n{R}:\nv_readfirstlane_b32 s{sN}, v{t}\nv_readfirstlane_b32 s{sN+1}, v{t+1}")
        a(f"s_cmp_eq_u32 s{sN}, 0\ns_cbranch_scc1 {L}\n{D}:")
        def body():
            a(f"{L}:\ns_add_u32 s{sCNT}, s{sCNT}, 1\ns_cmp_lt_u32 s{sCNT}, 0x40000\ns_cbranch_scc0 {D}")
            a(f"buffer_load_dwordx2 v[{t}:{t+1}], v{t+2}, {srd(SDBG)}, 0 offen sc1\ns_waitcnt vmcnt(0)\ns_branch {R}")
        ool.append(body)
    def build_masks(val):
        a(f"v_and_b32 v2, 31, v1\nv_lshrrev_b32 v3, 5, v1\nv_lshlrev_b32 v3, 2, v3\nv_sub_u32 v2, v2, v3\nv_mov_b32 v3, {BIGNEG:#x}")
        for r in range(16):
            m0 = 8 * (r >> 2) + (r & 3)
            a(f"v_cmp_le_i32 vcc, {m0}, v2\nv_mov_b32 v{vCZ+r}, {val}\nv_cndmask_b32 v{vCD+r}, v3, v{vCZ+r}, vcc\nv_cndmask_b32 v{vCF+r}, v{vCZ+r}, v3, vcc")
    q = []
    def issue(tag, n): q.extend([tag] * n)
    def wait_for(tags):
        last = max((i for i, t in enumerate(q) if t in tags), default=-1)
        if last >= 0:
            a(f"s_waitcnt lgkmcnt({min(len(q) - 1 - last, 15)})")
            del q[:last + 1]

    def b1_compute(B):
        kr = B; rs = B; vv = B + 16; ku = B + 24; tp = B + 46; vu = ku; pk = B + 16
        a(f"""
        v_and_b32 v2, 7, v0
        v_lshrrev_b32 v3, 3, v0
        v_mul_u32_u24 v4, 1296, v2
        v_lshl_add_u32 v4, v3, 2, v4
        v_add_u32 v4, {L_KB}, v4
        """)
        for i in range(-3, 8): a(f"ds_read_b32 v{kr+3+i}, v4 offset:{(640 if i < 0 else 656) + 160*i}")
        for i in range(8): a(f"ds_read_b32 v{vv+i}, v4 offset:{11024 + 160*i}")
        a(f"""
        v_lshlrev_b32 v{tp+0}, 16, v8
        v_lshlrev_b32 v{tp+1}, 16, v10
        v_and_b32 v{tp+2}, 0xffff0000, v8
        v_and_b32 v{tp+3}, 0xffff0000, v10
        v_lshlrev_b32 v{tp+4}, 16, v9
        v_lshlrev_b32 v{tp+5}, 16, v11
        v_and_b32 v{tp+6}, 0xffff0000, v9
        v_and_b32 v{tp+7}, 0xffff0000, v11
        s_mul_i32 s{sT0}, s{sC80}, {80*4096}
        s_lshl_b32 s{sT1}, s{sR64}, 7
        s_sub_u32 s{sT0}, s{sT0}, s{sT1}
        s_add_u32 s{sT0}, s{sT0}, {WS_U + 4080 - 112}
        v_lshlrev_b32 v3, 13, v3
        v_sub_u32 v2, 7, v2
        v_lshl_add_u32 v3, v2, 4, v3
        s_add_u32 s{sT1}, s{sT0}, 4096
        s_waitcnt lgkmcnt(8)
        """)
        for i in range(11): a(f"v_lshlrev_b32 v{ku+2*i}, 16, v{kr+i}\nv_and_b32 v{ku+2*i+1}, 0xffff0000, v{kr+i}")
        for i in range(8): a(f"v_pk_mul_f32 {pr(rs+2*i)}, {pr(ku+2*(i+3))}, {pr(tp)}")
        for j in range(1, 4):
            for i in range(8): a(f"v_pk_fma_f32 {pr(rs+2*i)}, {pr(ku+2*(i+3-j))}, {pr(tp+2*j)}, {pr(rs+2*i)}")
        a("s_waitcnt lgkmcnt(0)")
        for i in range(8): a(f"v_lshlrev_b32 v{vu+2*i}, 16, v{vv+i}\nv_and_b32 v{vu+2*i+1}, 0xffff0000, v{vv+i}")
        for i in range(8): a(f"v_pk_mul_f32 {pr(rs+2*i)}, {pr(rs+2*i)}, {pr(vu+2*i)}")
        for ch in range(2):
            for d in range(4): a(f"v_cvt_pk_bf16_f32 v{pk+4*ch+d}, v{rs+2*(7-2*d)+ch}, v{rs+2*(6-2*d)+ch}")
        a(f"buffer_store_dwordx4 v[{pk}:{pk+3}], v3, {srd(SWS)}, s{sT0} offen sc1")
        a(f"buffer_store_dwordx4 v[{pk+4}:{pk+7}], v3, {srd(SWS)}, s{sT1} offen sc1")
    def shift_load():
        a(f"v_lshrrev_b32 v4, 3, v0\nv_lshlrev_b32 v4, 4, v4\ns_mul_i32 s{sT4}, s{sC80}, 640\nbuffer_load_dwordx4 v[8:11], v4, {srd(SSH)}, s{sT4} offen")
    def publish_u(t):
        a(f"s_mul_i32 s{sT0}, s{sC80}, 5\ns_add_u32 s{sT0}, s{sT0}, s{sWV}\ns_lshl_b32 s{sT0}, s{sT0}, 5\ns_add_u32 s{sT0}, s{sT0}, s{sR64}\ns_mul_i32 s{sT0}, s{sT0}, {cfg.ufs}\ns_add_u32 s{sT0}, s{sT0}, {WS_FU}")
        publish(sT0, t)
    def rounds(RO):
        for k in range(3):
            a(f"""
            s_lshl_b32 s{sT0}, s{sHW}, 6
            s_add_u32 s{sT0}, s{sT0}, {256*k}
            v_add_u32 v2, s{sT0}, v1
            v_mul_u32_u24 v3, 205, v2
            v_lshrrev_b32 v3, 11, v3
            v_mul_u32_u24 v4, 10, v3
            v_sub_u32 v4, v2, v4
            v_mul_u32_u24 v5, 2560, v3
            v_lshl_add_u32 v{RO+k}, v4, 4, v5
            """)
            yield k
    def a2_setup():
        a(f"""
        s_lshl_b32 s{sT0}, s{sWV}, 9
        v_and_b32 v2, 31, v1
        v_lshrrev_b32 v3, 5, v1
        v_lshlrev_b32 v{OS1}, 3, v2
        v_lshlrev_b32 v4, 4, v2
        v_lshl_add_u32 v{OS0}, v3, 15, v4
        v_add_u32 v4, s{sT0}, v4
        v_lshl_add_u32 v5, v3, 12, v4
        v_add_u32 v{QAD0}, {L_Q}, v5
        v_add_u32 v{QAD1}, {L_Q + 8192}, v4
        v_lshl_add_u32 v{AK0}, v3, 13, v4
        v_add_u32 v{AK0}, {L_K}, v{AK0}
        v_add_u32 v{AK1}, {L_K + 16384}, v4
        v_bfe_u32 v4, v1, 2, 2
        v_lshl_add_u32 v4, v3, 2, v4
        v_lshlrev_b32 v4, 4, v4
        v_bfe_u32 v5, v1, 1, 1
        v_mul_u32_u24 v5, {VSTR}, v5
        v_and_b32 v6, 1, v1
        v_lshl_add_u32 v5, v6, 3, v5
        s_and_b32 s{sT1}, s{sHD}, 1
        s_lshl_b32 s{sT2}, s{sT1}, 3
        s_add_u32 s{sT2}, s{sT2}, {2*VSTR}
        v_mov_b32 v6, s{sT2}
        v_and_b32 v7, 16, v1
        v_cmp_ne_u32 vcc, 0, v7
        v_cndmask_b32 v5, v5, v6, vcc
        s_add_u32 s{sT0}, s{sT0}, {L_V + 4096}
        v_add3_u32 v5, v5, v4, s{sT0}
        v_add_u32 v6, {L_ONES}, v4
        v_and_b32 v7, 19, v1
        v_cmp_lt_u32 vcc, 16, v7
        v_cndmask_b32 v{AV0}, v5, v6, vcc
        v_mov_b32 v5, 512
        v_cndmask_b32 v{AVD}, v5, 0, vcc
        s_add_u32 s{sT0}, s{sWV}, 1
        s_cmp_eq_u32 s{sQB}, 0
        s_cselect_b32 s{sNV}, s{sT0}, 99
        s_mov_b32 s{sFB}, 0
        s_cmp_eq_u32 s{sT1}, 0
        s_cselect_b32 s{sT2}, -1, 0
        s_cselect_b32 s{sT3}, 0, -1
        v_cmp_eq_u32 vcc, 0, v3
        v_mov_b32 v5, s{sT2}
        v_mov_b32 v6, s{sT3}
        v_cndmask_b32 v{QM0}, 0, v5, vcc
        v_cndmask_b32 v{QM1}, 0, v6, vcc
        s_and_b32 s{sT2}, s{sJ}, 3
        s_mul_i32 s{sT2}, s{sT2}, 25
        s_and_b32 s{sT3}, s{sC80}, 1
        s_mul_i32 s{sT3}, s{sT3}, 12
        s_add_u32 s{sT2}, s{sT2}, s{sT3}
        s_add_u32 s{sT2}, s{sT2}, s{sWV}
        s_lshl_b32 s{sWON}, s{sT2}, 10
        s_mov_b32 s{sT4}, 6554
        """)
        for i in range(13):
            a(f"""
            s_lshl_b32 s{sT3}, s{sT2}, 6
            v_add_u32 v2, s{sT3}, v1
            v_mul_u32_u24 v3, s{sT4}, v2
            v_lshrrev_b32 v3, 16, v3
            v_mul_u32_u24 v3, 1120, v3
            v_lshl_add_u32 v{WOV+i}, v2, 4, v3
            s_add_u32 s{sT2}, s{sT2}, 8
            s_cmp_ge_u32 s{sT2}, 100
            s_cselect_b32 s{sT3}, 100, 0
            s_sub_u32 s{sT2}, s{sT2}, s{sT3}
            """)

    def wom_setup():
        for i in range(13):
            a(f"s_add_u32 s{sT0}, s{sWON}, {L_WO1}\ns_sub_u32 s{sT1}, s{sWON}, 76800")
            if i < 12: a(f"s_add_u32 s{sWON}, s{sWON}, 8192\ns_sub_u32 s{WOM[i]}, s{sWON}, 102400\ns_min_u32 s{sWON}, s{sWON}, s{WOM[i]}")
            a(f"s_min_u32 s{WOM[i]}, s{sT0}, s{sT1}")

    order = [(SX, 0), (SW, 1), (SK, 4), (SV, 5), (SSH, 6), (SDBG, 10), (SWS, 11), (SH, 7), (SD, 8), (SWO, 2), (SQ, 3), (SOUT, 9)]
    a("s_cmp_ge_u32 s2, 256\ns_cbranch_scc1 L_exit")
    stamp(0)
    for s, slot in order: a(f"s_load_dwordx2 s[{s}:{s+1}], s[0:1], {slot*8}")
    a(f"""
    v_lshrrev_b32 v2, 6, v0
    v_and_b32 v1, 63, v0
    s_and_b32 s{sXC}, s2, 7
    v_readfirstlane_b32 s{sWV}, v2
    s_lshr_b32 s{sJ}, s2, 3
    """)
    sizes = {SX: 2621440, SW: 2457600, SWO: 819200, SQ: 2621440, SK: 2621440, SV: 2621440, SSH: 5120, SH: 2621440, SD: 1280, SOUT: 5242880, SDBG: 256, SWS: WS_SIZE}
    for s, n in sizes.items(): a(f"s_mov_b32 s{s+2}, {n}\ns_mov_b32 s{s+3}, 0x20000")
    a(f"""
    s_and_b32 s{sT0}, s{sJ}, 3
    s_lshl_b32 s{sR64}, s{sXC}, 2
    s_add_u32 s{sR64}, s{sR64}, s{sT0}
    s_lshr_b32 s{sC80}, s{sJ}, 2
    s_mul_i32 s{sC160}, s{sC80}, 160
    s_and_b32 s{sHW}, s{sWV}, 3
    s_and_b32 s{sT0}, s{sXC}, 1
    s_mul_i32 s{sT0}, s{sT0}, 30
    s_add_u32 s{sT0}, s{sT0}, s{sJ}
    s_lshr_b32 s{sCT}, s{sT0}, 2
    s_and_b32 s{sT0}, s{sT0}, 3
    s_lshr_b32 s{sRB}, s{sXC}, 1
    s_lshl_b32 s{sRB}, s{sRB}, 2
    s_add_u32 s{sRB}, s{sRB}, s{sT0}
    """)
    if cfg.map2 == "head": a(f"s_mov_b32 s{sHD}, s{sR64}\ns_mov_b32 s{sQB}, s{sC80}")
    else: a(f"s_mov_b32 s{sHD}, s{sJ}\ns_mov_b32 s{sQB}, s{sXC}")
    a(f"s_cmp_lt_u32 s{sWV}, 4\ns_cbranch_scc1 L_C")

    vX = 16; vW = 20; vD = 21; vNH = 22; vHA = 64; vHB = 80
    a(f"""
    v_lshrrev_b32 v2, 3, v1
    v_lshrrev_b32 v3, 4, v1
    v_xor_b32 v4, v3, v1
    v_and_b32 v4, 7, v4
    v_mul_u32_u24 v2, 1280, v2
    v_lshl_add_u32 v{vX}, v4, 4, v2
    v_xor_b32 v4, 4, v4
    v_lshl_add_u32 v{vX+1}, v4, 4, v2
    v_add_u32 v{vX+1}, {8*1280}, v{vX+1}
    v_add_u32 v{vX+2}, {16*1280}, v{vX}
    v_add_u32 v{vX+3}, {16*1280}, v{vX+1}
    v_lshlrev_b32 v4, 2, v3
    v_xor_b32 v4, v4, v1
    v_and_b32 v4, 15, v4
    v_mul_u32_u24 v3, 3840, v3
    v_lshl_add_u32 v{vW}, v4, 4, v3
    s_mul_i32 s{sA}, s{sRB}, {128*1280}
    s_mul_i32 s{sT0}, s{sHW}, {32*1280}
    s_add_u32 s{sA}, s{sA}, s{sT0}
    s_lshl_b32 s{sB}, s{sCT}, 8
    s_mul_i32 s{sT0}, s{sHW}, {16*3840}
    s_add_u32 s{sB}, s{sB}, s{sT0}
    s_lshl_b32 s{sT5}, s{sHW}, 12
    """)
    if cfg.ncls == 10:
        a(f"s_and_b32 s{sT0}, s{sRB}, 3\ns_mul_i32 s{sT0}, s{sT0}, 5\ns_add_u32 s{sT0}, s{sT0}, 1\ns_lshr_b32 s{sT0}, s{sT0}, 1\ns_lshr_b32 s{sT1}, s{sRB}, 2\ns_add_u32 s{sT0}, s{sT0}, s{sT1}\ns_add_u32 s{sKC}, s{sT0}, s{sCT}")
    elif cfg.ncls == 2:
        a(f"s_add_u32 s{sT0}, s{sRB}, s{sCT}\ns_and_b32 s{sT0}, s{sT0}, 1\ns_mul_i32 s{sT0}, s{sT0}, 5\ns_add_u32 s{sKC}, s{sT0}, s{sXC}")
    elif cfg.ncls == 4:
        a(f"s_add_u32 s{sT0}, s{sRB}, s{sCT}\ns_and_b32 s{sT0}, s{sT0}, 3\ns_mul_i32 s{sT0}, s{sT0}, 5\ns_add_u32 s{sT0}, s{sT0}, 1\ns_lshr_b32 s{sT0}, s{sT0}, 1\ns_add_u32 s{sKC}, s{sT0}, s{sXC}")
    elif cfg.ncls == 3:
        a(f"s_add_u32 s{sT0}, s{sRB}, s{sCT}\ns_mul_i32 s{sT1}, s{sT0}, 86\ns_lshr_b32 s{sT1}, s{sT1}, 8\ns_mul_i32 s{sT1}, s{sT1}, 3\ns_sub_u32 s{sT0}, s{sT0}, s{sT1}\ns_mul_i32 s{sT0}, s{sT0}, 7\ns_lshr_b32 s{sT0}, s{sT0}, 1\ns_add_u32 s{sKC}, s{sT0}, s{sXC}")
    else:
        a(f"s_mov_b32 s{sKC}, s{sXC}")
    a(f"s_mul_i32 s{sT0}, s{sKC}, 205\ns_lshr_b32 s{sT0}, s{sT0}, 11\ns_mul_i32 s{sT0}, s{sT0}, 10\ns_sub_u32 s{sKC}, s{sKC}, s{sT0}")
    def ring_issue(c):
        slot = (c % 3) * 32768
        a(f"s_lshl_b32 s{sT0}, s{sKC}, 7\ns_add_u32 s{sT0}, s{sT0}, s{sA}\ns_mul_i32 s{sT1}, s{sKC}, {64*3840}\ns_add_u32 s{sT1}, s{sT1}, s{sB}")
        for i in range(4):
            dma(vX + i, SX, f"s{sT0}", f"s_add_u32 m0, s{sT5}, {slot + i*1024}")
            dma(vW, SW, f"s{sT1}", f"s_add_u32 m0, s{sT5}, {slot + 16384 + i*1024}")
            if i < 3: a(f"s_add_u32 s{sT1}, s{sT1}, {4*3840}")
        a(f"s_add_u32 s{sKC}, s{sKC}, 1\ns_cmp_eq_u32 s{sKC}, 10\ns_cselect_b32 s{sKC}, 0, s{sKC}")
    def h_chan():
        a(f"""
        s_mul_i32 s{sT0}, s{sJ}, 3
        s_lshl_b32 s{sT1}, s{sJ}, 1
        s_add_u32 s{sT1}, s{sT1}, 16
        s_cmp_lt_u32 s{sJ}, 16
        s_cselect_b32 s{sT0}, s{sT0}, s{sT1}
        s_cselect_b32 s{sT1}, 3, 2
        s_cmp_lt_u32 s{sHW}, s{sT1}
        s_cselect_b32 s{sCHV}, 1, 0
        s_cselect_b32 s{sT1}, s{sHW}, 0
        s_add_u32 s{sT0}, s{sT0}, s{sT1}
        s_mul_i32 s{sCH}, s{sXC}, 80
        s_add_u32 s{sCH}, s{sCH}, s{sT0}
        s_lshr_b32 s{sT0}, s{sT0}, 4
        s_mul_i32 s{sT1}, s{sXC}, 5
        s_add_u32 s{sT0}, s{sT0}, s{sT1}
        s_lshl_b32 s{sT0}, s{sT0}, 5
        v_and_b32 v12, 31, v1
        v_add_u32 v12, s{sT0}, v12
        v_mul_u32_u24 v12, {cfg.ufs}, v12
        v_add_u32 v12, {WS_FU}, v12
        """)
    def h_loads():
        a(f"""
        buffer_load_dwordx2 v[14:15], v12, {srd(SWS)}, 0 offen sc1
        s_lshl_b32 s{sT0}, s{sCH}, 12
        v_lshlrev_b32 v2, 4, v1
        v_add_u32 v2, s{sT0}, v2
        s_lshl_b32 s{sT0}, s{sCH}, 1
        v_mov_b32 v4, s{sT0}
        """)
        for i in range(4):
            a(f"buffer_load_dwordx4 v[{vHA+4*i}:{vHA+4*i+3}], v2, {srd(SH)}, 0 offen offset:{1024*i} {cfg.nt_in}")
            a(f"buffer_load_dwordx4 v[{vHB+4*i}:{vHB+4*i+3}], v2, {srd(SH)}, 0 offen offset:{1024*i+4} {cfg.nt_in}")
        a(f"buffer_load_ushort v{vD}, v4, {srd(SD)}, 0 offen")
    def h_b1():
        L = a.lab("L_hb1")
        a(f"s_cmp_lg_u32 s{sWV}, 4\ns_cbranch_scc1 {L}")
        b1_compute(64)
        a(f"{L}:")
    def h_pub_u():
        L = a.lab("L_hpu")
        nonce_take(vNH)
        a(f"s_cmp_lg_u32 s{sWV}, 4\ns_cbranch_scc1 {L}")
        publish_u(2)
        a(f"{L}:")
    AA = 26; AB = 30; BACC = 96; BF = 32; AF = 128; NAF = 5; DF = 148
    def h_setup():
        a(f"s_mul_i32 s{sT2}, s{sR64}, {64*1280}\ns_add_u32 s{sT2}, s{sT2}, s{sC160}")
        for k in rounds(ROH):
            a(f"""
            v_mul_u32_u24 v5, 1280, v3
            v_lshl_add_u32 v5, v4, 4, v5
            v_mul_u32_u24 v4, {ZSTR}, v4
            v_lshl_add_u32 v4, v3, 1, v4
            v_add_u32 v{ZA+k}, {L_Z}, v4
            v_add_u32 v{QA+k}, s{sT2}, v5
            """)
        a(f"""
        s_cmp_ge_u32 s{sHW}, 2
        s_cselect_b32 s{sT2}, 15, 23
        v_min_u32 v2, s{sT2}, v1
        v_lshrrev_b32 v3, 3, v2
        v_and_b32 v2, 7, v2
        v_lshl_add_u32 v2, v3, 5, v2
        s_mul_i32 s{sT0}, s{sC80}, 80
        s_lshl_b32 s{sT2}, s{sHW}, 3
        s_add_u32 s{sT0}, s{sT0}, s{sT2}
        v_add_u32 v2, s{sT0}, v2
        v_mul_u32_u24 v2, {FS}, v2
        v_add_u32 v{FZA}, {WS_FZ}, v2
        v_lshrrev_b32 v2, 3, v1
        v_and_b32 v3, 7, v1
        v_lshlrev_b32 v2, 12, v2
        v_lshl_add_u32 v{ZD}, v3, 4, v2
        v_and_b32 v2, 15, v1
        v_lshrrev_b32 v3, 4, v1
        v_add_u32 v4, 1, v2
        v_lshrrev_b32 v4, 1, v4
        v_lshl_add_u32 v4, v3, 2, v4
        v_lshlrev_b32 v4, 2, v4
        v_and_b32 v5, 1, v2
        v_cmp_eq_u32 vcc, 0, v5
        v_mov_b32 v5, {HODD}
        v_cndmask_b32 v5, 0, v5, vcc
        s_min_u32 s{sT1}, s{sHW}, 2
        s_mul_i32 s{sT0}, s{sT1}, {HSTR}
        s_add_u32 s{sT0}, s{sT0}, {L_H}
        v_add3_u32 v{AA}, v4, v5, s{sT0}
        v_add_u32 v{AA+1}, 1024, v{AA}
        v_add_u32 v{AA+2}, 2048, v{AA}
        v_add_u32 v{AA+3}, 3072, v{AA}
        v_lshlrev_b32 v13, 4, v1
        v_add_u32 v25, s{sT0}, v13
        v_lshlrev_b32 v4, 5, v2
        v_lshl_add_u32 v4, v3, 3, v4
        v_add_u32 v31, s{sT0}, v4
        v_sub_u32 v4, 15, v2
        v_lshlrev_b32 v4, 5, v4
        v_lshl_add_u32 v4, v3, 4, v4
        s_mul_i32 s{sT1}, s{sT1}, {USTR}
        s_add_u32 s{sT1}, s{sT1}, {L_U}
        v_add_u32 v{AB}, s{sT1}, v4
        v_lshl_add_u32 v2, v1, 3, s{sT1}
        v_mov_b32 v4, 0
        v_mov_b32 v5, 0
        v_mov_b32 v6, 0
        v_mov_b32 v7, 0
        ds_write_b64 v2, v[4:5] offset:4096
        s_mov_b64 exec, 3
        ds_write_b128 v25, v[4:7]
        s_mov_b64 exec, -1
        """)
    a(f"s_cmp_ge_u32 s{sJ}, 30\ns_cbranch_scc1 L_h_idle\ns_waitcnt lgkmcnt(0)")
    shift_load()
    ring_issue(0)
    h_chan()
    build_masks("0")
    h_setup(); a2_setup(); wom_setup()
    if cfg.b1c < 0:
        a("s_barrier")
        stamp(1)
        a("s_waitcnt vmcnt(8)")
        h_b1()
    nonce_issue(vNH)
    ring_issue(1)
    pubc = min(max(cfg.b1c, -1) + 3, 8)
    for c in range(10):
        w = {0: 9, 9: 10}.get(c, 8)
        a(f"s_waitcnt vmcnt({w})")
        if c in (0, 1, 2, 3, 5, 7, 9): stamp(1 + (0, 1, 2, 3, 5, 7, 9).index(c), "a1")
        a("s_barrier")
        if c == cfg.b1c:
            stamp(1); h_b1()
        if c + 2 <= 9: ring_issue(c + 2)
        if c == pubc: h_pub_u()
        if c == 8:
            a(f"s_cmp_eq_u32 s{sCHV}, 0\ns_cbranch_scc1 L_h_nob2a")
            h_loads()
    a("L_h_post:")
    def h_idle():
        a("L_h_idle:\ns_waitcnt lgkmcnt(0)")
        shift_load(); h_chan(); build_masks("0")
        h_setup(); a2_setup(); wom_setup()
        a("s_waitcnt vmcnt(0)\ns_barrier")
        nonce_issue(vNH)
        h_b1()
        a("s_waitcnt vmcnt(0)")
        h_pub_u()
        a(f"s_cmp_eq_u32 s{sCHV}, 0\ns_cbranch_scc1 L_h_nob2")
        h_loads()
        a("s_branch L_h_post")
    ool.append(h_idle)
    stamp(2)
    if cfg.stop <= 1: a("s_branch L_fin")
    def q_loads():
        for k in range(3): a(f"buffer_load_dwordx4 v[{QV+4*k}:{QV+4*k+3}], v{QA+k}, {srd(SQ)}, 0 offen {cfg.nt_in}")
    def h_nob2():
        a("L_h_nob2a:\ns_waitcnt vmcnt(0)\ns_barrier\nL_h_nob2:")
        if cfg.stop <= 1: a("s_branch L_fin")
        q_loads(); a("s_branch L_join_a")
    ool.append(h_nob2)
    a(f"""
    s_mul_i32 s{sT5}, s{sHW}, {USTR}
    s_add_u32 s{sT5}, s{sT5}, {L_U}
    s_lshl_b32 s{sA}, s{sCH}, 12
    s_add_u32 s{sA}, s{sA}, {WS_U}
    s_waitcnt vmcnt(9)
    """)
    check_or_poll(12, 14)
    for i in range(4):
        a(f"s_add_u32 s{sT0}, s{sA}, {1024*i}")
        dma(13, SWS, f"s{sT0}", f"s_add_u32 m0, s{sT5}, {1024*i}", "sc1")
    a(f"""
    s_add_u32 s{sA}, s{sA}, {WS_Z - WS_U}
    v_mov_b32 v8, 0
    v_mov_b32 v9, 0
    v_mov_b32 v10, 0
    v_and_b32 v2, 15, v1
    v_sub_u32 v2, 15, v2
    v_lshrrev_b32 v3, 4, v1
    v_lshlrev_b32 v3, 2, v3
    v_lshrrev_b32 v4, 1, v2
    v_sub_u32 v4, v4, v3
    v_and_b32 v2, 1, v2
    v_lshlrev_b32 v2, 4, v2
    s_waitcnt vmcnt(4)
    v_readfirstlane_b32 s{sT1}, v{vHA}
    v_cmp_eq_u32 vcc, 1, v1
    s_lshl_b32 s{sT1}, s{sT1}, 16
    v_mov_b32 v11, s{sT1}
    v_cndmask_b32 v11, 0, v11, vcc
    """)
    for i in range(4):
        a(f"ds_write_b128 v25, v[{vHA+4*i}:{vHA+4*i+3}] offset:{32+1024*i}")
        for j in range(4): a(f"v_alignbit_b32 v{vHB+4*i+j}, v{vHB+4*i+j}, v{vHA+4*i+j}, 16")
        a(f"ds_write_b128 v25, v[{vHB+4*i}:{vHB+4*i+3}] offset:{HODD+32+1024*i}")
    a(f"s_mov_b64 exec, 3\nds_write_b128 v25, v[8:11] offset:{HODD}\ns_mov_b64 exec, -1")
    a(f"v_lshlrev_b32 v2, v2, v{vD}")
    for rr in range(4): a(f"v_cmp_eq_u32 vcc, {rr}, v4\nv_cndmask_b32 v{DF+rr}, 0, v2, vcc")
    a("s_waitcnt vmcnt(0) lgkmcnt(0)")
    stamp(3)
    def b_read(r, nn):
        d = BF + 32 * (r & 1) + 4 * nn
        a(f"ds_read_b128 v[{d}:{d+3}], v{AB} offset:{2*(1792 - 32*(8*nn - r))}"); issue(("B", r, nn), 1)
    def a_read(gi):
        r, mu = groups[gi]; kap = 8 * mu + r
        d = AF + 4 * (gi % NAF); o = 16 * (kap % 16)
        a(f"ds_read2_b32 v[{d}:{d+1}], v{AA + kap//16} offset0:{o} offset1:{o+1}")
        a(f"ds_read2_b32 v[{d+2}:{d+3}], v{AA + kap//16} offset0:{o+2} offset1:{o+3}"); issue(("A", gi), 2)
    groups = [(r, mu) for r in range(7) for mu in (0, 7, 1, 6, 2, 5, 3, 4)] + [(7, mu) for mu in (7, 6, 5, 4, 3, 2, 1, 0)]
    q.clear()
    LA = NAF - 1
    for nn in range(8): b_read(0, nn)
    for gi in range(3): a_read(gi)
    q_loads()
    for i in range(8):
        wait_for({("B", 0, i)})
        d = BACC + 4 * i; f = BF + 4 * i
        a(f"v_mfma_f32_16x16x32_bf16 v[{d}:{d+3}], v[{DF}:{DF+3}], v[{f}:{f+3}], 0")
    for gi in range(3, LA): a_read(gi)
    PZ = 8
    for gi, (r, mu) in enumerate(groups):
        wait_for({("A", gi)} | {("B", r, nn) for nn in range(8 - mu)})
        pend = []
        if gi + LA < 64: pend.append(lambda g=gi + LA: a_read(g))
        if r < 7 and gi % 2 == 0:
            pend.append(lambda nn=gi % 8, r=r: b_read(r + 1, nn)); pend.append(lambda nn=gi % 8 + 1, r=r: b_read(r + 1, nn))
        tiles = list(range(mu, 8))
        for n, i in enumerate(tiles):
            d = BACC + 4 * i; f = BF + 32 * (r & 1) + 4 * (i - mu); s = AF + 4 * (gi % NAF)
            a(f"v_mfma_f32_16x16x32_bf16 v[{d}:{d+3}], v[{s}:{s+3}], v[{f}:{f+3}], v[{d}:{d+3}]")
            if pend: pend.pop(0)()
            if gi == 63 and n >= 3:
                j = n - 3; dd = BACC + 4 * j; p = PZ + 2 * (j & 1)
                a(f"v_cvt_pk_bf16_f32 v{p}, v{dd}, v{dd+1}\nv_cvt_pk_bf16_f32 v{p+1}, v{dd+2}, v{dd+3}\nds_write_b64 v31, v[{p}:{p+1}] offset:{512*j}")
        for f_ in pend: f_()
    stamp(4)
    for j in range(5, 8):
        dd = BACC + 4 * j; p = PZ + 2 * (j & 1)
        a(f"v_cvt_pk_bf16_f32 v{p}, v{dd}, v{dd+1}\nv_cvt_pk_bf16_f32 v{p+1}, v{dd+2}, v{dd+3}\nds_write_b64 v31, v[{p}:{p+1}] offset:{512*j}")
    for i in range(4): a(f"ds_read_b128 v[{32+4*i}:{35+4*i}], v25 offset:{1024*i}")
    for i in range(4):
        a(f"s_waitcnt lgkmcnt({3-i})\nbuffer_store_dwordx4 v[{32+4*i}:{35+4*i}], v13, {srd(SWS)}, s{sA} offen offset:{1024*i} sc1")
    a("s_branch L_join_a")

    a("L_C:")
    vNC = 60
    a(f"""
    s_getpc_b64 s[4:5]
    L_pc:
    s_sub_u32 s4, s4, L_pc-{NAME}_kernel
    s_subb_u32 s5, s5, 0
    s_mul_i32 s3, s{sJ}, 1280
    v_lshl_add_u32 v2, v0, 7, s3
    v_min_u32 v2, L_end-{NAME}_kernel, v2
    s_cmp_lg_u32 s{sWV}, 0
    s_cbranch_scc1 L_nocp
    s_mov_b64 exec, 0x3ff
    global_load_dword v63, v2, s[4:5]
    s_mov_b64 exec, -1
    L_nocp:
    s_mov_b32 s{sCHV}, 0
    s_mov_b32 s{sCH}, 0
    v_mul_u32_u24 v2, 26, v1
    v_lshrrev_b32 v2, 8, v2
    v_mul_u32_u24 v2, 1120, v2
    v_lshl_add_u32 v12, v1, 4, v2
    s_mul_i32 s{sA}, s{sR64}, {64*1280}
    s_add_u32 s{sA}, s{sA}, s{sC160}
    s_sub_u32 s{sT0}, s{sA}, {4*1280}
    v_add_u32 v13, s{sT0}, v12
    s_mul_i32 s{sT1}, s{sWV}, {8*1280}
    s_add_u32 s{sA}, s{sA}, s{sT1}
    s_mul_i32 s{sB}, s{sWV}, 1296
    """)

    def b1_loads(half):
        a(f"s_mov_b32 exec_hi, 0xff\ns_add_u32 s{sT1}, s{sA}, {half*32*1280}\ns_add_u32 s{sT2}, s{sT1}, {4*1280}")
        o = half * 4 * 1296
        dma(12, SK, f"s{sT1}", f"s_add_u32 m0, s{sB}, {L_KB+656+o}", cfg.nt_in)
        dma(12, SV, f"s{sT1}", f"s_add_u32 m0, s{sB}, {L_VB+o}", cfg.nt_in)
        dma(12, SK, f"s{sT2}", f"s_add_u32 m0, s{sB}, {L_KB+656+640+o}", cfg.nt_in)
        dma(12, SV, f"s{sT2}", f"s_add_u32 m0, s{sB}, {L_VB+640+o}", cfg.nt_in)
        if half == 0:
            L = a.lab("L_nh")
            a(f"s_cmp_lg_u32 s{sWV}, 0\ns_cbranch_scc1 {L}")
            dma(13, SK, "0", L_KB, cfg.nt_in)
            a(f"{L}:")
        a("s_mov_b32 exec_hi, -1")
    a(f"""
    s_waitcnt lgkmcnt(0)
    s_or_b32 s{sT0}, s2, s{sWV}
    s_cmp_lg_u32 s{sT0}, 0
    s_cbranch_scc1 L_nonon
    s_memrealtime s[{sN}:{sN+1}]
    s_waitcnt lgkmcnt(0)
    s_or_b32 s{sN}, s{sN}, 1
    v_mov_b32 v6, s{sN}
    v_mov_b32 v7, s{sN+1}
    v_mov_b32 v5, 0
    s_mov_b64 exec, 1
    buffer_store_dwordx2 v[6:7], v5, {srd(SDBG)}, 0 offen sc1
    s_mov_b64 exec, -1
    L_nonon:
    s_cmp_ge_u32 s{sJ}, 30
    s_cbranch_scc1 L_c_idle
    """)
    def tlb():
        if not cfg.tlb: return
        L = a.lab("L_tlb")
        a(f"s_cmp_lg_u32 s{sWV}, 1\ns_cbranch_scc1 {L}\nv_lshlrev_b32 v5, {cfg.tlb}, v1")
        for sr in (SWS, SOUT, SQ, SH, SWO, SD): a(f"buffer_load_dword v63, v5, {srd(sr)}, 0 offen")
        a(f"{L}:")
    GFA = 207; sGA, sGB = 0, 1
    def qkv_addr():
        a(f"""
        s_lshr_b32 s{sT0}, s{sHD}, 1
        s_mul_i32 s{sT0}, s{sT0}, 5
        s_and_b32 s{sT1}, s{sHD}, 1
        s_lshl_b32 s{sT2}, s{sT1}, 1
        s_add_u32 s{sT2}, s{sT2}, s{sT0}
        s_add_u32 s{sT3}, s{sT2}, 2
        s_lshr_b32 s{sT2}, s{sT2}, 3
        s_lshr_b32 s{sT3}, s{sT3}, 3
        v_lshrrev_b32 v2, 1, v1
        v_min_u32 v2, 4, v2
        v_cmp_le_u32 vcc, 3, v2
        v_subrev_u32 v3, 2, v2
        v_cndmask_b32 v2, v2, v3, vcc
        s_cmp_eq_u32 s{sQB}, 0
        s_cselect_b32 s{sT4}, 0, 4
        v_mov_b32 v3, s{sT4}
        v_cndmask_b32 v3, 0, v3, vcc
        v_mul_u32_u24 v2, 10, v2
        v_and_b32 v4, 1, v1
        v_cmp_eq_u32 vcc, 1, v4
        v_mov_b32 v4, s{sT2}
        v_mov_b32 v5, s{sT3}
        v_cndmask_b32 v4, v4, v5, vcc
        v_add_u32 v2, v2, v4
        v_lshlrev_b32 v2, 5, v2
        s_lshl_b32 s{sT4}, s{sQB}, 2
        s_add_u32 s{sT4}, s{sT4}, s{sWV}
        v_add_u32 v2, s{sT4}, v2
        v_sub_u32 v2, v2, v3
        v_mul_u32_u24 v2, {FS}, v2
        v_add_u32 v{GFA}, {WS_FG}, v2
        s_mul_i32 s{sT1}, s{sT1}, 3
        s_add_u32 s{sGA}, s{sT0}, s{sT1}
        s_add_u32 s{sGB}, s{sT0}, 2
        s_lshl_b32 s{sGA}, s{sGA}, 15
        s_lshl_b32 s{sGB}, s{sGB}, 15
        s_lshl_b32 s{sT4}, s{sT4}, 10
        s_add_u32 s{sGA}, s{sGA}, s{sT4}
        s_add_u32 s{sGB}, s{sGB}, s{sT4}
        v_lshlrev_b32 v14, 4, v1
        v_bfrev_b32 v15, 1
        s_cmp_eq_u32 s{sQB}, 0
        s_cselect_b64 vcc, -1, 0
        v_cndmask_b32 v15, v14, v15, vcc
        s_lshl_b32 s{sT5}, s{sWV}, 10
        """)
    def c_idle():
        a("L_c_idle:")
        b1_loads(0); b1_loads(1); shift_load(); tlb(); build_masks("0"); a2_setup(); qkv_addr(); wom_setup()
        a("s_waitcnt vmcnt(0)\ns_barrier")
        nonce_issue(vNC)
        b1_compute(128)
        a("s_waitcnt vmcnt(0)")
        nonce_take(vNC); publish_u(2)
        if cfg.wopre:
            a(f"""
            s_sub_u32 s{sT0}, s{sJ}, 30
            s_lshl_b32 s{sT0}, s{sT0}, 2
            s_add_u32 s{sT0}, s{sT0}, s{sWV}
            s_lshl_b32 s{sT0}, s{sT0}, 6
            s_mul_i32 s{sT1}, s{sXC}, 800
            s_add_u32 s{sT0}, s{sT0}, s{sT1}
            v_add_u32 v2, s{sT0}, v1
            v_lshlrev_b32 v2, 7, v2
            """)
            for i in range(cfg.wopre):
                a("s_waitcnt vmcnt(1)")
                a(f"v_subrev_u32 v3, {819200}, v2\nv_min_u32 v2, v2, v3\nbuffer_load_dword v63, v2, {srd(SWO)}, 0 offen\nv_add_u32 v2, {512*128}, v2")
        a("s_branch L_c_post")
    ool.append(c_idle)
    if cfg.b1a < 0: b1_loads(0)
    if cfg.b1b < 0: b1_loads(1)
    shift_load()
    tlb()
    AX = 48; AW = 56; ACC = 64
    FS4 = [128, 144, 16, 32]
    a(f"""
    s_and_b32 s{sT0}, s{sWV}, 1
    s_lshr_b32 s{sT1}, s{sWV}, 1
    v_and_b32 v2, 31, v1
    v_lshrrev_b32 v3, 5, v1
    v_bfe_u32 v4, v2, 1, 3
    v_xor_b32 v4, v4, v3
    s_lshl_b32 s{sT2}, s{sT1}, 13
    v_lshlrev_b32 v5, 7, v2
    v_add_u32 v5, s{sT2}, v5
    """)
    for ks in range(4):
        a(f"v_xor_b32 v6, {2*ks}, v4\nv_lshl_add_u32 v{AX+ks}, v6, 4, v5\nv_add_u32 v{AX+4+ks}, 0x10000, v{AX+ks}")
    a(f"""
    v_bfe_u32 v4, v1, 2, 2
    v_lshl_add_u32 v5, v3, 3, v4
    v_lshlrev_b32 v5, 8, v5
    v_and_b32 v6, 3, v1
    v_lshl_add_u32 v5, v6, 3, v5
    v_and_b32 v6, 16, v1
    v_lshl_add_u32 v5, v6, 1, v5
    v_add_u32 v5, 16384, v5
    s_lshl_b32 s{sT2}, s{sT0}, 1
    """)
    for mt in range(2):
        a(f"s_add_u32 s{sT3}, s{sT2}, {mt}\nv_xor_b32 v6, s{sT3}, v4\nv_lshl_add_u32 v{AW+mt}, v6, 6, v5\nv_add_u32 v{AW+2+mt}, 0x10000, v{AW+mt}")
    build_masks("0"); a2_setup(); qkv_addr()
    if cfg.b1b < 0: wom_setup()
    if cfg.b1c < 0:
        a("s_waitcnt vmcnt(0)\ns_barrier")
        stamp(1)
        nonce_issue(vNC)
        b1_compute(128)
    def a1_reads(c, ks):
        F = FS4[ks]
        slot = c % 3; hi = slot >> 1; o = (slot & 1) * 32768
        r = []
        for half in range(2):
            for t in range(2):
                r.append(f"ds_read_b64_tr_b16 v[{F+4*half+2*t}:{F+4*half+2*t+1}], v{AW+2*hi+half} offset:{o + (16*ks+4*t)*256}")
            r.append(f"ds_read_b128 v[{F+8+4*half}:{F+8+4*half+3}], v{AX+4*hi+ks} offset:{o + half*4096}")
        return [] if cfg.noread else r
    def a1_mfma(ks, first):
        F = FS4[ks]; r = []
        for mt, nt in ((0, 0), (1, 0), (1, 1), (0, 1)):
            d = ACC + 16 * (2 * mt + nt)
            r.append(f"v_mfma_f32_32x32x16_bf16 v[{d}:{d+15}], v[{F+4*mt}:{F+4*mt+3}], v[{F+8+4*nt}:{F+8+4*nt+3}], " + ("0" if first else f"v[{d}:{d+15}]"))
        return [] if cfg.nomfma else r
    def weave(reads, mf, per):
        reads = list(reads)
        for m in mf:
            for _ in range(per):
                if reads: a(reads.pop(0))
            a(m)
        for r in reads: a(r)
    for c in range(10):
        if c == cfg.b1c: a("s_waitcnt vmcnt(0)")
        if c == pubc + 1:
            a("s_waitcnt vmcnt(0)")
            nonce_take(vNC); publish_u(2)
        if c in (0, 1, 2, 3, 5, 7, 9): stamp(1 + (0, 1, 2, 3, 5, 7, 9).index(c), "a1")
        a("s_barrier")
        if c == cfg.b1a: b1_loads(0)
        if c == cfg.b1b: b1_loads(1); wom_setup()
        weave(a1_reads(c, 0) + a1_reads(c, 1), (a1_mfma(2, False) + a1_mfma(3, False)) if c > 0 else [], 2)
        a("s_waitcnt lgkmcnt(6)")
        m0 = a1_mfma(0, c == 0); m1 = a1_mfma(1, False); rd = a1_reads(c, 2) + a1_reads(c, 3)
        if cfg.nomfma or cfg.noread:
            weave(rd, m0 + m1, 2)
        else:
            a(m0[0]); weave(rd, m0[1:], 4)
            a("s_waitcnt lgkmcnt(12)")
            weave([], m1, 0)
        a("s_waitcnt lgkmcnt(0)")
        if c == cfg.b1c:
            stamp(1); nonce_issue(vNC); b1_compute(128)
    qs = f2u(20 ** -0.5 * math.log2(math.e))
    mlast = a1_mfma(2, False) + a1_mfma(3, False)
    weave([], mlast[:4], 0)
    a(f"""
    s_and_b32 s{sT0}, s{sWV}, 1
    s_lshr_b32 s{sT1}, s{sWV}, 1
    s_lshl_b32 s{sT2}, s{sCT}, 1
    s_add_u32 s{sT2}, s{sT2}, s{sT0}
    s_lshl_b32 s{sT3}, s{sRB}, 1
    s_add_u32 s{sT3}, s{sT3}, s{sT1}
    s_lshl_b32 s{sA}, s{sT2}, 18
    s_lshl_b32 s{sT4}, s{sT3}, 10
    s_add_u32 s{sA}, s{sA}, s{sT4}
    s_lshl_b32 s{sB}, s{sT2}, 5
    s_add_u32 s{sB}, s{sB}, s{sT3}
    s_mul_i32 s{sB}, s{sB}, {FS}
    s_add_u32 s{sB}, s{sB}, {WS_FG}
    v_and_b32 v2, 31, v1
    v_lshrrev_b32 v3, 5, v1
    v_lshlrev_b32 v2, 4, v2
    v_lshl_add_u32 v2, v3, 15, v2
    s_mov_b32 s{sT2}, {qs:#x}
    s_mov_b32 s{sT3}, {qs:#x}
    """)
    weave([], mlast[4:], 0)
    stamp(2)
    def a1_epi(scale):
        n = 0
        for mt, nt in ((0, 0), (1, 0), (1, 1), (0, 1)):
            for i in (0, 2):
                d = ACC + 16 * (2 * mt + nt) + 4 * i
                p = 128 + 4 * n; n += 1
                if scale:
                    for k in range(4): a(f"v_pk_mul_f32 {pr(d+2*k)}, {pr(d+2*k)}, s[{sT2}:{sT3}]")
                for k in range(4): a(f"v_cvt_pk_bf16_f32 v{p+k}, v{d+2*k}, v{d+2*k+1}")
                a(f"s_add_u32 s{sT0}, s{sA}, {(4*mt+i)*32768}")
                a(f"v_permlane32_swap_b32 v{p}, v{p+2}\nv_permlane32_swap_b32 v{p+1}, v{p+3}")
                a(f"buffer_store_dwordx4 v[{p}:{p+3}], v2, {srd(SWS)}, s{sT0} offen offset:{nt*512} sc1")
    a(f"s_cmp_ge_u32 s{sCT}, 5\ns_cbranch_scc1 L_epi_d")
    for mt, nt in ((0, 0), (1, 0), (1, 1), (0, 1)):
        for k in range(8):
            d = ACC + 16 * (2 * mt + nt) + 2 * k
            a(f"v_pk_mul_f32 {pr(d)}, {pr(d)}, s[{sT2}:{sT3}]")
    a("L_epi_d:\ns_nop 6")
    a1_epi(False)
    a("s_waitcnt vmcnt(0)")
    publish(sB, 4)
    a("L_c_post:")
    stamp(3)
    if cfg.stop <= 1: a("s_branch L_fin")
    a(f"""
    v_mov_b32 v8, 0x3f803f80
    v_mov_b32 v9, 0x3f803f80
    v_lshlrev_b32 v10, 3, v1
    ds_write_b64 v10, v[8:9] offset:{L_ONES}
    """)
    poll(GFA, 8)
    stamp(4)
    for half in (1, 0):
        for sec, lds, lstr in ((0, L_Q, 4096), (1, L_K, 8192), (2, L_V, VSTR)):
            if sec == 0 and half == 0: continue
            for slot in range(3):
                base = (sGA, 32768 * slot) if slot < 2 else (sGB, 0)
                off = base[1] + sec * 80 * 32768 - (0 if half else 4096)
                a(f"s_add_u32 s{sT0}, s{base[0]}, {off}")
                dma(14 if half else 15, SWS, f"s{sT0}", f"s_add_u32 m0, s{sT5}, {lds + slot*lstr + (4096 if (half and sec) else 0)}", "sc1")
    a("s_waitcnt vmcnt(0) lgkmcnt(0)")

    for r in (ROH, ROH + 1, ROH + 2, FZA, ZD): a(f"v_mov_b32 v{r}, 0")
    if cfg.prio: a("s_branch L_join_b\nL_join_a:\ns_setprio 1\nL_join_b:\ns_barrier")
    else: a("L_join_a:\ns_barrier")
    stamp(5)
    if cfg.stop <= 2: a("s_branch L_fin")
    Q0, Q1 = 16, 20; KF = 24; VF = 40; AV = 58; S = 64; PP = 96; O = 112
    def wo_dma(i):
        if cfg.nowo: return
        a(f"s_mov_b32 m0, s{WOM[i]}\nbuffer_load_dwordx4 v{WOV+i}, {srd(SWO)}, s{sC160} offen lds")
    def k_read(b):
        f = KF + 8 * (b & 1); o = (8 - b) * 512
        a(f"ds_read_b128 v[{f}:{f+3}], v{AK0} offset:{o}\nds_read_b128 v[{f+4}:{f+7}], v{AK1} offset:{o}")
    def v_read(b):
        f = VF + 8 * (b & 1)
        for s in range(2):
            for t in range(2):
                a(f"ds_read_b64_tr_b16 v[{f+4*s+2*t}:{f+4*s+2*t+1}], v{AV} offset:{(16*s+8*t)*16}")
        a(f"v_sub_u32 v{AV}, v{AV}, v{AVD}")
    def hook(b):
        L = a.lab("L_hook"); R = a.lab("L_hookr")
        a(f"s_cmp_eq_u32 s{sNV}, {b}\ns_cbranch_scc1 {L}\n{R}:")
        def body():
            a(f"{L}:\ns_nop 7")
            for r in range(16): a(f"v_mov_b32 v{vCZ+r}, {BIGNEG:#x}\nv_mov_b32 v{vCF+r}, v{vCZ+r}")
            a(f"s_nop 1\ns_branch {R}")
        ool.append(body)
    def qk(b, half=None):
        f = KF + 8 * (b & 1); d = S + 16 * (b & 1)
        c = vCD if b == 0 else (vCF if b == 8 else vCZ)
        if half in (None, 0): a(f"v_mfma_f32_32x32x16_bf16 v[{d}:{d+15}], v[{f}:{f+3}], v[{Q0}:{Q0+3}], v[{c}:{c+15}]")
        if half in (None, 1): a(f"v_mfma_f32_32x32x16_bf16 v[{d}:{d+15}], v[{f+4}:{f+7}], v[{Q1}:{Q1+3}], v[{d}:{d+15}]")
    def pv(b, s):
        p = PP + 8 * (b & 1); f = VF + 8 * (b & 1)
        a(f"v_mfma_f32_32x32x16_bf16 v[{O}:{O+15}], v[{f+4*s}:{f+4*s+3}], v[{p+4*s}:{p+4*s+3}], " + ("0" if (b == 0 and s == 0) else f"v[{O}:{O+15}]"))
    def cv(b, g):
        d = S + 16 * (b & 1) + 4 * g; p = PP + 8 * (b & 1) + 2 * g
        a(f"v_cvt_pk_bf16_f32 v{p}, v{d}, v{d+1}\nv_cvt_pk_bf16_f32 v{p+1}, v{d+2}, v{d+3}")
    def ex(b, g):
        d = S + 16 * (b & 1) + 4 * g
        a(f"v_exp_f32 v{d}, v{d}\nv_exp_f32 v{d+1}, v{d+1}")
        if g > 0: cv(b, g - 1)
        elif b > 0: cv(b - 1, 3)
        a(f"v_exp_f32 v{d+2}, v{d+2}\nv_exp_f32 v{d+3}, v{d+3}")
    def side(b, k):
        n = 2 * b + k - 1
        if n == 0:
            L = a.lab("L_side")
            a(f"s_cmp_lg_u32 s{sFB}, 0\ns_cbranch_scc1 {L}\ns_barrier\n{L}:")
        if n == cfg.zpub:
            L2 = a.lab("L_zp"); R = a.lab("L_zpr")
            a(f"s_cmp_lg_u32 s{sCHV}, 0\ns_cbranch_scc1 {L2}\n{R}:")
            def body():
                a(f"{L2}:\ns_waitcnt vmcnt({0 if cfg.nowo else n})")
                a(f"s_mul_i32 s{sT0}, s{sCH}, {FS}\ns_add_u32 s{sT0}, s{sT0}, {WS_FZ}")
                publish(sT0, 4)
                a(f"s_branch {R}")
            ool.append(body)
        if n == cfg.fzn:
            L = a.lab("L_side")
            a(f"s_cmp_lt_u32 s{sWV}, 4\ns_cbranch_scc1 {L}")
            a(f"buffer_load_dwordx2 v[{FZR}:{FZR+1}], v{FZA}, {srd(SWS)}, 0 offen sc1\n{L}:")
        if n == 12:
            L = a.lab("L_side")
            a(f"s_cmp_ge_u32 s{sWV}, 4\ns_cbranch_scc1 {L}")
            wo_dma(n); a(f"{L}:")
        elif 0 <= n < 12: wo_dma(n)
    a(f"ds_read_b128 v[{Q0}:{Q0+3}], v{QAD0}\nds_read_b128 v[{Q1}:{Q1+3}], v{QAD1}")
    stamp(1, "a2")
    a("L_a2_start:")
    a(f"v_mov_b32 v{AV}, v{AV0}")
    k_read(0); k_read(1)
    a(f"""
    s_lshl_b32 s{sT0}, s{sQB}, 3
    s_add_u32 s{sT0}, s{sT0}, s{sWV}
    s_lshl_b32 s{sT4}, s{sHD}, 16
    s_lshl_b32 s{sT2}, s{sT0}, 9
    s_add_u32 s{sT4}, s{sT4}, s{sT2}
    s_add_u32 s{sT4}, s{sT4}, {WS_O}
    s_lshl_b32 s{sT5}, s{sHD}, 14
    s_lshl_b32 s{sT3}, s{sT0}, 8
    s_add_u32 s{sT5}, s{sT5}, s{sT3}
    s_add_u32 s{sT5}, s{sT5}, {WS_O8}
    s_lshl_b32 s{sA}, s{sT0}, 5
    s_add_u32 s{sA}, s{sA}, s{sHD}
    s_mul_i32 s{sA}, s{sA}, {FS}
    s_add_u32 s{sA}, s{sA}, {WS_FO}
    s_waitcnt lgkmcnt(2)
    """)
    qk(0, 0)
    a(f"v_and_b32 v{Q1}, v{QM0}, v{Q1}\nv_and_b32 v{Q1+1}, v{QM0}, v{Q1+1}\nv_and_b32 v{Q1+2}, v{QM1}, v{Q1+2}\nv_and_b32 v{Q1+3}, v{QM1}, v{Q1+3}")
    qk(0, 1)
    for b in range(9):
        if b in (1, 3, 5, 7): stamp(2 + b // 2, "a2")
        if cfg.prio and b == cfg.prio: a("s_setprio 0")
        if b > 0:
            a("s_waitcnt lgkmcnt(0)")
            pv(b - 1, 0)
        v_read(b)
        if b < 7: k_read(b + 2)
        ex(b, 0)
        if b < 8:
            hook(b + 1)
            if b == 0: a("s_waitcnt lgkmcnt(6)")
            qk(b + 1, 0)
        else: pv(b - 1, 1)
        side(b, 0)
        ex(b, 1)
        if b < 8: qk(b + 1, 1)
        ex(b, 2)
        if 0 < b < 8: pv(b - 1, 1)
        if b == 8:
            a("s_waitcnt lgkmcnt(0)"); pv(8, 0)
        side(b, 1)
        ex(b, 3)
    cv(8, 3)
    pv(8, 1)
    stamp(6, "a2")
    lo = f2u(2.0 ** -24); hi = f2u(2.0 ** 40); fin = f2u(3.0e38)
    a(f"v_rcp_f32 v2, v{O+12}")
    a(f"v_cmp_nle_f32 vcc, {lo:#x}, v{O+12}\ns_mov_b64 s[{sEX}:{sEX+1}], vcc\nv_cmp_nge_f32 vcc, {hi:#x}, v{O+12}\ns_or_b64 s[{sEX}:{sEX+1}], s[{sEX}:{sEX+1}], vcc")
    for i in range(6): a(f"v_add_f32 v{4+i}, abs(v{O+2*i}), abs(v{O+2*i+1})")
    for i in range(12): a(f"v_mul_f32 v{O+i}, v{O+i}, v2")
    a("v_add_f32 v4, v4, v5\nv_add_f32 v6, v6, v7\nv_add_f32 v8, v8, v9\nv_add_f32 v4, v4, v6\nv_add_f32 v4, v4, v8")
    for i in range(6): a(f"v_cvt_pk_bf16_f32 v{24+i}, v{O+2*i}, v{O+2*i+1}")
    a(f"v_cmp_nge_f32 vcc, {fin:#x}, v4\ns_or_b64 vcc, s[{sEX}:{sEX+1}], vcc")
    if cfg.force_fb: a("s_mov_b64 vcc, -1")
    a("s_cbranch_vccnz L_a2_fb\nL_a2_ok:")
    def fallback():
        a(f"L_a2_fb:\ns_cmp_lg_u32 s{sFB}, 0\ns_cbranch_scc1 L_a2_ok\ns_mov_b32 s{sFB}, 1")
        build_masks("0")
        a(f"v_mov_b32 v4, {BIGNEG:#x}")
        for b in range(9):
            if b > 0: hook(b)
            k_read(b); a("s_waitcnt lgkmcnt(0)"); qk(b)
            d = S + 16 * (b & 1)
            for i in range(8): a(f"v_max3_f32 v4, v4, v{d+2*i}, v{d+2*i+1}")
        a("v_mov_b32 v5, v4\nv_permlane32_swap_b32 v4, v5\nv_max_f32 v4, v4, v5\nv_sub_f32 v4, 0, v4")
        build_masks("v4")
        a("s_nop 1\ns_branch L_a2_start")
    a(f"""
    buffer_store_dwordx4 v[24:27], v{OS0}, {srd(SWS)}, s{sT4} offen sc1
    s_mov_b32 exec_hi, 0
    buffer_store_dwordx2 v[28:29], v{OS1}, {srd(SWS)}, s{sT5} offen sc1
    s_mov_b32 exec_hi, -1
    """)
    stamp(6); stamp(7, "a2"); stamp(1, "g2")
    WA, WA2, WA3, WB, WB3, OA, OB = 52, 53, 54, 55, 56, 57, 58
    RO = 59; STA = 62
    a(f"""
    v_lshrrev_b32 v2, 4, v1
    v_bfe_u32 v3, v1, 2, 2
    v_and_b32 v4, 3, v1
    s_cmp_ge_u32 s{sWV}, 4
    s_cselect_b32 s{sT0}, 96, 0
    v_lshl_add_u32 v4, v4, 3, s{sT0}
    v_lshrrev_b32 v5, 1, v2
    v_mul_u32_u24 v5, 24, v5
    v_and_b32 v6, 1, v2
    v_lshl_add_u32 v5, v6, 2, v5
    v_add_u32 v5, v5, v3
    v_mul_u32_u24 v5, 160, v5
    v_add_u32 v{WA3}, v5, v4
    v_add_u32 v{WA2}, {L_WO1 + 6*6400}, v{WA3}
    v_add_u32 v{WA}, {L_WO1}, v{WA3}
    v_mul_u32_u24 v5, 40, v2
    v_add3_u32 v5, v5, v3, 16
    v_mul_u32_u24 v5, 160, v5
    v_add_u32 v{WB3}, v5, v4
    v_add_u32 v{WB}, {L_WO1}, v{WB3}
    s_waitcnt vmcnt(2)
    s_barrier
    """)
    def a3_addr():
        a(f"""
        v_lshrrev_b32 v2, 4, v1
        v_and_b32 v5, 15, v1
        s_lshl_b32 s{sT0}, s{sHW}, 4
        v_add_u32 v5, s{sT0}, v5
        v_lshlrev_b32 v6, 10, v2
        v_lshl_add_u32 v{OA}, v5, 4, v6
        v_add_u32 v{OA}, {L_O16}, v{OA}
        v_and_b32 v6, 1, v2
        v_lshlrev_b32 v6, 11, v6
        v_lshrrev_b32 v7, 1, v2
        v_lshl_add_u32 v6, v7, 9, v6
        v_lshl_add_u32 v{OB}, v5, 3, v6
        v_add_u32 v{OB}, {L_O8}, v{OB}
        v_mul_u32_u24 v5, 160, v5
        v_lshl_add_u32 v5, v2, 3, v5
        v_add_u32 v{STA}, {L_ST}, v5
        """)
    def wo_frag(step, ct, d):
        for t in range(2):
            if step < 6: r, o = WA, (40 * step + 8 * t) * 160
            elif step < 12: r, o = WA2, (40 * (step - 6) + 8 * t) * 160
            elif step < 16: r, o = WA3, (40 * (step - 12) + 8 * t) * 160
            elif step < 19: r, o = WB, (160 * (step - 16) + 4 * t) * 160
            else: r, o = WB3, 4 * t * 160
            a(f"ds_read_b64_tr_b16 v[{d+2*t}:{d+2*t+1}], v{r} offset:{o + 32*ct}")
    def o_frag(step, d):
        if step < 16:
            a(f"ds_read_b128 v[{d}:{d+3}], v{OA} offset:{4096*step}"); return 1
        for t in range(2):
            a(f"ds_read_b64 v[{d+2*t}:{d+2*t+1}], v{OB} offset:{4096*(step-16) + 1024*t}")
        return 2
    def a3_loop(nct, fr, ct0):
        ACC3 = 16; OF = 28
        q.clear()
        first = True
        for sg in range(4):
            steps = [4 * sg + k for k in range(4)] + [16 + sg]
            if nct == 3: a(f"s_waitcnt vmcnt({15 - 5*sg})")
            a("s_barrier"); stamp(3 + sg, "a3")
            for k, st in enumerate(steps):
                n = o_frag(st, OF + 4 * k); issue(("O", st), n)
            if nct == 3 and sg in (1, 2):
                for st in (12 + 2 * (sg - 1), 13 + 2 * (sg - 1)):
                    for ct in range(3): fr[(st, ct)] = fr[(st - 12, ct)]
            for k, st in enumerate(steps):
                wait_for({("O", st), ("W", st)})
                for ct in range(nct):
                    w = fr[(st, ct)]; d = ACC3 + 4 * ct; o = OF + 4 * k
                    a(f"v_mfma_f32_16x16x32_bf16 v[{d}:{d+3}], v[{w}:{w+3}], v[{o}:{o+3}], " + ("0" if first else f"v[{d}:{d+3}]"))
                first = False
                if nct == 3 and sg in (1, 2) and k in (1, 3):
                    st2 = 12 + 2 * (sg - 1) + (k >> 1)
                    for ct in range(3):
                        wo_frag(st2, ct, fr[(st2, ct)]); issue(("W", st2), 2)
        for ct in range(nct):
            d = ACC3 + 4 * ct
            a(f"v_cvt_pk_bf16_f32 v{2+2*ct}, v{d}, v{d+1}\nv_cvt_pk_bf16_f32 v{3+2*ct}, v{d+2}, v{d+3}\nds_write_b64 v{STA}, v[{2+2*ct}:{3+2*ct}] offset:{32*(ct+ct0)}")
        a("s_waitcnt lgkmcnt(0)\ns_barrier"); stamp(7, "a3")
    stamp(2, "g2")
    a(f"s_cmp_ge_u32 s{sWV}, 4\ns_cbranch_scc1 L_g2_h")
    csteps = list(range(12)) + [16, 17, 18, 19]
    cfr = {}
    for n, st in enumerate(csteps):
        for ct in range(3):
            cfr[(st, ct)] = 64 + 4 * (3 * n + ct)
            wo_frag(st, ct, cfr[(st, ct)])
        if n == 7:
            a("s_waitcnt vmcnt(0)"); publish(sA, 4); stamp(3, "g2")
    for k in rounds(RO): pass
    a3_addr()
    a(f"""
    s_lshl_b32 s{sT0}, s{sR64}, 6
    s_add_u32 s{sT0}, s{sT0}, s{sWV}
    v_and_b32 v8, 15, v1
    v_lshl_add_u32 v8, v8, 2, s{sT0}
    v_mul_u32_u24 v8, {FS}, v8
    v_add_u32 v8, {WS_FO}, v8
    v_lshlrev_b32 v12, 4, v1
    v_and_b32 v13, 31, v1
    v_lshrrev_b32 v9, 5, v1
    v_lshlrev_b32 v13, 4, v13
    v_lshl_add_u32 v13, v9, 16, v13
    s_lshl_b32 s{sA}, s{sWV}, 16
    s_lshl_b32 s{sT0}, s{sR64}, 10
    s_add_u32 s{sA}, s{sA}, s{sT0}
    s_lshl_b32 s{sB}, s{sWV}, 14
    s_lshl_b32 s{sT0}, s{sR64}, 9
    s_add_u32 s{sB}, s{sB}, s{sT0}
    s_lshl_b32 s{sT4}, s{sWV}, 11
    s_lshl_b32 s{sT5}, s{sWV}, 10
    s_add_u32 s{sT0}, s{sT5}, {L_ST}
    v_add_u32 v14, s{sT0}, v12
    s_mul_i32 s{sT3}, s{sR64}, {64*2560}
    s_add_u32 s{sT3}, s{sT3}, s{sC160}
    s_waitcnt lgkmcnt(0)
    s_barrier
    """)
    stamp(4, "g2")
    poll(8, 10)
    stamp(7); stamp(5, "g2"); stamp(1, "a3")
    for i in range(8):
        for hh in range(2):
            a(f"s_add_u32 s{sT0}, s{sA}, {WS_O + 32768*(8*i + hh)}")
            dma(12, SWS, f"s{sT0}", f"s_add_u32 m0, s{sT4}, {L_O16 + 1024*(8*i + hh)}", "sc1")
        if i & 1:
            a(f"s_add_u32 s{sT0}, s{sB}, {WS_O8 + 16384*8*(i >> 1)}")
            dma(13, SWS, f"s{sT0}", f"s_add_u32 m0, s{sT5}, {L_O8 + 4096*(i >> 1)}", "sc1")
    a3_loop(3, cfr, 0)
    a(f"""
    ds_read_b128 v[16:19], v14
    ds_read_b128 v[20:23], v14 offset:4096
    ds_read_b128 v[24:27], v14 offset:8192
    s_waitcnt lgkmcnt(2)
    buffer_store_dwordx4 v[16:19], v{RO}, {srd(SOUT)}, s{sT3} offen {cfg.outa}
    s_waitcnt lgkmcnt(1)
    buffer_store_dwordx4 v[20:23], v{RO+1}, {srd(SOUT)}, s{sT3} offen {cfg.outa}
    s_cmp_ge_u32 s{sHW}, 2
    s_cbranch_scc1 L_fin
    s_waitcnt lgkmcnt(0)
    buffer_store_dwordx4 v[24:27], v{RO+2}, {srd(SOUT)}, s{sT3} offen {cfg.outa}
    s_branch L_fin
    """)
    a("L_g2_h:")
    hfr = {}; ZV = 40
    a(f"""
    s_mul_i32 s{sB}, s{sC80}, {80*4096}
    s_lshl_b32 s{sT0}, s{sR64}, 7
    s_add_u32 s{sB}, s{sB}, s{sT0}
    s_add_u32 s{sB}, s{sB}, {WS_Z}
    """)
    check_or_poll(FZA, FZR)
    for k in range(3):
        a(f"s_add_u32 s{sT1}, s{sHW}, {4*k}\ns_min_u32 s{sT1}, s{sT1}, 9\ns_lshl_b32 s{sT0}, s{sT1}, 15\ns_add_u32 s{sT0}, s{sT0}, s{sB}\ns_mul_i32 s{sT1}, s{sT1}, {ZSTR}")
        dma(ZD, SWS, f"s{sT0}", f"s_add_u32 m0, s{sT1}, {L_Z}", "sc1")
    for st in range(20):
        for ct in range(2):
            i = 2 * st + ct
            hfr[(st, ct)] = 64 + 4 * i if i < 22 else 184 + 4 * (i - 22)
            wo_frag(st, ct, hfr[(st, ct)])
        if st == 11:
            a("s_waitcnt vmcnt(3)"); publish(sA, 4); stamp(3, "g2")
    a3_addr()
    a("s_waitcnt vmcnt(1) lgkmcnt(0)\ns_barrier")
    stamp(4, "g2"); stamp(7); stamp(1, "a3")
    a(f"s_mul_i32 s{sT2}, s{sR64}, {64*2560}\ns_add_u32 s{sT2}, s{sT2}, s{sC160}\ns_add_u32 s{sT2}, s{sT2}, 1280")
    for k in range(3):
        if k == 2: a(f"s_cmp_ge_u32 s{sHW}, 2\ns_cbranch_scc1 L_b3d")
        for j in range(8): a(f"v_mov_b32 v{ZV+j}, 0")
        for j in range(8): a(f"ds_read_u16_d16_hi v{ZV+j}, v{ZA+k} offset:{128*j}")
        for j in range(4):
            a(f"v_lshlrev_b32 v{ZT+2*j}, 16, v{QV+4*k+j}\nv_and_b32 v{ZT+1+2*j}, 0xffff0000, v{QV+4*k+j}")
        a("s_waitcnt lgkmcnt(0)")
        for j in range(8): a(f"v_mul_f32 v{ZT+j}, v{ZT+j}, v{ZV+j}")
        for j in range(4): a(f"v_cvt_pk_bf16_f32 v{QV+4*k+j}, v{ZT+2*j}, v{ZT+1+2*j}")
        a(f"buffer_store_dwordx4 v[{QV+4*k}:{QV+4*k+3}], v{ROH+k}, {srd(SOUT)}, s{sT2} offen {cfg.outb}")
    a("L_b3d:")
    stamp(5, "g2"); stamp(2, "a3")
    a3_loop(2, hfr, 3)
    a("L_fin:")
    if cfg.stamps:
        a("s_waitcnt vmcnt(0)")
        stamp(8)
        a(f"s_lshl_b32 s{sT0}, s2, 3\ns_add_u32 s{sT0}, s{sT0}, s{sWV}\ns_lshl_b32 s{sT0}, s{sT0}, 7\ns_add_u32 s{sT0}, s{sT0}, {WS_T}\nv_mov_b32 v2, s{sT0}\ns_mov_b64 exec, 1")
        for i in range(9):
            a(f"v_mov_b32 v4, s{sSTAMP+2*i}\nv_mov_b32 v5, s{sSTAMP+2*i+1}\nbuffer_store_dwordx2 v[4:5], v2, {srd(SWS)}, 0 offen offset:{8*i}\ns_waitcnt vmcnt(0)")
    a("L_exit:\ns_endpgm")
    i = 0
    while i < len(ool):
        ool[i](); i += 1
    a("L_end:")
    fallback()
    while i < len(ool):
        ool[i](); i += 1
    body = a.finish()
    hdr = open("cdna_kernels/" + NAME + ".s.ref").read().split("; Override launch")[0]
    src = hdr + f"""; Single persistent kernel, one 512-thread workgroup per CU; generated by the author's own script.
; @launch grid=(256,1,1) block=(512,1,1) lds=163840
.amdgcn_target "amdgcn-amd-amdhsa--gfx950"
.text
.globl {NAME}_kernel
.p2align 8
.type {NAME}_kernel,@function
{NAME}_kernel:
{body}.section .rodata,"a"
.p2align 6
.amdhsa_kernel {NAME}_kernel
  .amdhsa_next_free_vgpr 256
  .amdhsa_next_free_sgpr 102
  .amdhsa_accum_offset 256
  .amdhsa_group_segment_fixed_size 0
  .amdhsa_kernarg_size 96
  .amdhsa_user_sgpr_count 2
  .amdhsa_user_sgpr_kernarg_segment_ptr 1
  .amdhsa_system_sgpr_workgroup_id_x 1
.end_amdhsa_kernel
"""
    return src

if __name__ == "__main__":
    cfg = Cfg()
    out = sys.argv[1]
    for kv in sys.argv[2:]:
        k, v = kv.split("=")
        old = getattr(cfg, k)
        setattr(cfg, k, (v == "1") if isinstance(old, bool) else (int(v) if isinstance(old, int) else v))
    open(out, "w").write(gen(cfg))
```

```python
import sys, math, struct
from asmdsl import Asm

NAME = "concat_heads__sliding_block__ssm_conv_h3__prompt"

class Cfg:
    stamps = False
    grp = ""
    stop = 99
    nt_in = ""
    fstr = 128
    slp = 1
    force_fb = False
    ncls = 10
    b1a = -1
    b1b = -1
    b1c = -1
    map2 = "head"
    outa = "sc1"
    outb = "sc1"
    tlb = 0
    tlball = False
    tlbs = False
    zpub = 4
    fzn = 14
    prio = 4
    ufs = 8
    wopre = 8
    noread = False; nomfma = False; nowo = False

WS_G = 0x0; WS_U = 0x800000; WS_Z = 0xB00000; WS_O = 0xE00000; WS_O8 = 0x1000000
WS_FG = 0x1100000; WS_FU = 0x1140000; WS_FZ = 0x1180000; WS_FO = 0x11C0000; WS_T = 0x1200000
WS_SIZE = 0x1400000
L_KB = 98304; L_VB = L_KB + 11024
L_H = 119808; HSTR = 8320; HODD = 4160
L_U = 144768; USTR = 4608
L_V = 32768; VSTR = 8256; L_ONES = L_V + 24768; L_K = 58112; L_Q = 82688
L_WO1 = 82688
L_WO2 = 0
L_Z = 32768; ZSTR = 1040; L_O8 = 43264; L_ST = 59648; L_O16 = 98304
SX, SW, SWO, SQ, SK, SV, SSH, SH, SD, SOUT, SDBG, SWS = [8 + 4 * i for i in range(12)]
def srd(b): return f"s[{b}:{b+3}]"
sWON, sC160 = 6, 7
sWV, sXC, sJ, sHW = 56, 57, 58, 59
sN = 60
sR64, sC80, sRB, sCT, sCH, sCHV, sHD, sQB = 62, 63, 64, 65, 66, 67, 68, 69
sT0, sT1, sT2, sT3, sT4, sT5 = 70, 71, 72, 73, 74, 75
sCNT, sNV, sFB, sKC = 76, 77, 78, 79
sEX = 80
sA, sB = 82, 83
sSTAMP = 84
WOM = list(range(24, 36)) + [sWON]
BIGNEG = 0xf149f2ca
vCZ, vCD, vCF = 208, 224, 240
QV = 152; ROH = 164; ZA = 167; FZA = 170; ZD = 171; FZR = 172; QA = 174; ZT = 174
WOV = 184; AK0, AK1, AVD, AV0, QAD0, QAD1, QM0, QM1, OS0, OS1 = 197, 198, 199, 200, 201, 202, 203, 204, 205, 206

def f2u(x): return struct.unpack("<I", struct.pack("<f", x))[0]
def pr(b): return f"v[{b}:{b+1}]"

def gen(cfg):
    a = Asm()
    FS = cfg.fstr
    ool = []
    def stamp(i, grp=""):
        if cfg.stamps and (grp == cfg.grp or i in (0, 8) and grp == ""):
            a(f"s_memrealtime s[{sSTAMP+2*i}:{sSTAMP+2*i+1}]\ns_memtime s[4:5]\ns_waitcnt lgkmcnt(0)\ns_mov_b32 s{sSTAMP+2*i+1}, s4")
    def dma(vaddr, s, soff, m0, flags=""):
        if isinstance(m0, int): a(f"s_mov_b32 m0, {m0}")
        else: a(m0)
        a(f"buffer_load_dwordx4 v{vaddr}, {srd(s)}, {soff} offen {flags} lds")
    def poll(vaddr, t):
        L = a.lab("L_poll"); D = a.lab("L_polld")
        a(f"s_mov_b32 s{sCNT}, 0\n{L}:")
        a(f"buffer_load_dwordx2 v[{t}:{t+1}], v{vaddr}, {srd(SWS)}, 0 offen sc1\ns_waitcnt vmcnt(0)")
        a(f"v_cmp_ne_u64 vcc, s[{sN}:{sN+1}], v[{t}:{t+1}]")
        a(f"s_cbranch_vccz {D}\ns_add_u32 s{sCNT}, s{sCNT}, 1\ns_cmp_lt_u32 s{sCNT}, 0x40000\ns_cbranch_scc0 {D}\ns_sleep {cfg.slp}\ns_branch {L}\n{D}:")
    def check_or_poll(vaddr, t):
        L = a.lab("L_cp"); R = a.lab("L_cpr")
        a(f"v_cmp_ne_u64 vcc, s[{sN}:{sN+1}], v[{t}:{t+1}]\ns_cbranch_vccnz {L}\n{R}:")
        def body():
            a(f"{L}:"); poll(vaddr, t); a(f"s_branch {R}")
        ool.append(body)
    def publish(soff_sgpr, t):
        a(f"v_mov_b32 v{t}, s{sN}\nv_mov_b32 v{t+1}, s{sN+1}\nv_mov_b32 v{t+2}, s{soff_sgpr}")
        a(f"s_mov_b64 exec, 1\nbuffer_store_dwordx2 v[{t}:{t+1}], v{t+2}, {srd(SWS)}, 0 offen sc1\ns_mov_b64 exec, -1")
    def nonce_issue(t):
        a(f"v_mov_b32 v{t+2}, 0\nbuffer_load_dwordx2 v[{t}:{t+1}], v{t+2}, {srd(SDBG)}, 0 offen sc1")
    def nonce_take(t):
        L = a.lab("L_non"); R = a.lab("L_nonr"); D = a.lab("L_nond")
        a(f"s_mov_b32 s{sCNT}, 0\n{R}:\nv_readfirstlane_b32 s{sN}, v{t}\nv_readfirstlane_b32 s{sN+1}, v{t+1}")
        a(f"s_cmp_eq_u32 s{sN}, 0\ns_cbranch_scc1 {L}\n{D}:")
        def body():
            a(f"{L}:\ns_add_u32 s{sCNT}, s{sCNT}, 1\ns_cmp_lt_u32 s{sCNT}, 0x40000\ns_cbranch_scc0 {D}")
            a(f"buffer_load_dwordx2 v[{t}:{t+1}], v{t+2}, {srd(SDBG)}, 0 offen sc1\ns_waitcnt vmcnt(0)\ns_branch {R}")
        ool.append(body)
    def build_masks(val):
        a(f"v_and_b32 v2, 31, v1\nv_lshrrev_b32 v3, 5, v1\nv_lshlrev_b32 v3, 2, v3\nv_sub_u32 v2, v2, v3\nv_mov_b32 v3, {BIGNEG:#x}")
        for r in range(16):
            m0 = 8 * (r >> 2) + (r & 3)
            a(f"v_cmp_le_i32 vcc, {m0}, v2\nv_mov_b32 v{vCZ+r}, {val}\nv_cndmask_b32 v{vCD+r}, v3, v{vCZ+r}, vcc\nv_cndmask_b32 v{vCF+r}, v{vCZ+r}, v3, vcc")
    q = []
    def issue(tag, n): q.extend([tag] * n)
    def wait_for(tags):
        last = max((i for i, t in enumerate(q) if t in tags), default=-1)
        if last >= 0:
            a(f"s_waitcnt lgkmcnt({min(len(q) - 1 - last, 15)})")
            del q[:last + 1]

    def b1_compute(B):
        kr = B; rs = B; vv = B + 16; ku = B + 24; tp = B + 46; vu = ku; pk = B + 16
        a(f"""
        v_and_b32 v2, 7, v0
        v_lshrrev_b32 v3, 3, v0
        v_mul_u32_u24 v4, 1296, v2
        v_lshl_add_u32 v4, v3, 2, v4
        v_add_u32 v4, {L_KB}, v4
        """)
        for i in range(-3, 8): a(f"ds_read_b32 v{kr+3+i}, v4 offset:{(640 if i < 0 else 656) + 160*i}")
        for i in range(8): a(f"ds_read_b32 v{vv+i}, v4 offset:{11024 + 160*i}")
        a(f"""
        v_lshlrev_b32 v{tp+0}, 16, v8
        v_lshlrev_b32 v{tp+1}, 16, v10
        v_and_b32 v{tp+2}, 0xffff0000, v8
        v_and_b32 v{tp+3}, 0xffff0000, v10
        v_lshlrev_b32 v{tp+4}, 16, v9
        v_lshlrev_b32 v{tp+5}, 16, v11
        v_and_b32 v{tp+6}, 0xffff0000, v9
        v_and_b32 v{tp+7}, 0xffff0000, v11
        s_mul_i32 s{sT0}, s{sC80}, {80*4096}
        s_lshl_b32 s{sT1}, s{sR64}, 7
        s_sub_u32 s{sT0}, s{sT0}, s{sT1}
        s_add_u32 s{sT0}, s{sT0}, {WS_U + 4080 - 112}
        v_lshlrev_b32 v3, 13, v3
        v_sub_u32 v2, 7, v2
        v_lshl_add_u32 v3, v2, 4, v3
        s_add_u32 s{sT1}, s{sT0}, 4096
        s_waitcnt lgkmcnt(8)
        """)
        for i in range(11): a(f"v_lshlrev_b32 v{ku+2*i}, 16, v{kr+i}\nv_and_b32 v{ku+2*i+1}, 0xffff0000, v{kr+i}")
        for i in range(8): a(f"v_pk_mul_f32 {pr(rs+2*i)}, {pr(ku+2*(i+3))}, {pr(tp)}")
        for j in range(1, 4):
            for i in range(8): a(f"v_pk_fma_f32 {pr(rs+2*i)}, {pr(ku+2*(i+3-j))}, {pr(tp+2*j)}, {pr(rs+2*i)}")
        a("s_waitcnt lgkmcnt(0)")
        for i in range(8): a(f"v_lshlrev_b32 v{vu+2*i}, 16, v{vv+i}\nv_and_b32 v{vu+2*i+1}, 0xffff0000, v{vv+i}")
        for i in range(8): a(f"v_pk_mul_f32 {pr(rs+2*i)}, {pr(rs+2*i)}, {pr(vu+2*i)}")
        for ch in range(2):
            for d in range(4): a(f"v_cvt_pk_bf16_f32 v{pk+4*ch+d}, v{rs+2*(7-2*d)+ch}, v{rs+2*(6-2*d)+ch}")
        a(f"buffer_store_dwordx4 v[{pk}:{pk+3}], v3, {srd(SWS)}, s{sT0} offen sc1")
        a(f"buffer_store_dwordx4 v[{pk+4}:{pk+7}], v3, {srd(SWS)}, s{sT1} offen sc1")
    def shift_load():
        a(f"v_lshrrev_b32 v4, 3, v0\nv_lshlrev_b32 v4, 4, v4\ns_mul_i32 s{sT4}, s{sC80}, 640\nbuffer_load_dwordx4 v[8:11], v4, {srd(SSH)}, s{sT4} offen")
    def publish_u(t):
        a(f"s_mul_i32 s{sT0}, s{sC80}, 5\ns_add_u32 s{sT0}, s{sT0}, s{sWV}\ns_lshl_b32 s{sT0}, s{sT0}, 5\ns_add_u32 s{sT0}, s{sT0}, s{sR64}\ns_mul_i32 s{sT0}, s{sT0}, {cfg.ufs}\ns_add_u32 s{sT0}, s{sT0}, {WS_FU}")
        publish(sT0, t)
    def rounds(RO):
        for k in range(3):
            a(f"""
            s_lshl_b32 s{sT0}, s{sHW}, 6
            s_add_u32 s{sT0}, s{sT0}, {256*k}
            v_add_u32 v2, s{sT0}, v1
            v_mul_u32_u24 v3, 205, v2
            v_lshrrev_b32 v3, 11, v3
            v_mul_u32_u24 v4, 10, v3
            v_sub_u32 v4, v2, v4
            v_mul_u32_u24 v5, 2560, v3
            v_lshl_add_u32 v{RO+k}, v4, 4, v5
            """)
            yield k
    def a2_setup():
        a(f"""
        s_lshl_b32 s{sT0}, s{sWV}, 9
        v_and_b32 v2, 31, v1
        v_lshrrev_b32 v3, 5, v1
        v_lshlrev_b32 v{OS1}, 3, v2
        v_lshlrev_b32 v4, 4, v2
        v_lshl_add_u32 v{OS0}, v3, 15, v4
        v_add_u32 v4, s{sT0}, v4
        v_lshl_add_u32 v5, v3, 12, v4
        v_add_u32 v{QAD0}, {L_Q}, v5
        v_add_u32 v{QAD1}, {L_Q + 8192}, v4
        v_lshl_add_u32 v{AK0}, v3, 13, v4
        v_add_u32 v{AK0}, {L_K}, v{AK0}
        v_add_u32 v{AK1}, {L_K + 16384}, v4
        v_bfe_u32 v4, v1, 2, 2
        v_lshl_add_u32 v4, v3, 2, v4
        v_lshlrev_b32 v4, 4, v4
        v_bfe_u32 v5, v1, 1, 1
        v_mul_u32_u24 v5, {VSTR}, v5
        v_and_b32 v6, 1, v1
        v_lshl_add_u32 v5, v6, 3, v5
        s_and_b32 s{sT1}, s{sHD}, 1
        s_lshl_b32 s{sT2}, s{sT1}, 3
        s_add_u32 s{sT2}, s{sT2}, {2*VSTR}
        v_mov_b32 v6, s{sT2}
        v_and_b32 v7, 16, v1
        v_cmp_ne_u32 vcc, 0, v7
        v_cndmask_b32 v5, v5, v6, vcc
        s_add_u32 s{sT0}, s{sT0}, {L_V + 4096}
        v_add3_u32 v5, v5, v4, s{sT0}
        v_add_u32 v6, {L_ONES}, v4
        v_and_b32 v7, 19, v1
        v_cmp_lt_u32 vcc, 16, v7
        v_cndmask_b32 v{AV0}, v5, v6, vcc
        v_mov_b32 v5, 512
        v_cndmask_b32 v{AVD}, v5, 0, vcc
        s_add_u32 s{sT0}, s{sWV}, 1
        s_cmp_eq_u32 s{sQB}, 0
        s_cselect_b32 s{sNV}, s{sT0}, 99
        s_mov_b32 s{sFB}, 0
        s_cmp_eq_u32 s{sT1}, 0
        s_cselect_b32 s{sT2}, -1, 0
        s_cselect_b32 s{sT3}, 0, -1
        v_cmp_eq_u32 vcc, 0, v3
        v_mov_b32 v5, s{sT2}
        v_mov_b32 v6, s{sT3}
        v_cndmask_b32 v{QM0}, 0, v5, vcc
        v_cndmask_b32 v{QM1}, 0, v6, vcc
        s_and_b32 s{sT2}, s{sJ}, 3
        s_mul_i32 s{sT2}, s{sT2}, 25
        s_and_b32 s{sT3}, s{sC80}, 1
        s_mul_i32 s{sT3}, s{sT3}, 12
        s_add_u32 s{sT2}, s{sT2}, s{sT3}
        s_add_u32 s{sT2}, s{sT2}, s{sWV}
        s_lshl_b32 s{sWON}, s{sT2}, 10
        s_mov_b32 s{sT4}, 6554
        """)
        for i in range(13):
            a(f"""
            s_lshl_b32 s{sT3}, s{sT2}, 6
            v_add_u32 v2, s{sT3}, v1
            v_mul_u32_u24 v3, s{sT4}, v2
            v_lshrrev_b32 v3, 16, v3
            v_mul_u32_u24 v3, 1120, v3
            v_lshl_add_u32 v{WOV+i}, v2, 4, v3
            s_add_u32 s{sT2}, s{sT2}, 8
            s_cmp_ge_u32 s{sT2}, 100
            s_cselect_b32 s{sT3}, 100, 0
            s_sub_u32 s{sT2}, s{sT2}, s{sT3}
            """)

    def wom_setup():
        for i in range(13):
            a(f"s_add_u32 s{sT0}, s{sWON}, {L_WO1}\ns_sub_u32 s{sT1}, s{sWON}, 76800")
            if i < 12: a(f"s_add_u32 s{sWON}, s{sWON}, 8192\ns_sub_u32 s{WOM[i]}, s{sWON}, 102400\ns_min_u32 s{sWON}, s{sWON}, s{WOM[i]}")
            a(f"s_min_u32 s{WOM[i]}, s{sT0}, s{sT1}")

    order = [(SX, 0), (SW, 1), (SK, 4), (SV, 5), (SSH, 6), (SDBG, 10), (SWS, 11), (SH, 7), (SD, 8), (SWO, 2), (SQ, 3), (SOUT, 9)]
    a("s_cmp_ge_u32 s2, 256\ns_cbranch_scc1 L_exit")
    stamp(0)
    for s, slot in order: a(f"s_load_dwordx2 s[{s}:{s+1}], s[0:1], {slot*8}")
    a(f"""
    v_lshrrev_b32 v2, 6, v0
    v_and_b32 v1, 63, v0
    s_and_b32 s{sXC}, s2, 7
    v_readfirstlane_b32 s{sWV}, v2
    s_lshr_b32 s{sJ}, s2, 3
    """)
    sizes = {SX: 2621440, SW: 2457600, SWO: 819200, SQ: 2621440, SK: 2621440, SV: 2621440, SSH: 5120, SH: 2621440, SD: 1280, SOUT: 5242880, SDBG: 256, SWS: WS_SIZE}
    for s, n in sizes.items(): a(f"s_mov_b32 s{s+2}, {n}\ns_mov_b32 s{s+3}, 0x20000")
    a(f"""
    s_and_b32 s{sT0}, s{sJ}, 3
    s_lshl_b32 s{sR64}, s{sXC}, 2
    s_add_u32 s{sR64}, s{sR64}, s{sT0}
    s_lshr_b32 s{sC80}, s{sJ}, 2
    s_mul_i32 s{sC160}, s{sC80}, 160
    s_and_b32 s{sHW}, s{sWV}, 3
    s_and_b32 s{sT0}, s{sXC}, 1
    s_mul_i32 s{sT0}, s{sT0}, 30
    s_add_u32 s{sT0}, s{sT0}, s{sJ}
    s_lshr_b32 s{sCT}, s{sT0}, 2
    s_and_b32 s{sT0}, s{sT0}, 3
    s_lshr_b32 s{sRB}, s{sXC}, 1
    s_lshl_b32 s{sRB}, s{sRB}, 2
    s_add_u32 s{sRB}, s{sRB}, s{sT0}
    """)
    if cfg.map2 == "head": a(f"s_mov_b32 s{sHD}, s{sR64}\ns_mov_b32 s{sQB}, s{sC80}")
    else: a(f"s_mov_b32 s{sHD}, s{sJ}\ns_mov_b32 s{sQB}, s{sXC}")
    a(f"s_cmp_lt_u32 s{sWV}, 4\ns_cbranch_scc1 L_C")

    vX = 16; vW = 20; vD = 21; vNH = 22; vHA = 64; vHB = 80
    a(f"""
    v_lshrrev_b32 v2, 3, v1
    v_lshrrev_b32 v3, 4, v1
    v_xor_b32 v4, v3, v1
    v_and_b32 v4, 7, v4
    v_mul_u32_u24 v2, 1280, v2
    v_lshl_add_u32 v{vX}, v4, 4, v2
    v_xor_b32 v4, 4, v4
    v_lshl_add_u32 v{vX+1}, v4, 4, v2
    v_add_u32 v{vX+1}, {8*1280}, v{vX+1}
    v_add_u32 v{vX+2}, {16*1280}, v{vX}
    v_add_u32 v{vX+3}, {16*1280}, v{vX+1}
    v_lshlrev_b32 v4, 2, v3
    v_xor_b32 v4, v4, v1
    v_and_b32 v4, 15, v4
    v_mul_u32_u24 v3, 3840, v3
    v_lshl_add_u32 v{vW}, v4, 4, v3
    s_mul_i32 s{sA}, s{sRB}, {128*1280}
    s_mul_i32 s{sT0}, s{sHW}, {32*1280}
    s_add_u32 s{sA}, s{sA}, s{sT0}
    s_lshl_b32 s{sB}, s{sCT}, 8
    s_mul_i32 s{sT0}, s{sHW}, {16*3840}
    s_add_u32 s{sB}, s{sB}, s{sT0}
    s_lshl_b32 s{sT5}, s{sHW}, 12
    """)
    if cfg.ncls == 10:
        a(f"s_and_b32 s{sT0}, s{sRB}, 3\ns_mul_i32 s{sT0}, s{sT0}, 5\ns_add_u32 s{sT0}, s{sT0}, 1\ns_lshr_b32 s{sT0}, s{sT0}, 1\ns_lshr_b32 s{sT1}, s{sRB}, 2\ns_add_u32 s{sT0}, s{sT0}, s{sT1}\ns_add_u32 s{sKC}, s{sT0}, s{sCT}")
    elif cfg.ncls == 2:
        a(f"s_add_u32 s{sT0}, s{sRB}, s{sCT}\ns_and_b32 s{sT0}, s{sT0}, 1\ns_mul_i32 s{sT0}, s{sT0}, 5\ns_add_u32 s{sKC}, s{sT0}, s{sXC}")
    elif cfg.ncls == 4:
        a(f"s_add_u32 s{sT0}, s{sRB}, s{sCT}\ns_and_b32 s{sT0}, s{sT0}, 3\ns_mul_i32 s{sT0}, s{sT0}, 5\ns_add_u32 s{sT0}, s{sT0}, 1\ns_lshr_b32 s{sT0}, s{sT0}, 1\ns_add_u32 s{sKC}, s{sT0}, s{sXC}")
    elif cfg.ncls == 3:
        a(f"s_add_u32 s{sT0}, s{sRB}, s{sCT}\ns_mul_i32 s{sT1}, s{sT0}, 86\ns_lshr_b32 s{sT1}, s{sT1}, 8\ns_mul_i32 s{sT1}, s{sT1}, 3\ns_sub_u32 s{sT0}, s{sT0}, s{sT1}\ns_mul_i32 s{sT0}, s{sT0}, 7\ns_lshr_b32 s{sT0}, s{sT0}, 1\ns_add_u32 s{sKC}, s{sT0}, s{sXC}")
    else:
        a(f"s_mov_b32 s{sKC}, s{sXC}")
    a(f"s_mul_i32 s{sT0}, s{sKC}, 205\ns_lshr_b32 s{sT0}, s{sT0}, 11\ns_mul_i32 s{sT0}, s{sT0}, 10\ns_sub_u32 s{sKC}, s{sKC}, s{sT0}")
    def ring_issue(c):
        slot = (c % 3) * 32768
        a(f"s_lshl_b32 s{sT0}, s{sKC}, 7\ns_add_u32 s{sT0}, s{sT0}, s{sA}\ns_mul_i32 s{sT1}, s{sKC}, {64*3840}\ns_add_u32 s{sT1}, s{sT1}, s{sB}")
        for i in range(4):
            dma(vX + i, SX, f"s{sT0}", f"s_add_u32 m0, s{sT5}, {slot + i*1024}")
            dma(vW, SW, f"s{sT1}", f"s_add_u32 m0, s{sT5}, {slot + 16384 + i*1024}")
            if i < 3: a(f"s_add_u32 s{sT1}, s{sT1}, {4*3840}")
        a(f"s_add_u32 s{sKC}, s{sKC}, 1\ns_cmp_eq_u32 s{sKC}, 10\ns_cselect_b32 s{sKC}, 0, s{sKC}")
    def h_chan():
        a(f"""
        s_mul_i32 s{sT0}, s{sJ}, 3
        s_lshl_b32 s{sT1}, s{sJ}, 1
        s_add_u32 s{sT1}, s{sT1}, 16
        s_cmp_lt_u32 s{sJ}, 16
        s_cselect_b32 s{sT0}, s{sT0}, s{sT1}
        s_cselect_b32 s{sT1}, 3, 2
        s_cmp_lt_u32 s{sHW}, s{sT1}
        s_cselect_b32 s{sCHV}, 1, 0
        s_cselect_b32 s{sT1}, s{sHW}, 0
        s_add_u32 s{sT0}, s{sT0}, s{sT1}
        s_mul_i32 s{sCH}, s{sXC}, 80
        s_add_u32 s{sCH}, s{sCH}, s{sT0}
        s_lshr_b32 s{sT0}, s{sT0}, 4
        s_mul_i32 s{sT1}, s{sXC}, 5
        s_add_u32 s{sT0}, s{sT0}, s{sT1}
        s_lshl_b32 s{sT0}, s{sT0}, 5
        v_and_b32 v12, 31, v1
        v_add_u32 v12, s{sT0}, v12
        v_mul_u32_u24 v12, {cfg.ufs}, v12
        v_add_u32 v12, {WS_FU}, v12
        """)
    def h_loads():
        a(f"""
        buffer_load_dwordx2 v[14:15], v12, {srd(SWS)}, 0 offen sc1
        s_lshl_b32 s{sT0}, s{sCH}, 12
        v_lshlrev_b32 v2, 4, v1
        v_add_u32 v2, s{sT0}, v2
        s_lshl_b32 s{sT0}, s{sCH}, 1
        v_mov_b32 v4, s{sT0}
        """)
        for i in range(4):
            a(f"buffer_load_dwordx4 v[{vHA+4*i}:{vHA+4*i+3}], v2, {srd(SH)}, 0 offen offset:{1024*i} {cfg.nt_in}")
            a(f"buffer_load_dwordx4 v[{vHB+4*i}:{vHB+4*i+3}], v2, {srd(SH)}, 0 offen offset:{1024*i+4} {cfg.nt_in}")
        a(f"buffer_load_ushort v{vD}, v4, {srd(SD)}, 0 offen")
    def h_b1():
        L = a.lab("L_hb1")
        a(f"s_cmp_lg_u32 s{sWV}, 4\ns_cbranch_scc1 {L}")
        b1_compute(64)
        a(f"{L}:")
    def h_pub_u():
        L = a.lab("L_hpu")
        nonce_take(vNH)
        a(f"s_cmp_lg_u32 s{sWV}, 4\ns_cbranch_scc1 {L}")
        publish_u(2)
        a(f"{L}:")
    AA = 26; AB = 30; BACC = 96; BF = 32; AF = 128; NAF = 5; DF = 148
    def h_setup():
        a(f"s_mul_i32 s{sT2}, s{sR64}, {64*1280}\ns_add_u32 s{sT2}, s{sT2}, s{sC160}")
        for k in rounds(ROH):
            a(f"""
            v_mul_u32_u24 v5, 1280, v3
            v_lshl_add_u32 v5, v4, 4, v5
            v_mul_u32_u24 v4, {ZSTR}, v4
            v_lshl_add_u32 v4, v3, 1, v4
            v_add_u32 v{ZA+k}, {L_Z}, v4
            v_add_u32 v{QA+k}, s{sT2}, v5
            """)
        a(f"""
        s_cmp_ge_u32 s{sHW}, 2
        s_cselect_b32 s{sT2}, 15, 23
        v_min_u32 v2, s{sT2}, v1
        v_lshrrev_b32 v3, 3, v2
        v_and_b32 v2, 7, v2
        v_lshl_add_u32 v2, v3, 5, v2
        s_mul_i32 s{sT0}, s{sC80}, 80
        s_lshl_b32 s{sT2}, s{sHW}, 3
        s_add_u32 s{sT0}, s{sT0}, s{sT2}
        v_add_u32 v2, s{sT0}, v2
        v_mul_u32_u24 v2, {FS}, v2
        v_add_u32 v{FZA}, {WS_FZ}, v2
        v_lshrrev_b32 v2, 3, v1
        v_and_b32 v3, 7, v1
        v_lshlrev_b32 v2, 12, v2
        v_lshl_add_u32 v{ZD}, v3, 4, v2
        v_and_b32 v2, 15, v1
        v_lshrrev_b32 v3, 4, v1
        v_add_u32 v4, 1, v2
        v_lshrrev_b32 v4, 1, v4
        v_lshl_add_u32 v4, v3, 2, v4
        v_lshlrev_b32 v4, 2, v4
        v_and_b32 v5, 1, v2
        v_cmp_eq_u32 vcc, 0, v5
        v_mov_b32 v5, {HODD}
        v_cndmask_b32 v5, 0, v5, vcc
        s_min_u32 s{sT1}, s{sHW}, 2
        s_mul_i32 s{sT0}, s{sT1}, {HSTR}
        s_add_u32 s{sT0}, s{sT0}, {L_H}
        v_add3_u32 v{AA}, v4, v5, s{sT0}
        v_add_u32 v{AA+1}, 1024, v{AA}
        v_add_u32 v{AA+2}, 2048, v{AA}
        v_add_u32 v{AA+3}, 3072, v{AA}
        v_lshlrev_b32 v13, 4, v1
        v_add_u32 v25, s{sT0}, v13
        v_lshlrev_b32 v4, 5, v2
        v_lshl_add_u32 v4, v3, 3, v4
        v_add_u32 v31, s{sT0}, v4
        v_sub_u32 v4, 15, v2
        v_lshlrev_b32 v4, 5, v4
        v_lshl_add_u32 v4, v3, 4, v4
        s_mul_i32 s{sT1}, s{sT1}, {USTR}
        s_add_u32 s{sT1}, s{sT1}, {L_U}
        v_add_u32 v{AB}, s{sT1}, v4
        v_lshl_add_u32 v2, v1, 3, s{sT1}
        v_mov_b32 v4, 0
        v_mov_b32 v5, 0
        v_mov_b32 v6, 0
        v_mov_b32 v7, 0
        ds_write_b64 v2, v[4:5] offset:4096
        s_mov_b64 exec, 3
        ds_write_b128 v25, v[4:7]
        s_mov_b64 exec, -1
        """)
    a(f"s_cmp_ge_u32 s{sJ}, 30\ns_cbranch_scc1 L_h_idle\ns_waitcnt lgkmcnt(0)")
    shift_load()
    ring_issue(0)
    h_chan()
    build_masks("0")
    h_setup(); a2_setup(); wom_setup()
    if cfg.b1c < 0:
        a("s_barrier")
        stamp(1)
        a("s_waitcnt vmcnt(8)")
        h_b1()
    nonce_issue(vNH)
    ring_issue(1)
    pubc = min(max(cfg.b1c, -1) + 3, 8)
    for c in range(10):
        w = {0: 9, 9: 10}.get(c, 8)
        a(f"s_waitcnt vmcnt({w})")
        if c in (0, 1, 2, 3, 5, 7, 9): stamp(1 + (0, 1, 2, 3, 5, 7, 9).index(c), "a1")
        a("s_barrier")
        if c == cfg.b1c:
            stamp(1); h_b1()
        if c + 2 <= 9: ring_issue(c + 2)
        if c == pubc: h_pub_u()
        if c == 8:
            a(f"s_cmp_eq_u32 s{sCHV}, 0\ns_cbranch_scc1 L_h_nob2a")
            h_loads()
    a("L_h_post:")
    def h_idle():
        a("L_h_idle:\ns_waitcnt lgkmcnt(0)")
        shift_load(); h_chan(); build_masks("0")
        h_setup(); a2_setup(); wom_setup()
        a("s_waitcnt vmcnt(0)\ns_barrier")
        nonce_issue(vNH)
        h_b1()
        a("s_waitcnt vmcnt(0)")
        h_pub_u()
        a(f"s_cmp_eq_u32 s{sCHV}, 0\ns_cbranch_scc1 L_h_nob2")
        h_loads()
        a("s_branch L_h_post")
    ool.append(h_idle)
    stamp(2)
    if cfg.stop <= 1: a("s_branch L_fin")
    def q_loads():
        for k in range(3): a(f"buffer_load_dwordx4 v[{QV+4*k}:{QV+4*k+3}], v{QA+k}, {srd(SQ)}, 0 offen {cfg.nt_in}")
    def h_nob2():
        a("L_h_nob2a:\ns_waitcnt vmcnt(0)\ns_barrier\nL_h_nob2:")
        if cfg.stop <= 1: a("s_branch L_fin")
        q_loads(); a("s_branch L_join_a")
    ool.append(h_nob2)
    a(f"""
    s_mul_i32 s{sT5}, s{sHW}, {USTR}
    s_add_u32 s{sT5}, s{sT5}, {L_U}
    s_lshl_b32 s{sA}, s{sCH}, 12
    s_add_u32 s{sA}, s{sA}, {WS_U}
    s_waitcnt vmcnt(9)
    """)
    check_or_poll(12, 14)
    for i in range(4):
        a(f"s_add_u32 s{sT0}, s{sA}, {1024*i}")
        dma(13, SWS, f"s{sT0}", f"s_add_u32 m0, s{sT5}, {1024*i}", "sc1")
    a(f"""
    s_add_u32 s{sA}, s{sA}, {WS_Z - WS_U}
    v_mov_b32 v8, 0
    v_mov_b32 v9, 0
    v_mov_b32 v10, 0
    v_and_b32 v2, 15, v1
    v_sub_u32 v2, 15, v2
    v_lshrrev_b32 v3, 4, v1
    v_lshlrev_b32 v3, 2, v3
    v_lshrrev_b32 v4, 1, v2
    v_sub_u32 v4, v4, v3
    v_and_b32 v2, 1, v2
    v_lshlrev_b32 v2, 4, v2
    s_waitcnt vmcnt(4)
    v_readfirstlane_b32 s{sT1}, v{vHA}
    v_cmp_eq_u32 vcc, 1, v1
    s_lshl_b32 s{sT1}, s{sT1}, 16
    v_mov_b32 v11, s{sT1}
    v_cndmask_b32 v11, 0, v11, vcc
    """)
    for i in range(4):
        a(f"ds_write_b128 v25, v[{vHA+4*i}:{vHA+4*i+3}] offset:{32+1024*i}")
        for j in range(4): a(f"v_alignbit_b32 v{vHB+4*i+j}, v{vHB+4*i+j}, v{vHA+4*i+j}, 16")
        a(f"ds_write_b128 v25, v[{vHB+4*i}:{vHB+4*i+3}] offset:{HODD+32+1024*i}")
    a(f"s_mov_b64 exec, 3\nds_write_b128 v25, v[8:11] offset:{HODD}\ns_mov_b64 exec, -1")
    a(f"v_lshlrev_b32 v2, v2, v{vD}")
    for rr in range(4): a(f"v_cmp_eq_u32 vcc, {rr}, v4\nv_cndmask_b32 v{DF+rr}, 0, v2, vcc")
    a("s_waitcnt vmcnt(0) lgkmcnt(0)")
    stamp(3)
    def b_read(r, nn):
        d = BF + 32 * (r & 1) + 4 * nn
        a(f"ds_read_b128 v[{d}:{d+3}], v{AB} offset:{2*(1792 - 32*(8*nn - r))}"); issue(("B", r, nn), 1)
    def a_read(gi):
        r, mu = groups[gi]; kap = 8 * mu + r
        d = AF + 4 * (gi % NAF); o = 16 * (kap % 16)
        a(f"ds_read2_b32 v[{d}:{d+1}], v{AA + kap//16} offset0:{o} offset1:{o+1}")
        a(f"ds_read2_b32 v[{d+2}:{d+3}], v{AA + kap//16} offset0:{o+2} offset1:{o+3}"); issue(("A", gi), 2)
    groups = [(r, mu) for r in range(7) for mu in (0, 7, 1, 6, 2, 5, 3, 4)] + [(7, mu) for mu in (7, 6, 5, 4, 3, 2, 1, 0)]
    q.clear()
    LA = NAF - 1
    for nn in range(8): b_read(0, nn)
    for gi in range(3): a_read(gi)
    q_loads()
    for i in range(8):
        wait_for({("B", 0, i)})
        d = BACC + 4 * i; f = BF + 4 * i
        a(f"v_mfma_f32_16x16x32_bf16 v[{d}:{d+3}], v[{DF}:{DF+3}], v[{f}:{f+3}], 0")
    for gi in range(3, LA): a_read(gi)
    PZ = 8
    for gi, (r, mu) in enumerate(groups):
        wait_for({("A", gi)} | {("B", r, nn) for nn in range(8 - mu)})
        pend = []
        if gi + LA < 64: pend.append(lambda g=gi + LA: a_read(g))
        if r < 7 and gi % 2 == 0:
            pend.append(lambda nn=gi % 8, r=r: b_read(r + 1, nn)); pend.append(lambda nn=gi % 8 + 1, r=r: b_read(r + 1, nn))
        tiles = list(range(mu, 8))
        for n, i in enumerate(tiles):
            d = BACC + 4 * i; f = BF + 32 * (r & 1) + 4 * (i - mu); s = AF + 4 * (gi % NAF)
            a(f"v_mfma_f32_16x16x32_bf16 v[{d}:{d+3}], v[{s}:{s+3}], v[{f}:{f+3}], v[{d}:{d+3}]")
            if pend: pend.pop(0)()
            if gi == 63 and n >= 3:
                j = n - 3; dd = BACC + 4 * j; p = PZ + 2 * (j & 1)
                a(f"v_cvt_pk_bf16_f32 v{p}, v{dd}, v{dd+1}\nv_cvt_pk_bf16_f32 v{p+1}, v{dd+2}, v{dd+3}\nds_write_b64 v31, v[{p}:{p+1}] offset:{512*j}")
        for f_ in pend: f_()
    stamp(4)
    for j in range(5, 8):
        dd = BACC + 4 * j; p = PZ + 2 * (j & 1)
        a(f"v_cvt_pk_bf16_f32 v{p}, v{dd}, v{dd+1}\nv_cvt_pk_bf16_f32 v{p+1}, v{dd+2}, v{dd+3}\nds_write_b64 v31, v[{p}:{p+1}] offset:{512*j}")
    for i in range(4): a(f"ds_read_b128 v[{32+4*i}:{35+4*i}], v25 offset:{1024*i}")
    for i in range(4):
        a(f"s_waitcnt lgkmcnt({3-i})\nbuffer_store_dwordx4 v[{32+4*i}:{35+4*i}], v13, {srd(SWS)}, s{sA} offen offset:{1024*i} sc1")
    a("s_branch L_join_a")

    a("L_C:")
    vNC = 60
    a(f"""
    s_getpc_b64 s[4:5]
    L_pc:
    s_sub_u32 s4, s4, L_pc-{NAME}_kernel
    s_subb_u32 s5, s5, 0
    s_mul_i32 s3, s{sJ}, 1280
    v_lshl_add_u32 v2, v0, 7, s3
    v_min_u32 v2, L_end-{NAME}_kernel, v2
    s_cmp_lg_u32 s{sWV}, 0
    s_cbranch_scc1 L_nocp
    s_mov_b64 exec, 0x3ff
    global_load_dword v63, v2, s[4:5]
    s_mov_b64 exec, -1
    L_nocp:
    s_mov_b32 s{sCHV}, 0
    s_mov_b32 s{sCH}, 0
    v_mul_u32_u24 v2, 26, v1
    v_lshrrev_b32 v2, 8, v2
    v_mul_u32_u24 v2, 1120, v2
    v_lshl_add_u32 v12, v1, 4, v2
    s_mul_i32 s{sA}, s{sR64}, {64*1280}
    s_add_u32 s{sA}, s{sA}, s{sC160}
    s_sub_u32 s{sT0}, s{sA}, {4*1280}
    v_add_u32 v13, s{sT0}, v12
    s_mul_i32 s{sT1}, s{sWV}, {8*1280}
    s_add_u32 s{sA}, s{sA}, s{sT1}
    s_mul_i32 s{sB}, s{sWV}, 1296
    """)

    def b1_loads(half):
        a(f"s_mov_b32 exec_hi, 0xff\ns_add_u32 s{sT1}, s{sA}, {half*32*1280}\ns_add_u32 s{sT2}, s{sT1}, {4*1280}")
        o = half * 4 * 1296
        dma(12, SK, f"s{sT1}", f"s_add_u32 m0, s{sB}, {L_KB+656+o}", cfg.nt_in)
        dma(12, SV, f"s{sT1}", f"s_add_u32 m0, s{sB}, {L_VB+o}", cfg.nt_in)
        dma(12, SK, f"s{sT2}", f"s_add_u32 m0, s{sB}, {L_KB+656+640+o}", cfg.nt_in)
        dma(12, SV, f"s{sT2}", f"s_add_u32 m0, s{sB}, {L_VB+640+o}", cfg.nt_in)
        if half == 0:
            L = a.lab("L_nh")
            a(f"s_cmp_lg_u32 s{sWV}, 0\ns_cbranch_scc1 {L}")
            dma(13, SK, "0", L_KB, cfg.nt_in)
            a(f"{L}:")
        a("s_mov_b32 exec_hi, -1")
    a(f"""
    s_waitcnt lgkmcnt(0)
    s_or_b32 s{sT0}, s2, s{sWV}
    s_cmp_lg_u32 s{sT0}, 0
    s_cbranch_scc1 L_nonon
    s_memrealtime s[{sN}:{sN+1}]
    s_waitcnt lgkmcnt(0)
    s_or_b32 s{sN}, s{sN}, 1
    v_mov_b32 v6, s{sN}
    v_mov_b32 v7, s{sN+1}
    v_mov_b32 v5, 0
    s_mov_b64 exec, 1
    buffer_store_dwordx2 v[6:7], v5, {srd(SDBG)}, 0 offen sc1
    s_mov_b64 exec, -1
    L_nonon:
    s_cmp_ge_u32 s{sJ}, 30
    s_cbranch_scc1 L_c_idle
    """)
    def tlb():
        if not cfg.tlb: return
        L = a.lab("L_tlb")
        a(f"s_cmp_lg_u32 s{sWV}, 1\ns_cbranch_scc1 {L}\nv_lshlrev_b32 v5, {cfg.tlb}, v1")
        for sr in (SWS, SOUT, SQ, SH, SWO, SD): a(f"buffer_load_dword v63, v5, {srd(sr)}, 0 offen")
        a(f"{L}:")
    GFA = 207; sGA, sGB = 0, 1
    def qkv_addr():
        a(f"""
        s_lshr_b32 s{sT0}, s{sHD}, 1
        s_mul_i32 s{sT0}, s{sT0}, 5
        s_and_b32 s{sT1}, s{sHD}, 1
        s_lshl_b32 s{sT2}, s{sT1}, 1
        s_add_u32 s{sT2}, s{sT2}, s{sT0}
        s_add_u32 s{sT3}, s{sT2}, 2
        s_lshr_b32 s{sT2}, s{sT2}, 3
        s_lshr_b32 s{sT3}, s{sT3}, 3
        v_lshrrev_b32 v2, 1, v1
        v_min_u32 v2, 4, v2
        v_cmp_le_u32 vcc, 3, v2
        v_subrev_u32 v3, 2, v2
        v_cndmask_b32 v2, v2, v3, vcc
        s_cmp_eq_u32 s{sQB}, 0
        s_cselect_b32 s{sT4}, 0, 4
        v_mov_b32 v3, s{sT4}
        v_cndmask_b32 v3, 0, v3, vcc
        v_mul_u32_u24 v2, 10, v2
        v_and_b32 v4, 1, v1
        v_cmp_eq_u32 vcc, 1, v4
        v_mov_b32 v4, s{sT2}
        v_mov_b32 v5, s{sT3}
        v_cndmask_b32 v4, v4, v5, vcc
        v_add_u32 v2, v2, v4
        v_lshlrev_b32 v2, 5, v2
        s_lshl_b32 s{sT4}, s{sQB}, 2
        s_add_u32 s{sT4}, s{sT4}, s{sWV}
        v_add_u32 v2, s{sT4}, v2
        v_sub_u32 v2, v2, v3
        v_mul_u32_u24 v2, {FS}, v2
        v_add_u32 v{GFA}, {WS_FG}, v2
        s_mul_i32 s{sT1}, s{sT1}, 3
        s_add_u32 s{sGA}, s{sT0}, s{sT1}
        s_add_u32 s{sGB}, s{sT0}, 2
        s_lshl_b32 s{sGA}, s{sGA}, 15
        s_lshl_b32 s{sGB}, s{sGB}, 15
        s_lshl_b32 s{sT4}, s{sT4}, 10
        s_add_u32 s{sGA}, s{sGA}, s{sT4}
        s_add_u32 s{sGB}, s{sGB}, s{sT4}
        v_lshlrev_b32 v14, 4, v1
        v_bfrev_b32 v15, 1
        s_cmp_eq_u32 s{sQB}, 0
        s_cselect_b64 vcc, -1, 0
        v_cndmask_b32 v15, v14, v15, vcc
        s_lshl_b32 s{sT5}, s{sWV}, 10
        """)
    def c_idle():
        a("L_c_idle:")
        b1_loads(0); b1_loads(1); shift_load(); build_masks("0"); a2_setup(); qkv_addr(); wom_setup()
        a("s_waitcnt vmcnt(0)\ns_barrier")
        nonce_issue(vNC)
        b1_compute(128)
        a("s_waitcnt vmcnt(0)")
        nonce_take(vNC); publish_u(2)
        tlb()
        if cfg.wopre:
            a(f"""
            s_sub_u32 s{sT0}, s{sJ}, 30
            s_lshl_b32 s{sT0}, s{sT0}, 2
            s_add_u32 s{sT0}, s{sT0}, s{sWV}
            s_lshl_b32 s{sT0}, s{sT0}, 6
            s_mul_i32 s{sT1}, s{sXC}, 800
            s_add_u32 s{sT0}, s{sT0}, s{sT1}
            v_add_u32 v2, s{sT0}, v1
            v_lshlrev_b32 v2, 7, v2
            """)
            for i in range(cfg.wopre):
                a("s_waitcnt vmcnt(1)")
                a(f"v_subrev_u32 v3, {819200}, v2\nv_min_u32 v2, v2, v3\nbuffer_load_dword v63, v2, {srd(SWO)}, 0 offen\nv_add_u32 v2, {512*128}, v2")
        a("s_branch L_c_post")
    ool.append(c_idle)
    if cfg.b1a < 0: b1_loads(0)
    if cfg.b1b < 0: b1_loads(1)
    shift_load()
    if cfg.tlball: tlb()
    if cfg.tlbs:
        L = a.lab("L_tlbs")
        a(f"s_cmp_lg_u32 s{sWV}, 1\ns_cbranch_scc1 {L}")
        for sr, n in ((SWS, 10), (SOUT, 3), (SQ, 2), (SH, 2), (SWO, 1), (SD, 1)):
            for i in range(n):
                a(f"s_mov_b32 s{sT0}, {i << 21}\ns_load_dword s3, s[{sr}:{sr+1}], s{sT0}")
        a(f"{L}:")
    AX = 48; AW = 56; ACC = 64
    FS4 = [128, 144, 16, 32]
    a(f"""
    s_and_b32 s{sT0}, s{sWV}, 1
    s_lshr_b32 s{sT1}, s{sWV}, 1
    v_and_b32 v2, 31, v1
    v_lshrrev_b32 v3, 5, v1
    v_bfe_u32 v4, v2, 1, 3
    v_xor_b32 v4, v4, v3
    s_lshl_b32 s{sT2}, s{sT1}, 13
    v_lshlrev_b32 v5, 7, v2
    v_add_u32 v5, s{sT2}, v5
    """)
    for ks in range(4):
        a(f"v_xor_b32 v6, {2*ks}, v4\nv_lshl_add_u32 v{AX+ks}, v6, 4, v5\nv_add_u32 v{AX+4+ks}, 0x10000, v{AX+ks}")
    a(f"""
    v_bfe_u32 v4, v1, 2, 2
    v_lshl_add_u32 v5, v3, 3, v4
    v_lshlrev_b32 v5, 8, v5
    v_and_b32 v6, 3, v1
    v_lshl_add_u32 v5, v6, 3, v5
    v_and_b32 v6, 16, v1
    v_lshl_add_u32 v5, v6, 1, v5
    v_add_u32 v5, 16384, v5
    s_lshl_b32 s{sT2}, s{sT0}, 1
    """)
    for mt in range(2):
        a(f"s_add_u32 s{sT3}, s{sT2}, {mt}\nv_xor_b32 v6, s{sT3}, v4\nv_lshl_add_u32 v{AW+mt}, v6, 6, v5\nv_add_u32 v{AW+2+mt}, 0x10000, v{AW+mt}")
    build_masks("0"); a2_setup(); qkv_addr()
    if cfg.b1b < 0: wom_setup()
    if cfg.b1c < 0:
        a("s_waitcnt vmcnt(0)\ns_barrier")
        stamp(1)
        nonce_issue(vNC)
        b1_compute(128)
    def a1_reads(c, ks):
        F = FS4[ks]
        slot = c % 3; hi = slot >> 1; o = (slot & 1) * 32768
        r = []
        for half in range(2):
            for t in range(2):
                r.append(f"ds_read_b64_tr_b16 v[{F+4*half+2*t}:{F+4*half+2*t+1}], v{AW+2*hi+half} offset:{o + (16*ks+4*t)*256}")
            r.append(f"ds_read_b128 v[{F+8+4*half}:{F+8+4*half+3}], v{AX+4*hi+ks} offset:{o + half*4096}")
        return [] if cfg.noread else r
    def a1_mfma(ks, first):
        F = FS4[ks]; r = []
        for mt, nt in ((0, 0), (1, 0), (1, 1), (0, 1)):
            d = ACC + 16 * (2 * mt + nt)
            r.append(f"v_mfma_f32_32x32x16_bf16 v[{d}:{d+15}], v[{F+4*mt}:{F+4*mt+3}], v[{F+8+4*nt}:{F+8+4*nt+3}], " + ("0" if first else f"v[{d}:{d+15}]"))
        return [] if cfg.nomfma else r
    def weave(reads, mf, per):
        reads = list(reads)
        for m in mf:
            for _ in range(per):
                if reads: a(reads.pop(0))
            a(m)
        for r in reads: a(r)
    for c in range(10):
        if c == cfg.b1c: a("s_waitcnt vmcnt(0)")
        if c == pubc + 1:
            a("s_waitcnt vmcnt(0)")
            nonce_take(vNC); publish_u(2)
        if c in (0, 1, 2, 3, 5, 7, 9): stamp(1 + (0, 1, 2, 3, 5, 7, 9).index(c), "a1")
        a("s_barrier")
        if c == cfg.b1a: b1_loads(0)
        if c == cfg.b1b: b1_loads(1); wom_setup()
        weave(a1_reads(c, 0) + a1_reads(c, 1), (a1_mfma(2, False) + a1_mfma(3, False)) if c > 0 else [], 2)
        a("s_waitcnt lgkmcnt(6)")
        m0 = a1_mfma(0, c == 0); m1 = a1_mfma(1, False); rd = a1_reads(c, 2) + a1_reads(c, 3)
        if cfg.nomfma or cfg.noread:
            weave(rd, m0 + m1, 2)
        else:
            a(m0[0]); weave(rd, m0[1:], 4)
            a("s_waitcnt lgkmcnt(12)")
            weave([], m1, 0)
        a("s_waitcnt lgkmcnt(0)")
        if c == cfg.b1c:
            stamp(1); nonce_issue(vNC); b1_compute(128)
    qs = f2u(20 ** -0.5 * math.log2(math.e))
    mlast = a1_mfma(2, False) + a1_mfma(3, False)
    weave([], mlast[:4], 0)
    a(f"""
    s_and_b32 s{sT0}, s{sWV}, 1
    s_lshr_b32 s{sT1}, s{sWV}, 1
    s_lshl_b32 s{sT2}, s{sCT}, 1
    s_add_u32 s{sT2}, s{sT2}, s{sT0}
    s_lshl_b32 s{sT3}, s{sRB}, 1
    s_add_u32 s{sT3}, s{sT3}, s{sT1}
    s_lshl_b32 s{sA}, s{sT2}, 18
    s_lshl_b32 s{sT4}, s{sT3}, 10
    s_add_u32 s{sA}, s{sA}, s{sT4}
    s_lshl_b32 s{sB}, s{sT2}, 5
    s_add_u32 s{sB}, s{sB}, s{sT3}
    s_mul_i32 s{sB}, s{sB}, {FS}
    s_add_u32 s{sB}, s{sB}, {WS_FG}
    v_and_b32 v2, 31, v1
    v_lshrrev_b32 v3, 5, v1
    v_lshlrev_b32 v2, 4, v2
    v_lshl_add_u32 v2, v3, 15, v2
    s_mov_b32 s{sT2}, {qs:#x}
    s_mov_b32 s{sT3}, {qs:#x}
    """)
    weave([], mlast[4:], 0)
    stamp(2)
    def a1_epi(scale):
        n = 0
        for mt, nt in ((0, 0), (1, 0), (1, 1), (0, 1)):
            for i in (0, 2):
                d = ACC + 16 * (2 * mt + nt) + 4 * i
                p = 128 + 4 * n; n += 1
                if scale:
                    for k in range(4): a(f"v_pk_mul_f32 {pr(d+2*k)}, {pr(d+2*k)}, s[{sT2}:{sT3}]")
                for k in range(4): a(f"v_cvt_pk_bf16_f32 v{p+k}, v{d+2*k}, v{d+2*k+1}")
                a(f"s_add_u32 s{sT0}, s{sA}, {(4*mt+i)*32768}")
                a(f"v_permlane32_swap_b32 v{p}, v{p+2}\nv_permlane32_swap_b32 v{p+1}, v{p+3}")
                a(f"buffer_store_dwordx4 v[{p}:{p+3}], v2, {srd(SWS)}, s{sT0} offen offset:{nt*512} sc1")
    a(f"s_cmp_ge_u32 s{sCT}, 5\ns_cbranch_scc1 L_epi_d")
    for mt, nt in ((0, 0), (1, 0), (1, 1), (0, 1)):
        for k in range(8):
            d = ACC + 16 * (2 * mt + nt) + 2 * k
            a(f"v_pk_mul_f32 {pr(d)}, {pr(d)}, s[{sT2}:{sT3}]")
    a("L_epi_d:\ns_nop 6")
    a1_epi(False)
    a("s_waitcnt vmcnt(0)")
    publish(sB, 4)
    a("L_c_post:")
    stamp(3)
    if cfg.stop <= 1: a("s_branch L_fin")
    a(f"""
    v_mov_b32 v8, 0x3f803f80
    v_mov_b32 v9, 0x3f803f80
    v_lshlrev_b32 v10, 3, v1
    ds_write_b64 v10, v[8:9] offset:{L_ONES}
    """)
    poll(GFA, 8)
    stamp(4)
    for half in (1, 0):
        for sec, lds, lstr in ((0, L_Q, 4096), (1, L_K, 8192), (2, L_V, VSTR)):
            if sec == 0 and half == 0: continue
            for slot in range(3):
                base = (sGA, 32768 * slot) if slot < 2 else (sGB, 0)
                off = base[1] + sec * 80 * 32768 - (0 if half else 4096)
                a(f"s_add_u32 s{sT0}, s{base[0]}, {off}")
                dma(14 if half else 15, SWS, f"s{sT0}", f"s_add_u32 m0, s{sT5}, {lds + slot*lstr + (4096 if (half and sec) else 0)}", "sc1")
    a("s_waitcnt vmcnt(0) lgkmcnt(0)")

    for r in (ROH, ROH + 1, ROH + 2, FZA, ZD): a(f"v_mov_b32 v{r}, 0")
    if cfg.prio: a("s_branch L_join_b\nL_join_a:\ns_setprio 1\nL_join_b:\ns_barrier")
    else: a("L_join_a:\ns_barrier")
    stamp(5)
    if cfg.stop <= 2: a("s_branch L_fin")
    Q0, Q1 = 16, 20; KF = 24; VF = 40; AV = 58; S = 64; PP = 96; O = 112
    def wo_dma(i):
        if cfg.nowo: return
        a(f"s_mov_b32 m0, s{WOM[i]}\nbuffer_load_dwordx4 v{WOV+i}, {srd(SWO)}, s{sC160} offen lds")
    def k_read(b):
        f = KF + 8 * (b & 1); o = (8 - b) * 512
        a(f"ds_read_b128 v[{f}:{f+3}], v{AK0} offset:{o}\nds_read_b128 v[{f+4}:{f+7}], v{AK1} offset:{o}")
    def v_read(b):
        f = VF + 8 * (b & 1)
        for s in range(2):
            for t in range(2):
                a(f"ds_read_b64_tr_b16 v[{f+4*s+2*t}:{f+4*s+2*t+1}], v{AV} offset:{(16*s+8*t)*16}")
        a(f"v_sub_u32 v{AV}, v{AV}, v{AVD}")
    def hook(b):
        L = a.lab("L_hook"); R = a.lab("L_hookr")
        a(f"s_cmp_eq_u32 s{sNV}, {b}\ns_cbranch_scc1 {L}\n{R}:")
        def body():
            a(f"{L}:\ns_nop 7")
            for r in range(16): a(f"v_mov_b32 v{vCZ+r}, {BIGNEG:#x}\nv_mov_b32 v{vCF+r}, v{vCZ+r}")
            a(f"s_nop 1\ns_branch {R}")
        ool.append(body)
    def qk(b, half=None):
        f = KF + 8 * (b & 1); d = S + 16 * (b & 1)
        c = vCD if b == 0 else (vCF if b == 8 else vCZ)
        if half in (None, 0): a(f"v_mfma_f32_32x32x16_bf16 v[{d}:{d+15}], v[{f}:{f+3}], v[{Q0}:{Q0+3}], v[{c}:{c+15}]")
        if half in (None, 1): a(f"v_mfma_f32_32x32x16_bf16 v[{d}:{d+15}], v[{f+4}:{f+7}], v[{Q1}:{Q1+3}], v[{d}:{d+15}]")
    def pv(b, s):
        p = PP + 8 * (b & 1); f = VF + 8 * (b & 1)
        a(f"v_mfma_f32_32x32x16_bf16 v[{O}:{O+15}], v[{f+4*s}:{f+4*s+3}], v[{p+4*s}:{p+4*s+3}], " + ("0" if (b == 0 and s == 0) else f"v[{O}:{O+15}]"))
    def cv(b, g):
        d = S + 16 * (b & 1) + 4 * g; p = PP + 8 * (b & 1) + 2 * g
        a(f"v_cvt_pk_bf16_f32 v{p}, v{d}, v{d+1}\nv_cvt_pk_bf16_f32 v{p+1}, v{d+2}, v{d+3}")
    def ex(b, g):
        d = S + 16 * (b & 1) + 4 * g
        a(f"v_exp_f32 v{d}, v{d}\nv_exp_f32 v{d+1}, v{d+1}")
        if g > 0: cv(b, g - 1)
        elif b > 0: cv(b - 1, 3)
        a(f"v_exp_f32 v{d+2}, v{d+2}\nv_exp_f32 v{d+3}, v{d+3}")
    def side(b, k):
        n = 2 * b + k - 1
        if n == 0:
            L = a.lab("L_side")
            a(f"s_cmp_lg_u32 s{sFB}, 0\ns_cbranch_scc1 {L}\ns_barrier\n{L}:")
        if n == cfg.zpub:
            L2 = a.lab("L_zp"); R = a.lab("L_zpr")
            a(f"s_cmp_lg_u32 s{sCHV}, 0\ns_cbranch_scc1 {L2}\n{R}:")
            def body():
                a(f"{L2}:\ns_waitcnt vmcnt({0 if cfg.nowo else n})")
                a(f"s_mul_i32 s{sT0}, s{sCH}, {FS}\ns_add_u32 s{sT0}, s{sT0}, {WS_FZ}")
                publish(sT0, 4)
                a(f"s_branch {R}")
            ool.append(body)
        if n == cfg.fzn:
            L = a.lab("L_side")
            a(f"s_cmp_lt_u32 s{sWV}, 4\ns_cbranch_scc1 {L}")
            a(f"buffer_load_dwordx2 v[{FZR}:{FZR+1}], v{FZA}, {srd(SWS)}, 0 offen sc1\n{L}:")
        if n == 12:
            L = a.lab("L_side")
            a(f"s_cmp_ge_u32 s{sWV}, 4\ns_cbranch_scc1 {L}")
            wo_dma(n); a(f"{L}:")
        elif 0 <= n < 12: wo_dma(n)
    a(f"ds_read_b128 v[{Q0}:{Q0+3}], v{QAD0}\nds_read_b128 v[{Q1}:{Q1+3}], v{QAD1}")
    stamp(1, "a2")
    a("L_a2_start:")
    a(f"v_mov_b32 v{AV}, v{AV0}")
    k_read(0); k_read(1)
    a(f"""
    s_lshl_b32 s{sT0}, s{sQB}, 3
    s_add_u32 s{sT0}, s{sT0}, s{sWV}
    s_lshl_b32 s{sT4}, s{sHD}, 16
    s_lshl_b32 s{sT2}, s{sT0}, 9
    s_add_u32 s{sT4}, s{sT4}, s{sT2}
    s_add_u32 s{sT4}, s{sT4}, {WS_O}
    s_lshl_b32 s{sT5}, s{sHD}, 14
    s_lshl_b32 s{sT3}, s{sT0}, 8
    s_add_u32 s{sT5}, s{sT5}, s{sT3}
    s_add_u32 s{sT5}, s{sT5}, {WS_O8}
    s_lshl_b32 s{sA}, s{sT0}, 5
    s_add_u32 s{sA}, s{sA}, s{sHD}
    s_mul_i32 s{sA}, s{sA}, {FS}
    s_add_u32 s{sA}, s{sA}, {WS_FO}
    s_waitcnt lgkmcnt(2)
    """)
    qk(0, 0)
    a(f"v_and_b32 v{Q1}, v{QM0}, v{Q1}\nv_and_b32 v{Q1+1}, v{QM0}, v{Q1+1}\nv_and_b32 v{Q1+2}, v{QM1}, v{Q1+2}\nv_and_b32 v{Q1+3}, v{QM1}, v{Q1+3}")
    qk(0, 1)
    for b in range(9):
        if b in (1, 3, 5, 7): stamp(2 + b // 2, "a2")
        if cfg.prio and b == cfg.prio: a("s_setprio 0")
        if b > 0:
            a("s_waitcnt lgkmcnt(0)")
            pv(b - 1, 0)
        v_read(b)
        if b < 7: k_read(b + 2)
        ex(b, 0)
        if b < 8:
            hook(b + 1)
            if b == 0: a("s_waitcnt lgkmcnt(6)")
            qk(b + 1, 0)
        else: pv(b - 1, 1)
        side(b, 0)
        ex(b, 1)
        if b < 8: qk(b + 1, 1)
        ex(b, 2)
        if 0 < b < 8: pv(b - 1, 1)
        if b == 8:
            a("s_waitcnt lgkmcnt(0)"); pv(8, 0)
        side(b, 1)
        ex(b, 3)
    cv(8, 3)
    pv(8, 1)
    stamp(6, "a2")
    lo = f2u(2.0 ** -24); hi = f2u(2.0 ** 40); fin = f2u(3.0e38)
    a(f"v_rcp_f32 v2, v{O+12}")
    a(f"v_cmp_nle_f32 vcc, {lo:#x}, v{O+12}\ns_mov_b64 s[{sEX}:{sEX+1}], vcc\nv_cmp_nge_f32 vcc, {hi:#x}, v{O+12}\ns_or_b64 s[{sEX}:{sEX+1}], s[{sEX}:{sEX+1}], vcc")
    for i in range(6): a(f"v_add_f32 v{4+i}, abs(v{O+2*i}), abs(v{O+2*i+1})")
    for i in range(12): a(f"v_mul_f32 v{O+i}, v{O+i}, v2")
    a("v_add_f32 v4, v4, v5\nv_add_f32 v6, v6, v7\nv_add_f32 v8, v8, v9\nv_add_f32 v4, v4, v6\nv_add_f32 v4, v4, v8")
    for i in range(6): a(f"v_cvt_pk_bf16_f32 v{24+i}, v{O+2*i}, v{O+2*i+1}")
    a(f"v_cmp_nge_f32 vcc, {fin:#x}, v4\ns_or_b64 vcc, s[{sEX}:{sEX+1}], vcc")
    if cfg.force_fb: a("s_mov_b64 vcc, -1")
    a("s_cbranch_vccnz L_a2_fb\nL_a2_ok:")
    def fallback():
        a(f"L_a2_fb:\ns_cmp_lg_u32 s{sFB}, 0\ns_cbranch_scc1 L_a2_ok\ns_mov_b32 s{sFB}, 1")
        build_masks("0")
        a(f"v_mov_b32 v4, {BIGNEG:#x}")
        for b in range(9):
            if b > 0: hook(b)
            k_read(b); a("s_waitcnt lgkmcnt(0)"); qk(b)
            d = S + 16 * (b & 1)
            for i in range(8): a(f"v_max3_f32 v4, v4, v{d+2*i}, v{d+2*i+1}")
        a("v_mov_b32 v5, v4\nv_permlane32_swap_b32 v4, v5\nv_max_f32 v4, v4, v5\nv_sub_f32 v4, 0, v4")
        build_masks("v4")
        a("s_nop 1\ns_branch L_a2_start")
    a(f"""
    buffer_store_dwordx4 v[24:27], v{OS0}, {srd(SWS)}, s{sT4} offen sc1
    s_mov_b32 exec_hi, 0
    buffer_store_dwordx2 v[28:29], v{OS1}, {srd(SWS)}, s{sT5} offen sc1
    s_mov_b32 exec_hi, -1
    """)
    stamp(6); stamp(7, "a2"); stamp(1, "g2")
    WA, WA2, WA3, WB, WB3, OA, OB = 52, 53, 54, 55, 56, 57, 58
    RO = 59; STA = 62
    a(f"""
    v_lshrrev_b32 v2, 4, v1
    v_bfe_u32 v3, v1, 2, 2
    v_and_b32 v4, 3, v1
    s_cmp_ge_u32 s{sWV}, 4
    s_cselect_b32 s{sT0}, 96, 0
    v_lshl_add_u32 v4, v4, 3, s{sT0}
    v_lshrrev_b32 v5, 1, v2
    v_mul_u32_u24 v5, 24, v5
    v_and_b32 v6, 1, v2
    v_lshl_add_u32 v5, v6, 2, v5
    v_add_u32 v5, v5, v3
    v_mul_u32_u24 v5, 160, v5
    v_add_u32 v{WA3}, v5, v4
    v_add_u32 v{WA2}, {L_WO1 + 6*6400}, v{WA3}
    v_add_u32 v{WA}, {L_WO1}, v{WA3}
    v_mul_u32_u24 v5, 40, v2
    v_add3_u32 v5, v5, v3, 16
    v_mul_u32_u24 v5, 160, v5
    v_add_u32 v{WB3}, v5, v4
    v_add_u32 v{WB}, {L_WO1}, v{WB3}
    s_waitcnt vmcnt(2)
    s_barrier
    """)
    def a3_addr():
        a(f"""
        v_lshrrev_b32 v2, 4, v1
        v_and_b32 v5, 15, v1
        s_lshl_b32 s{sT0}, s{sHW}, 4
        v_add_u32 v5, s{sT0}, v5
        v_lshlrev_b32 v6, 10, v2
        v_lshl_add_u32 v{OA}, v5, 4, v6
        v_add_u32 v{OA}, {L_O16}, v{OA}
        v_and_b32 v6, 1, v2
        v_lshlrev_b32 v6, 11, v6
        v_lshrrev_b32 v7, 1, v2
        v_lshl_add_u32 v6, v7, 9, v6
        v_lshl_add_u32 v{OB}, v5, 3, v6
        v_add_u32 v{OB}, {L_O8}, v{OB}
        v_mul_u32_u24 v5, 160, v5
        v_lshl_add_u32 v5, v2, 3, v5
        v_add_u32 v{STA}, {L_ST}, v5
        """)
    def wo_frag(step, ct, d):
        for t in range(2):
            if step < 6: r, o = WA, (40 * step + 8 * t) * 160
            elif step < 12: r, o = WA2, (40 * (step - 6) + 8 * t) * 160
            elif step < 16: r, o = WA3, (40 * (step - 12) + 8 * t) * 160
            elif step < 19: r, o = WB, (160 * (step - 16) + 4 * t) * 160
            else: r, o = WB3, 4 * t * 160
            a(f"ds_read_b64_tr_b16 v[{d+2*t}:{d+2*t+1}], v{r} offset:{o + 32*ct}")
    def o_frag(step, d):
        if step < 16:
            a(f"ds_read_b128 v[{d}:{d+3}], v{OA} offset:{4096*step}"); return 1
        for t in range(2):
            a(f"ds_read_b64 v[{d+2*t}:{d+2*t+1}], v{OB} offset:{4096*(step-16) + 1024*t}")
        return 2
    def a3_loop(nct, fr, ct0):
        ACC3 = 16; OF = 28
        q.clear()
        first = True
        for sg in range(4):
            steps = [4 * sg + k for k in range(4)] + [16 + sg]
            if nct == 3: a(f"s_waitcnt vmcnt({15 - 5*sg})")
            a("s_barrier"); stamp(3 + sg, "a3")
            for k, st in enumerate(steps):
                n = o_frag(st, OF + 4 * k); issue(("O", st), n)
            if nct == 3 and sg in (1, 2):
                for st in (12 + 2 * (sg - 1), 13 + 2 * (sg - 1)):
                    for ct in range(3): fr[(st, ct)] = fr[(st - 12, ct)]
            for k, st in enumerate(steps):
                wait_for({("O", st), ("W", st)})
                for ct in range(nct):
                    w = fr[(st, ct)]; d = ACC3 + 4 * ct; o = OF + 4 * k
                    a(f"v_mfma_f32_16x16x32_bf16 v[{d}:{d+3}], v[{w}:{w+3}], v[{o}:{o+3}], " + ("0" if first else f"v[{d}:{d+3}]"))
                first = False
                if nct == 3 and sg in (1, 2) and k in (1, 3):
                    st2 = 12 + 2 * (sg - 1) + (k >> 1)
                    for ct in range(3):
                        wo_frag(st2, ct, fr[(st2, ct)]); issue(("W", st2), 2)
        for ct in range(nct):
            d = ACC3 + 4 * ct
            a(f"v_cvt_pk_bf16_f32 v{2+2*ct}, v{d}, v{d+1}\nv_cvt_pk_bf16_f32 v{3+2*ct}, v{d+2}, v{d+3}\nds_write_b64 v{STA}, v[{2+2*ct}:{3+2*ct}] offset:{32*(ct+ct0)}")
        a("s_waitcnt lgkmcnt(0)\ns_barrier"); stamp(7, "a3")
    stamp(2, "g2")
    a(f"s_cmp_ge_u32 s{sWV}, 4\ns_cbranch_scc1 L_g2_h")
    csteps = list(range(12)) + [16, 17, 18, 19]
    cfr = {}
    for n, st in enumerate(csteps):
        for ct in range(3):
            cfr[(st, ct)] = 64 + 4 * (3 * n + ct)
            wo_frag(st, ct, cfr[(st, ct)])
        if n == 7:
            a("s_waitcnt vmcnt(0)"); publish(sA, 4); stamp(3, "g2")
    for k in rounds(RO): pass
    a3_addr()
    a(f"""
    s_lshl_b32 s{sT0}, s{sR64}, 6
    s_add_u32 s{sT0}, s{sT0}, s{sWV}
    v_and_b32 v8, 15, v1
    v_lshl_add_u32 v8, v8, 2, s{sT0}
    v_mul_u32_u24 v8, {FS}, v8
    v_add_u32 v8, {WS_FO}, v8
    v_lshlrev_b32 v12, 4, v1
    v_and_b32 v13, 31, v1
    v_lshrrev_b32 v9, 5, v1
    v_lshlrev_b32 v13, 4, v13
    v_lshl_add_u32 v13, v9, 16, v13
    s_lshl_b32 s{sA}, s{sWV}, 16
    s_lshl_b32 s{sT0}, s{sR64}, 10
    s_add_u32 s{sA}, s{sA}, s{sT0}
    s_lshl_b32 s{sB}, s{sWV}, 14
    s_lshl_b32 s{sT0}, s{sR64}, 9
    s_add_u32 s{sB}, s{sB}, s{sT0}
    s_lshl_b32 s{sT4}, s{sWV}, 11
    s_lshl_b32 s{sT5}, s{sWV}, 10
    s_add_u32 s{sT0}, s{sT5}, {L_ST}
    v_add_u32 v14, s{sT0}, v12
    s_mul_i32 s{sT3}, s{sR64}, {64*2560}
    s_add_u32 s{sT3}, s{sT3}, s{sC160}
    s_waitcnt lgkmcnt(0)
    s_barrier
    """)
    stamp(4, "g2")
    poll(8, 10)
    stamp(7); stamp(5, "g2"); stamp(1, "a3")
    for i in range(8):
        for hh in range(2):
            a(f"s_add_u32 s{sT0}, s{sA}, {WS_O + 32768*(8*i + hh)}")
            dma(12, SWS, f"s{sT0}", f"s_add_u32 m0, s{sT4}, {L_O16 + 1024*(8*i + hh)}", "sc1")
        if i & 1:
            a(f"s_add_u32 s{sT0}, s{sB}, {WS_O8 + 16384*8*(i >> 1)}")
            dma(13, SWS, f"s{sT0}", f"s_add_u32 m0, s{sT5}, {L_O8 + 4096*(i >> 1)}", "sc1")
    a3_loop(3, cfr, 0)
    a(f"""
    ds_read_b128 v[16:19], v14
    ds_read_b128 v[20:23], v14 offset:4096
    ds_read_b128 v[24:27], v14 offset:8192
    s_waitcnt lgkmcnt(2)
    buffer_store_dwordx4 v[16:19], v{RO}, {srd(SOUT)}, s{sT3} offen {cfg.outa}
    s_waitcnt lgkmcnt(1)
    buffer_store_dwordx4 v[20:23], v{RO+1}, {srd(SOUT)}, s{sT3} offen {cfg.outa}
    s_cmp_ge_u32 s{sHW}, 2
    s_cbranch_scc1 L_fin
    s_waitcnt lgkmcnt(0)
    buffer_store_dwordx4 v[24:27], v{RO+2}, {srd(SOUT)}, s{sT3} offen {cfg.outa}
    s_branch L_fin
    """)
    a("L_g2_h:")
    hfr = {}; ZV = 40
    a(f"""
    s_mul_i32 s{sB}, s{sC80}, {80*4096}
    s_lshl_b32 s{sT0}, s{sR64}, 7
    s_add_u32 s{sB}, s{sB}, s{sT0}
    s_add_u32 s{sB}, s{sB}, {WS_Z}
    """)
    check_or_poll(FZA, FZR)
    for k in range(3):
        a(f"s_add_u32 s{sT1}, s{sHW}, {4*k}\ns_min_u32 s{sT1}, s{sT1}, 9\ns_lshl_b32 s{sT0}, s{sT1}, 15\ns_add_u32 s{sT0}, s{sT0}, s{sB}\ns_mul_i32 s{sT1}, s{sT1}, {ZSTR}")
        dma(ZD, SWS, f"s{sT0}", f"s_add_u32 m0, s{sT1}, {L_Z}", "sc1")
    for st in range(20):
        for ct in range(2):
            i = 2 * st + ct
            hfr[(st, ct)] = 64 + 4 * i if i < 22 else 184 + 4 * (i - 22)
            wo_frag(st, ct, hfr[(st, ct)])
        if st == 11:
            a("s_waitcnt vmcnt(3)"); publish(sA, 4); stamp(3, "g2")
    a3_addr()
    a("s_waitcnt vmcnt(1) lgkmcnt(0)\ns_barrier")
    stamp(4, "g2"); stamp(7); stamp(1, "a3")
    a(f"s_mul_i32 s{sT2}, s{sR64}, {64*2560}\ns_add_u32 s{sT2}, s{sT2}, s{sC160}\ns_add_u32 s{sT2}, s{sT2}, 1280")
    for k in range(3):
        if k == 2: a(f"s_cmp_ge_u32 s{sHW}, 2\ns_cbranch_scc1 L_b3d")
        for j in range(8): a(f"v_mov_b32 v{ZV+j}, 0")
        for j in range(8): a(f"ds_read_u16_d16_hi v{ZV+j}, v{ZA+k} offset:{128*j}")
        for j in range(4):
            a(f"v_lshlrev_b32 v{ZT+2*j}, 16, v{QV+4*k+j}\nv_and_b32 v{ZT+1+2*j}, 0xffff0000, v{QV+4*k+j}")
        a("s_waitcnt lgkmcnt(0)")
        for j in range(8): a(f"v_mul_f32 v{ZT+j}, v{ZT+j}, v{ZV+j}")
        for j in range(4): a(f"v_cvt_pk_bf16_f32 v{QV+4*k+j}, v{ZT+2*j}, v{ZT+1+2*j}")
        a(f"buffer_store_dwordx4 v[{QV+4*k}:{QV+4*k+3}], v{ROH+k}, {srd(SOUT)}, s{sT2} offen {cfg.outb}")
    a("L_b3d:")
    stamp(5, "g2"); stamp(2, "a3")
    a3_loop(2, hfr, 3)
    a("L_fin:")
    if cfg.stamps:
        a("s_waitcnt vmcnt(0)")
        stamp(8)
        a(f"s_lshl_b32 s{sT0}, s2, 3\ns_add_u32 s{sT0}, s{sT0}, s{sWV}\ns_lshl_b32 s{sT0}, s{sT0}, 7\ns_add_u32 s{sT0}, s{sT0}, {WS_T}\nv_mov_b32 v2, s{sT0}\ns_mov_b64 exec, 1")
        for i in range(9):
            a(f"v_mov_b32 v4, s{sSTAMP+2*i}\nv_mov_b32 v5, s{sSTAMP+2*i+1}\nbuffer_store_dwordx2 v[4:5], v2, {srd(SWS)}, 0 offen offset:{8*i}\ns_waitcnt vmcnt(0)")
    a("L_exit:\ns_endpgm")
    i = 0
    while i < len(ool):
        ool[i](); i += 1
    a("L_end:")
    fallback()
    while i < len(ool):
        ool[i](); i += 1
    body = a.finish()
    hdr = open("cdna_kernels/" + NAME + ".s.ref").read().split("; Override launch")[0]
    src = hdr + f"""; Single persistent kernel, one 512-thread workgroup per CU; generated by the author's own script.
; @launch grid=(256,1,1) block=(512,1,1) lds=163840
.amdgcn_target "amdgcn-amd-amdhsa--gfx950"
.text
.globl {NAME}_kernel
.p2align 8
.type {NAME}_kernel,@function
{NAME}_kernel:
{body}.section .rodata,"a"
.p2align 6
.amdhsa_kernel {NAME}_kernel
  .amdhsa_next_free_vgpr 256
  .amdhsa_next_free_sgpr 102
  .amdhsa_accum_offset 256
  .amdhsa_group_segment_fixed_size 0
  .amdhsa_kernarg_size 96
  .amdhsa_user_sgpr_count 2
  .amdhsa_user_sgpr_kernarg_segment_ptr 1
  .amdhsa_system_sgpr_workgroup_id_x 1
.end_amdhsa_kernel
"""
    return src

if __name__ == "__main__":
    cfg = Cfg()
    out = sys.argv[1]
    for kv in sys.argv[2:]:
        k, v = kv.split("=")
        old = getattr(cfg, k)
        setattr(cfg, k, (v == "1") if isinstance(old, bool) else (int(v) if isinstance(old, int) else v))
    open(out, "w").write(gen(cfg))
```

```python
import sys, math, struct
from asmdsl import Asm

NAME = "concat_heads__sliding_block__ssm_conv_h3__prompt"

class Cfg:
    stamps = False
    grp = ""
    stop = 99
    nt_in = ""
    fstr = 128
    slp = 1
    force_fb = False
    ncls = 3
    b1a = -1
    b1b = -1
    b1c = -1
    map2 = "head"
    outa = "sc1"
    outb = ""
    m16 = True
    nfill = 2
    a3la = 3
    otouch = 1
    tlb = 0
    tlball = False
    tlbs = False
    zpub = 1
    early = 20
    wtouch = 0
    wfirst = 2
    qn = 10
    fzn = 14
    wbar = 15
    cpub = 5
    hpub = 8
    prio = 5
    ufs = 8
    wopre = 9
    noread = False; nomfma = False; nowo = False

WS_G = 0x0; WS_U = 0x800000; WS_Z = 0xB00000; WS_O = 0xE00000; WS_O8 = 0x1000000
WS_FG = 0x1100000; WS_FU = 0x1140000; WS_FZ = 0x1180000; WS_FO = 0x11C0000; WS_T = 0x1200000
WS_SIZE = 0x1400000
L_KB = 98304; L_VB = L_KB + 11024
L_H = 119808; HSTR = 8320; HODD = 4160
L_U = 144768; USTR = 4608
L_V = 32768; VSTR = 8256; L_ONES = L_V + 24768 + 512; L_K = 59136; L_Q = 83712
L_WO1 = 87040
L_WO2 = 0
L_ZA = 25600; L_ZB = 83712
L_O8 = 32768; L_ST = 49152; L_O16 = 98304
SX, SW, SWO, SQ, SK, SV, SSH, SH, SD, SOUT, SDBG, SWS = [8 + 4 * i for i in range(12)]
def srd(b): return f"s[{b}:{b+3}]"
sWON, sC160 = 6, 7
sWV, sXC, sJ, sHW = 56, 57, 58, 59
sN = 60
sR64, sC80, sRB, sCT, sCH, sCHV, sHD, sQB = 62, 63, 64, 65, 66, 67, 68, 69
sT0, sT1, sT2, sT3, sT4, sT5 = 70, 71, 72, 73, 74, 75
sCNT, sNV, sFB, sKC = 76, 77, 78, 79
sEX = 80
sA, sB = 82, 83
sSTAMP = 84
WOM = list(range(24, 36))
ZM = [0, 1, 3]
BIGNEG = 0xf149f2ca
vCZ, vCD, vCF = 208, 224, 240
QV = 152; ROH = 164; ZA = 167; FZA = 170; FZR = 172; QA = 174; ZD = 177; ZT = 174; QM2, QM3 = 182, 183
WOV = 208; AVP = 190; AK0, AK1, AVD, AV0, QAD0, QAD1, QM0, QM1, OS0, OS1 = 197, 198, 199, 200, 201, 202, 203, 204, 205, 206

def f2u(x): return struct.unpack("<I", struct.pack("<f", x))[0]
def pr(b): return f"v[{b}:{b+1}]"

def gen(cfg):
    a = Asm()
    FS = cfg.fstr
    NWO = (100 - cfg.early + 7) // 8
    ool = []
    def stamp(i, grp=""):
        if cfg.stamps and (grp == cfg.grp or i in (0, 8) and grp == ""):
            a(f"s_memrealtime s[{sSTAMP+2*i}:{sSTAMP+2*i+1}]\ns_memtime s[4:5]\ns_waitcnt lgkmcnt(0)\ns_mov_b32 s{sSTAMP+2*i+1}, s4")
    def dma(vaddr, s, soff, m0, flags=""):
        if isinstance(m0, int): a(f"s_mov_b32 m0, {m0}")
        else: a(m0)
        a(f"buffer_load_dwordx4 v{vaddr}, {srd(s)}, {soff} offen {flags} lds")
    def poll(vaddr, t):
        L = a.lab("L_poll"); D = a.lab("L_polld")
        a(f"s_mov_b32 s{sCNT}, 0\n{L}:")
        a(f"buffer_load_dwordx2 v[{t}:{t+1}], v{vaddr}, {srd(SWS)}, 0 offen sc1\ns_waitcnt vmcnt(0)")
        a(f"v_cmp_ne_u64 vcc, s[{sN}:{sN+1}], v[{t}:{t+1}]")
        a(f"s_cbranch_vccz {D}\ns_add_u32 s{sCNT}, s{sCNT}, 1\ns_cmp_lt_u32 s{sCNT}, 0x40000\ns_cbranch_scc0 {D}\ns_sleep {cfg.slp}\ns_branch {L}\n{D}:")
    def check_or_poll(vaddr, t):
        L = a.lab("L_cp"); R = a.lab("L_cpr")
        a(f"v_cmp_ne_u64 vcc, s[{sN}:{sN+1}], v[{t}:{t+1}]\ns_cbranch_vccnz {L}\n{R}:")
        def body():
            a(f"{L}:"); poll(vaddr, t); a(f"s_branch {R}")
        ool.append(body)
    def publish(soff_sgpr, t):
        a(f"v_mov_b32 v{t}, s{sN}\nv_mov_b32 v{t+1}, s{sN+1}\nv_mov_b32 v{t+2}, s{soff_sgpr}")
        a(f"s_mov_b64 exec, 1\nbuffer_store_dwordx2 v[{t}:{t+1}], v{t+2}, {srd(SWS)}, 0 offen sc1\ns_mov_b64 exec, -1")
    def nonce_issue(t):
        a(f"v_mov_b32 v{t+2}, 0\nbuffer_load_dwordx2 v[{t}:{t+1}], v{t+2}, {srd(SDBG)}, 0 offen sc1")
    def nonce_take(t):
        L = a.lab("L_non"); R = a.lab("L_nonr"); D = a.lab("L_nond")
        a(f"s_mov_b32 s{sCNT}, 0\n{R}:\nv_readfirstlane_b32 s{sN}, v{t}\nv_readfirstlane_b32 s{sN+1}, v{t+1}")
        a(f"s_cmp_eq_u32 s{sN}, 0\ns_cbranch_scc1 {L}\n{D}:")
        def body():
            a(f"{L}:\ns_add_u32 s{sCNT}, s{sCNT}, 1\ns_cmp_lt_u32 s{sCNT}, 0x40000\ns_cbranch_scc0 {D}")
            a(f"buffer_load_dwordx2 v[{t}:{t+1}], v{t+2}, {srd(SDBG)}, 0 offen sc1\ns_waitcnt vmcnt(0)\ns_branch {R}")
        ool.append(body)
    def build_masks(val):
        a(f"v_and_b32 v2, 31, v1\nv_lshrrev_b32 v3, 5, v1\nv_lshlrev_b32 v3, 2, v3\nv_sub_u32 v2, v2, v3\nv_mov_b32 v3, {BIGNEG:#x}")
        for r in range(0, 16, 2):
            m0 = 8 * (r >> 2) + (r & 3)
            if val is None:
                a(f"v_cmp_gt_i32 vcc, {m0}, v2\nv_cmp_gt_i32 s[{sEX}:{sEX+1}], {m0+1}, v2")
                if r > 0: a(f"v_xor_b32 v{vCF+r-2}, v3, v{vCD+r-2}\nv_xor_b32 v{vCF+r-1}, v3, v{vCD+r-1}")
                a(f"v_cndmask_b32 v{vCD+r}, 0, v3, vcc\nv_cndmask_b32 v{vCD+r+1}, 0, v3, s[{sEX}:{sEX+1}]")
                if r == 14: a(f"v_xor_b32 v{vCF+r}, v3, v{vCD+r}\nv_xor_b32 v{vCF+r+1}, v3, v{vCD+r+1}")
                continue
            a(f"v_cmp_le_i32 vcc, {m0}, v2\nv_cmp_le_i32 s[{sEX}:{sEX+1}], {m0+1}, v2\nv_mov_b32 v{vCZ+r}, {val}\nv_mov_b32 v{vCZ+r+1}, {val}")
            a(f"v_cndmask_b32 v{vCD+r}, v3, v{vCZ+r}, vcc\nv_cndmask_b32 v{vCF+r}, v{vCZ+r}, v3, vcc")
            a(f"v_cndmask_b32 v{vCD+r+1}, v3, v{vCZ+r+1}, s[{sEX}:{sEX+1}]\nv_cndmask_b32 v{vCF+r+1}, v{vCZ+r+1}, v3, s[{sEX}:{sEX+1}]")
    def capture(f):
        n0 = len(a.ins); f(); r = [i.text for i in a.ins[n0:]]; del a.ins[n0:]; return r
    q = []
    def issue(tag, n): q.extend([tag] * n)
    def wait_for(tags):
        last = max((i for i, t in enumerate(q) if t in tags), default=-1)
        if last >= 0:
            a(f"s_waitcnt lgkmcnt({min(len(q) - 1 - last, 15)})")
            del q[:last + 1]

    def b1_compute(B):
        kr = B; rs = B; vv = B + 16; ku = B + 24; tp = B + 46; vu = ku; pk = B + 16
        a(f"""
        v_and_b32 v2, 7, v0
        v_lshrrev_b32 v3, 3, v0
        v_mul_u32_u24 v4, 1296, v2
        v_lshl_add_u32 v4, v3, 2, v4
        v_add_u32 v4, {L_KB}, v4
        """)
        for i in range(-3, 8): a(f"ds_read_b32 v{kr+3+i}, v4 offset:{(640 if i < 0 else 656) + 160*i}")
        for i in range(8): a(f"ds_read_b32 v{vv+i}, v4 offset:{11024 + 160*i}")
        a(f"""
        v_lshlrev_b32 v{tp+0}, 16, v8
        v_lshlrev_b32 v{tp+1}, 16, v10
        v_and_b32 v{tp+2}, 0xffff0000, v8
        v_and_b32 v{tp+3}, 0xffff0000, v10
        v_lshlrev_b32 v{tp+4}, 16, v9
        v_lshlrev_b32 v{tp+5}, 16, v11
        v_and_b32 v{tp+6}, 0xffff0000, v9
        v_and_b32 v{tp+7}, 0xffff0000, v11
        s_mul_i32 s{sT0}, s{sC80}, {80*4096}
        s_lshl_b32 s{sT1}, s{sR64}, 7
        s_sub_u32 s{sT0}, s{sT0}, s{sT1}
        s_add_u32 s{sT0}, s{sT0}, {WS_U + 4080 - 112}
        v_lshlrev_b32 v3, 13, v3
        v_sub_u32 v2, 7, v2
        v_lshl_add_u32 v3, v2, 4, v3
        s_add_u32 s{sT1}, s{sT0}, 4096
        s_waitcnt lgkmcnt(8)
        """)
        for i in range(11): a(f"v_lshlrev_b32 v{ku+2*i}, 16, v{kr+i}\nv_and_b32 v{ku+2*i+1}, 0xffff0000, v{kr+i}")
        for i in range(8): a(f"v_pk_mul_f32 {pr(rs+2*i)}, {pr(ku+2*(i+3))}, {pr(tp)}")
        for j in range(1, 4):
            for i in range(8): a(f"v_pk_fma_f32 {pr(rs+2*i)}, {pr(ku+2*(i+3-j))}, {pr(tp+2*j)}, {pr(rs+2*i)}")
        a("s_waitcnt lgkmcnt(0)")
        for i in range(8): a(f"v_lshlrev_b32 v{vu+2*i}, 16, v{vv+i}\nv_and_b32 v{vu+2*i+1}, 0xffff0000, v{vv+i}")
        for i in range(8): a(f"v_pk_mul_f32 {pr(rs+2*i)}, {pr(rs+2*i)}, {pr(vu+2*i)}")
        for ch in range(2):
            for d in range(4): a(f"v_cvt_pk_bf16_f32 v{pk+4*ch+d}, v{rs+2*(7-2*d)+ch}, v{rs+2*(6-2*d)+ch}")
        a(f"buffer_store_dwordx4 v[{pk}:{pk+3}], v3, {srd(SWS)}, s{sT0} offen sc1")
        a(f"buffer_store_dwordx4 v[{pk+4}:{pk+7}], v3, {srd(SWS)}, s{sT1} offen sc1")
    def shift_load():
        a(f"v_lshrrev_b32 v4, 3, v0\nv_lshlrev_b32 v4, 4, v4\ns_mul_i32 s{sT4}, s{sC80}, 640\nbuffer_load_dwordx4 v[8:11], v4, {srd(SSH)}, s{sT4} offen")
    def publish_u(t):
        a(f"s_mul_i32 s{sT0}, s{sC80}, 5\ns_add_u32 s{sT0}, s{sT0}, s{sWV}\ns_lshl_b32 s{sT0}, s{sT0}, 5\ns_add_u32 s{sT0}, s{sT0}, s{sR64}\ns_mul_i32 s{sT0}, s{sT0}, {cfg.ufs}\ns_add_u32 s{sT0}, s{sT0}, {WS_FU}")
        publish(sT0, t)
    def rounds(RO):
        for k in range(3):
            a(f"""
            s_lshl_b32 s{sT0}, s{sHW}, 6
            s_add_u32 s{sT0}, s{sT0}, {256*k}
            v_add_u32 v2, s{sT0}, v1
            v_mul_u32_u24 v3, 205, v2
            v_lshrrev_b32 v3, 11, v3
            v_mul_u32_u24 v4, 10, v3
            v_sub_u32 v4, v2, v4
            v_mul_u32_u24 v5, 2560, v3
            v_lshl_add_u32 v{RO+k}, v4, 4, v5
            """)
            yield k
    def a2_setup():
        a(f"""
        s_lshl_b32 s{sT0}, s{sWV}, 9
        v_and_b32 v2, 31, v1
        v_lshrrev_b32 v3, 5, v1
        v_lshlrev_b32 v{OS1}, 3, v2
        v_lshlrev_b32 v4, 4, v2
        v_lshl_add_u32 v{OS0}, v3, 15, v4
        v_add_u32 v4, s{sT0}, v4
        v_lshl_add_u32 v5, v3, 12, v4
        v_add_u32 v{QAD0}, {L_Q}, v5
        v_add_u32 v{QAD1}, {L_Q + 8192}, v4
        v_lshl_add_u32 v{AK0}, v3, 13, v4
        v_add_u32 v{AK0}, {L_K}, v{AK0}
        v_lshlrev_b32 v5, 9, v3
        v_sub_u32 v5, v4, v5
        v_add_u32 v{AK1}, {L_K + 16384}, v5
        v_bfe_u32 v4, v1, 2, 2
        v_lshl_add_u32 v4, v3, 2, v4
        v_lshlrev_b32 v4, 4, v4
        v_bfe_u32 v5, v1, 1, 1
        v_mul_u32_u24 v5, {VSTR}, v5
        v_and_b32 v6, 1, v1
        v_lshl_add_u32 v5, v6, 3, v5
        s_and_b32 s{sT1}, s{sHD}, 1
        s_lshl_b32 s{sT2}, s{sT1}, 3
        s_add_u32 s{sT2}, s{sT2}, {2*VSTR}
        v_mov_b32 v6, s{sT2}
        v_and_b32 v7, 16, v1
        v_cmp_ne_u32 vcc, 0, v7
        v_cndmask_b32 v5, v5, v6, vcc
        s_add_u32 s{sT0}, s{sT0}, {L_V + 4096 - 512}
        v_add3_u32 v5, v5, v4, s{sT0}
        v_and_b32 v7, 19, v1
        v_cmp_lt_u32 vcc, 16, v7
        s_add_u32 s{sT0}, s{sWV}, 1
        s_cmp_eq_u32 s{sQB}, 0
        s_cselect_b32 s{sNV}, s{sT0}, 99
        """)
        for p in range(5):
            a(f"""
            s_cmp_gt_u32 s{sNV}, {2*p}
            s_cselect_b32 s{sT0}, {L_ONES - 512 - (L_V + 192)}, 0
            s_add_u32 s{sT0}, s{sT0}, {L_V + 192}
            s_cmp_gt_u32 s{sNV}, {2*p+1}
            s_cselect_b32 s{sT0}, {L_ONES}, s{sT0}
            v_add_u32 v6, s{sT0}, v4
            v_cndmask_b32 v{AVP+p}, v5, v6, vcc
            v_subrev_u32 v5, 1024, v5
            """)
        a(f"""
        s_mov_b32 s{sFB}, 0
        s_cmp_eq_u32 s{sT1}, 0
        s_cselect_b32 s{sT2}, -1, 0
        s_cselect_b32 s{sT3}, 0, -1
        v_cmp_eq_u32 vcc, 0, v3
        v_mov_b32 v5, s{sT2}
        v_mov_b32 v6, s{sT3}
        v_cndmask_b32 v{QM0}, 0, v5, vcc
        v_cndmask_b32 v{QM1}, 0, v6, vcc
        v_cndmask_b32 v{QM2}, v5, 0, vcc
        v_cndmask_b32 v{QM3}, v6, 0, vcc
        s_mov_b32 s{sT4}, 6554
        """)
        for i in range(NWO):
            wo_index(i)
            a(f"""
            s_lshl_b32 s{sT3}, s{sT2}, 6
            v_add_u32 v2, s{sT3}, v1
            v_mul_u32_u24 v3, s{sT4}, v2
            v_lshrrev_b32 v3, 16, v3
            v_mul_u32_u24 v3, 1120, v3
            v_lshl_add_u32 v{WOV+i}, v2, 4, v3
            """)
    def wo_index(i):
        a(f"s_add_u32 s{sT2}, s{sWV}, {8*i}")
        if 8 * i + 7 > 99 - cfg.early: a(f"s_min_u32 s{sT2}, s{sT2}, {99 - cfg.early}")
    def wom_setup():
        for i in range(NWO):
            wo_index(i)
            a(f"s_lshl_b32 s{sT2}, s{sT2}, 10\ns_add_u32 s{WOM[i]}, s{sT2}, {L_WO1}")
            if 8 * i + 7 >= 75: a(f"s_sub_u32 s{sT2}, s{sT2}, 76800\ns_min_u32 s{WOM[i]}, s{WOM[i]}, s{sT2}")
    def wo_early_addr():
        for i in range(5):
            a(f"v_add_u32 v2, {64*i}, v1\nv_mul_u32_u24 v3, 205, v2\nv_lshrrev_b32 v3, 11, v3\nv_mul_u32_u24 v3, 1120, v3\nv_lshl_add_u32 v{32+i}, v2, 4, v3")
    def wo_early():
        lastp = -1
        for n in range(100 - cfg.early, 100):
            if n // 5 != lastp:
                lastp = n // 5; a(f"s_add_u32 s{sT0}, s{sC160}, {lastp*32*1280}")
            dma(32 + n % 5, SWO, f"s{sT0}", L_WO1 + 1024 * n if n < 75 else L_WO2 + 1024 * (n - 75))

    order = [(SX, 0), (SW, 1), (SK, 4), (SV, 5), (SSH, 6), (SDBG, 10), (SWS, 11), (SH, 7), (SD, 8), (SWO, 2), (SQ, 3), (SOUT, 9)]
    a("s_cmp_ge_u32 s2, 256\ns_cbranch_scc1 L_exit")
    stamp(0)
    for s, slot in order: a(f"s_load_dwordx2 s[{s}:{s+1}], s[0:1], {slot*8}")
    a(f"""
    v_lshrrev_b32 v2, 6, v0
    v_and_b32 v1, 63, v0
    s_and_b32 s{sXC}, s2, 7
    v_readfirstlane_b32 s{sWV}, v2
    s_lshr_b32 s{sJ}, s2, 3
    """)
    sizes = {SX: 2621440, SW: 2457600, SWO: 819200, SQ: 2621440, SK: 2621440, SV: 2621440, SSH: 5120, SH: 2621440, SD: 1280, SOUT: 5242880, SDBG: 256, SWS: WS_SIZE}
    for s, n in sizes.items(): a(f"s_mov_b32 s{s+2}, {n}\ns_mov_b32 s{s+3}, 0x20000")
    a(f"""
    s_and_b32 s{sT0}, s{sJ}, 3
    s_lshl_b32 s{sR64}, s{sXC}, 2
    s_add_u32 s{sR64}, s{sR64}, s{sT0}
    s_lshr_b32 s{sC80}, s{sJ}, 2
    s_mul_i32 s{sC160}, s{sC80}, 160
    s_and_b32 s{sHW}, s{sWV}, 3
    s_and_b32 s{sT0}, s{sXC}, 1
    s_mul_i32 s{sT0}, s{sT0}, 30
    s_add_u32 s{sT0}, s{sT0}, s{sJ}
    s_lshr_b32 s{sCT}, s{sT0}, 2
    s_and_b32 s{sT0}, s{sT0}, 3
    s_lshr_b32 s{sRB}, s{sXC}, 1
    s_lshl_b32 s{sRB}, s{sRB}, 2
    s_add_u32 s{sRB}, s{sRB}, s{sT0}
    """)
    if cfg.map2 == "head": a(f"s_mov_b32 s{sHD}, s{sR64}\ns_mov_b32 s{sQB}, s{sC80}")
    else: a(f"s_mov_b32 s{sHD}, s{sJ}\ns_mov_b32 s{sQB}, s{sXC}")
    a(f"s_cmp_lt_u32 s{sWV}, 4\ns_cbranch_scc1 L_C")

    vX = 16; vW = 20; vW2 = 63; vD = 21; vNH = 22; vHA = 64; vHB = 80
    a(f"""
    v_lshrrev_b32 v2, 3, v1
    v_lshrrev_b32 v3, 4, v1
    v_xor_b32 v4, v3, v1
    v_and_b32 v4, 7, v4
    v_mul_u32_u24 v2, 1280, v2
    v_lshl_add_u32 v{vX}, v4, 4, v2
    v_xor_b32 v4, 4, v4
    v_lshl_add_u32 v{vX+1}, v4, 4, v2
    v_add_u32 v{vX+1}, {8*1280}, v{vX+1}
    v_add_u32 v{vX+2}, {16*1280}, v{vX}
    v_add_u32 v{vX+3}, {16*1280}, v{vX+1}
    v_lshlrev_b32 v4, 2, v3
    v_xor_b32 v4, v4, v1
    v_and_b32 v4, 15, v4
    v_mul_u32_u24 v3, 3840, v3
    v_lshl_add_u32 v{vW}, v4, 4, v3
    v_xor_b32 v{vW2}, {32 if cfg.m16 else 0}, v{vW}
    s_mul_i32 s{sA}, s{sRB}, {128*1280}
    s_mul_i32 s{sT0}, s{sHW}, {32*1280}
    s_add_u32 s{sA}, s{sA}, s{sT0}
    s_lshl_b32 s{sB}, s{sCT}, 8
    s_mul_i32 s{sT0}, s{sHW}, {16*3840}
    s_add_u32 s{sB}, s{sB}, s{sT0}
    s_lshl_b32 s{sT5}, s{sHW}, 12
    """)
    if cfg.ncls == 10:
        a(f"s_and_b32 s{sT0}, s{sRB}, 3\ns_mul_i32 s{sT0}, s{sT0}, 5\ns_add_u32 s{sT0}, s{sT0}, 1\ns_lshr_b32 s{sT0}, s{sT0}, 1\ns_lshr_b32 s{sT1}, s{sRB}, 2\ns_add_u32 s{sT0}, s{sT0}, s{sT1}\ns_add_u32 s{sKC}, s{sT0}, s{sCT}")
    elif cfg.ncls == 2:
        a(f"s_add_u32 s{sT0}, s{sRB}, s{sCT}\ns_and_b32 s{sT0}, s{sT0}, 1\ns_mul_i32 s{sT0}, s{sT0}, 5\ns_add_u32 s{sKC}, s{sT0}, s{sXC}")
    elif cfg.ncls == 4:
        a(f"s_add_u32 s{sT0}, s{sRB}, s{sCT}\ns_and_b32 s{sT0}, s{sT0}, 3\ns_mul_i32 s{sT0}, s{sT0}, 5\ns_add_u32 s{sT0}, s{sT0}, 1\ns_lshr_b32 s{sT0}, s{sT0}, 1\ns_add_u32 s{sKC}, s{sT0}, s{sXC}")
    elif cfg.ncls == 3:
        a(f"s_add_u32 s{sT0}, s{sRB}, s{sCT}\ns_mul_i32 s{sT1}, s{sT0}, 86\ns_lshr_b32 s{sT1}, s{sT1}, 8\ns_mul_i32 s{sT1}, s{sT1}, 3\ns_sub_u32 s{sT0}, s{sT0}, s{sT1}\ns_mul_i32 s{sT0}, s{sT0}, 7\ns_lshr_b32 s{sT0}, s{sT0}, 1\ns_add_u32 s{sKC}, s{sT0}, s{sXC}")
    else:
        a(f"s_mov_b32 s{sKC}, s{sXC}")
    a(f"s_mul_i32 s{sT0}, s{sKC}, 205\ns_lshr_b32 s{sT0}, s{sT0}, 11\ns_mul_i32 s{sT0}, s{sT0}, 10\ns_sub_u32 s{sKC}, s{sKC}, s{sT0}")
    def ring_issue(c):
        slot = ((c + 1) % 3) * 32768
        a(f"s_lshl_b32 s{sT0}, s{sKC}, 7\ns_add_u32 s{sT0}, s{sT0}, s{sA}\ns_mul_i32 s{sT1}, s{sKC}, {64*3840}\ns_add_u32 s{sT1}, s{sT1}, s{sB}")
        for i in range(4):
            dma(vX + i, SX, f"s{sT0}", f"s_add_u32 m0, s{sT5}, {slot + i*1024}")
            dma(vW if i < 2 else vW2, SW, f"s{sT1}", f"s_add_u32 m0, s{sT5}, {slot + 16384 + i*1024}")
            if i < 3: a(f"s_add_u32 s{sT1}, s{sT1}, {4*3840}")
        a(f"s_add_u32 s{sKC}, s{sKC}, 1\ns_cmp_eq_u32 s{sKC}, 10\ns_cselect_b32 s{sKC}, 0, s{sKC}")
    def h_chan():
        a(f"""
        s_mul_i32 s{sT0}, s{sJ}, 3
        s_lshl_b32 s{sT1}, s{sJ}, 1
        s_add_u32 s{sT1}, s{sT1}, 16
        s_cmp_lt_u32 s{sJ}, 16
        s_cselect_b32 s{sT0}, s{sT0}, s{sT1}
        s_cselect_b32 s{sT1}, 3, 2
        s_cmp_lt_u32 s{sHW}, s{sT1}
        s_cselect_b32 s{sCHV}, 1, 0
        s_cselect_b32 s{sT1}, s{sHW}, 0
        s_add_u32 s{sT0}, s{sT0}, s{sT1}
        s_mul_i32 s{sCH}, s{sXC}, 80
        s_add_u32 s{sCH}, s{sCH}, s{sT0}
        s_lshr_b32 s{sT0}, s{sT0}, 4
        s_mul_i32 s{sT1}, s{sXC}, 5
        s_add_u32 s{sT0}, s{sT0}, s{sT1}
        s_lshl_b32 s{sT0}, s{sT0}, 5
        v_and_b32 v12, 31, v1
        v_add_u32 v12, s{sT0}, v12
        v_mul_u32_u24 v12, {cfg.ufs}, v12
        v_add_u32 v12, {WS_FU}, v12
        """)
    def f_load():
        a(f"buffer_load_dwordx2 v[14:15], v12, {srd(SWS)}, 0 offen sc1")
    def hu_loads():
        check_or_poll(12, 14)
        a(f"""
        s_mul_i32 s{sT2}, s{sHW}, {USTR}
        s_mul_i32 s{sT3}, s{sHW}, {HSTR}
        s_lshl_b32 s{sT0}, s{sCH}, 12
        s_add_u32 s{sT1}, s{sT0}, {WS_U}
        s_add_u32 m0, s{sT3}, {L_H + 32}
        s_lshl_b32 s{sT4}, s{sCH}, 1
        v_mov_b32 v4, s{sT4}
        """)
        for i in range(4): a(f"buffer_load_dwordx4 v13, {srd(SH)}, s{sT0} offen offset:{1024*i} {cfg.nt_in} lds")
        a(f"buffer_load_ushort v{vD}, v4, {srd(SD)}, 0 offen\ns_add_u32 m0, s{sT2}, {L_U}")
        for i in range(4): a(f"buffer_load_dwordx4 v13, {srd(SWS)}, s{sT1} offen offset:{1024*i} sc1 lds")
    def h_b1():
        L = a.lab("L_hb1")
        a(f"s_cmp_lg_u32 s{sWV}, 4\ns_cbranch_scc1 {L}")
        b1_compute(64)
        a(f"{L}:")
    def h_pub_u():
        L = a.lab("L_hpu")
        nonce_take(vNH)
        a(f"s_cmp_lg_u32 s{sWV}, 4\ns_cbranch_scc1 {L}")
        publish_u(2)
        a(f"{L}:")
    AA = 26; AB = 30; BACC = 96; BF = 32; AF = 128; NAF = 5; DF = 148
    def b3_setup():
        a(f"s_mul_i32 s{sT2}, s{sR64}, {64*1280}\ns_add_u32 s{sT2}, s{sT2}, s{sC160}")
        for k in rounds(ROH):
            a(f"""
            v_mul_u32_u24 v5, 1280, v3
            v_lshl_add_u32 v5, v4, 4, v5
            v_add_u32 v{QA+k}, s{sT2}, v5
            v_lshlrev_b32 v5, 3, v4
            v_xor_b32 v5, v5, v3
            v_and_b32 v5, 63, v5
            v_lshlrev_b32 v5, 1, v5
            v_lshl_add_u32 v5, v4, 10, v5
            v_cmp_lt_u32 vcc, 6, v4
            v_add_u32 v6, {L_ZA}, v5
            v_add_u32 v5, {L_ZB - 7*1024}, v5
            v_cndmask_b32 v{ZA+k}, v6, v5, vcc
            """)
        a(f"""
        s_cmp_ge_u32 s{sHW}, 2
        s_cselect_b32 s{sT2}, 15, 23
        v_min_u32 v2, s{sT2}, v1
        v_lshrrev_b32 v3, 3, v2
        v_and_b32 v2, 7, v2
        v_lshl_add_u32 v2, v3, 5, v2
        s_mul_i32 s{sT0}, s{sC80}, 80
        s_lshl_b32 s{sT2}, s{sHW}, 3
        s_add_u32 s{sT0}, s{sT0}, s{sT2}
        v_add_u32 v2, s{sT0}, v2
        v_mul_u32_u24 v2, {FS}, v2
        v_add_u32 v{FZA}, {WS_FZ}, v2
        v_lshrrev_b32 v2, 3, v1
        v_and_b32 v3, 7, v1
        v_lshlrev_b32 v2, 12, v2
        v_lshl_add_u32 v2, v3, 4, v2
        s_mul_i32 s{sT0}, s{sC80}, {80*4096}
        s_lshl_b32 s{sT1}, s{sR64}, 7
        s_add_u32 s{sT0}, s{sT0}, s{sT1}
        s_add_u32 s{sT0}, s{sT0}, {WS_Z}
        """)
        for k in range(3):
            a(f"""
            s_add_u32 s{sT1}, s{sHW}, {4*k}
            s_min_u32 s{sT1}, s{sT1}, 9
            s_and_b32 s{sT2}, s{sT1}, 7
            s_lshl_b32 s{sT2}, s{sT2}, 4
            v_xor_b32 v3, s{sT2}, v2
            s_lshl_b32 s{sT2}, s{sT1}, 15
            s_add_u32 s{sT2}, s{sT2}, s{sT0}
            v_add_u32 v{ZD+k}, s{sT2}, v3
            s_lshl_b32 s{sT2}, s{sT1}, 10
            s_cmp_gt_u32 s{sT1}, 6
            s_cselect_b32 s{sT1}, {L_ZB - 7*1024 - L_ZA}, 0
            s_add_u32 s{sT2}, s{sT2}, s{sT1}
            s_add_u32 s{ZM[k]}, s{sT2}, {L_ZA}
            """)
    def b2_setup():
        a(f"""
        v_and_b32 v2, 15, v1
        v_lshrrev_b32 v3, 4, v1
        v_add_u32 v4, 1, v2
        v_lshrrev_b32 v4, 1, v4
        v_lshl_add_u32 v4, v3, 2, v4
        v_lshlrev_b32 v4, 2, v4
        v_and_b32 v5, 1, v2
        v_cmp_eq_u32 vcc, 0, v5
        v_mov_b32 v5, {HODD}
        v_cndmask_b32 v5, 0, v5, vcc
        s_min_u32 s{sT1}, s{sHW}, 2
        s_mul_i32 s{sT0}, s{sT1}, {HSTR}
        s_add_u32 s{sT0}, s{sT0}, {L_H}
        v_add3_u32 v{AA}, v4, v5, s{sT0}
        v_add_u32 v{AA+1}, 1024, v{AA}
        v_add_u32 v{AA+2}, 2048, v{AA}
        v_add_u32 v{AA+3}, 3072, v{AA}
        v_lshlrev_b32 v13, 4, v1
        v_add_u32 v25, s{sT0}, v13
        v_lshlrev_b32 v4, 5, v2
        v_lshl_add_u32 v4, v3, 3, v4
        v_add_u32 v31, s{sT0}, v4
        v_sub_u32 v4, 15, v2
        v_lshlrev_b32 v4, 5, v4
        v_lshl_add_u32 v4, v3, 4, v4
        s_mul_i32 s{sT1}, s{sT1}, {USTR}
        s_add_u32 s{sT1}, s{sT1}, {L_U}
        v_add_u32 v{AB}, s{sT1}, v4
        v_lshl_add_u32 v2, v1, 3, s{sT1}
        v_mov_b32 v4, 0
        v_mov_b32 v5, 0
        v_mov_b32 v6, 0
        v_mov_b32 v7, 0
        ds_write_b64 v2, v[4:5] offset:4096
        s_mov_b64 exec, 3
        ds_write_b128 v25, v[4:7]
        s_mov_b64 exec, -1
        """)
    a(f"s_cmp_ge_u32 s{sJ}, 30\ns_cbranch_scc1 L_h_idle\ns_waitcnt lgkmcnt(0)")
    shift_load()
    ring_issue(0)
    h_chan(); b2_setup()
    if cfg.b1c < 0:
        a("s_barrier")
        stamp(1)
        a("s_waitcnt vmcnt(8)")
        h_b1()
    nonce_issue(vNH)
    ring_issue(1)
    pubc = min(max(cfg.b1c, -1) + 2, 8)
    for c in range(10):
        w = {0: 9, 7: 9, 8: 17, 9: 9}.get(c, 8)
        a(f"s_waitcnt vmcnt({w})")
        if c in (0, 1, 2, 3, 5, 7, 9): stamp(1 + (0, 1, 2, 3, 5, 7, 9).index(c), "a1")
        a("s_barrier")
        if c == cfg.b1c:
            stamp(1); h_b1()
        if c == 6: f_load()
        if c + 2 <= 9: ring_issue(c + 2)
        if c == pubc: h_pub_u()
        if c == 7:
            a(f"s_cmp_eq_u32 s{sCHV}, 0\ns_cbranch_scc1 L_h_nob2a\ns_waitcnt vmcnt(16)")
            hu_loads()
    a("L_h_post:")
    def h_idle():
        a("L_h_idle:\ns_waitcnt lgkmcnt(0)")
        shift_load(); h_chan(); b2_setup()
        a("s_waitcnt vmcnt(0)\ns_barrier")
        nonce_issue(vNH)
        h_b1()
        a("s_barrier\ns_waitcnt vmcnt(0)")
        h_pub_u()
        a(f"s_cmp_eq_u32 s{sCHV}, 0\ns_cbranch_scc1 L_h_nob2")
        f_load(); a("s_waitcnt vmcnt(0)")
        hu_loads()
        a("s_branch L_h_post")
    ool.append(h_idle)
    stamp(2)
    if cfg.stop <= 1: a("s_branch L_fin")
    def q_loads():
        for k in range(3): a(f"buffer_load_dwordx4 v[{QV+4*k}:{QV+4*k+3}], v{QA+k}, {srd(SQ)}, 0 offen {cfg.nt_in}")
    def h_late():
        b3_setup(); a2_setup(); build_masks(None); wom_setup()
    def h_nob2():
        a("L_h_nob2a:")
        if cfg.wtouch:
            a(f"s_lshl_b32 s{sT0}, s{sJ}, 6\ns_add_u32 s{sT0}, s{sT0}, {4480 - 1920}\nv_add_lshl_u32 v2, v1, s{sT0}, 7\nbuffer_load_dword v62, v2, {srd(SWO)}, 0 offen")
        wo_early_addr()
        a(f"s_waitcnt vmcnt({8 + cfg.wtouch})\ns_barrier\ns_waitcnt vmcnt({cfg.wtouch})\ns_barrier\ns_branch L_h_nob2b\nL_h_nob2:")
        wo_early_addr()
        a("L_h_nob2b:")
        if cfg.stop <= 1: a("s_branch L_fin")
        a(f"s_cmp_lg_u32 s{sWV}, 7\ns_cbranch_scc1 L_h_nob2c")
        wo_early()
        a("L_h_nob2c:")
        h_late()
        a("s_waitcnt vmcnt(0)\ns_branch L_join_a")
    ool.append(h_nob2)
    a(f"""
    s_lshl_b32 s{sA}, s{sCH}, 12
    s_add_u32 s{sA}, s{sA}, {WS_Z}
    v_mov_b32 v8, 0
    v_mov_b32 v9, 0
    v_mov_b32 v10, 0
    v_and_b32 v2, 15, v1
    v_sub_u32 v2, 15, v2
    v_lshrrev_b32 v3, 4, v1
    v_lshlrev_b32 v3, 2, v3
    v_lshrrev_b32 v4, 1, v2
    v_sub_u32 v4, v4, v3
    v_and_b32 v2, 1, v2
    v_lshlrev_b32 v2, 4, v2
    v_cmp_eq_u32 vcc, 1, v1
    s_waitcnt vmcnt(4)
    """)
    for i in range(4):
        a(f"ds_read_b128 v[{vHA+6*i}:{vHA+6*i+3}], v25 offset:{32+1024*i}\nds_read_b32 v{vHA+6*i+4}, v25 offset:{48+1024*i}")
    for i in range(4):
        a(f"s_waitcnt lgkmcnt({6-2*i+i})")
        if i == 0: a(f"v_readfirstlane_b32 s{sT1}, v{vHA}")
        for j in range(4): a(f"v_alignbit_b32 v{vHA+6*i+j}, v{vHA+6*i+j+1}, v{vHA+6*i+j}, 16")
        a(f"ds_write_b128 v25, v[{vHA+6*i}:{vHA+6*i+3}] offset:{HODD+32+1024*i}")
    a(f"s_lshl_b32 s{sT1}, s{sT1}, 16\nv_mov_b32 v11, s{sT1}\nv_cndmask_b32 v11, 0, v11, vcc")
    a(f"s_mov_b64 exec, 3\nds_write_b128 v25, v[8:11] offset:{HODD}\ns_mov_b64 exec, -1")
    a(f"v_lshlrev_b32 v2, v2, v{vD}")
    for rr in range(4): a(f"v_cmp_eq_u32 vcc, {rr}, v4\nv_cndmask_b32 v{DF+rr}, 0, v2, vcc")
    a("s_waitcnt vmcnt(0) lgkmcnt(0)")
    stamp(3)
    def b_read(r, nn):
        d = BF + 32 * (r & 1) + 4 * nn
        a(f"ds_read_b128 v[{d}:{d+3}], v{AB} offset:{2*(1792 - 32*(8*nn - r))}"); issue(("B", r, nn), 1)
    def a_read(gi):
        r, mu = groups[gi]; kap = 8 * mu + r
        d = AF + 4 * (gi % NAF); o = 16 * (kap % 16)
        a(f"ds_read2_b32 v[{d}:{d+1}], v{AA + kap//16} offset0:{o} offset1:{o+1}")
        a(f"ds_read2_b32 v[{d+2}:{d+3}], v{AA + kap//16} offset0:{o+2} offset1:{o+3}"); issue(("A", gi), 2)
    groups = [(r, mu) for r in range(7) for mu in (0, 7, 1, 6, 2, 5, 3, 4)] + [(7, mu) for mu in (7, 6, 5, 4, 3, 2, 1, 0)]
    q.clear()
    LA = NAF - 1
    for nn in range(8): b_read(0, nn)
    for gi in range(3): a_read(gi)
    fill = capture(h_late)
    for i in range(8):
        wait_for({("B", 0, i)})
        d = BACC + 4 * i; f = BF + 4 * i
        a(f"v_mfma_f32_16x16x32_bf16 v[{d}:{d+3}], v[{DF}:{DF+3}], v[{f}:{f+3}], 0")
    for gi in range(3, LA): a_read(gi)
    PZ = 8
    for gi, (r, mu) in enumerate(groups):
        wait_for({("A", gi)} | {("B", r, nn) for nn in range(8 - mu)})
        pend = []
        if gi + LA < 64: pend.append(lambda g=gi + LA: a_read(g))
        if r < 7 and gi % 2 == 0:
            pend.append(lambda nn=gi % 8, r=r: b_read(r + 1, nn)); pend.append(lambda nn=gi % 8 + 1, r=r: b_read(r + 1, nn))
        tiles = list(range(mu, 8))
        for n, i in enumerate(tiles):
            d = BACC + 4 * i; f = BF + 32 * (r & 1) + 4 * (i - mu); s = AF + 4 * (gi % NAF)
            a(f"v_mfma_f32_16x16x32_bf16 v[{d}:{d+3}], v[{s}:{s+3}], v[{f}:{f+3}], v[{d}:{d+3}]")
            if pend: pend.pop(0)()
            elif gi < 63:
                nv = 0
                while fill and nv < cfg.nfill:
                    t = fill.pop(0); a(t); nv += 1 if t.startswith("v_") else 0.5
            if gi == 63 and n >= 3:
                j = n - 3; dd = BACC + 4 * j; p = PZ + 2 * (j & 1)
                a(f"v_cvt_pk_bf16_f32 v{p}, v{dd}, v{dd+1}\nv_cvt_pk_bf16_f32 v{p+1}, v{dd+2}, v{dd+3}\nds_write_b64 v31, v[{p}:{p+1}] offset:{512*j}")
        for f_ in pend: f_()
    for t in fill: a(t)
    stamp(4)
    for j in range(5, 8):
        dd = BACC + 4 * j; p = PZ + 2 * (j & 1)
        a(f"v_cvt_pk_bf16_f32 v{p}, v{dd}, v{dd+1}\nv_cvt_pk_bf16_f32 v{p+1}, v{dd+2}, v{dd+3}\nds_write_b64 v31, v[{p}:{p+1}] offset:{512*j}")
    for i in range(4): a(f"ds_read_b128 v[{32+4*i}:{35+4*i}], v25 offset:{1024*i}")
    for i in range(4):
        a(f"s_waitcnt lgkmcnt({3-i})\nbuffer_store_dwordx4 v[{32+4*i}:{35+4*i}], v13, {srd(SWS)}, s{sA} offen offset:{1024*i} sc1")
    a("s_branch L_join_a")

    a("L_C:")
    vNC = 60
    a(f"""
    s_getpc_b64 s[4:5]
    L_pc:
    s_sub_u32 s4, s4, L_pc-{NAME}_kernel
    s_subb_u32 s5, s5, 0
    s_mul_i32 s3, s{sJ}, 1408
    v_lshl_add_u32 v2, v0, 7, s3
    v_min_u32 v2, L_end-{NAME}_kernel, v2
    s_cmp_lg_u32 s{sWV}, 0
    s_cbranch_scc1 L_nocp
    s_mov_b64 exec, 0x7ff
    global_load_dword v63, v2, s[4:5]
    s_mov_b64 exec, -1
    L_nocp:
    s_mov_b32 s{sCHV}, 0
    s_mov_b32 s{sCH}, 0
    v_mul_u32_u24 v2, 26, v1
    v_lshrrev_b32 v2, 8, v2
    v_mul_u32_u24 v2, 1120, v2
    v_lshl_add_u32 v12, v1, 4, v2
    s_mul_i32 s{sA}, s{sR64}, {64*1280}
    s_add_u32 s{sA}, s{sA}, s{sC160}
    s_sub_u32 s{sT0}, s{sA}, {4*1280}
    v_add_u32 v13, s{sT0}, v12
    s_mul_i32 s{sT1}, s{sWV}, {8*1280}
    s_add_u32 s{sA}, s{sA}, s{sT1}
    s_mul_i32 s{sB}, s{sWV}, 1296
    """)

    def b1_loads(half):
        a(f"s_mov_b32 exec_hi, 0xff\ns_add_u32 s{sT1}, s{sA}, {half*32*1280}\ns_add_u32 s{sT2}, s{sT1}, {4*1280}")
        o = half * 4 * 1296
        dma(12, SK, f"s{sT1}", f"s_add_u32 m0, s{sB}, {L_KB+656+o}", cfg.nt_in)
        dma(12, SV, f"s{sT1}", f"s_add_u32 m0, s{sB}, {L_VB+o}", cfg.nt_in)
        dma(12, SK, f"s{sT2}", f"s_add_u32 m0, s{sB}, {L_KB+656+640+o}", cfg.nt_in)
        dma(12, SV, f"s{sT2}", f"s_add_u32 m0, s{sB}, {L_VB+640+o}", cfg.nt_in)
        if half == 0:
            L = a.lab("L_nh")
            a(f"s_cmp_lg_u32 s{sWV}, 0\ns_cbranch_scc1 {L}")
            dma(13, SK, "0", L_KB, cfg.nt_in)
            a(f"{L}:")
        a("s_mov_b32 exec_hi, -1")
    a(f"""
    s_waitcnt lgkmcnt(0)
    s_or_b32 s{sT0}, s2, s{sWV}
    s_cmp_lg_u32 s{sT0}, 0
    s_cbranch_scc1 L_nonon
    s_memrealtime s[{sN}:{sN+1}]
    s_waitcnt lgkmcnt(0)
    s_or_b32 s{sN}, s{sN}, 1
    v_mov_b32 v6, s{sN}
    v_mov_b32 v7, s{sN+1}
    v_mov_b32 v5, 0
    s_mov_b64 exec, 1
    buffer_store_dwordx2 v[6:7], v5, {srd(SDBG)}, 0 offen sc1
    s_mov_b64 exec, -1
    L_nonon:
    s_cmp_ge_u32 s{sJ}, 30
    s_cbranch_scc1 L_c_idle
    """)
    def tlb():
        if not cfg.tlb: return
        L = a.lab("L_tlb")
        a(f"s_cmp_lg_u32 s{sWV}, 1\ns_cbranch_scc1 {L}\nv_lshlrev_b32 v5, {cfg.tlb}, v1")
        for sr in (SWS, SOUT, SQ, SH, SWO, SD): a(f"buffer_load_dword v63, v5, {srd(sr)}, 0 offen")
        a(f"{L}:")
    GFA = 207; sGA, sGB = 0, 1
    def qkv_addr():
        a(f"""
        s_lshr_b32 s{sT0}, s{sHD}, 1
        s_mul_i32 s{sT0}, s{sT0}, 5
        s_and_b32 s{sT1}, s{sHD}, 1
        s_lshl_b32 s{sT2}, s{sT1}, 1
        s_add_u32 s{sT2}, s{sT2}, s{sT0}
        s_add_u32 s{sT3}, s{sT2}, 2
        s_lshr_b32 s{sT2}, s{sT2}, 3
        s_lshr_b32 s{sT3}, s{sT3}, 3
        v_lshrrev_b32 v2, 1, v1
        v_min_u32 v2, 4, v2
        v_cmp_le_u32 vcc, 3, v2
        v_subrev_u32 v3, 2, v2
        v_cndmask_b32 v2, v2, v3, vcc
        s_cmp_eq_u32 s{sQB}, 0
        s_cselect_b32 s{sT4}, 0, 4
        v_mov_b32 v3, s{sT4}
        v_cndmask_b32 v3, 0, v3, vcc
        v_mul_u32_u24 v2, 10, v2
        v_and_b32 v4, 1, v1
        v_cmp_eq_u32 vcc, 1, v4
        v_mov_b32 v4, s{sT2}
        v_mov_b32 v5, s{sT3}
        v_cndmask_b32 v4, v4, v5, vcc
        v_add_u32 v2, v2, v4
        v_lshlrev_b32 v2, 5, v2
        s_lshl_b32 s{sT4}, s{sQB}, 2
        s_add_u32 s{sT4}, s{sT4}, s{sWV}
        v_add_u32 v2, s{sT4}, v2
        v_sub_u32 v2, v2, v3
        s_lshl_b32 s{sT2}, s{sCT}, 6
        s_lshl_b32 s{sT3}, s{sRB}, 1
        s_add_u32 s{sT2}, s{sT2}, s{sT3}
        v_and_b32 v4, 1, v1
        v_bfe_u32 v5, v1, 1, 1
        v_lshl_add_u32 v4, v4, 5, v5
        v_add_u32 v4, s{sT2}, v4
        s_cmp_lt_u32 s{sJ}, 30
        s_cselect_b32 s{sT2}, 11, 64
        v_cmp_lt_u32 vcc, s{sT2}, v1
        v_cndmask_b32 v2, v2, v4, vcc
        v_mul_u32_u24 v2, {FS}, v2
        v_add_u32 v{GFA}, {WS_FG}, v2
        s_mul_i32 s{sT1}, s{sT1}, 3
        s_add_u32 s{sGA}, s{sT0}, s{sT1}
        s_add_u32 s{sGB}, s{sT0}, 2
        s_lshl_b32 s{sGA}, s{sGA}, 15
        s_lshl_b32 s{sGB}, s{sGB}, 15
        s_lshl_b32 s{sT4}, s{sT4}, 10
        s_add_u32 s{sGA}, s{sGA}, s{sT4}
        s_add_u32 s{sGB}, s{sGB}, s{sT4}
        v_lshlrev_b32 v14, 4, v1
        v_bfrev_b32 v15, 1
        s_cmp_eq_u32 s{sQB}, 0
        s_cselect_b64 vcc, -1, 0
        v_cndmask_b32 v15, v14, v15, vcc
        s_lshl_b32 s{sT5}, s{sWV}, 10
        """)
    def c_idle():
        a("L_c_idle:")
        b1_loads(0); b1_loads(1); shift_load(); build_masks(None); a2_setup(); qkv_addr(); wom_setup()
        a("s_waitcnt vmcnt(0)\ns_barrier")
        nonce_issue(vNC)
        b1_compute(128)
        a("s_barrier\ns_waitcnt vmcnt(0)")
        nonce_take(vNC); publish_u(2)
        tlb()
        if cfg.wopre:
            a(f"""
            s_sub_u32 s{sT0}, s{sJ}, 30
            s_lshl_b32 s{sT0}, s{sT0}, 2
            s_add_u32 s{sT0}, s{sT0}, s{sWV}
            s_lshl_b32 s{sT0}, s{sT0}, 6
            v_add_u32 v4, s{sT0}, v1
            s_lshl_b32 s{sT1}, s{sXC}, 9
            v_add_u32 v2, s{sT1}, v4
            """)
            for i in range(cfg.wopre):
                a("s_waitcnt vmcnt(1)")
                if i < 8:
                    a(f"v_and_b32 v2, 4095, v2\nv_add_u32 v3, 4480, v2\nv_subrev_u32 v5, 6400, v3\nv_min_u32 v3, v3, v5\nv_add_u32 v2, 512, v2")
                else:
                    a(f"v_add_u32 v3, {2176 + 512*(i-8)}, v4")
                a(f"v_lshlrev_b32 v3, 7, v3\nbuffer_load_dword v63, v3, {srd(SWO)}, 0 offen")
        a("s_branch L_c_post")
    ool.append(c_idle)
    if cfg.b1a < 0: b1_loads(0)
    if cfg.b1b < 0: b1_loads(1)
    shift_load()
    if cfg.tlball: tlb()
    if cfg.tlbs:
        L = a.lab("L_tlbs")
        a(f"s_cmp_lg_u32 s{sWV}, 1\ns_cbranch_scc1 {L}")
        for sr, n in ((SWS, 10), (SOUT, 3), (SQ, 2), (SH, 2), (SWO, 1), (SD, 1)):
            for i in range(n):
                a(f"s_mov_b32 s{sT0}, {i << 21}\ns_load_dword s3, s[{sr}:{sr+1}], s{sT0}")
        a(f"{L}:")
    ACC = 64
    FS4 = [128, 144, 16, 32]
    if not cfg.m16:
        AX = 48; AW = 56
        a(f"""
        s_and_b32 s{sT0}, s{sWV}, 1
        s_lshr_b32 s{sT1}, s{sWV}, 1
        v_and_b32 v2, 31, v1
        v_lshrrev_b32 v3, 5, v1
        v_bfe_u32 v4, v2, 1, 3
        v_xor_b32 v4, v4, v3
        s_lshl_b32 s{sT2}, s{sT1}, 13
        v_lshlrev_b32 v5, 7, v2
        v_add_u32 v5, s{sT2}, v5
        """)
        for ks in range(4):
            a(f"v_xor_b32 v6, {2*ks}, v4\nv_lshl_add_u32 v{AX+ks}, v6, 4, v5\nv_add_u32 v{AX+4+ks}, 0x10000, v{AX+ks}")
        a(f"""
        v_bfe_u32 v4, v1, 2, 2
        v_lshl_add_u32 v5, v3, 3, v4
        v_lshlrev_b32 v5, 8, v5
        v_and_b32 v6, 3, v1
        v_lshl_add_u32 v5, v6, 3, v5
        v_and_b32 v6, 16, v1
        v_lshl_add_u32 v5, v6, 1, v5
        v_add_u32 v5, 16384, v5
        s_lshl_b32 s{sT2}, s{sT0}, 1
        """)
        for mt in range(2):
            a(f"s_add_u32 s{sT3}, s{sT2}, {mt}\nv_xor_b32 v6, s{sT3}, v4\nv_lshl_add_u32 v{AW+mt}, v6, 6, v5\nv_add_u32 v{AW+2+mt}, 0x10000, v{AW+mt}")

    else:
        AX = 48; AW = 52
        a(f"""
        s_and_b32 s{sT0}, s{sWV}, 1
        s_lshr_b32 s{sT1}, s{sWV}, 1
        v_and_b32 v2, 15, v1
        v_lshrrev_b32 v3, 4, v1
        v_lshrrev_b32 v4, 1, v2
        v_xor_b32 v4, v4, v3
        s_lshl_b32 s{sT2}, s{sT1}, 13
        v_lshlrev_b32 v5, 7, v2
        v_add_u32 v5, s{sT2}, v5
        """)
        for ks in range(2):
            a(f"v_xor_b32 v6, {4*ks}, v4\nv_lshl_add_u32 v{AX+ks}, v6, 4, v5\nv_add_u32 v{AX+2+ks}, 0x10000, v{AX+ks}")
        a(f"""
        v_bfe_u32 v4, v1, 2, 2
        v_lshl_add_u32 v5, v3, 3, v4
        v_lshlrev_b32 v5, 8, v5
        v_and_b32 v6, 3, v1
        v_lshl_add_u32 v5, v6, 3, v5
        v_and_b32 v6, 16, v1
        v_lshl_add_u32 v5, v6, 1, v5
        v_add_u32 v5, 16384, v5
        s_lshl_b32 s{sT2}, s{sT0}, 1
        """)
        for m2 in range(2):
            a(f"s_add_u32 s{sT3}, s{sT2}, {m2}\nv_xor_b32 v6, s{sT3}, v4\nv_lshl_add_u32 v{AW+2*m2}, v6, 6, v5\nv_xor_b32 v{AW+2*m2+1}, 32, v{AW+2*m2}")
        for mt in range(4): a(f"v_add_u32 v{AW+4+mt}, 0x10000, v{AW+mt}")
    build_masks(None); a2_setup(); qkv_addr()
    if cfg.b1b < 0: wom_setup()
    if cfg.b1c < 0:
        a("s_waitcnt vmcnt(0)\ns_barrier")
        stamp(1)
        nonce_issue(vNC)
        b1_compute(128)
    def a1_reads(c, ks):
        F = FS4[ks]
        slot = (c + 1) % 3; hi = slot >> 1; o = (slot & 1) * 32768
        r = []
        for half in range(2):
            for t in range(2):
                r.append(f"ds_read_b64_tr_b16 v[{F+4*half+2*t}:{F+4*half+2*t+1}], v{AW+2*hi+half} offset:{o + (16*ks+4*t)*256}")
            r.append(f"ds_read_b128 v[{F+8+4*half}:{F+8+4*half+3}], v{AX+4*hi+ks} offset:{o + half*4096}")
        return [] if cfg.noread else r
    def a1_mfma(ks, first):
        F = FS4[ks]; r = []
        for mt, nt in ((0, 0), (1, 0), (1, 1), (0, 1)):
            d = ACC + 16 * (2 * mt + nt)
            r.append(f"v_mfma_f32_32x32x16_bf16 v[{d}:{d+15}], v[{F+4*mt}:{F+4*mt+3}], v[{F+8+4*nt}:{F+8+4*nt+3}], " + ("0" if first else f"v[{d}:{d+15}]"))
        return [] if cfg.nomfma else r
    def weave(reads, mf, per):
        reads = list(reads)
        for m in mf:
            for _ in range(per):
                if reads: a(reads.pop(0))
            a(m)
        for r in reads: a(r)
    FS2 = [128, 16]
    def r16(c, ks):
        F = FS2[ks]; slot = (c + 1) % 3; hi = slot >> 1; o = (slot & 1) * 32768; r = []
        for i in range(4):
            for t in range(2):
                r.append(f"ds_read_b64_tr_b16 v[{F+4*i+2*t}:{F+4*i+2*t+1}], v{AW+4*hi+i} offset:{o + (32*ks+4*t)*256}")
            r.append(f"ds_read_b128 v[{F+16+4*i}:{F+16+4*i+3}], v{AX+2*hi+ks} offset:{o + i*2048}")
        return r
    def m16(ks, first):
        F = FS2[ks]; r = []
        for mt in range(4):
            for nt in (range(4) if mt % 2 == 0 else range(3, -1, -1)):
                d = ACC + 4 * (4 * mt + nt)
                r.append(f"v_mfma_f32_16x16x32_bf16 v[{d}:{d+3}], v[{F+4*mt}:{F+4*mt+3}], v[{F+16+4*nt}:{F+16+4*nt+3}], " + ("0" if first else f"v[{d}:{d+3}]"))
        return r
    for c in range(10):
        if c == cfg.b1c: a("s_waitcnt vmcnt(0)")
        if c == pubc + 1:
            a("s_waitcnt vmcnt(0)")
            nonce_take(vNC); publish_u(2)
        if c in (0, 1, 2, 3, 5, 7, 9): stamp(1 + (0, 1, 2, 3, 5, 7, 9).index(c), "a1")
        a("s_barrier")
        if c == cfg.b1a: b1_loads(0)
        if c == cfg.b1b: b1_loads(1); wom_setup()
        if cfg.m16:
            weave(r16(c, 0), m16(1, False) if c > 0 else [], 1)
            a("s_waitcnt lgkmcnt(0)")
            mm = m16(0, c == 0); a(mm[0]); weave(r16(c, 1), mm[1:], 2)
        else:
            weave(a1_reads(c, 0) + a1_reads(c, 1), (a1_mfma(2, False) + a1_mfma(3, False)) if c > 0 else [], 2)
            a("s_waitcnt lgkmcnt(6)")
            m0 = a1_mfma(0, c == 0); m1 = a1_mfma(1, False); rd = a1_reads(c, 2) + a1_reads(c, 3)
            if cfg.nomfma or cfg.noread:
                weave(rd, m0 + m1, 2)
            else:
                a(m0[0]); weave(rd, m0[1:], 4)
                a("s_waitcnt lgkmcnt(12)")
                weave([], m1, 0)
        a("s_waitcnt lgkmcnt(0)")
        if c == cfg.b1c:
            stamp(1); nonce_issue(vNC); b1_compute(128)
    qs = f2u(20 ** -0.5 * math.log2(math.e))
    mlast = m16(1, False) if cfg.m16 else a1_mfma(2, False) + a1_mfma(3, False)
    weave([], mlast[:4], 0)
    a(f"""
    s_and_b32 s{sT0}, s{sWV}, 1
    s_lshr_b32 s{sT1}, s{sWV}, 1
    s_lshl_b32 s{sT2}, s{sCT}, 1
    s_add_u32 s{sT2}, s{sT2}, s{sT0}
    s_lshl_b32 s{sT3}, s{sRB}, 1
    s_add_u32 s{sT3}, s{sT3}, s{sT1}
    s_lshl_b32 s{sA}, s{sT2}, 18
    s_lshl_b32 s{sT4}, s{sT3}, 10
    s_add_u32 s{sA}, s{sA}, s{sT4}
    s_lshl_b32 s{sB}, s{sT2}, 5
    s_add_u32 s{sB}, s{sB}, s{sT3}
    s_mul_i32 s{sB}, s{sB}, {FS}
    s_add_u32 s{sB}, s{sB}, {WS_FG}
    v_and_b32 v2, 31, v1
    v_lshrrev_b32 v3, 5, v1
    v_lshlrev_b32 v2, 4, v2
    v_lshl_add_u32 v2, v3, 15, v2
    s_mov_b32 s{sT2}, {qs:#x}
    s_mov_b32 s{sT3}, {qs:#x}
    """)
    weave([], mlast[4:], 0)
    stamp(2)
    def a1_epi(scale):
        n = 0
        if cfg.m16:
            for mt in range(4):
                a(f"s_add_u32 s{sT0}, s{sA}, {2*mt*32768}")
                for n2 in range(2):
                    d = ACC + 4 * (4 * mt + 2 * n2); p = 128 + 4 * n; n += 1
                    for k in range(4): a(f"v_cvt_pk_bf16_f32 v{p+k}, v{d+2*k}, v{d+2*k+1}")
                    a(f"v_permlane16_swap_b32 v{p}, v{p+2}\nv_permlane16_swap_b32 v{p+1}, v{p+3}")
                    a(f"buffer_store_dwordx4 v[{p}:{p+3}], v2, {srd(SWS)}, s{sT0} offen offset:{n2*512} sc1")
            return
        for mt, nt in ((0, 0), (1, 0), (1, 1), (0, 1)):
            for i in (0, 2):
                d = ACC + 16 * (2 * mt + nt) + 4 * i
                p = 128 + 4 * n; n += 1
                if scale:
                    for k in range(4): a(f"v_pk_mul_f32 {pr(d+2*k)}, {pr(d+2*k)}, s[{sT2}:{sT3}]")
                for k in range(4): a(f"v_cvt_pk_bf16_f32 v{p+k}, v{d+2*k}, v{d+2*k+1}")
                a(f"s_add_u32 s{sT0}, s{sA}, {(4*mt+i)*32768}")
                a(f"v_permlane32_swap_b32 v{p}, v{p+2}\nv_permlane32_swap_b32 v{p+1}, v{p+3}")
                a(f"buffer_store_dwordx4 v[{p}:{p+3}], v2, {srd(SWS)}, s{sT0} offen offset:{nt*512} sc1")
    a(f"s_cmp_ge_u32 s{sCT}, 5\ns_cbranch_scc1 L_epi_d")
    for mt, nt in ((0, 0), (0, 1), (1, 0), (1, 1)) if cfg.m16 else ((0, 0), (1, 0), (1, 1), (0, 1)):
        for k in range(8):
            d = ACC + 16 * (2 * mt + nt) + 2 * k
            a(f"v_pk_mul_f32 {pr(d)}, {pr(d)}, s[{sT2}:{sT3}]")
    a("L_epi_d:\ns_nop 6")
    a1_epi(False)
    a("s_waitcnt vmcnt(0)")
    publish(sB, 4)
    a("L_c_post:")
    stamp(3)
    if cfg.stop <= 1: a("s_branch L_fin")
    a("v_mov_b32 v10, 0x3f803f80\nv_mov_b32 v11, 0x3f803f80\nv_mov_b32 v12, 0\nv_mov_b32 v13, 0\nv_lshlrev_b32 v7, 3, v1")
    poll(GFA, 8)
    stamp(4)
    for half in (1, 0):
        for sec, lds, lstr in ((0, L_Q, 4096), (1, L_K, 8192), (2, L_V, VSTR)):
            if sec == 0 and half == 0: continue
            for slot in range(3):
                base = (sGA, 32768 * slot) if slot < 2 else (sGB, 0)
                off = base[1] + sec * 80 * 32768 - (0 if half else 4096)
                a(f"s_add_u32 s{sT0}, s{base[0]}, {off}")
                dma(14 if half else 15, SWS, f"s{sT0}", f"s_add_u32 m0, s{sT5}, {lds + slot*lstr + (4096 if (half and sec) else 0)}", "sc1")
    a(f"ds_write_b64 v7, v[10:11] offset:{L_ONES}\nds_write_b64 v7, v[10:11] offset:{L_ONES + 512}\nds_write_b64 v7, v[12:13] offset:{L_ONES - 512}")
    a("s_waitcnt vmcnt(0) lgkmcnt(0)")

    for r in (ROH, ROH + 1, ROH + 2, FZA, ZD, ZD + 1, ZD + 2, QA, QA + 1, QA + 2): a(f"v_mov_b32 v{r}, 0")
    if cfg.prio: a("s_branch L_join_b\nL_join_a:\ns_setprio 1\nL_join_b:\ns_barrier")
    else: a("L_join_a:\ns_barrier")
    stamp(5)
    if cfg.stop <= 2: a("s_branch L_fin")
    Q0, Q1, Q1B = 16, 20, 60; K0F = 24; K1F = 32; VF = 40; AV = 58; S = 64; PP = 96; O = 112
    def wo_dma(i):
        if cfg.nowo: return
        a(f"s_mov_b32 m0, s{WOM[i]}\nbuffer_load_dwordx4 v{WOV+i}, {srd(SWO)}, s{sC160} offen lds")
    def k_read(b):
        f = K0F + 4 * (b & 1); o = (8 - b) * 512
        a(f"ds_read_b128 v[{f}:{f+3}], v{AK0} offset:{o}")
        if b % 2 == 0:
            f = K1F + 4 * ((b >> 1) & 1)
            a(f"ds_read_b128 v[{f}:{f+3}], v{AK1} offset:{o}")
    def v_read(b):
        f = VF + 8 * (b & 1); o = 0 if b & 1 else 512
        for s in range(2):
            for t in range(2):
                a(f"ds_read_b64_tr_b16 v[{f+4*s+2*t}:{f+4*s+2*t+1}], v{AVP + b//2} offset:{o + (16*s+8*t)*16}")
    def hook(b):
        L = a.lab("L_hook")
        a(f"s_cmp_lg_u32 s{sNV}, {b}\ns_cbranch_scc1 {L}\ns_nop 7")
        for r in range(16): a(f"v_mov_b32 v{vCZ+r}, v59\nv_mov_b32 v{vCF+r}, v59")
        a(f"s_nop 1\n{L}:")
    def qk(b, half, gen_):
        d = S + 16 * (b & 1)
        if half == 0:
            f = K0F + 4 * (b & 1)
            c = vCD if b == 0 else (vCF if b == 8 else vCZ)
            cs = f"v[{c}:{c+15}]" if (gen_ or c != vCZ) else "0"
            a(f"v_mfma_f32_32x32x16_bf16 v[{d}:{d+15}], v[{f}:{f+3}], v[{Q0}:{Q0+3}], {cs}")
        else:
            f = K1F + 4 * ((b >> 1) & 1); qq = Q1B if b & 1 else Q1
            a(f"v_mfma_f32_32x32x16_bf16 v[{d}:{d+15}], v[{f}:{f+3}], v[{qq}:{qq+3}], v[{d}:{d+15}]")
    def pv(b, s):
        p = PP + 8 * (b & 1); f = VF + 8 * (b & 1)
        a(f"v_mfma_f32_32x32x16_bf16 v[{O}:{O+15}], v[{f+4*s}:{f+4*s+3}], v[{p+4*s}:{p+4*s+3}], " + ("0" if (b == 0 and s == 0) else f"v[{O}:{O+15}]"))
    def cv(b, g):
        d = S + 16 * (b & 1) + 4 * g; p = PP + 8 * (b & 1) + 2 * g
        a(f"v_cvt_pk_bf16_f32 v{p}, v{d}, v{d+1}\nv_cvt_pk_bf16_f32 v{p+1}, v{d+2}, v{d+3}")
    def ex(b, g):
        d = S + 16 * (b & 1) + 4 * g
        a(f"v_exp_f32 v{d}, v{d}\nv_exp_f32 v{d+1}, v{d+1}")
        if g > 0: cv(b, g - 1)
        elif b > 0: cv(b - 1, 3)
        a(f"v_exp_f32 v{d+2}, v{d+2}\nv_exp_f32 v{d+3}, v{d+3}")
    wsched = {}
    i = 0
    for n in range(17):
        k = cfg.wfirst if n == 0 else 1
        wsched[n] = list(range(i, min(i + k, NWO))); i += k
    assert cfg.qn >= NWO - cfg.wfirst and cfg.fzn > cfg.qn and cfg.wbar >= cfg.fzn
    def side(b, k, gen_):
        n = 2 * b + k - 1
        if gen_ or n < 0: return
        if n == 0: a("s_barrier")
        if n == cfg.zpub:
            L2 = a.lab("L_zp"); R = a.lab("L_zpr")
            a(f"s_cmp_lg_u32 s{sCHV}, 0\ns_cbranch_scc1 {L2}\n{R}:")
            def body():
                a(f"{L2}:\ns_waitcnt vmcnt({0 if cfg.nowo else sum(len(wsched[j]) for j in range(n))})")
                a(f"s_mul_i32 s{sT0}, s{sCH}, {FS}\ns_add_u32 s{sT0}, s{sT0}, {WS_FZ}")
                publish(sT0, 4)
                a(f"s_branch {R}")
            ool.append(body)
        for i in wsched.get(n, []): wo_dma(i)
        if n == cfg.qn or n == cfg.fzn:
            L = a.lab("L_hq")
            a(f"s_cmp_lt_u32 s{sWV}, 4\ns_cbranch_scc1 {L}")
            if n == cfg.qn: q_loads()
            else: a(f"buffer_load_dwordx2 v[{FZR}:{FZR+1}], v{FZA}, {srd(SWS)}, 0 offen sc1")
            a(f"{L}:")
        if n == cfg.wbar:
            L = a.lab("L_wb")
            a(f"s_waitcnt vmcnt(4)\ns_cmp_ge_u32 s{sWV}, 4\ns_cbranch_scc1 {L}\ns_waitcnt vmcnt(0)\n{L}:\ns_barrier")
    def a2_loop(gen_):
        if gen_: a(f"v_mov_b32 v59, {BIGNEG:#x}")
        a("s_waitcnt lgkmcnt(1)")
        qk(0, 0, gen_)
        qk(0, 1, gen_)
        for b in range(9):
            if b in (1, 3, 5, 7) and not gen_: stamp(2 + b // 2, "a2")
            if cfg.prio and b == cfg.prio: a("s_setprio 0")
            if b > 0:
                a("s_waitcnt lgkmcnt(0)")
                pv(b - 1, 0)
            v_read(b)
            if b < 7: k_read(b + 2)
            ex(b, 0)
            if b < 8:
                if gen_: hook(b + 1)
                if b == 0: a("s_waitcnt lgkmcnt(6)")
                qk(b + 1, 0, gen_)
            else: pv(b - 1, 1)
            side(b, 0, gen_)
            ex(b, 1)
            if b < 8: qk(b + 1, 1, gen_)
            ex(b, 2)
            if 0 < b < 8: pv(b - 1, 1)
            if b == 8:
                a("s_waitcnt lgkmcnt(0)"); pv(8, 0)
            side(b, 1, gen_)
            ex(b, 3)
        cv(8, 3)
        pv(8, 1)
    a(f"ds_read_b128 v[{Q1}:{Q1+3}], v{QAD1}\nds_read_b128 v[{Q0}:{Q0+3}], v{QAD0}")
    k_read(0); k_read(1)
    a(f"""
    s_lshl_b32 s{sT0}, s{sQB}, 3
    s_add_u32 s{sT0}, s{sT0}, s{sWV}
    s_lshl_b32 s{sT4}, s{sHD}, 16
    s_lshl_b32 s{sT2}, s{sT0}, 9
    s_add_u32 s{sT4}, s{sT4}, s{sT2}
    s_add_u32 s{sT4}, s{sT4}, {WS_O}
    s_lshl_b32 s{sT5}, s{sHD}, 14
    s_lshl_b32 s{sT3}, s{sT0}, 8
    s_add_u32 s{sT5}, s{sT5}, s{sT3}
    s_add_u32 s{sT5}, s{sT5}, {WS_O8}
    s_lshl_b32 s{sA}, s{sT0}, 5
    s_add_u32 s{sA}, s{sA}, s{sHD}
    s_mul_i32 s{sA}, s{sA}, {FS}
    s_add_u32 s{sA}, s{sA}, {WS_FO}
    s_waitcnt lgkmcnt(4)
    v_and_b32 v{Q1B}, v{QM2}, v{Q1}
    v_and_b32 v{Q1B+1}, v{QM2}, v{Q1+1}
    v_and_b32 v{Q1B+2}, v{QM3}, v{Q1+2}
    v_and_b32 v{Q1B+3}, v{QM3}, v{Q1+3}
    v_and_b32 v{Q1}, v{QM0}, v{Q1}
    v_and_b32 v{Q1+1}, v{QM0}, v{Q1+1}
    v_and_b32 v{Q1+2}, v{QM1}, v{Q1+2}
    v_and_b32 v{Q1+3}, v{QM1}, v{Q1+3}
    """)
    stamp(1, "a2")
    a2_loop(False)
    a("L_a2_done:")
    def gen_loop():
        a("L_a2_gen:"); a2_loop(True); a("s_nop 10\ns_branch L_a2_done")
    stamp(6, "a2")
    lo = f2u(2.0 ** -24); hi = f2u(2.0 ** 40); fin = f2u(3.0e38)
    a(f"v_rcp_f32 v2, v{O+12}\nv_mov_b32 v3, v2")
    for i in range(6): a(f"v_pk_mul_f32 {pr(40+2*i)}, {pr(O+2*i)}, v[2:3]")
    for i in range(6): a(f"v_cvt_pk_bf16_f32 v{24+i}, v{40+2*i}, v{41+2*i}")
    a(f"""
    buffer_store_dwordx4 v[24:27], v{OS0}, {srd(SWS)}, s{sT4} offen sc1
    s_mov_b32 exec_hi, 0
    buffer_store_dwordx2 v[28:29], v{OS1}, {srd(SWS)}, s{sT5} offen sc1
    s_mov_b32 exec_hi, -1
    """)
    stamp(6); stamp(7, "a2"); stamp(1, "g2")
    a(f"v_cmp_nle_f32 vcc, {lo:#x}, v{O+12}\ns_mov_b64 s[{sEX}:{sEX+1}], vcc\nv_cmp_nge_f32 vcc, {hi:#x}, v{O+12}\ns_or_b64 s[{sEX}:{sEX+1}], s[{sEX}:{sEX+1}], vcc")
    for i in range(6): a(f"v_add_f32 v{4+i}, abs(v{O+2*i}), abs(v{O+2*i+1})")
    a("v_add_f32 v4, v4, v5\nv_add_f32 v6, v6, v7\nv_add_f32 v8, v8, v9\nv_add_f32 v4, v4, v6\nv_add_f32 v4, v4, v8")
    a(f"v_cmp_nge_f32 vcc, {fin:#x}, v4\ns_or_b64 vcc, s[{sEX}:{sEX+1}], vcc")
    if cfg.force_fb: a("s_mov_b64 vcc, -1")
    a("s_cbranch_vccnz L_a2_fb\nL_a2_ok:")
    def fallback():
        a(f"L_a2_fb:\ns_cmp_lg_u32 s{sFB}, 0\ns_cbranch_scc1 L_a2_ok\ns_mov_b32 s{sFB}, 1\ns_waitcnt vmcnt(0)")
        build_masks("0")
        a(f"v_mov_b32 v4, {BIGNEG:#x}\nv_mov_b32 v59, {BIGNEG:#x}")
        for b in range(9):
            if b > 0: hook(b)
            k_read(b); a("s_waitcnt lgkmcnt(0)"); qk(b, 0, True); qk(b, 1, True)
            d = S + 16 * (b & 1)
            for i in range(8): a(f"v_max3_f32 v4, v4, v{d+2*i}, v{d+2*i+1}")
        a("v_mov_b32 v5, v4\nv_permlane32_swap_b32 v4, v5\nv_max_f32 v4, v4, v5\nv_sub_f32 v4, 0, v4")
        build_masks("v4")
        k_read(0); k_read(1)
        a("s_branch L_a2_gen")
    WA, WA2, WA3, WB, WB3, OA, OB = 52, 53, 54, 55, 56, 57, 58
    RO = 59; STA = 62
    a(f"""
    v_lshrrev_b32 v2, 4, v1
    v_bfe_u32 v3, v1, 2, 2
    v_and_b32 v4, 3, v1
    s_cmp_ge_u32 s{sWV}, 4
    s_cselect_b32 s{sT0}, 96, 0
    v_lshl_add_u32 v4, v4, 3, s{sT0}
    v_lshrrev_b32 v5, 1, v2
    v_mul_u32_u24 v5, 24, v5
    v_and_b32 v6, 1, v2
    v_lshl_add_u32 v5, v6, 2, v5
    v_add_u32 v5, v5, v3
    v_mul_u32_u24 v5, 160, v5
    v_add_u32 v{WA3}, v5, v4
    v_add_u32 v{WA2}, {L_WO1 + 6*6400}, v{WA3}
    v_add_u32 v{WA}, {L_WO1}, v{WA3}
    v_mul_u32_u24 v5, 40, v2
    v_add3_u32 v5, v5, v3, 16
    v_mul_u32_u24 v5, 160, v5
    v_add_u32 v{WB3}, v5, v4
    v_add_u32 v{WB}, {L_WO1}, v{WB3}
    """)
    def a3_addr():
        a(f"""
        v_lshrrev_b32 v2, 4, v1
        v_and_b32 v5, 15, v1
        s_lshl_b32 s{sT0}, s{sHW}, 4
        v_add_u32 v5, s{sT0}, v5
        v_lshlrev_b32 v6, 10, v2
        v_lshl_add_u32 v{OA}, v5, 4, v6
        v_add_u32 v{OA}, {L_O16}, v{OA}
        v_and_b32 v6, 1, v2
        v_lshlrev_b32 v6, 11, v6
        v_lshrrev_b32 v7, 1, v2
        v_lshl_add_u32 v6, v7, 9, v6
        v_lshl_add_u32 v{OB}, v5, 3, v6
        v_add_u32 v{OB}, {L_O8}, v{OB}
        v_mul_u32_u24 v5, 160, v5
        v_lshl_add_u32 v5, v2, 3, v5
        v_add_u32 v{STA}, {L_ST}, v5
        """)
    def wo_frag(step, ct, d):
        for t in range(2):
            if step < 6: r, o = WA, (40 * step + 8 * t) * 160
            elif step < 12: r, o = WA2, (40 * (step - 6) + 8 * t) * 160
            elif step < 16: r, o = WA3, (40 * (step - 12) + 8 * t) * 160
            elif step < 19: r, o = WB, (160 * (step - 16) + 4 * t) * 160
            else: r, o = WB3, 4 * t * 160
            a(f"ds_read_b64_tr_b16 v[{d+2*t}:{d+2*t+1}], v{r} offset:{o + 32*ct}")
    def o_frag(step, d):
        if step < 16:
            a(f"ds_read_b128 v[{d}:{d+3}], v{OA} offset:{4096*step}"); return 1
        for t in range(2):
            a(f"ds_read_b64 v[{d+2*t}:{d+2*t+1}], v{OB} offset:{4096*(step-16) + 1024*t}")
        return 2
    def a3_loop(nct, fr, ct0):
        ACC3 = 16
        OFS = [28, 28]
        q.clear()
        stages = [[4 * sg + k for k in range(4)] + [16 + sg] for sg in range(4)]
        seq = [st for sg in stages for st in sg]
        slot = {st: 28 + 4 * (i % 6) for i, st in enumerate(seq)}
        nread = [0]
        def reads_upto(lim):
            while nread[0] < lim:
                st = seq[nread[0]]
                if nread[0] % 5 == 0:
                    sg = nread[0] // 5
                    if nct == 3: a(f"s_waitcnt vmcnt({15 - 5*sg + (1 if (cfg.otouch > 2 and sg == 0) else 0)})")
                    a("s_barrier"); stamp(3 + sg, "a3")
                n = o_frag(st, slot[st]); issue(("O", st), n); nread[0] += 1
        for i, st in enumerate(seq):
            reads_upto(min(i + cfg.a3la, 20))
            wait_for({("O", st), ("W", st)})
            for ct in range(nct):
                w = fr[(st, ct)]; d = ACC3 + 4 * ct; o = slot[st]
                a(f"v_mfma_f32_16x16x32_bf16 v[{d}:{d+3}], v[{w}:{w+3}], v[{o}:{o+3}], " + ("0" if i == 0 else f"v[{d}:{d+3}]"))
            if nct == 3 and i in (5, 7, 9, 11):
                st2 = 12 + (i - 5) // 2
                for ct in range(3):
                    fr[(st2, ct)] = fr[(st2 - 12, ct)]
                    wo_frag(st2, ct, fr[(st2, ct)]); issue(("W", st2), 2)
        for ct in range(nct):
            d = ACC3 + 4 * ct
            a(f"v_cvt_pk_bf16_f32 v{2+2*ct}, v{d}, v{d+1}\nv_cvt_pk_bf16_f32 v{3+2*ct}, v{d+2}, v{d+3}\nds_write_b64 v{STA}, v[{2+2*ct}:{3+2*ct}] offset:{32*(ct+ct0)}")
        a("s_waitcnt lgkmcnt(0)\ns_barrier"); stamp(7, "a3")
    stamp(2, "g2")
    a(f"s_cmp_ge_u32 s{sWV}, 4\ns_cbranch_scc1 L_g2_h")
    csteps = list(range(12)) + [16, 17, 18, 19]
    cfr = {}
    for n, st in enumerate(csteps):
        for ct in range(3):
            cfr[(st, ct)] = 64 + 4 * (3 * n + ct)
            wo_frag(st, ct, cfr[(st, ct)])
        if n == cfg.cpub:
            a("s_waitcnt vmcnt(0)"); publish(sA, 4); stamp(3, "g2")
    for k in rounds(RO): pass
    a3_addr()
    a(f"""
    s_lshl_b32 s{sT0}, s{sR64}, 6
    s_add_u32 s{sT0}, s{sT0}, s{sWV}
    v_and_b32 v8, 15, v1
    v_lshl_add_u32 v8, v8, 2, s{sT0}
    v_mul_u32_u24 v8, {FS}, v8
    v_add_u32 v8, {WS_FO}, v8
    v_lshlrev_b32 v12, 4, v1
    v_and_b32 v13, 31, v1
    v_lshrrev_b32 v9, 5, v1
    v_lshlrev_b32 v13, 4, v13
    v_lshl_add_u32 v13, v9, 16, v13
    s_lshl_b32 s{sA}, s{sWV}, 16
    s_lshl_b32 s{sT0}, s{sR64}, 10
    s_add_u32 s{sA}, s{sA}, s{sT0}
    s_lshl_b32 s{sB}, s{sWV}, 14
    s_lshl_b32 s{sT0}, s{sR64}, 9
    s_add_u32 s{sB}, s{sB}, s{sT0}
    s_lshl_b32 s{sT4}, s{sWV}, 11
    s_lshl_b32 s{sT5}, s{sWV}, 10
    s_add_u32 s{sT0}, s{sT5}, {L_ST}
    v_add_u32 v14, s{sT0}, v12
    s_mul_i32 s{sT3}, s{sR64}, {64*2560}
    s_add_u32 s{sT3}, s{sT3}, s{sC160}
    s_lshl_b32 s{sT0}, s{sC80}, 18
    s_add_u32 s{sT0}, s{sT0}, s{sA}
    s_add_u32 s{sT0}, s{sT0}, {WS_O}
    s_lshl_b32 s{sT1}, s{sC80}, 16
    s_add_u32 s{sT1}, s{sT1}, s{sB}
    s_add_u32 s{sT1}, s{sT1}, {WS_O8}
    v_and_b32 v2, 7, v1
    v_lshlrev_b32 v2, 7, v2
    v_bfe_u32 v3, v1, 3, 1
    v_lshl_add_u32 v3, v3, 15, v2
    v_add_u32 v3, s{sT0}, v3
    v_add_u32 v2, s{sT1}, v2
    v_cmp_gt_u32 vcc, 16, v1
    v_cndmask_b32 v15, v2, v3, vcc
    s_waitcnt lgkmcnt(0)
    s_barrier
    """)
    stamp(4, "g2")
    poll(8, 10)
    stamp(7); stamp(5, "g2"); stamp(1, "a3")
    for i in range(8):
        if cfg.otouch and i == cfg.otouch - 1:
            a(f"s_mov_b64 exec, 0xfffff\nbuffer_load_dword v63, v15, {srd(SWS)}, 0 offen sc1\ns_mov_b64 exec, -1")
        for hh in range(2):
            a(f"s_add_u32 s{sT0}, s{sA}, {WS_O + 32768*(8*i + hh)}")
            dma(12, SWS, f"s{sT0}", f"s_add_u32 m0, s{sT4}, {L_O16 + 1024*(8*i + hh)}", "sc1")
        if i & 1:
            a(f"s_add_u32 s{sT0}, s{sB}, {WS_O8 + 16384*8*(i >> 1)}")
            dma(13, SWS, f"s{sT0}", f"s_add_u32 m0, s{sT5}, {L_O8 + 4096*(i >> 1)}", "sc1")
    a3_loop(3, cfr, 0)
    a(f"""
    ds_read_b128 v[16:19], v14
    ds_read_b128 v[20:23], v14 offset:4096
    ds_read_b128 v[24:27], v14 offset:8192
    s_waitcnt lgkmcnt(2)
    buffer_store_dwordx4 v[16:19], v{RO}, {srd(SOUT)}, s{sT3} offen {cfg.outa}
    s_waitcnt lgkmcnt(1)
    buffer_store_dwordx4 v[20:23], v{RO+1}, {srd(SOUT)}, s{sT3} offen {cfg.outa}
    s_cmp_ge_u32 s{sHW}, 2
    s_cbranch_scc1 L_fin
    s_waitcnt lgkmcnt(0)
    buffer_store_dwordx4 v[24:27], v{RO+2}, {srd(SOUT)}, s{sT3} offen {cfg.outa}
    s_branch L_fin
    """)
    a("L_g2_h:")
    hfr = {}; ZV = 40
    a("s_waitcnt vmcnt(2)")
    check_or_poll(FZA, FZR)
    for k in range(3): a(f"s_mov_b32 m0, s{ZM[k]}\nbuffer_load_dwordx4 v{ZD+k}, {srd(SWS)}, 0 offen sc1 lds")
    for st in range(20):
        for ct in range(2):
            i = 2 * st + ct
            hfr[(st, ct)] = 64 + 4 * i if i < 22 else 184 + 4 * (i - 22)
            wo_frag(st, ct, hfr[(st, ct)])
        if st == cfg.hpub:
            a("s_waitcnt vmcnt(3)"); publish(sA, 4); stamp(3, "g2")
    a3_addr()
    a("s_waitcnt vmcnt(1) lgkmcnt(0)\ns_barrier")
    stamp(4, "g2"); stamp(7); stamp(1, "a3")
    a(f"s_mul_i32 s{sT2}, s{sR64}, {64*2560}\ns_add_u32 s{sT2}, s{sT2}, s{sC160}\ns_add_u32 s{sT2}, s{sT2}, 1280")
    for k in range(3):
        if k == 2: a(f"s_cmp_ge_u32 s{sHW}, 2\ns_cbranch_scc1 L_b3d")
        for j in range(8): a(f"v_mov_b32 v{ZV+j}, 0")
        for j in range(8): a(f"ds_read_u16_d16_hi v{ZV+j}, v{ZA+k} offset:{128*j}")
        for j in range(4):
            a(f"v_lshlrev_b32 v{ZT+2*j}, 16, v{QV+4*k+j}\nv_and_b32 v{ZT+1+2*j}, 0xffff0000, v{QV+4*k+j}")
        a("s_waitcnt lgkmcnt(0)")
        for j in range(8): a(f"v_mul_f32 v{ZT+j}, v{ZT+j}, v{ZV+j}")
        for j in range(4): a(f"v_cvt_pk_bf16_f32 v{QV+4*k+j}, v{ZT+2*j}, v{ZT+1+2*j}")
        a(f"buffer_store_dwordx4 v[{QV+4*k}:{QV+4*k+3}], v{ROH+k}, {srd(SOUT)}, s{sT2} offen {cfg.outb}")
    a("L_b3d:")
    stamp(5, "g2"); stamp(2, "a3")
    a3_loop(2, hfr, 3)
    a("L_fin:")
    if cfg.stamps:
        a("s_waitcnt vmcnt(0)")
        stamp(8)
        a(f"s_lshl_b32 s{sT0}, s2, 3\ns_add_u32 s{sT0}, s{sT0}, s{sWV}\ns_lshl_b32 s{sT0}, s{sT0}, 7\ns_add_u32 s{sT0}, s{sT0}, {WS_T}\nv_mov_b32 v2, s{sT0}\ns_mov_b64 exec, 1")
        for i in range(9):
            a(f"v_mov_b32 v4, s{sSTAMP+2*i}\nv_mov_b32 v5, s{sSTAMP+2*i+1}\nbuffer_store_dwordx2 v[4:5], v2, {srd(SWS)}, 0 offen offset:{8*i}\ns_waitcnt vmcnt(0)")
    a("L_exit:\ns_endpgm")
    i = 0
    while i < len(ool):
        ool[i](); i += 1
    a("L_end:")
    fallback(); gen_loop()
    while i < len(ool):
        ool[i](); i += 1
    body = a.finish()
    hdr = open("cdna_kernels/" + NAME + ".s.ref").read().split("; Override launch")[0]
    src = hdr + f"""; Single persistent kernel, one 512-thread workgroup per CU; generated by the author's own script.
; @launch grid=(256,1,1) block=(512,1,1) lds=163840
.amdgcn_target "amdgcn-amd-amdhsa--gfx950"
.text
.globl {NAME}_kernel
.p2align 8
.type {NAME}_kernel,@function
{NAME}_kernel:
{body}.section .rodata,"a"
.p2align 6
.amdhsa_kernel {NAME}_kernel
  .amdhsa_next_free_vgpr 256
  .amdhsa_next_free_sgpr 102
  .amdhsa_accum_offset 256
  .amdhsa_group_segment_fixed_size 0
  .amdhsa_kernarg_size 96
  .amdhsa_user_sgpr_count 2
  .amdhsa_user_sgpr_kernarg_segment_ptr 1
  .amdhsa_system_sgpr_workgroup_id_x 1
.end_amdhsa_kernel
"""
    return src

if __name__ == "__main__":
    cfg = Cfg()
    out = sys.argv[1]
    for kv in sys.argv[2:]:
        k, v = kv.split("=")
        old = getattr(cfg, k)
        setattr(cfg, k, (v == "1") if isinstance(old, bool) else (int(v) if isinstance(old, int) else v))
    open(out, "w").write(gen(cfg))
```

```python
import sys, math, struct
from asmdsl import Asm

NAME = "concat_heads__sliding_block__ssm_conv_h3__prompt"

class Cfg:
    stamps = False
    grp = ""
    stop = 99
    nt_in = ""
    fstr = 128
    slp = 1
    force_fb = False
    ncls = 3
    b1a = -1
    b1b = -1
    b1c = -1
    map2 = "head"
    outa = "sc1"
    outb = "sc1"
    m16 = True
    nfill = 2
    a3la = 2
    otouch = 0
    dbgst = False
    tlb = 0
    tlball = False
    tlbs = False
    zpub = 1
    early = 20
    wtouch = 0
    wfirst = 2
    qn = 10
    fzn = 14
    wbar = 15
    cpub = 3
    hpub = 5
    prio = 5
    ufs = 8
    wopre = 9
    noread = False; nomfma = False; nowo = False

WS_G = 0x0; WS_U = 0x800000; WS_Z = 0xB00000; WS_O = 0xE00000; WS_O8 = 0x1000000
WS_FG = 0x1100000; WS_FU = 0x1140000; WS_FZ = 0x1180000; WS_FO = 0x11C0000; WS_T = 0x1200000
WS_SIZE = 0x1400000
L_KB = 98304; L_VB = L_KB + 11024
L_H = 119808; HSTR = 8320; HODD = 4160
L_U = 144768; USTR = 4608
L_V = 32768; VSTR = 8256; L_ONES = L_V + 24768 + 512; L_K = 59136; L_Q = 83712
L_WO1 = 87040
L_WO2 = 0
L_ZA = 25600; L_ZB = 83712
L_O8 = 32768; L_ST = 49152; L_O16 = 98304
SX, SW, SWO, SQ, SK, SV, SSH, SH, SD, SOUT, SDBG, SWS = [8 + 4 * i for i in range(12)]
def srd(b): return f"s[{b}:{b+3}]"
sWON, sC160 = 6, 7
sWV, sXC, sJ, sHW = 56, 57, 58, 59
sN = 60
sR64, sC80, sRB, sCT, sCH, sCHV, sHD, sQB = 62, 63, 64, 65, 66, 67, 68, 69
sT0, sT1, sT2, sT3, sT4, sT5 = 70, 71, 72, 73, 74, 75
sCNT, sNV, sFB, sKC = 76, 77, 78, 79
sEX = 80
sA, sB = 82, 83
sSTAMP = 84
WOM = list(range(24, 36))
ZM = [0, 1, 3]
BIGNEG = 0xf149f2ca
vCZ, vCD, vCF = 208, 224, 240
QV = 152; ROH = 164; ZA = 167; FZA = 170; FZR = 172; QA = 174; ZD = 177; ZT = 174; QM2, QM3 = 182, 183
WOV = 208; AVP = 190; AK0, AK1, AVD, AV0, QAD0, QAD1, QM0, QM1, OS0, OS1 = 197, 198, 199, 200, 201, 202, 203, 204, 205, 206

def f2u(x): return struct.unpack("<I", struct.pack("<f", x))[0]
def pr(b): return f"v[{b}:{b+1}]"

def gen(cfg):
    a = Asm()
    FS = cfg.fstr
    NWO = (100 - cfg.early + 7) // 8
    ool = []
    def stamp(i, grp=""):
        if cfg.stamps and (grp == cfg.grp or i in (0, 8) and grp == ""):
            a(f"s_memrealtime s[{sSTAMP+2*i}:{sSTAMP+2*i+1}]\ns_memtime s[4:5]\ns_waitcnt lgkmcnt(0)\ns_mov_b32 s{sSTAMP+2*i+1}, s4")
    def dma(vaddr, s, soff, m0, flags=""):
        if isinstance(m0, int): a(f"s_mov_b32 m0, {m0}")
        else: a(m0)
        a(f"buffer_load_dwordx4 v{vaddr}, {srd(s)}, {soff} offen {flags} lds")
    def poll(vaddr, t):
        L = a.lab("L_poll"); D = a.lab("L_polld")
        a(f"s_mov_b32 s{sCNT}, 0\n{L}:")
        a(f"buffer_load_dwordx2 v[{t}:{t+1}], v{vaddr}, {srd(SWS)}, 0 offen sc1\ns_waitcnt vmcnt(0)")
        a(f"v_cmp_ne_u64 vcc, s[{sN}:{sN+1}], v[{t}:{t+1}]")
        a(f"s_cbranch_vccz {D}\ns_add_u32 s{sCNT}, s{sCNT}, 1\ns_cmp_lt_u32 s{sCNT}, 0x40000\ns_cbranch_scc0 {D}\ns_sleep {cfg.slp}\ns_branch {L}\n{D}:")
    def check_or_poll(vaddr, t):
        L = a.lab("L_cp"); R = a.lab("L_cpr")
        a(f"v_cmp_ne_u64 vcc, s[{sN}:{sN+1}], v[{t}:{t+1}]\ns_cbranch_vccnz {L}\n{R}:")
        def body():
            a(f"{L}:"); poll(vaddr, t); a(f"s_branch {R}")
        ool.append(body)
    def publish(soff_sgpr, t):
        a(f"v_mov_b32 v{t}, s{sN}\nv_mov_b32 v{t+1}, s{sN+1}\nv_mov_b32 v{t+2}, s{soff_sgpr}")
        a(f"s_mov_b64 exec, 1\nbuffer_store_dwordx2 v[{t}:{t+1}], v{t+2}, {srd(SWS)}, 0 offen sc1\ns_mov_b64 exec, -1")
    def nonce_issue(t):
        a(f"v_mov_b32 v{t+2}, 0\nbuffer_load_dwordx2 v[{t}:{t+1}], v{t+2}, {srd(SDBG)}, 0 offen sc1")
    def nonce_take(t):
        L = a.lab("L_non"); R = a.lab("L_nonr"); D = a.lab("L_nond")
        a(f"s_mov_b32 s{sCNT}, 0\n{R}:\nv_readfirstlane_b32 s{sN}, v{t}\nv_readfirstlane_b32 s{sN+1}, v{t+1}")
        a(f"s_cmp_eq_u32 s{sN}, 0\ns_cbranch_scc1 {L}\n{D}:")
        def body():
            a(f"{L}:\ns_add_u32 s{sCNT}, s{sCNT}, 1\ns_cmp_lt_u32 s{sCNT}, 0x40000\ns_cbranch_scc0 {D}")
            a(f"buffer_load_dwordx2 v[{t}:{t+1}], v{t+2}, {srd(SDBG)}, 0 offen sc1\ns_waitcnt vmcnt(0)\ns_branch {R}")
        ool.append(body)
    def build_masks(val):
        a(f"v_and_b32 v2, 31, v1\nv_lshrrev_b32 v3, 5, v1\nv_lshlrev_b32 v3, 2, v3\nv_sub_u32 v2, v2, v3\nv_mov_b32 v3, {BIGNEG:#x}")
        for r in range(0, 16, 2):
            m0 = 8 * (r >> 2) + (r & 3)
            if val is None:
                a(f"v_cmp_gt_i32 vcc, {m0}, v2\nv_cmp_gt_i32 s[{sEX}:{sEX+1}], {m0+1}, v2")
                if r > 0: a(f"v_xor_b32 v{vCF+r-2}, v3, v{vCD+r-2}\nv_xor_b32 v{vCF+r-1}, v3, v{vCD+r-1}")
                a(f"v_cndmask_b32 v{vCD+r}, 0, v3, vcc\nv_cndmask_b32 v{vCD+r+1}, 0, v3, s[{sEX}:{sEX+1}]")
                if r == 14: a(f"v_xor_b32 v{vCF+r}, v3, v{vCD+r}\nv_xor_b32 v{vCF+r+1}, v3, v{vCD+r+1}")
                continue
            a(f"v_cmp_le_i32 vcc, {m0}, v2\nv_cmp_le_i32 s[{sEX}:{sEX+1}], {m0+1}, v2\nv_mov_b32 v{vCZ+r}, {val}\nv_mov_b32 v{vCZ+r+1}, {val}")
            a(f"v_cndmask_b32 v{vCD+r}, v3, v{vCZ+r}, vcc\nv_cndmask_b32 v{vCF+r}, v{vCZ+r}, v3, vcc")
            a(f"v_cndmask_b32 v{vCD+r+1}, v3, v{vCZ+r+1}, s[{sEX}:{sEX+1}]\nv_cndmask_b32 v{vCF+r+1}, v{vCZ+r+1}, v3, s[{sEX}:{sEX+1}]")
    def capture(f):
        n0 = len(a.ins); f(); r = [i.text for i in a.ins[n0:]]; del a.ins[n0:]; return r
    q = []
    def issue(tag, n): q.extend([tag] * n)
    def wait_for(tags):
        last = max((i for i, t in enumerate(q) if t in tags), default=-1)
        if last >= 0:
            a(f"s_waitcnt lgkmcnt({min(len(q) - 1 - last, 15)})")
            del q[:last + 1]

    def b1_compute(B):
        kr = B; rs = B; vv = B + 16; ku = B + 24; tp = B + 46; vu = ku; pk = B + 16
        a(f"""
        v_and_b32 v2, 7, v0
        v_lshrrev_b32 v3, 3, v0
        v_mul_u32_u24 v4, 1296, v2
        v_lshl_add_u32 v4, v3, 2, v4
        v_add_u32 v4, {L_KB}, v4
        """)
        for i in range(-3, 8): a(f"ds_read_b32 v{kr+3+i}, v4 offset:{(640 if i < 0 else 656) + 160*i}")
        for i in range(8): a(f"ds_read_b32 v{vv+i}, v4 offset:{11024 + 160*i}")
        a(f"""
        v_lshlrev_b32 v{tp+0}, 16, v8
        v_lshlrev_b32 v{tp+1}, 16, v10
        v_and_b32 v{tp+2}, 0xffff0000, v8
        v_and_b32 v{tp+3}, 0xffff0000, v10
        v_lshlrev_b32 v{tp+4}, 16, v9
        v_lshlrev_b32 v{tp+5}, 16, v11
        v_and_b32 v{tp+6}, 0xffff0000, v9
        v_and_b32 v{tp+7}, 0xffff0000, v11
        s_mul_i32 s{sT0}, s{sC80}, {80*4096}
        s_lshl_b32 s{sT1}, s{sR64}, 7
        s_sub_u32 s{sT0}, s{sT0}, s{sT1}
        s_add_u32 s{sT0}, s{sT0}, {WS_U + 4080 - 112}
        v_lshlrev_b32 v3, 13, v3
        v_sub_u32 v2, 7, v2
        v_lshl_add_u32 v3, v2, 4, v3
        s_add_u32 s{sT1}, s{sT0}, 4096
        s_waitcnt lgkmcnt(8)
        """)
        for i in range(11): a(f"v_lshlrev_b32 v{ku+2*i}, 16, v{kr+i}\nv_and_b32 v{ku+2*i+1}, 0xffff0000, v{kr+i}")
        for i in range(8): a(f"v_pk_mul_f32 {pr(rs+2*i)}, {pr(ku+2*(i+3))}, {pr(tp)}")
        for j in range(1, 4):
            for i in range(8): a(f"v_pk_fma_f32 {pr(rs+2*i)}, {pr(ku+2*(i+3-j))}, {pr(tp+2*j)}, {pr(rs+2*i)}")
        a("s_waitcnt lgkmcnt(0)")
        for i in range(8): a(f"v_lshlrev_b32 v{vu+2*i}, 16, v{vv+i}\nv_and_b32 v{vu+2*i+1}, 0xffff0000, v{vv+i}")
        for i in range(8): a(f"v_pk_mul_f32 {pr(rs+2*i)}, {pr(rs+2*i)}, {pr(vu+2*i)}")
        for ch in range(2):
            for d in range(4): a(f"v_cvt_pk_bf16_f32 v{pk+4*ch+d}, v{rs+2*(7-2*d)+ch}, v{rs+2*(6-2*d)+ch}")
        a(f"buffer_store_dwordx4 v[{pk}:{pk+3}], v3, {srd(SWS)}, s{sT0} offen sc1")
        a(f"buffer_store_dwordx4 v[{pk+4}:{pk+7}], v3, {srd(SWS)}, s{sT1} offen sc1")
    def shift_load():
        a(f"v_lshrrev_b32 v4, 3, v0\nv_lshlrev_b32 v4, 4, v4\ns_mul_i32 s{sT4}, s{sC80}, 640\nbuffer_load_dwordx4 v[8:11], v4, {srd(SSH)}, s{sT4} offen")
    def publish_u(t):
        a(f"s_mul_i32 s{sT0}, s{sC80}, 5\ns_add_u32 s{sT0}, s{sT0}, s{sWV}\ns_lshl_b32 s{sT0}, s{sT0}, 5\ns_add_u32 s{sT0}, s{sT0}, s{sR64}\ns_mul_i32 s{sT0}, s{sT0}, {cfg.ufs}\ns_add_u32 s{sT0}, s{sT0}, {WS_FU}")
        publish(sT0, t)
    def rounds(RO):
        for k in range(3):
            a(f"""
            s_lshl_b32 s{sT0}, s{sHW}, 6
            s_add_u32 s{sT0}, s{sT0}, {256*k}
            v_add_u32 v2, s{sT0}, v1
            v_mul_u32_u24 v3, 205, v2
            v_lshrrev_b32 v3, 11, v3
            v_mul_u32_u24 v4, 10, v3
            v_sub_u32 v4, v2, v4
            v_mul_u32_u24 v5, 2560, v3
            v_lshl_add_u32 v{RO+k}, v4, 4, v5
            """)
            yield k
    def a2_setup():
        a(f"""
        s_lshl_b32 s{sT0}, s{sWV}, 9
        v_and_b32 v2, 31, v1
        v_lshrrev_b32 v3, 5, v1
        v_lshlrev_b32 v{OS1}, 3, v2
        v_lshlrev_b32 v4, 4, v2
        v_lshl_add_u32 v{OS0}, v3, 15, v4
        v_add_u32 v4, s{sT0}, v4
        v_lshl_add_u32 v5, v3, 12, v4
        v_add_u32 v{QAD0}, {L_Q}, v5
        v_add_u32 v{QAD1}, {L_Q + 8192}, v4
        v_lshl_add_u32 v{AK0}, v3, 13, v4
        v_add_u32 v{AK0}, {L_K}, v{AK0}
        v_lshlrev_b32 v5, 9, v3
        v_sub_u32 v5, v4, v5
        v_add_u32 v{AK1}, {L_K + 16384}, v5
        v_bfe_u32 v4, v1, 2, 2
        v_lshl_add_u32 v4, v3, 2, v4
        v_lshlrev_b32 v4, 4, v4
        v_bfe_u32 v5, v1, 1, 1
        v_mul_u32_u24 v5, {VSTR}, v5
        v_and_b32 v6, 1, v1
        v_lshl_add_u32 v5, v6, 3, v5
        s_and_b32 s{sT1}, s{sHD}, 1
        s_lshl_b32 s{sT2}, s{sT1}, 3
        s_add_u32 s{sT2}, s{sT2}, {2*VSTR}
        v_mov_b32 v6, s{sT2}
        v_and_b32 v7, 16, v1
        v_cmp_ne_u32 vcc, 0, v7
        v_cndmask_b32 v5, v5, v6, vcc
        s_add_u32 s{sT0}, s{sT0}, {L_V + 4096 - 512}
        v_add3_u32 v5, v5, v4, s{sT0}
        v_and_b32 v7, 19, v1
        v_cmp_lt_u32 vcc, 16, v7
        s_add_u32 s{sT0}, s{sWV}, 1
        s_cmp_eq_u32 s{sQB}, 0
        s_cselect_b32 s{sNV}, s{sT0}, 99
        """)
        for p in range(5):
            a(f"""
            s_cmp_gt_u32 s{sNV}, {2*p}
            s_cselect_b32 s{sT0}, {L_ONES - 512 - (L_V + 192)}, 0
            s_add_u32 s{sT0}, s{sT0}, {L_V + 192}
            s_cmp_gt_u32 s{sNV}, {2*p+1}
            s_cselect_b32 s{sT0}, {L_ONES}, s{sT0}
            v_add_u32 v6, s{sT0}, v4
            v_cndmask_b32 v{AVP+p}, v5, v6, vcc
            v_subrev_u32 v5, 1024, v5
            """)
        a(f"""
        s_mov_b32 s{sFB}, 0
        s_cmp_eq_u32 s{sT1}, 0
        s_cselect_b32 s{sT2}, -1, 0
        s_cselect_b32 s{sT3}, 0, -1
        v_cmp_eq_u32 vcc, 0, v3
        v_mov_b32 v5, s{sT2}
        v_mov_b32 v6, s{sT3}
        v_cndmask_b32 v{QM0}, 0, v5, vcc
        v_cndmask_b32 v{QM1}, 0, v6, vcc
        v_cndmask_b32 v{QM2}, v5, 0, vcc
        v_cndmask_b32 v{QM3}, v6, 0, vcc
        s_mov_b32 s{sT4}, 6554
        """)
        for i in range(NWO):
            wo_index(i)
            a(f"""
            s_lshl_b32 s{sT3}, s{sT2}, 6
            v_add_u32 v2, s{sT3}, v1
            v_mul_u32_u24 v3, s{sT4}, v2
            v_lshrrev_b32 v3, 16, v3
            v_mul_u32_u24 v3, 1120, v3
            v_lshl_add_u32 v{WOV+i}, v2, 4, v3
            """)
    def wo_index(i):
        a(f"s_add_u32 s{sT2}, s{sWV}, {8*i}")
        if 8 * i + 7 > 99 - cfg.early: a(f"s_min_u32 s{sT2}, s{sT2}, {99 - cfg.early}")
    def wom_setup():
        for i in range(NWO):
            wo_index(i)
            a(f"s_lshl_b32 s{sT2}, s{sT2}, 10\ns_add_u32 s{WOM[i]}, s{sT2}, {L_WO1}")
            if 8 * i + 7 >= 75: a(f"s_sub_u32 s{sT2}, s{sT2}, 76800\ns_min_u32 s{WOM[i]}, s{WOM[i]}, s{sT2}")
    def wo_early_addr():
        for i in range(5):
            a(f"v_add_u32 v2, {64*i}, v1\nv_mul_u32_u24 v3, 205, v2\nv_lshrrev_b32 v3, 11, v3\nv_mul_u32_u24 v3, 1120, v3\nv_lshl_add_u32 v{32+i}, v2, 4, v3")
    def wo_early():
        lastp = -1
        for n in range(100 - cfg.early, 100):
            if n // 5 != lastp:
                lastp = n // 5; a(f"s_add_u32 s{sT0}, s{sC160}, {lastp*32*1280}")
            dma(32 + n % 5, SWO, f"s{sT0}", L_WO1 + 1024 * n if n < 75 else L_WO2 + 1024 * (n - 75))

    order = [(SX, 0), (SW, 1), (SK, 4), (SV, 5), (SSH, 6), (SDBG, 10), (SWS, 11), (SH, 7), (SD, 8), (SWO, 2), (SQ, 3), (SOUT, 9)]
    a("s_cmp_ge_u32 s2, 256\ns_cbranch_scc1 L_exit")
    stamp(0)
    for s, slot in order: a(f"s_load_dwordx2 s[{s}:{s+1}], s[0:1], {slot*8}")
    a(f"""
    v_lshrrev_b32 v2, 6, v0
    v_and_b32 v1, 63, v0
    s_and_b32 s{sXC}, s2, 7
    v_readfirstlane_b32 s{sWV}, v2
    s_lshr_b32 s{sJ}, s2, 3
    """)
    sizes = {SX: 2621440, SW: 2457600, SWO: 819200, SQ: 2621440, SK: 2621440, SV: 2621440, SSH: 5120, SH: 2621440, SD: 1280, SOUT: 5242880, SDBG: 256, SWS: WS_SIZE}
    for s, n in sizes.items(): a(f"s_mov_b32 s{s+2}, {n}\ns_mov_b32 s{s+3}, 0x20000")
    a(f"""
    s_and_b32 s{sT0}, s{sJ}, 3
    s_lshl_b32 s{sR64}, s{sXC}, 2
    s_add_u32 s{sR64}, s{sR64}, s{sT0}
    s_lshr_b32 s{sC80}, s{sJ}, 2
    s_mul_i32 s{sC160}, s{sC80}, 160
    s_and_b32 s{sHW}, s{sWV}, 3
    s_and_b32 s{sT0}, s{sXC}, 1
    s_mul_i32 s{sT0}, s{sT0}, 30
    s_add_u32 s{sT0}, s{sT0}, s{sJ}
    s_lshr_b32 s{sCT}, s{sT0}, 2
    s_and_b32 s{sT0}, s{sT0}, 3
    s_lshr_b32 s{sRB}, s{sXC}, 1
    s_lshl_b32 s{sRB}, s{sRB}, 2
    s_add_u32 s{sRB}, s{sRB}, s{sT0}
    """)
    if cfg.map2 == "head": a(f"s_mov_b32 s{sHD}, s{sR64}\ns_mov_b32 s{sQB}, s{sC80}")
    else: a(f"s_mov_b32 s{sHD}, s{sJ}\ns_mov_b32 s{sQB}, s{sXC}")
    a(f"s_cmp_lt_u32 s{sWV}, 4\ns_cbranch_scc1 L_C")

    vX = 16; vW = 20; vW2 = 63; vD = 21; vNH = 22; vHA = 64; vHB = 80
    a(f"""
    v_lshrrev_b32 v2, 3, v1
    v_lshrrev_b32 v3, 4, v1
    v_xor_b32 v4, v3, v1
    v_and_b32 v4, 7, v4
    v_mul_u32_u24 v2, 1280, v2
    v_lshl_add_u32 v{vX}, v4, 4, v2
    v_xor_b32 v4, 4, v4
    v_lshl_add_u32 v{vX+1}, v4, 4, v2
    v_add_u32 v{vX+1}, {8*1280}, v{vX+1}
    v_add_u32 v{vX+2}, {16*1280}, v{vX}
    v_add_u32 v{vX+3}, {16*1280}, v{vX+1}
    v_lshlrev_b32 v4, 2, v3
    v_xor_b32 v4, v4, v1
    v_and_b32 v4, 15, v4
    v_mul_u32_u24 v3, 3840, v3
    v_lshl_add_u32 v{vW}, v4, 4, v3
    v_xor_b32 v{vW2}, {32 if cfg.m16 else 0}, v{vW}
    s_mul_i32 s{sA}, s{sRB}, {128*1280}
    s_mul_i32 s{sT0}, s{sHW}, {32*1280}
    s_add_u32 s{sA}, s{sA}, s{sT0}
    s_lshl_b32 s{sB}, s{sCT}, 8
    s_mul_i32 s{sT0}, s{sHW}, {16*3840}
    s_add_u32 s{sB}, s{sB}, s{sT0}
    s_lshl_b32 s{sT5}, s{sHW}, 12
    """)
    if cfg.ncls == 10:
        a(f"s_and_b32 s{sT0}, s{sRB}, 3\ns_mul_i32 s{sT0}, s{sT0}, 5\ns_add_u32 s{sT0}, s{sT0}, 1\ns_lshr_b32 s{sT0}, s{sT0}, 1\ns_lshr_b32 s{sT1}, s{sRB}, 2\ns_add_u32 s{sT0}, s{sT0}, s{sT1}\ns_add_u32 s{sKC}, s{sT0}, s{sCT}")
    elif cfg.ncls == 2:
        a(f"s_add_u32 s{sT0}, s{sRB}, s{sCT}\ns_and_b32 s{sT0}, s{sT0}, 1\ns_mul_i32 s{sT0}, s{sT0}, 5\ns_add_u32 s{sKC}, s{sT0}, s{sXC}")
    elif cfg.ncls == 4:
        a(f"s_add_u32 s{sT0}, s{sRB}, s{sCT}\ns_and_b32 s{sT0}, s{sT0}, 3\ns_mul_i32 s{sT0}, s{sT0}, 5\ns_add_u32 s{sT0}, s{sT0}, 1\ns_lshr_b32 s{sT0}, s{sT0}, 1\ns_add_u32 s{sKC}, s{sT0}, s{sXC}")
    elif cfg.ncls == 3:
        a(f"s_add_u32 s{sT0}, s{sRB}, s{sCT}\ns_mul_i32 s{sT1}, s{sT0}, 86\ns_lshr_b32 s{sT1}, s{sT1}, 8\ns_mul_i32 s{sT1}, s{sT1}, 3\ns_sub_u32 s{sT0}, s{sT0}, s{sT1}\ns_mul_i32 s{sT0}, s{sT0}, 7\ns_lshr_b32 s{sT0}, s{sT0}, 1\ns_add_u32 s{sKC}, s{sT0}, s{sXC}")
    else:
        a(f"s_mov_b32 s{sKC}, s{sXC}")
    a(f"s_mul_i32 s{sT0}, s{sKC}, 205\ns_lshr_b32 s{sT0}, s{sT0}, 11\ns_mul_i32 s{sT0}, s{sT0}, 10\ns_sub_u32 s{sKC}, s{sKC}, s{sT0}")
    def ring_issue(c):
        slot = ((c + 1) % 3) * 32768
        a(f"s_lshl_b32 s{sT0}, s{sKC}, 7\ns_add_u32 s{sT0}, s{sT0}, s{sA}\ns_mul_i32 s{sT1}, s{sKC}, {64*3840}\ns_add_u32 s{sT1}, s{sT1}, s{sB}")
        for i in range(4):
            dma(vX + i, SX, f"s{sT0}", f"s_add_u32 m0, s{sT5}, {slot + i*1024}")
            dma(vW if i < 2 else vW2, SW, f"s{sT1}", f"s_add_u32 m0, s{sT5}, {slot + 16384 + i*1024}")
            if i < 3: a(f"s_add_u32 s{sT1}, s{sT1}, {4*3840}")
        a(f"s_add_u32 s{sKC}, s{sKC}, 1\ns_cmp_eq_u32 s{sKC}, 10\ns_cselect_b32 s{sKC}, 0, s{sKC}")
    def h_chan():
        a(f"""
        s_mul_i32 s{sT0}, s{sJ}, 3
        s_lshl_b32 s{sT1}, s{sJ}, 1
        s_add_u32 s{sT1}, s{sT1}, 16
        s_cmp_lt_u32 s{sJ}, 16
        s_cselect_b32 s{sT0}, s{sT0}, s{sT1}
        s_cselect_b32 s{sT1}, 3, 2
        s_cmp_lt_u32 s{sHW}, s{sT1}
        s_cselect_b32 s{sCHV}, 1, 0
        s_cselect_b32 s{sT1}, s{sHW}, 0
        s_add_u32 s{sT0}, s{sT0}, s{sT1}
        s_mul_i32 s{sCH}, s{sXC}, 80
        s_add_u32 s{sCH}, s{sCH}, s{sT0}
        s_lshr_b32 s{sT0}, s{sT0}, 4
        s_mul_i32 s{sT1}, s{sXC}, 5
        s_add_u32 s{sT0}, s{sT0}, s{sT1}
        s_lshl_b32 s{sT0}, s{sT0}, 5
        v_and_b32 v12, 31, v1
        v_add_u32 v12, s{sT0}, v12
        v_mul_u32_u24 v12, {cfg.ufs}, v12
        v_add_u32 v12, {WS_FU}, v12
        """)
    def f_load():
        a(f"buffer_load_dwordx2 v[14:15], v12, {srd(SWS)}, 0 offen sc1")
    def hu_loads():
        check_or_poll(12, 14)
        a(f"""
        s_mul_i32 s{sT2}, s{sHW}, {USTR}
        s_mul_i32 s{sT3}, s{sHW}, {HSTR}
        s_lshl_b32 s{sT0}, s{sCH}, 12
        s_add_u32 s{sT1}, s{sT0}, {WS_U}
        s_add_u32 m0, s{sT3}, {L_H + 32}
        s_lshl_b32 s{sT4}, s{sCH}, 1
        v_mov_b32 v4, s{sT4}
        """)
        for i in range(4): a(f"buffer_load_dwordx4 v13, {srd(SH)}, s{sT0} offen offset:{1024*i} {cfg.nt_in} lds")
        a(f"buffer_load_ushort v{vD}, v4, {srd(SD)}, 0 offen\ns_add_u32 m0, s{sT2}, {L_U}")
        for i in range(4): a(f"buffer_load_dwordx4 v13, {srd(SWS)}, s{sT1} offen offset:{1024*i} sc1 lds")
    def h_b1():
        L = a.lab("L_hb1")
        a(f"s_cmp_lg_u32 s{sWV}, 4\ns_cbranch_scc1 {L}")
        b1_compute(64)
        a(f"{L}:")
    def h_pub_u():
        L = a.lab("L_hpu")
        nonce_take(vNH)
        a(f"s_cmp_lg_u32 s{sWV}, 4\ns_cbranch_scc1 {L}")
        publish_u(2)
        a(f"{L}:")
    AA = 26; AB = 30; BACC = 96; BF = 32; AF = 128; NAF = 5; DF = 148
    def b3_setup():
        a(f"s_mul_i32 s{sT2}, s{sR64}, {64*1280}\ns_add_u32 s{sT2}, s{sT2}, s{sC160}")
        for k in rounds(ROH):
            a(f"""
            v_mul_u32_u24 v5, 1280, v3
            v_lshl_add_u32 v5, v4, 4, v5
            v_add_u32 v{QA+k}, s{sT2}, v5
            v_lshlrev_b32 v5, 3, v4
            v_xor_b32 v5, v5, v3
            v_and_b32 v5, 63, v5
            v_lshlrev_b32 v5, 1, v5
            v_lshl_add_u32 v5, v4, 10, v5
            v_cmp_lt_u32 vcc, 6, v4
            v_add_u32 v6, {L_ZA}, v5
            v_add_u32 v5, {L_ZB - 7*1024}, v5
            v_cndmask_b32 v{ZA+k}, v6, v5, vcc
            """)
        a(f"""
        s_cmp_ge_u32 s{sHW}, 2
        s_cselect_b32 s{sT2}, 15, 23
        v_min_u32 v2, s{sT2}, v1
        v_lshrrev_b32 v3, 3, v2
        v_and_b32 v2, 7, v2
        v_lshl_add_u32 v2, v3, 5, v2
        s_mul_i32 s{sT0}, s{sC80}, 80
        s_lshl_b32 s{sT2}, s{sHW}, 3
        s_add_u32 s{sT0}, s{sT0}, s{sT2}
        v_add_u32 v2, s{sT0}, v2
        v_mul_u32_u24 v2, {FS}, v2
        v_add_u32 v{FZA}, {WS_FZ}, v2
        v_lshrrev_b32 v2, 3, v1
        v_and_b32 v3, 7, v1
        v_lshlrev_b32 v2, 12, v2
        v_lshl_add_u32 v2, v3, 4, v2
        s_mul_i32 s{sT0}, s{sC80}, {80*4096}
        s_lshl_b32 s{sT1}, s{sR64}, 7
        s_add_u32 s{sT0}, s{sT0}, s{sT1}
        s_add_u32 s{sT0}, s{sT0}, {WS_Z}
        """)
        for k in range(3):
            a(f"""
            s_add_u32 s{sT1}, s{sHW}, {4*k}
            s_min_u32 s{sT1}, s{sT1}, 9
            s_and_b32 s{sT2}, s{sT1}, 7
            s_lshl_b32 s{sT2}, s{sT2}, 4
            v_xor_b32 v3, s{sT2}, v2
            s_lshl_b32 s{sT2}, s{sT1}, 15
            s_add_u32 s{sT2}, s{sT2}, s{sT0}
            v_add_u32 v{ZD+k}, s{sT2}, v3
            s_lshl_b32 s{sT2}, s{sT1}, 10
            s_cmp_gt_u32 s{sT1}, 6
            s_cselect_b32 s{sT1}, {L_ZB - 7*1024 - L_ZA}, 0
            s_add_u32 s{sT2}, s{sT2}, s{sT1}
            s_add_u32 s{ZM[k]}, s{sT2}, {L_ZA}
            """)
    def b2_setup():
        a(f"""
        v_and_b32 v2, 15, v1
        v_lshrrev_b32 v3, 4, v1
        v_add_u32 v4, 1, v2
        v_lshrrev_b32 v4, 1, v4
        v_lshl_add_u32 v4, v3, 2, v4
        v_lshlrev_b32 v4, 2, v4
        v_and_b32 v5, 1, v2
        v_cmp_eq_u32 vcc, 0, v5
        v_mov_b32 v5, {HODD}
        v_cndmask_b32 v5, 0, v5, vcc
        s_min_u32 s{sT1}, s{sHW}, 2
        s_mul_i32 s{sT0}, s{sT1}, {HSTR}
        s_add_u32 s{sT0}, s{sT0}, {L_H}
        v_add3_u32 v{AA}, v4, v5, s{sT0}
        v_add_u32 v{AA+1}, 1024, v{AA}
        v_add_u32 v{AA+2}, 2048, v{AA}
        v_add_u32 v{AA+3}, 3072, v{AA}
        v_lshlrev_b32 v13, 4, v1
        v_add_u32 v25, s{sT0}, v13
        v_lshlrev_b32 v4, 5, v2
        v_lshl_add_u32 v4, v3, 3, v4
        v_add_u32 v31, s{sT0}, v4
        v_sub_u32 v4, 15, v2
        v_lshlrev_b32 v4, 5, v4
        v_lshl_add_u32 v4, v3, 4, v4
        s_mul_i32 s{sT1}, s{sT1}, {USTR}
        s_add_u32 s{sT1}, s{sT1}, {L_U}
        v_add_u32 v{AB}, s{sT1}, v4
        v_lshl_add_u32 v2, v1, 3, s{sT1}
        v_mov_b32 v4, 0
        v_mov_b32 v5, 0
        v_mov_b32 v6, 0
        v_mov_b32 v7, 0
        ds_write_b64 v2, v[4:5] offset:4096
        s_mov_b64 exec, 3
        ds_write_b128 v25, v[4:7]
        s_mov_b64 exec, -1
        """)
    a(f"s_cmp_ge_u32 s{sJ}, 30\ns_cbranch_scc1 L_h_idle\ns_waitcnt lgkmcnt(0)")
    shift_load()
    ring_issue(0)
    h_chan(); b2_setup()
    if cfg.b1c < 0:
        a("s_barrier")
        stamp(1)
        a("s_waitcnt vmcnt(8)")
        h_b1()
    nonce_issue(vNH)
    ring_issue(1)
    pubc = min(max(cfg.b1c, -1) + 2, 8)
    for c in range(10):
        w = {0: 9, 7: 9, 8: 17, 9: 9}.get(c, 8)
        a(f"s_waitcnt vmcnt({w})")
        if c in (0, 1, 2, 3, 5, 7, 9): stamp(1 + (0, 1, 2, 3, 5, 7, 9).index(c), "a1")
        a("s_barrier")
        if c == cfg.b1c:
            stamp(1); h_b1()
        if c == 6: f_load()
        if c + 2 <= 9: ring_issue(c + 2)
        if c == pubc: h_pub_u()
        if c == 7:
            a(f"s_cmp_eq_u32 s{sCHV}, 0\ns_cbranch_scc1 L_h_nob2a\ns_waitcnt vmcnt(16)")
            hu_loads()
    a("L_h_post:")
    def h_idle():
        a("L_h_idle:\ns_waitcnt lgkmcnt(0)")
        shift_load(); h_chan(); b2_setup()
        a("s_waitcnt vmcnt(0)\ns_barrier")
        nonce_issue(vNH)
        h_b1()
        a("s_barrier\ns_waitcnt vmcnt(0)")
        h_pub_u()
        a(f"s_cmp_eq_u32 s{sCHV}, 0\ns_cbranch_scc1 L_h_nob2")
        f_load(); a("s_waitcnt vmcnt(0)")
        hu_loads()
        a("s_branch L_h_post")
    ool.append(h_idle)
    stamp(2)
    if cfg.stop <= 1: a("s_branch L_fin")
    def q_loads():
        for k in range(3): a(f"buffer_load_dwordx4 v[{QV+4*k}:{QV+4*k+3}], v{QA+k}, {srd(SQ)}, 0 offen {cfg.nt_in}")
    def h_late():
        b3_setup(); a2_setup(); build_masks(None); wom_setup()
    def h_nob2():
        a("L_h_nob2a:")
        if cfg.wtouch:
            a(f"s_lshl_b32 s{sT0}, s{sJ}, 6\ns_add_u32 s{sT0}, s{sT0}, {4480 - 1920}\nv_add_lshl_u32 v2, v1, s{sT0}, 7\nbuffer_load_dword v62, v2, {srd(SWO)}, 0 offen")
        wo_early_addr()
        a(f"s_waitcnt vmcnt({8 + cfg.wtouch})\ns_barrier\ns_waitcnt vmcnt({cfg.wtouch})\ns_barrier\ns_branch L_h_nob2b\nL_h_nob2:")
        wo_early_addr()
        a("L_h_nob2b:")
        if cfg.stop <= 1: a("s_branch L_fin")
        a(f"s_cmp_lg_u32 s{sWV}, 7\ns_cbranch_scc1 L_h_nob2c")
        wo_early()
        a("L_h_nob2c:")
        h_late()
        a("s_waitcnt vmcnt(0)\ns_branch L_join_a")
    ool.append(h_nob2)
    a(f"""
    s_lshl_b32 s{sA}, s{sCH}, 12
    s_add_u32 s{sA}, s{sA}, {WS_Z}
    v_mov_b32 v8, 0
    v_mov_b32 v9, 0
    v_mov_b32 v10, 0
    v_and_b32 v2, 15, v1
    v_sub_u32 v2, 15, v2
    v_lshrrev_b32 v3, 4, v1
    v_lshlrev_b32 v3, 2, v3
    v_lshrrev_b32 v4, 1, v2
    v_sub_u32 v4, v4, v3
    v_and_b32 v2, 1, v2
    v_lshlrev_b32 v2, 4, v2
    v_cmp_eq_u32 vcc, 1, v1
    s_waitcnt vmcnt(4)
    """)
    for i in range(4):
        a(f"ds_read_b128 v[{vHA+6*i}:{vHA+6*i+3}], v25 offset:{32+1024*i}\nds_read_b32 v{vHA+6*i+4}, v25 offset:{48+1024*i}")
    for i in range(4):
        a(f"s_waitcnt lgkmcnt({6-2*i+i})")
        if i == 0: a(f"v_readfirstlane_b32 s{sT1}, v{vHA}")
        for j in range(4): a(f"v_alignbit_b32 v{vHA+6*i+j}, v{vHA+6*i+j+1}, v{vHA+6*i+j}, 16")
        a(f"ds_write_b128 v25, v[{vHA+6*i}:{vHA+6*i+3}] offset:{HODD+32+1024*i}")
    a(f"s_lshl_b32 s{sT1}, s{sT1}, 16\nv_mov_b32 v11, s{sT1}\nv_cndmask_b32 v11, 0, v11, vcc")
    a(f"s_mov_b64 exec, 3\nds_write_b128 v25, v[8:11] offset:{HODD}\ns_mov_b64 exec, -1")
    a(f"v_lshlrev_b32 v2, v2, v{vD}")
    for rr in range(4): a(f"v_cmp_eq_u32 vcc, {rr}, v4\nv_cndmask_b32 v{DF+rr}, 0, v2, vcc")
    a("s_waitcnt vmcnt(0) lgkmcnt(0)")
    stamp(3)
    def b_read(r, nn):
        d = BF + 32 * (r & 1) + 4 * nn
        a(f"ds_read_b128 v[{d}:{d+3}], v{AB} offset:{2*(1792 - 32*(8*nn - r))}"); issue(("B", r, nn), 1)
    def a_read(gi):
        r, mu = groups[gi]; kap = 8 * mu + r
        d = AF + 4 * (gi % NAF); o = 16 * (kap % 16)
        a(f"ds_read2_b32 v[{d}:{d+1}], v{AA + kap//16} offset0:{o} offset1:{o+1}")
        a(f"ds_read2_b32 v[{d+2}:{d+3}], v{AA + kap//16} offset0:{o+2} offset1:{o+3}"); issue(("A", gi), 2)
    groups = [(r, mu) for r in range(7) for mu in (0, 7, 1, 6, 2, 5, 3, 4)] + [(7, mu) for mu in (7, 6, 5, 4, 3, 2, 1, 0)]
    q.clear()
    LA = NAF - 1
    for nn in range(8): b_read(0, nn)
    for gi in range(3): a_read(gi)
    fill = capture(h_late)
    for i in range(8):
        wait_for({("B", 0, i)})
        d = BACC + 4 * i; f = BF + 4 * i
        a(f"v_mfma_f32_16x16x32_bf16 v[{d}:{d+3}], v[{DF}:{DF+3}], v[{f}:{f+3}], 0")
    for gi in range(3, LA): a_read(gi)
    PZ = 8
    for gi, (r, mu) in enumerate(groups):
        wait_for({("A", gi)} | {("B", r, nn) for nn in range(8 - mu)})
        pend = []
        if gi + LA < 64: pend.append(lambda g=gi + LA: a_read(g))
        if r < 7 and gi % 2 == 0:
            pend.append(lambda nn=gi % 8, r=r: b_read(r + 1, nn)); pend.append(lambda nn=gi % 8 + 1, r=r: b_read(r + 1, nn))
        tiles = list(range(mu, 8))
        for n, i in enumerate(tiles):
            d = BACC + 4 * i; f = BF + 32 * (r & 1) + 4 * (i - mu); s = AF + 4 * (gi % NAF)
            a(f"v_mfma_f32_16x16x32_bf16 v[{d}:{d+3}], v[{s}:{s+3}], v[{f}:{f+3}], v[{d}:{d+3}]")
            if pend: pend.pop(0)()
            elif gi < 63:
                nv = 0
                while fill and nv < cfg.nfill:
                    t = fill.pop(0); a(t); nv += 1 if t.startswith("v_") else 0.5
            if gi == 63 and n >= 3:
                j = n - 3; dd = BACC + 4 * j; p = PZ + 2 * (j & 1)
                a(f"v_cvt_pk_bf16_f32 v{p}, v{dd}, v{dd+1}\nv_cvt_pk_bf16_f32 v{p+1}, v{dd+2}, v{dd+3}\nds_write_b64 v31, v[{p}:{p+1}] offset:{512*j}")
        for f_ in pend: f_()
    for t in fill: a(t)
    stamp(4)
    for j in range(5, 8):
        dd = BACC + 4 * j; p = PZ + 2 * (j & 1)
        a(f"v_cvt_pk_bf16_f32 v{p}, v{dd}, v{dd+1}\nv_cvt_pk_bf16_f32 v{p+1}, v{dd+2}, v{dd+3}\nds_write_b64 v31, v[{p}:{p+1}] offset:{512*j}")
    for i in range(4): a(f"ds_read_b128 v[{32+4*i}:{35+4*i}], v25 offset:{1024*i}")
    for i in range(4):
        a(f"s_waitcnt lgkmcnt({3-i})\nbuffer_store_dwordx4 v[{32+4*i}:{35+4*i}], v13, {srd(SWS)}, s{sA} offen offset:{1024*i} sc1")
    a("s_branch L_join_a")

    a("L_C:")
    vNC = 60
    a(f"""
    s_getpc_b64 s[4:5]
    L_pc:
    s_sub_u32 s4, s4, L_pc-{NAME}_kernel
    s_subb_u32 s5, s5, 0
    s_mul_i32 s3, s{sJ}, 1408
    v_lshl_add_u32 v2, v0, 7, s3
    v_min_u32 v2, L_end-{NAME}_kernel, v2
    s_cmp_lg_u32 s{sWV}, 0
    s_cbranch_scc1 L_nocp
    s_mov_b64 exec, 0x7ff
    global_load_dword v63, v2, s[4:5]
    s_mov_b64 exec, -1
    L_nocp:
    s_mov_b32 s{sCHV}, 0
    s_mov_b32 s{sCH}, 0
    v_mul_u32_u24 v2, 26, v1
    v_lshrrev_b32 v2, 8, v2
    v_mul_u32_u24 v2, 1120, v2
    v_lshl_add_u32 v12, v1, 4, v2
    s_mul_i32 s{sA}, s{sR64}, {64*1280}
    s_add_u32 s{sA}, s{sA}, s{sC160}
    s_sub_u32 s{sT0}, s{sA}, {4*1280}
    v_add_u32 v13, s{sT0}, v12
    s_mul_i32 s{sT1}, s{sWV}, {8*1280}
    s_add_u32 s{sA}, s{sA}, s{sT1}
    s_mul_i32 s{sB}, s{sWV}, 1296
    """)

    def b1_loads(half):
        a(f"s_mov_b32 exec_hi, 0xff\ns_add_u32 s{sT1}, s{sA}, {half*32*1280}\ns_add_u32 s{sT2}, s{sT1}, {4*1280}")
        o = half * 4 * 1296
        dma(12, SK, f"s{sT1}", f"s_add_u32 m0, s{sB}, {L_KB+656+o}", cfg.nt_in)
        dma(12, SV, f"s{sT1}", f"s_add_u32 m0, s{sB}, {L_VB+o}", cfg.nt_in)
        dma(12, SK, f"s{sT2}", f"s_add_u32 m0, s{sB}, {L_KB+656+640+o}", cfg.nt_in)
        dma(12, SV, f"s{sT2}", f"s_add_u32 m0, s{sB}, {L_VB+640+o}", cfg.nt_in)
        if half == 0:
            L = a.lab("L_nh")
            a(f"s_cmp_lg_u32 s{sWV}, 0\ns_cbranch_scc1 {L}")
            dma(13, SK, "0", L_KB, cfg.nt_in)
            a(f"{L}:")
        a("s_mov_b32 exec_hi, -1")
    a(f"""
    s_waitcnt lgkmcnt(0)
    s_or_b32 s{sT0}, s2, s{sWV}
    s_cmp_lg_u32 s{sT0}, 0
    s_cbranch_scc1 L_nonon
    s_memrealtime s[{sN}:{sN+1}]
    s_waitcnt lgkmcnt(0)
    s_or_b32 s{sN}, s{sN}, 1
    v_mov_b32 v6, s{sN}
    v_mov_b32 v7, s{sN+1}
    v_mov_b32 v5, 0
    s_mov_b64 exec, 1
    buffer_store_dwordx2 v[6:7], v5, {srd(SDBG)}, 0 offen sc1
    s_mov_b64 exec, -1
    L_nonon:
    s_cmp_ge_u32 s{sJ}, 30
    s_cbranch_scc1 L_c_idle
    """)
    def tlb():
        if not cfg.tlb: return
        L = a.lab("L_tlb")
        a(f"s_cmp_lg_u32 s{sWV}, 1\ns_cbranch_scc1 {L}\nv_lshlrev_b32 v5, {cfg.tlb}, v1")
        for sr in (SWS, SOUT, SQ, SH, SWO, SD): a(f"buffer_load_dword v63, v5, {srd(sr)}, 0 offen")
        a(f"{L}:")
    GFA = 207; sGA, sGB = 0, 1
    def qkv_addr():
        a(f"""
        s_lshr_b32 s{sT0}, s{sHD}, 1
        s_mul_i32 s{sT0}, s{sT0}, 5
        s_and_b32 s{sT1}, s{sHD}, 1
        s_lshl_b32 s{sT2}, s{sT1}, 1
        s_add_u32 s{sT2}, s{sT2}, s{sT0}
        s_add_u32 s{sT3}, s{sT2}, 2
        s_lshr_b32 s{sT2}, s{sT2}, 3
        s_lshr_b32 s{sT3}, s{sT3}, 3
        v_lshrrev_b32 v2, 1, v1
        v_min_u32 v2, 4, v2
        v_cmp_le_u32 vcc, 3, v2
        v_subrev_u32 v3, 2, v2
        v_cndmask_b32 v2, v2, v3, vcc
        s_cmp_eq_u32 s{sQB}, 0
        s_cselect_b32 s{sT4}, 0, 4
        v_mov_b32 v3, s{sT4}
        v_cndmask_b32 v3, 0, v3, vcc
        v_mul_u32_u24 v2, 10, v2
        v_and_b32 v4, 1, v1
        v_cmp_eq_u32 vcc, 1, v4
        v_mov_b32 v4, s{sT2}
        v_mov_b32 v5, s{sT3}
        v_cndmask_b32 v4, v4, v5, vcc
        v_add_u32 v2, v2, v4
        v_lshlrev_b32 v2, 5, v2
        s_lshl_b32 s{sT4}, s{sQB}, 2
        s_add_u32 s{sT4}, s{sT4}, s{sWV}
        v_add_u32 v2, s{sT4}, v2
        v_sub_u32 v2, v2, v3
        s_lshl_b32 s{sT2}, s{sCT}, 6
        s_lshl_b32 s{sT3}, s{sRB}, 1
        s_add_u32 s{sT2}, s{sT2}, s{sT3}
        v_and_b32 v4, 1, v1
        v_bfe_u32 v5, v1, 1, 1
        v_lshl_add_u32 v4, v4, 5, v5
        v_add_u32 v4, s{sT2}, v4
        s_cmp_lt_u32 s{sJ}, 30
        s_cselect_b32 s{sT2}, 11, 64
        v_cmp_lt_u32 vcc, s{sT2}, v1
        v_cndmask_b32 v2, v2, v4, vcc
        v_mul_u32_u24 v2, {FS}, v2
        v_add_u32 v{GFA}, {WS_FG}, v2
        s_mul_i32 s{sT1}, s{sT1}, 3
        s_add_u32 s{sGA}, s{sT0}, s{sT1}
        s_add_u32 s{sGB}, s{sT0}, 2
        s_lshl_b32 s{sGA}, s{sGA}, 15
        s_lshl_b32 s{sGB}, s{sGB}, 15
        s_lshl_b32 s{sT4}, s{sT4}, 10
        s_add_u32 s{sGA}, s{sGA}, s{sT4}
        s_add_u32 s{sGB}, s{sGB}, s{sT4}
        v_lshlrev_b32 v14, 4, v1
        v_bfrev_b32 v15, 1
        s_cmp_eq_u32 s{sQB}, 0
        s_cselect_b64 vcc, -1, 0
        v_cndmask_b32 v15, v14, v15, vcc
        s_lshl_b32 s{sT5}, s{sWV}, 10
        """)
    def c_idle():
        a("L_c_idle:")
        b1_loads(0); b1_loads(1); shift_load(); build_masks(None); a2_setup(); qkv_addr(); wom_setup()
        a("s_waitcnt vmcnt(0)\ns_barrier")
        nonce_issue(vNC)
        b1_compute(128)
        a("s_barrier\ns_waitcnt vmcnt(0)")
        nonce_take(vNC); publish_u(2)
        tlb()
        if cfg.wopre:
            a(f"""
            s_sub_u32 s{sT0}, s{sJ}, 30
            s_lshl_b32 s{sT0}, s{sT0}, 2
            s_add_u32 s{sT0}, s{sT0}, s{sWV}
            s_lshl_b32 s{sT0}, s{sT0}, 6
            v_add_u32 v4, s{sT0}, v1
            s_lshl_b32 s{sT1}, s{sXC}, 9
            v_add_u32 v2, s{sT1}, v4
            """)
            for i in range(cfg.wopre):
                a("s_waitcnt vmcnt(1)")
                if i < 8:
                    a(f"v_and_b32 v2, 4095, v2\nv_add_u32 v3, 4480, v2\nv_subrev_u32 v5, 6400, v3\nv_min_u32 v3, v3, v5\nv_add_u32 v2, 512, v2")
                else:
                    a(f"v_add_u32 v3, {2176 + 512*(i-8)}, v4")
                a(f"v_lshlrev_b32 v3, 7, v3\nbuffer_load_dword v63, v3, {srd(SWO)}, 0 offen")
        a("s_branch L_c_post")
    ool.append(c_idle)
    if cfg.b1a < 0: b1_loads(0)
    if cfg.b1b < 0: b1_loads(1)
    shift_load()
    if cfg.tlball: tlb()
    if cfg.tlbs:
        L = a.lab("L_tlbs")
        a(f"s_cmp_lg_u32 s{sWV}, 1\ns_cbranch_scc1 {L}")
        for sr, n in ((SWS, 10), (SOUT, 3), (SQ, 2), (SH, 2), (SWO, 1), (SD, 1)):
            for i in range(n):
                a(f"s_mov_b32 s{sT0}, {i << 21}\ns_load_dword s3, s[{sr}:{sr+1}], s{sT0}")
        a(f"{L}:")
    ACC = 64
    FS4 = [128, 144, 16, 32]
    if not cfg.m16:
        AX = 48; AW = 56
        a(f"""
        s_and_b32 s{sT0}, s{sWV}, 1
        s_lshr_b32 s{sT1}, s{sWV}, 1
        v_and_b32 v2, 31, v1
        v_lshrrev_b32 v3, 5, v1
        v_bfe_u32 v4, v2, 1, 3
        v_xor_b32 v4, v4, v3
        s_lshl_b32 s{sT2}, s{sT1}, 13
        v_lshlrev_b32 v5, 7, v2
        v_add_u32 v5, s{sT2}, v5
        """)
        for ks in range(4):
            a(f"v_xor_b32 v6, {2*ks}, v4\nv_lshl_add_u32 v{AX+ks}, v6, 4, v5\nv_add_u32 v{AX+4+ks}, 0x10000, v{AX+ks}")
        a(f"""
        v_bfe_u32 v4, v1, 2, 2
        v_lshl_add_u32 v5, v3, 3, v4
        v_lshlrev_b32 v5, 8, v5
        v_and_b32 v6, 3, v1
        v_lshl_add_u32 v5, v6, 3, v5
        v_and_b32 v6, 16, v1
        v_lshl_add_u32 v5, v6, 1, v5
        v_add_u32 v5, 16384, v5
        s_lshl_b32 s{sT2}, s{sT0}, 1
        """)
        for mt in range(2):
            a(f"s_add_u32 s{sT3}, s{sT2}, {mt}\nv_xor_b32 v6, s{sT3}, v4\nv_lshl_add_u32 v{AW+mt}, v6, 6, v5\nv_add_u32 v{AW+2+mt}, 0x10000, v{AW+mt}")

    else:
        AX = 48; AW = 52
        a(f"""
        s_and_b32 s{sT0}, s{sWV}, 1
        s_lshr_b32 s{sT1}, s{sWV}, 1
        v_and_b32 v2, 15, v1
        v_lshrrev_b32 v3, 4, v1
        v_lshrrev_b32 v4, 1, v2
        v_xor_b32 v4, v4, v3
        s_lshl_b32 s{sT2}, s{sT1}, 13
        v_lshlrev_b32 v5, 7, v2
        v_add_u32 v5, s{sT2}, v5
        """)
        for ks in range(2):
            a(f"v_xor_b32 v6, {4*ks}, v4\nv_lshl_add_u32 v{AX+ks}, v6, 4, v5\nv_add_u32 v{AX+2+ks}, 0x10000, v{AX+ks}")
        a(f"""
        v_bfe_u32 v4, v1, 2, 2
        v_lshl_add_u32 v5, v3, 3, v4
        v_lshlrev_b32 v5, 8, v5
        v_and_b32 v6, 3, v1
        v_lshl_add_u32 v5, v6, 3, v5
        v_and_b32 v6, 16, v1
        v_lshl_add_u32 v5, v6, 1, v5
        v_add_u32 v5, 16384, v5
        s_lshl_b32 s{sT2}, s{sT0}, 1
        """)
        for m2 in range(2):
            a(f"s_add_u32 s{sT3}, s{sT2}, {m2}\nv_xor_b32 v6, s{sT3}, v4\nv_lshl_add_u32 v{AW+2*m2}, v6, 6, v5\nv_xor_b32 v{AW+2*m2+1}, 32, v{AW+2*m2}")
        for mt in range(4): a(f"v_add_u32 v{AW+4+mt}, 0x10000, v{AW+mt}")
    build_masks(None); a2_setup(); qkv_addr()
    if cfg.b1b < 0: wom_setup()
    if cfg.b1c < 0:
        a("s_waitcnt vmcnt(0)\ns_barrier")
        stamp(1)
        nonce_issue(vNC)
        b1_compute(128)
    def a1_reads(c, ks):
        F = FS4[ks]
        slot = (c + 1) % 3; hi = slot >> 1; o = (slot & 1) * 32768
        r = []
        for half in range(2):
            for t in range(2):
                r.append(f"ds_read_b64_tr_b16 v[{F+4*half+2*t}:{F+4*half+2*t+1}], v{AW+2*hi+half} offset:{o + (16*ks+4*t)*256}")
            r.append(f"ds_read_b128 v[{F+8+4*half}:{F+8+4*half+3}], v{AX+4*hi+ks} offset:{o + half*4096}")
        return [] if cfg.noread else r
    def a1_mfma(ks, first):
        F = FS4[ks]; r = []
        for mt, nt in ((0, 0), (1, 0), (1, 1), (0, 1)):
            d = ACC + 16 * (2 * mt + nt)
            r.append(f"v_mfma_f32_32x32x16_bf16 v[{d}:{d+15}], v[{F+4*mt}:{F+4*mt+3}], v[{F+8+4*nt}:{F+8+4*nt+3}], " + ("0" if first else f"v[{d}:{d+15}]"))
        return [] if cfg.nomfma else r
    def weave(reads, mf, per):
        reads = list(reads)
        for m in mf:
            for _ in range(per):
                if reads: a(reads.pop(0))
            a(m)
        for r in reads: a(r)
    FS2 = [128, 16]
    def r16(c, ks):
        F = FS2[ks]; slot = (c + 1) % 3; hi = slot >> 1; o = (slot & 1) * 32768; r = []
        for i in range(4):
            for t in range(2):
                r.append(f"ds_read_b64_tr_b16 v[{F+4*i+2*t}:{F+4*i+2*t+1}], v{AW+4*hi+i} offset:{o + (32*ks+4*t)*256}")
            r.append(f"ds_read_b128 v[{F+16+4*i}:{F+16+4*i+3}], v{AX+2*hi+ks} offset:{o + i*2048}")
        return r
    def m16(ks, first):
        F = FS2[ks]; r = []
        for mt in range(4):
            for nt in (range(4) if mt % 2 == 0 else range(3, -1, -1)):
                d = ACC + 4 * (4 * mt + nt)
                r.append(f"v_mfma_f32_16x16x32_bf16 v[{d}:{d+3}], v[{F+4*mt}:{F+4*mt+3}], v[{F+16+4*nt}:{F+16+4*nt+3}], " + ("0" if first else f"v[{d}:{d+3}]"))
        return r
    for c in range(10):
        if c == cfg.b1c: a("s_waitcnt vmcnt(0)")
        if c == pubc + 1:
            a("s_waitcnt vmcnt(0)")
            nonce_take(vNC); publish_u(2)
        if c in (0, 1, 2, 3, 5, 7, 9): stamp(1 + (0, 1, 2, 3, 5, 7, 9).index(c), "a1")
        a("s_barrier")
        if c == cfg.b1a: b1_loads(0)
        if c == cfg.b1b: b1_loads(1); wom_setup()
        if cfg.m16:
            weave(r16(c, 0), m16(1, False) if c > 0 else [], 1)
            a("s_waitcnt lgkmcnt(0)")
            mm = m16(0, c == 0); a(mm[0]); weave(r16(c, 1), mm[1:], 2)
        else:
            weave(a1_reads(c, 0) + a1_reads(c, 1), (a1_mfma(2, False) + a1_mfma(3, False)) if c > 0 else [], 2)
            a("s_waitcnt lgkmcnt(6)")
            m0 = a1_mfma(0, c == 0); m1 = a1_mfma(1, False); rd = a1_reads(c, 2) + a1_reads(c, 3)
            if cfg.nomfma or cfg.noread:
                weave(rd, m0 + m1, 2)
            else:
                a(m0[0]); weave(rd, m0[1:], 4)
                a("s_waitcnt lgkmcnt(12)")
                weave([], m1, 0)
        a("s_waitcnt lgkmcnt(0)")
        if c == cfg.b1c:
            stamp(1); nonce_issue(vNC); b1_compute(128)
    qs = f2u(20 ** -0.5 * math.log2(math.e))
    mlast = m16(1, False) if cfg.m16 else a1_mfma(2, False) + a1_mfma(3, False)
    weave([], mlast[:4], 0)
    a(f"""
    s_and_b32 s{sT0}, s{sWV}, 1
    s_lshr_b32 s{sT1}, s{sWV}, 1
    s_lshl_b32 s{sT2}, s{sCT}, 1
    s_add_u32 s{sT2}, s{sT2}, s{sT0}
    s_lshl_b32 s{sT3}, s{sRB}, 1
    s_add_u32 s{sT3}, s{sT3}, s{sT1}
    s_lshl_b32 s{sA}, s{sT2}, 18
    s_lshl_b32 s{sT4}, s{sT3}, 10
    s_add_u32 s{sA}, s{sA}, s{sT4}
    s_lshl_b32 s{sB}, s{sT2}, 5
    s_add_u32 s{sB}, s{sB}, s{sT3}
    s_mul_i32 s{sB}, s{sB}, {FS}
    s_add_u32 s{sB}, s{sB}, {WS_FG}
    v_and_b32 v2, 31, v1
    v_lshrrev_b32 v3, 5, v1
    v_lshlrev_b32 v2, 4, v2
    v_lshl_add_u32 v2, v3, 15, v2
    s_mov_b32 s{sT2}, {qs:#x}
    s_mov_b32 s{sT3}, {qs:#x}
    """)
    weave([], mlast[4:], 0)
    stamp(2)
    def a1_epi(scale):
        n = 0
        if cfg.m16:
            for mt in range(4):
                a(f"s_add_u32 s{sT0}, s{sA}, {2*mt*32768}")
                for n2 in range(2):
                    d = ACC + 4 * (4 * mt + 2 * n2); p = 128 + 4 * n; n += 1
                    for k in range(4): a(f"v_cvt_pk_bf16_f32 v{p+k}, v{d+2*k}, v{d+2*k+1}")
                    a(f"v_permlane16_swap_b32 v{p}, v{p+2}\nv_permlane16_swap_b32 v{p+1}, v{p+3}")
                    a(f"buffer_store_dwordx4 v[{p}:{p+3}], v2, {srd(SWS)}, s{sT0} offen offset:{n2*512} sc1")
            return
        for mt, nt in ((0, 0), (1, 0), (1, 1), (0, 1)):
            for i in (0, 2):
                d = ACC + 16 * (2 * mt + nt) + 4 * i
                p = 128 + 4 * n; n += 1
                if scale:
                    for k in range(4): a(f"v_pk_mul_f32 {pr(d+2*k)}, {pr(d+2*k)}, s[{sT2}:{sT3}]")
                for k in range(4): a(f"v_cvt_pk_bf16_f32 v{p+k}, v{d+2*k}, v{d+2*k+1}")
                a(f"s_add_u32 s{sT0}, s{sA}, {(4*mt+i)*32768}")
                a(f"v_permlane32_swap_b32 v{p}, v{p+2}\nv_permlane32_swap_b32 v{p+1}, v{p+3}")
                a(f"buffer_store_dwordx4 v[{p}:{p+3}], v2, {srd(SWS)}, s{sT0} offen offset:{nt*512} sc1")
    a(f"s_cmp_ge_u32 s{sCT}, 5\ns_cbranch_scc1 L_epi_d")
    for mt, nt in ((0, 0), (0, 1), (1, 0), (1, 1)) if cfg.m16 else ((0, 0), (1, 0), (1, 1), (0, 1)):
        for k in range(8):
            d = ACC + 16 * (2 * mt + nt) + 2 * k
            a(f"v_pk_mul_f32 {pr(d)}, {pr(d)}, s[{sT2}:{sT3}]")
    a("L_epi_d:\ns_nop 6")
    a1_epi(False)
    a("s_waitcnt vmcnt(0)")
    publish(sB, 4)
    a("L_c_post:")
    stamp(3)
    if cfg.stop <= 1: a("s_branch L_fin")
    a("v_mov_b32 v10, 0x3f803f80\nv_mov_b32 v11, 0x3f803f80\nv_mov_b32 v12, 0\nv_mov_b32 v13, 0\nv_lshlrev_b32 v7, 3, v1")
    poll(GFA, 8)
    stamp(4)
    for half in (1, 0):
        for sec, lds, lstr in ((0, L_Q, 4096), (1, L_K, 8192), (2, L_V, VSTR)):
            if sec == 0 and half == 0: continue
            for slot in range(3):
                base = (sGA, 32768 * slot) if slot < 2 else (sGB, 0)
                off = base[1] + sec * 80 * 32768 - (0 if half else 4096)
                a(f"s_add_u32 s{sT0}, s{base[0]}, {off}")
                dma(14 if half else 15, SWS, f"s{sT0}", f"s_add_u32 m0, s{sT5}, {lds + slot*lstr + (4096 if (half and sec) else 0)}", "sc1")
    a(f"ds_write_b64 v7, v[10:11] offset:{L_ONES}\nds_write_b64 v7, v[10:11] offset:{L_ONES + 512}\nds_write_b64 v7, v[12:13] offset:{L_ONES - 512}")
    a("s_waitcnt vmcnt(0) lgkmcnt(0)")

    for r in (ROH, ROH + 1, ROH + 2, FZA, ZD, ZD + 1, ZD + 2, QA, QA + 1, QA + 2): a(f"v_mov_b32 v{r}, 0")
    if cfg.prio: a("s_branch L_join_b\nL_join_a:\ns_setprio 1\nL_join_b:\ns_barrier")
    else: a("L_join_a:\ns_barrier")
    stamp(5)
    if cfg.stop <= 2: a("s_branch L_fin")
    Q0, Q1, Q1B = 16, 20, 60; K0F = 24; K1F = 32; VF = 40; AV = 58; S = 64; PP = 96; O = 112
    def wo_dma(i):
        if cfg.nowo: return
        a(f"s_mov_b32 m0, s{WOM[i]}\nbuffer_load_dwordx4 v{WOV+i}, {srd(SWO)}, s{sC160} offen lds")
    def k_read(b):
        f = K0F + 4 * (b & 1); o = (8 - b) * 512
        a(f"ds_read_b128 v[{f}:{f+3}], v{AK0} offset:{o}")
        if b % 2 == 0:
            f = K1F + 4 * ((b >> 1) & 1)
            a(f"ds_read_b128 v[{f}:{f+3}], v{AK1} offset:{o}")
    def v_read(b):
        f = VF + 8 * (b & 1); o = 0 if b & 1 else 512
        for s in range(2):
            for t in range(2):
                a(f"ds_read_b64_tr_b16 v[{f+4*s+2*t}:{f+4*s+2*t+1}], v{AVP + b//2} offset:{o + (16*s+8*t)*16}")
    def hook(b):
        L = a.lab("L_hook")
        a(f"s_cmp_lg_u32 s{sNV}, {b}\ns_cbranch_scc1 {L}\ns_nop 7")
        for r in range(16): a(f"v_mov_b32 v{vCZ+r}, v59\nv_mov_b32 v{vCF+r}, v59")
        a(f"s_nop 1\n{L}:")
    def qk(b, half, gen_):
        d = S + 16 * (b & 1)
        if half == 0:
            f = K0F + 4 * (b & 1)
            c = vCD if b == 0 else (vCF if b == 8 else vCZ)
            cs = f"v[{c}:{c+15}]" if (gen_ or c != vCZ) else "0"
            a(f"v_mfma_f32_32x32x16_bf16 v[{d}:{d+15}], v[{f}:{f+3}], v[{Q0}:{Q0+3}], {cs}")
        else:
            f = K1F + 4 * ((b >> 1) & 1); qq = Q1B if b & 1 else Q1
            a(f"v_mfma_f32_32x32x16_bf16 v[{d}:{d+15}], v[{f}:{f+3}], v[{qq}:{qq+3}], v[{d}:{d+15}]")
    def pv(b, s):
        p = PP + 8 * (b & 1); f = VF + 8 * (b & 1)
        a(f"v_mfma_f32_32x32x16_bf16 v[{O}:{O+15}], v[{f+4*s}:{f+4*s+3}], v[{p+4*s}:{p+4*s+3}], " + ("0" if (b == 0 and s == 0) else f"v[{O}:{O+15}]"))
    def cv(b, g):
        d = S + 16 * (b & 1) + 4 * g; p = PP + 8 * (b & 1) + 2 * g
        a(f"v_cvt_pk_bf16_f32 v{p}, v{d}, v{d+1}\nv_cvt_pk_bf16_f32 v{p+1}, v{d+2}, v{d+3}")
    def ex(b, g):
        d = S + 16 * (b & 1) + 4 * g
        a(f"v_exp_f32 v{d}, v{d}\nv_exp_f32 v{d+1}, v{d+1}")
        if g > 0: cv(b, g - 1)
        elif b > 0: cv(b - 1, 3)
        a(f"v_exp_f32 v{d+2}, v{d+2}\nv_exp_f32 v{d+3}, v{d+3}")
    wsched = {}
    i = 0
    for n in range(17):
        k = cfg.wfirst if n == 0 else 1
        wsched[n] = list(range(i, min(i + k, NWO))); i += k
    assert cfg.qn >= NWO - cfg.wfirst and cfg.fzn > cfg.qn and cfg.wbar >= cfg.fzn
    def side(b, k, gen_):
        n = 2 * b + k - 1
        if gen_ or n < 0: return
        if n == 0: a("s_barrier")
        if n == cfg.zpub:
            L2 = a.lab("L_zp"); R = a.lab("L_zpr")
            a(f"s_cmp_lg_u32 s{sCHV}, 0\ns_cbranch_scc1 {L2}\n{R}:")
            def body():
                a(f"{L2}:\ns_waitcnt vmcnt({0 if cfg.nowo else sum(len(wsched[j]) for j in range(n))})")
                a(f"s_mul_i32 s{sT0}, s{sCH}, {FS}\ns_add_u32 s{sT0}, s{sT0}, {WS_FZ}")
                publish(sT0, 4)
                a(f"s_branch {R}")
            ool.append(body)
        for i in wsched.get(n, []): wo_dma(i)
        if n == cfg.qn or n == cfg.fzn:
            L = a.lab("L_hq")
            a(f"s_cmp_lt_u32 s{sWV}, 4\ns_cbranch_scc1 {L}")
            if n == cfg.qn: q_loads()
            else: a(f"buffer_load_dwordx2 v[{FZR}:{FZR+1}], v{FZA}, {srd(SWS)}, 0 offen sc1")
            a(f"{L}:")
        if n == cfg.wbar:
            L = a.lab("L_wb")
            a(f"s_waitcnt vmcnt(4)\ns_cmp_ge_u32 s{sWV}, 4\ns_cbranch_scc1 {L}\ns_waitcnt vmcnt(0)\n{L}:\ns_barrier")
    def a2_loop(gen_):
        if gen_: a(f"v_mov_b32 v59, {BIGNEG:#x}")
        a("s_waitcnt lgkmcnt(1)")
        qk(0, 0, gen_)
        qk(0, 1, gen_)
        for b in range(9):
            if b in (1, 3, 5, 7) and not gen_: stamp(2 + b // 2, "a2")
            if cfg.prio and b == cfg.prio: a("s_setprio 0")
            if b > 0:
                a("s_waitcnt lgkmcnt(0)")
                pv(b - 1, 0)
            v_read(b)
            if b < 7: k_read(b + 2)
            ex(b, 0)
            if b < 8:
                if gen_: hook(b + 1)
                if b == 0: a("s_waitcnt lgkmcnt(6)")
                qk(b + 1, 0, gen_)
            else: pv(b - 1, 1)
            side(b, 0, gen_)
            ex(b, 1)
            if b < 8: qk(b + 1, 1, gen_)
            ex(b, 2)
            if 0 < b < 8: pv(b - 1, 1)
            if b == 8:
                a("s_waitcnt lgkmcnt(0)"); pv(8, 0)
            side(b, 1, gen_)
            ex(b, 3)
        cv(8, 3)
        pv(8, 1)
    a(f"ds_read_b128 v[{Q1}:{Q1+3}], v{QAD1}\nds_read_b128 v[{Q0}:{Q0+3}], v{QAD0}")
    k_read(0); k_read(1)
    a(f"""
    s_lshl_b32 s{sT0}, s{sQB}, 3
    s_add_u32 s{sT0}, s{sT0}, s{sWV}
    s_lshl_b32 s{sT4}, s{sHD}, 16
    s_lshl_b32 s{sT2}, s{sT0}, 9
    s_add_u32 s{sT4}, s{sT4}, s{sT2}
    s_add_u32 s{sT4}, s{sT4}, {WS_O}
    s_lshl_b32 s{sT5}, s{sHD}, 14
    s_lshl_b32 s{sT3}, s{sT0}, 8
    s_add_u32 s{sT5}, s{sT5}, s{sT3}
    s_add_u32 s{sT5}, s{sT5}, {WS_O8}
    s_lshl_b32 s{sA}, s{sT0}, 5
    s_add_u32 s{sA}, s{sA}, s{sHD}
    s_mul_i32 s{sA}, s{sA}, {FS}
    s_add_u32 s{sA}, s{sA}, {WS_FO}
    s_waitcnt lgkmcnt(4)
    v_and_b32 v{Q1B}, v{QM2}, v{Q1}
    v_and_b32 v{Q1B+1}, v{QM2}, v{Q1+1}
    v_and_b32 v{Q1B+2}, v{QM3}, v{Q1+2}
    v_and_b32 v{Q1B+3}, v{QM3}, v{Q1+3}
    v_and_b32 v{Q1}, v{QM0}, v{Q1}
    v_and_b32 v{Q1+1}, v{QM0}, v{Q1+1}
    v_and_b32 v{Q1+2}, v{QM1}, v{Q1+2}
    v_and_b32 v{Q1+3}, v{QM1}, v{Q1+3}
    """)
    stamp(1, "a2")
    a2_loop(False)
    a("L_a2_done:")
    def gen_loop():
        a("L_a2_gen:"); a2_loop(True); a("s_nop 10\ns_branch L_a2_done")
    stamp(6, "a2")
    lo = f2u(2.0 ** -24); hi = f2u(2.0 ** 40); fin = f2u(3.0e38)
    a(f"v_rcp_f32 v2, v{O+12}\nv_mov_b32 v3, v2")
    for i in range(6): a(f"v_pk_mul_f32 {pr(40+2*i)}, {pr(O+2*i)}, v[2:3]")
    for i in range(6): a(f"v_cvt_pk_bf16_f32 v{24+i}, v{40+2*i}, v{41+2*i}")
    a(f"""
    buffer_store_dwordx4 v[24:27], v{OS0}, {srd(SWS)}, s{sT4} offen sc1
    s_mov_b32 exec_hi, 0
    buffer_store_dwordx2 v[28:29], v{OS1}, {srd(SWS)}, s{sT5} offen sc1
    s_mov_b32 exec_hi, -1
    """)
    stamp(6); stamp(7, "a2"); stamp(1, "g2")
    a(f"v_cmp_nle_f32 vcc, {lo:#x}, v{O+12}\ns_mov_b64 s[{sEX}:{sEX+1}], vcc\nv_cmp_nge_f32 vcc, {hi:#x}, v{O+12}\ns_or_b64 s[{sEX}:{sEX+1}], s[{sEX}:{sEX+1}], vcc")
    for i in range(6): a(f"v_add_f32 v{4+i}, abs(v{O+2*i}), abs(v{O+2*i+1})")
    a("v_add_f32 v4, v4, v5\nv_add_f32 v6, v6, v7\nv_add_f32 v8, v8, v9\nv_add_f32 v4, v4, v6\nv_add_f32 v4, v4, v8")
    a(f"v_cmp_nge_f32 vcc, {fin:#x}, v4\ns_or_b64 vcc, s[{sEX}:{sEX+1}], vcc")
    if cfg.force_fb: a("s_mov_b64 vcc, -1")
    a("s_cbranch_vccnz L_a2_fb\nL_a2_ok:")
    def fallback():
        a(f"L_a2_fb:\ns_cmp_lg_u32 s{sFB}, 0\ns_cbranch_scc1 L_a2_ok\ns_mov_b32 s{sFB}, 1\ns_waitcnt vmcnt(0)")
        build_masks("0")
        a(f"v_mov_b32 v4, {BIGNEG:#x}\nv_mov_b32 v59, {BIGNEG:#x}")
        for b in range(9):
            if b > 0: hook(b)
            k_read(b); a("s_waitcnt lgkmcnt(0)"); qk(b, 0, True); qk(b, 1, True)
            d = S + 16 * (b & 1)
            for i in range(8): a(f"v_max3_f32 v4, v4, v{d+2*i}, v{d+2*i+1}")
        a("v_mov_b32 v5, v4\nv_permlane32_swap_b32 v4, v5\nv_max_f32 v4, v4, v5\nv_sub_f32 v4, 0, v4")
        build_masks("v4")
        k_read(0); k_read(1)
        a("s_branch L_a2_gen")
    WA, WA2, WA3, WB, WB3, OA, OB = 52, 53, 54, 55, 56, 57, 58
    RO = 59; STA = 62
    a(f"""
    v_lshrrev_b32 v2, 4, v1
    v_bfe_u32 v3, v1, 2, 2
    v_and_b32 v4, 3, v1
    s_cmp_ge_u32 s{sWV}, 4
    s_cselect_b32 s{sT0}, 96, 0
    v_lshl_add_u32 v4, v4, 3, s{sT0}
    v_lshrrev_b32 v5, 1, v2
    v_mul_u32_u24 v5, 24, v5
    v_and_b32 v6, 1, v2
    v_lshl_add_u32 v5, v6, 2, v5
    v_add_u32 v5, v5, v3
    v_mul_u32_u24 v5, 160, v5
    v_add_u32 v{WA3}, v5, v4
    v_add_u32 v{WA2}, {L_WO1 + 6*6400}, v{WA3}
    v_add_u32 v{WA}, {L_WO1}, v{WA3}
    v_mul_u32_u24 v5, 40, v2
    v_add3_u32 v5, v5, v3, 16
    v_mul_u32_u24 v5, 160, v5
    v_add_u32 v{WB3}, v5, v4
    v_add_u32 v{WB}, {L_WO1}, v{WB3}
    """)
    def a3_addr():
        a(f"""
        v_lshrrev_b32 v2, 4, v1
        v_and_b32 v5, 15, v1
        s_lshl_b32 s{sT0}, s{sHW}, 4
        v_add_u32 v5, s{sT0}, v5
        v_lshlrev_b32 v6, 10, v2
        v_lshl_add_u32 v{OA}, v5, 4, v6
        v_add_u32 v{OA}, {L_O16}, v{OA}
        v_and_b32 v6, 1, v2
        v_lshlrev_b32 v6, 11, v6
        v_lshrrev_b32 v7, 1, v2
        v_lshl_add_u32 v6, v7, 9, v6
        v_lshl_add_u32 v{OB}, v5, 3, v6
        v_add_u32 v{OB}, {L_O8}, v{OB}
        v_mul_u32_u24 v5, 160, v5
        v_lshl_add_u32 v5, v2, 3, v5
        v_add_u32 v{STA}, {L_ST}, v5
        """)
    def wo_frag(step, ct, d):
        for t in range(2):
            if step < 6: r, o = WA, (40 * step + 8 * t) * 160
            elif step < 12: r, o = WA2, (40 * (step - 6) + 8 * t) * 160
            elif step < 16: r, o = WA3, (40 * (step - 12) + 8 * t) * 160
            elif step < 19: r, o = WB, (160 * (step - 16) + 4 * t) * 160
            else: r, o = WB3, 4 * t * 160
            a(f"ds_read_b64_tr_b16 v[{d+2*t}:{d+2*t+1}], v{r} offset:{o + 32*ct}")
    def o_frag(step, d):
        if step < 16:
            a(f"ds_read_b128 v[{d}:{d+3}], v{OA} offset:{4096*step}"); return 1
        for t in range(2):
            a(f"ds_read_b64 v[{d+2*t}:{d+2*t+1}], v{OB} offset:{4096*(step-16) + 1024*t}")
        return 2
    def a3_loop(nct, fr, ct0):
        ACC3 = 16
        OFS = [28, 28]
        q.clear()
        stages = [[4 * sg + k for k in range(4)] + [16 + sg] for sg in range(4)]
        seq = [st for sg in stages for st in sg]
        slot = {st: 28 + 4 * (i % 6) for i, st in enumerate(seq)}
        nread = [0]
        def reads_upto(lim):
            while nread[0] < lim:
                st = seq[nread[0]]
                if nread[0] % 5 == 0:
                    sg = nread[0] // 5
                    if nct == 3: a(f"s_waitcnt vmcnt({15 - 5*sg + (1 if (cfg.otouch > 2 and sg == 0) else 0)})")
                    a("s_barrier"); stamp(3 + sg, "a3")
                n = o_frag(st, slot[st]); issue(("O", st), n); nread[0] += 1
        for i, st in enumerate(seq):
            reads_upto(min(i + cfg.a3la, 20))
            wait_for({("O", st), ("W", st)})
            for ct in range(nct):
                w = fr[(st, ct)]; d = ACC3 + 4 * ct; o = slot[st]
                a(f"v_mfma_f32_16x16x32_bf16 v[{d}:{d+3}], v[{w}:{w+3}], v[{o}:{o+3}], " + ("0" if i == 0 else f"v[{d}:{d+3}]"))
            if nct == 3 and i in (5, 7, 9, 11):
                st2 = 12 + (i - 5) // 2
                for ct in range(3):
                    fr[(st2, ct)] = fr[(st2 - 12, ct)]
                    wo_frag(st2, ct, fr[(st2, ct)]); issue(("W", st2), 2)
        for ct in range(nct):
            d = ACC3 + 4 * ct
            a(f"v_cvt_pk_bf16_f32 v{2+2*ct}, v{d}, v{d+1}\nv_cvt_pk_bf16_f32 v{3+2*ct}, v{d+2}, v{d+3}\nds_write_b64 v{STA}, v[{2+2*ct}:{3+2*ct}] offset:{32*(ct+ct0)}")
        a("s_waitcnt lgkmcnt(0)\ns_barrier"); stamp(7, "a3")
    stamp(2, "g2")
    a(f"s_cmp_ge_u32 s{sWV}, 4\ns_cbranch_scc1 L_g2_h")
    csteps = list(range(12)) + [16, 17, 18, 19]
    cfr = {}
    for n, st in enumerate(csteps):
        for ct in range(3):
            cfr[(st, ct)] = 64 + 4 * (3 * n + ct)
            wo_frag(st, ct, cfr[(st, ct)])
        if n == cfg.cpub:
            a("s_waitcnt vmcnt(0)"); publish(sA, 4); stamp(3, "g2")
    for k in rounds(RO): pass
    a3_addr()
    a(f"""
    s_lshl_b32 s{sT0}, s{sR64}, 6
    s_add_u32 s{sT0}, s{sT0}, s{sWV}
    v_and_b32 v8, 15, v1
    v_lshl_add_u32 v8, v8, 2, s{sT0}
    v_mul_u32_u24 v8, {FS}, v8
    v_add_u32 v8, {WS_FO}, v8
    v_lshlrev_b32 v12, 4, v1
    v_and_b32 v13, 31, v1
    v_lshrrev_b32 v9, 5, v1
    v_lshlrev_b32 v13, 4, v13
    v_lshl_add_u32 v13, v9, 16, v13
    s_lshl_b32 s{sA}, s{sWV}, 16
    s_lshl_b32 s{sT0}, s{sR64}, 10
    s_add_u32 s{sA}, s{sA}, s{sT0}
    s_lshl_b32 s{sB}, s{sWV}, 14
    s_lshl_b32 s{sT0}, s{sR64}, 9
    s_add_u32 s{sB}, s{sB}, s{sT0}
    s_lshl_b32 s{sT4}, s{sWV}, 11
    s_lshl_b32 s{sT5}, s{sWV}, 10
    s_add_u32 s{sT0}, s{sT5}, {L_ST}
    v_add_u32 v14, s{sT0}, v12
    s_mul_i32 s{sT3}, s{sR64}, {64*2560}
    s_add_u32 s{sT3}, s{sT3}, s{sC160}
    s_lshl_b32 s{sT0}, s{sC80}, 18
    s_add_u32 s{sT0}, s{sT0}, s{sA}
    s_add_u32 s{sT0}, s{sT0}, {WS_O}
    s_lshl_b32 s{sT1}, s{sC80}, 16
    s_add_u32 s{sT1}, s{sT1}, s{sB}
    s_add_u32 s{sT1}, s{sT1}, {WS_O8}
    v_and_b32 v2, 7, v1
    v_lshlrev_b32 v2, 7, v2
    v_bfe_u32 v3, v1, 3, 1
    v_lshl_add_u32 v3, v3, 15, v2
    v_add_u32 v3, s{sT0}, v3
    v_add_u32 v2, s{sT1}, v2
    v_cmp_gt_u32 vcc, 16, v1
    v_cndmask_b32 v15, v2, v3, vcc
    s_waitcnt lgkmcnt(0)
    s_barrier
    """)
    stamp(4, "g2")
    poll(8, 10)
    stamp(7); stamp(5, "g2"); stamp(1, "a3")
    for i in range(8):
        if cfg.otouch and i == cfg.otouch - 1:
            a(f"s_mov_b64 exec, 0xfffff\nbuffer_load_dword v63, v15, {srd(SWS)}, 0 offen sc1\ns_mov_b64 exec, -1")
        for hh in range(2):
            a(f"s_add_u32 s{sT0}, s{sA}, {WS_O + 32768*(8*i + hh)}")
            dma(12, SWS, f"s{sT0}", f"s_add_u32 m0, s{sT4}, {L_O16 + 1024*(8*i + hh)}", "sc1")
        if i & 1:
            a(f"s_add_u32 s{sT0}, s{sB}, {WS_O8 + 16384*8*(i >> 1)}")
            dma(13, SWS, f"s{sT0}", f"s_add_u32 m0, s{sT5}, {L_O8 + 4096*(i >> 1)}", "sc1")
    a3_loop(3, cfr, 0)
    a(f"""
    ds_read_b128 v[16:19], v14
    ds_read_b128 v[20:23], v14 offset:4096
    ds_read_b128 v[24:27], v14 offset:8192
    s_waitcnt lgkmcnt(2)
    buffer_store_dwordx4 v[16:19], v{RO}, {srd(SOUT)}, s{sT3} offen {cfg.outa}
    s_waitcnt lgkmcnt(1)
    buffer_store_dwordx4 v[20:23], v{RO+1}, {srd(SOUT)}, s{sT3} offen {cfg.outa}
    s_cmp_ge_u32 s{sHW}, 2
    s_cbranch_scc1 L_fin
    s_waitcnt lgkmcnt(0)
    buffer_store_dwordx4 v[24:27], v{RO+2}, {srd(SOUT)}, s{sT3} offen {cfg.outa}
    s_branch L_fin
    """)
    a("L_g2_h:")
    hfr = {}; ZV = 40
    a("s_waitcnt vmcnt(2)")
    check_or_poll(FZA, FZR)
    for k in range(3): a(f"s_mov_b32 m0, s{ZM[k]}\nbuffer_load_dwordx4 v{ZD+k}, {srd(SWS)}, 0 offen sc1 lds")
    for st in range(20):
        for ct in range(2):
            i = 2 * st + ct
            hfr[(st, ct)] = 64 + 4 * i if i < 22 else 184 + 4 * (i - 22)
            wo_frag(st, ct, hfr[(st, ct)])
        if st == cfg.hpub:
            a("s_waitcnt vmcnt(3)"); publish(sA, 4); stamp(3, "g2")
    a3_addr()
    a("s_waitcnt vmcnt(1) lgkmcnt(0)\ns_barrier")
    stamp(4, "g2"); stamp(7); stamp(1, "a3")
    a(f"s_mul_i32 s{sT2}, s{sR64}, {64*2560}\ns_add_u32 s{sT2}, s{sT2}, s{sC160}\ns_add_u32 s{sT2}, s{sT2}, 1280")
    for k in range(3):
        if k == 2: a(f"s_cmp_ge_u32 s{sHW}, 2\ns_cbranch_scc1 L_b3d")
        for j in range(8): a(f"v_mov_b32 v{ZV+j}, 0")
        for j in range(8): a(f"ds_read_u16_d16_hi v{ZV+j}, v{ZA+k} offset:{128*j}")
        for j in range(4):
            a(f"v_lshlrev_b32 v{ZT+2*j}, 16, v{QV+4*k+j}\nv_and_b32 v{ZT+1+2*j}, 0xffff0000, v{QV+4*k+j}")
        a("s_waitcnt lgkmcnt(0)")
        for j in range(8): a(f"v_mul_f32 v{ZT+j}, v{ZT+j}, v{ZV+j}")
        for j in range(4): a(f"v_cvt_pk_bf16_f32 v{QV+4*k+j}, v{ZT+2*j}, v{ZT+1+2*j}")
        a(f"buffer_store_dwordx4 v[{QV+4*k}:{QV+4*k+3}], v{ROH+k}, {srd(SOUT)}, s{sT2} offen {cfg.outb}")
    a("L_b3d:")
    stamp(5, "g2"); stamp(2, "a3")
    a3_loop(2, hfr, 3)
    a("L_fin:")
    if cfg.stamps:
        a("s_waitcnt vmcnt(0)")
        stamp(8)
        if cfg.dbgst:
            a(f"s_cmp_lg_u32 s2, 41\ns_cbranch_scc1 L_exit\ns_cmp_lg_u32 s{sWV}, 0\ns_cbranch_scc1 L_exit\ns_mov_b64 exec, 1\nv_mov_b32 v2, 0")
            for i in range(9):
                a(f"s_sub_u32 s{sT0}, s{sSTAMP+2*i}, s{sSTAMP}\nv_mov_b32 v4, s{sT0}\nbuffer_store_dword v4, v2, {srd(SDBG)}, 0 offen offset:{8+4*i}\ns_waitcnt vmcnt(0)")
            a(f"s_sub_u32 s{sT0}, s{sN}, s{sSTAMP}\nv_mov_b32 v4, s{sT0}\nbuffer_store_dword v4, v2, {srd(SDBG)}, 0 offen offset:48\ns_waitcnt vmcnt(0)")
            a("s_endpgm")
        a(f"s_lshl_b32 s{sT0}, s2, 3\ns_add_u32 s{sT0}, s{sT0}, s{sWV}\ns_lshl_b32 s{sT0}, s{sT0}, 7\ns_add_u32 s{sT0}, s{sT0}, {WS_T}\nv_mov_b32 v2, s{sT0}\ns_mov_b64 exec, 1")
        for i in range(9):
            a(f"v_mov_b32 v4, s{sSTAMP+2*i}\nv_mov_b32 v5, s{sSTAMP+2*i+1}\nbuffer_store_dwordx2 v[4:5], v2, {srd(SWS)}, 0 offen offset:{8*i}\ns_waitcnt vmcnt(0)")
    a("L_exit:\ns_endpgm")
    i = 0
    while i < len(ool):
        ool[i](); i += 1
    a("L_end:")
    fallback(); gen_loop()
    while i < len(ool):
        ool[i](); i += 1
    body = a.finish()
    hdr = open("cdna_kernels/" + NAME + ".s.ref").read().split("; Override launch")[0]
    src = hdr + f"""; Single persistent kernel, one 512-thread workgroup per CU; generated by the author's own script.
; @launch grid=(256,1,1) block=(512,1,1) lds=163840
.amdgcn_target "amdgcn-amd-amdhsa--gfx950"
.text
.globl {NAME}_kernel
.p2align 8
.type {NAME}_kernel,@function
{NAME}_kernel:
{body}.section .rodata,"a"
.p2align 6
.amdhsa_kernel {NAME}_kernel
  .amdhsa_next_free_vgpr 256
  .amdhsa_next_free_sgpr 102
  .amdhsa_accum_offset 256
  .amdhsa_group_segment_fixed_size 0
  .amdhsa_kernarg_size 96
  .amdhsa_user_sgpr_count 2
  .amdhsa_user_sgpr_kernarg_segment_ptr 1
  .amdhsa_system_sgpr_workgroup_id_x 1
.end_amdhsa_kernel
"""
    return src

if __name__ == "__main__":
    cfg = Cfg()
    out = sys.argv[1]
    for kv in sys.argv[2:]:
        k, v = kv.split("=")
        old = getattr(cfg, k)
        setattr(cfg, k, (v == "1") if isinstance(old, bool) else (int(v) if isinstance(old, int) else v))
    open(out, "w").write(gen(cfg))
```

```python
import sys, math, struct
from asmdsl import Asm

NAME = "concat_heads__sliding_block__ssm_conv_h3__prompt"

class Cfg:
    stamps = False
    grp = ""
    stop = 99
    nt_in = ""
    fstr = 128
    slp = 1
    force_fb = False
    ncls = 3
    b1a = -1
    b1b = -1
    b1c = -1
    map2 = "head"
    outa = "sc1"
    outb = "sc1"
    m16 = True
    nfill = 2
    a3la = 2
    otouch = 0
    dbgst = False
    tmaj = True
    tscale = True
    cprio = 99
    prew = True
    gdelay = 1
    assist = 4
    lset = "s01"
    usplit = True
    upub = 3
    ust = -1
    wdelay = False
    fld = 6
    pre = 4
    uwarm = False
    r1first = True
    cs0 = "maqgw"
    cs1 = ""
    cs2 = ""
    elate = False
    hc = 4
    oc9 = False
    ocs = False
    zst = -1
    tlb = 0
    tlball = False
    tlbs = False
    zpub = 1
    early = 20
    wtouch = 0
    wfirst = 2
    qn = 10
    fzn = 14
    wbar = 15
    cpub = 3
    hpub = 5
    prio = 5
    ufs = 8
    wopre = 9
    noread = False; nomfma = False; nowo = False

WS_G = 0x0; WS_U = 0x800000; WS_Z = 0xB00000; WS_O = 0xE00000; WS_O8 = 0x1000000
WS_FG = 0x1100000; WS_FU = 0x1140000; WS_FZ = 0x1180000; WS_FO = 0x11C0000; WS_T = 0x1200000
WS_SIZE = 0x1400000
L_KB = 98304; L_VB = L_KB + 11024
L_H = 119808; HSTR = 8320; HODD = 4160
L_U = 144768; USTR = 4608
L_V = 32768; VSTR = 8256; L_ONES = L_V + 24768 + 512; L_K = 59136; L_Q = 83712
L_WO1 = 87040
L_WO2 = 0
L_ZA = 25600; L_ZB = 83712
L_O8 = 32768; L_ST = 49152; L_O16 = 98304
SX, SW, SWO, SQ, SK, SV, SSH, SH, SD, SOUT, SDBG, SWS = [8 + 4 * i for i in range(12)]
def srd(b): return f"s[{b}:{b+3}]"
sWON, sC160 = 6, 7
sWV, sXC, sJ, sHW = 56, 57, 58, 59
sN = 60
sR64, sC80, sRB, sCT, sCH, sCHV, sHD, sQB = 62, 63, 64, 65, 66, 67, 68, 69
sT0, sT1, sT2, sT3, sT4, sT5 = 70, 71, 72, 73, 74, 75
sCNT, sNV, sFB, sKC = 76, 77, 78, 79
sEX = 80
sA, sB = 82, 83
sSTAMP = 84
WOM = list(range(24, 36))
ZM = [0, 1, 3]
BIGNEG = 0xf149f2ca
vCZ, vCD, vCF = 208, 224, 240
QV = 152; ROH = 164; ZA = 167; FZA = 170; FZR = 172; QA = 174; ZD = 177; ZT = 174; QM2, QM3 = 182, 183
WOV = 208; AVP = 190; AK0, AK1, AVD, AV0, QAD0, QAD1, QM0, QM1, OS0, OS1 = 197, 198, 199, 200, 201, 202, 203, 204, 205, 206

def f2u(x): return struct.unpack("<I", struct.pack("<f", x))[0]
def pr(b): return f"v[{b}:{b+1}]"

def gen(cfg):
    a = Asm()
    FS = cfg.fstr
    NWO = (100 - cfg.early + 7) // 8
    ool = []
    def stamp(i, grp=""):
        if cfg.stamps and (grp == cfg.grp or i in (0, 8) and grp == ""):
            a(f"s_memrealtime s[{sSTAMP+2*i}:{sSTAMP+2*i+1}]\ns_memtime s[4:5]\ns_waitcnt lgkmcnt(0)\ns_mov_b32 s{sSTAMP+2*i+1}, s4")
    def dma(vaddr, s, soff, m0, flags=""):
        if isinstance(m0, int): a(f"s_mov_b32 m0, {m0}")
        else: a(m0)
        a(f"buffer_load_dwordx4 v{vaddr}, {srd(s)}, {soff} offen {flags} lds")
    def cmpflag(t):
        a(f"v_cmp_ne_u32 vcc, s{sN}, v{t}\nv_cmp_ne_u32 s[{sEX}:{sEX+1}], s{sN+1}, v{t+1}\ns_or_b64 vcc, vcc, s[{sEX}:{sEX+1}]")
    def poll(vaddr, t):
        L = a.lab("L_poll"); D = a.lab("L_polld")
        a(f"s_mov_b32 s{sCNT}, 0\n{L}:")
        a(f"buffer_load_dwordx2 v[{t}:{t+1}], v{vaddr}, {srd(SWS)}, 0 offen sc1\ns_waitcnt vmcnt(0)")
        cmpflag(t)
        a(f"s_cbranch_vccz {D}\ns_add_u32 s{sCNT}, s{sCNT}, 1\ns_cmp_lt_u32 s{sCNT}, 0x40000\ns_cbranch_scc0 {D}\ns_sleep {cfg.slp}\ns_branch {L}\n{D}:")
    def check_or_poll(vaddr, t):
        L = a.lab("L_cp"); R = a.lab("L_cpr")
        cmpflag(t)
        a(f"s_cbranch_vccnz {L}\n{R}:")
        def body():
            a(f"{L}:"); poll(vaddr, t); a(f"s_branch {R}")
        ool.append(body)
    def publish(soff_sgpr, t):
        a(f"v_mov_b32 v{t}, s{sN}\nv_mov_b32 v{t+1}, s{sN+1}\nv_mov_b32 v{t+2}, s{soff_sgpr}")
        a(f"s_mov_b64 exec, 1\nbuffer_store_dwordx2 v[{t}:{t+1}], v{t+2}, {srd(SWS)}, 0 offen sc1\ns_mov_b64 exec, -1")
    def nonce_issue(t):
        a(f"v_mov_b32 v{t+2}, 0\nbuffer_load_dwordx2 v[{t}:{t+1}], v{t+2}, {srd(SDBG)}, 0 offen sc1")
    def nonce_take(t):
        L = a.lab("L_non"); R = a.lab("L_nonr"); D = a.lab("L_nond")
        a(f"s_mov_b32 s{sCNT}, 0\n{R}:\nv_readfirstlane_b32 s{sN}, v{t}\nv_readfirstlane_b32 s{sN+1}, v{t+1}")
        a(f"s_cmp_eq_u32 s{sN}, 0\ns_cbranch_scc1 {L}\n{D}:")
        def body():
            a(f"{L}:\ns_add_u32 s{sCNT}, s{sCNT}, 1\ns_cmp_lt_u32 s{sCNT}, 0x40000\ns_cbranch_scc0 {D}")
            a(f"buffer_load_dwordx2 v[{t}:{t+1}], v{t+2}, {srd(SDBG)}, 0 offen sc1\ns_waitcnt vmcnt(0)\ns_branch {R}")
        ool.append(body)
    def build_masks(val):
        a(f"v_and_b32 v2, 31, v1\nv_lshrrev_b32 v3, 5, v1\nv_lshlrev_b32 v3, 2, v3\nv_sub_u32 v2, v2, v3\nv_mov_b32 v3, {BIGNEG:#x}")
        for r in range(0, 16, 2):
            m0 = 8 * (r >> 2) + (r & 3)
            if val is None:
                a(f"v_cmp_gt_i32 vcc, {m0}, v2\nv_cmp_gt_i32 s[{sEX}:{sEX+1}], {m0+1}, v2")
                if r > 0: a(f"v_xor_b32 v{vCF+r-2}, v3, v{vCD+r-2}\nv_xor_b32 v{vCF+r-1}, v3, v{vCD+r-1}")
                a(f"v_cndmask_b32 v{vCD+r}, 0, v3, vcc\nv_cndmask_b32 v{vCD+r+1}, 0, v3, s[{sEX}:{sEX+1}]")
                if r == 14: a(f"v_xor_b32 v{vCF+r}, v3, v{vCD+r}\nv_xor_b32 v{vCF+r+1}, v3, v{vCD+r+1}")
                continue
            a(f"v_cmp_le_i32 vcc, {m0}, v2\nv_cmp_le_i32 s[{sEX}:{sEX+1}], {m0+1}, v2\nv_mov_b32 v{vCZ+r}, {val}\nv_mov_b32 v{vCZ+r+1}, {val}")
            a(f"v_cndmask_b32 v{vCD+r}, v3, v{vCZ+r}, vcc\nv_cndmask_b32 v{vCF+r}, v{vCZ+r}, v3, vcc")
            a(f"v_cndmask_b32 v{vCD+r+1}, v3, v{vCZ+r+1}, s[{sEX}:{sEX+1}]\nv_cndmask_b32 v{vCF+r+1}, v{vCZ+r+1}, v3, s[{sEX}:{sEX+1}]")
    def capture(f):
        n0 = len(a.ins); f(); r = [i.text for i in a.ins[n0:]]; del a.ins[n0:]; return r
    q = []
    def issue(tag, n): q.extend([tag] * n)
    def wait_for(tags):
        last = max((i for i, t in enumerate(q) if t in tags), default=-1)
        if last >= 0:
            a(f"s_waitcnt lgkmcnt({min(len(q) - 1 - last, 15)})")
            del q[:last + 1]

    T2 = 184
    def taps(tp, r):
        a(f"""
        v_lshlrev_b32 v{tp+0}, 16, v{r}
        v_lshlrev_b32 v{tp+1}, 16, v{r+2}
        v_and_b32 v{tp+2}, 0xffff0000, v{r}
        v_and_b32 v{tp+3}, 0xffff0000, v{r+2}
        v_lshlrev_b32 v{tp+4}, 16, v{r+1}
        v_lshlrev_b32 v{tp+5}, 16, v{r+3}
        v_and_b32 v{tp+6}, 0xffff0000, v{r+1}
        v_and_b32 v{tp+7}, 0xffff0000, v{r+3}
        """)
    def b1_compute(B):
        kr = B; rs = B; vv = B + 16; ku = B + 24; tp = B + 46; vu = ku; pk = B + 40
        a(f"""
        v_and_b32 v2, 7, v0
        v_lshrrev_b32 v3, 3, v0
        v_mul_u32_u24 v4, 1296, v2
        v_lshl_add_u32 v4, v3, 2, v4
        v_add_u32 v4, {L_KB}, v4
        """)
        for i in range(-3, 8): a(f"ds_read_b32 v{kr+3+i}, v4 offset:{(640 if i < 0 else 656) + 160*i}")
        for i in range(8): a(f"ds_read_b32 v{vv+i}, v4 offset:{11024 + 160*i}")
        a(f"""
        v_lshlrev_b32 v3, 13, v3
        v_sub_u32 v2, 7, v2
        v_lshl_add_u32 v3, v2, 4, v3
        v_and_b32 v2, 31, v0
        v_lshrrev_b32 v4, 5, v0
        v_mul_u32_u24 v5, 320, v2
        v_lshl_add_u32 v5, v4, 2, v5
        v_add_u32 v5, {L_KB + 128}, v5
        v_add_u32 v6, 3, v2
        v_lshrrev_b32 v6, 2, v6
        v_lshl_add_u32 v6, v6, 4, v5
        v_add_u32 v7, 2, v2
        v_lshrrev_b32 v7, 2, v7
        v_lshl_add_u32 v7, v7, 4, v5
        v_lshrrev_b32 v188, 2, v2
        v_lshl_add_u32 v5, v188, 4, v5
        ds_read_b32 v7, v7 offset:160
        ds_read_b32 v188, v6 offset:320
        ds_read_b32 v6, v6 offset:480
        ds_read_b32 v189, v5 offset:656
        ds_read_b32 v195, v5 offset:816
        ds_read_b32 v196, v5 offset:11024
        ds_read_b32 v5, v5 offset:11184
        v_lshlrev_b32 v2, 2, v2
        v_sub_u32 v2, {32*8192 + 124}, v2
        v_lshl_add_u32 v2, v4, 13, v2
        """)
        taps(tp, 8)
        a(f"""
        s_mul_i32 s{sT0}, s{sC80}, {80*4096}
        s_lshl_b32 s{sT1}, s{sR64}, 7
        s_sub_u32 s{sT0}, s{sT0}, s{sT1}
        s_add_u32 s{sT0}, s{sT0}, {WS_U + 4080 - 112}
        s_waitcnt lgkmcnt(15)
        """)
        def unp(d, r): a(f"v_lshlrev_b32 v{d}, 16, v{r}\nv_and_b32 v{d+1}, 0xffff0000, v{r}")
        for i in range(11): unp(ku + 2 * i, kr + i)
        for i in range(8): a(f"v_pk_mul_f32 {pr(rs+2*i)}, {pr(ku+2*(i+3))}, {pr(tp)}")
        for j in range(1, 4):
            for i in range(8): a(f"v_pk_fma_f32 {pr(rs+2*i)}, {pr(ku+2*(i+3-j))}, {pr(tp+2*j)}, {pr(rs+2*i)}")
        a("s_waitcnt lgkmcnt(7)")
        for i in range(8): unp(vu + 2 * i, vv + i)
        for i in range(8): a(f"v_pk_mul_f32 {pr(rs+2*i)}, {pr(rs+2*i)}, {pr(vu+2*i)}")
        for ch in range(2):
            for d in range(4): a(f"v_cvt_pk_bf16_f32 v{pk+4*ch+d}, v{rs+2*(7-2*d)+ch}, v{rs+2*(6-2*d)+ch}")
        ku = B + 4; tp = B + 18
        taps(tp, T2)
        a("s_waitcnt lgkmcnt(0)")
        for i, r in enumerate((7, 188, 6, 189, 195, 196, 5)): unp(ku + 2 * i, r)
        for i in range(2): a(f"v_pk_mul_f32 {pr(rs+2*i)}, {pr(ku+2*(i+3))}, {pr(tp)}")
        for j in range(1, 4):
            for i in range(2): a(f"v_pk_fma_f32 {pr(rs+2*i)}, {pr(ku+2*(i+3-j))}, {pr(tp+2*j)}, {pr(rs+2*i)}")
        for i in range(2): a(f"v_pk_mul_f32 {pr(rs+2*i)}, {pr(rs+2*i)}, {pr(ku+10+2*i)}")
        a(f"v_cvt_pk_bf16_f32 v{pk+8}, v{rs+2}, v{rs}\nv_cvt_pk_bf16_f32 v{pk+9}, v{rs+3}, v{rs+1}")
        a(f"v_add_u32 v{pk+10}, s{sT0}, v3\nv_add_u32 v{pk+11}, s{sT0}, v2")
    def b1_store(B):
        pk = B + 40
        a(f"""
        s_movk_i32 s{sT1}, 0x1000
        buffer_store_dwordx4 v[{pk}:{pk+3}], v{pk+10}, {srd(SWS)}, 0 offen sc1
        buffer_store_dwordx4 v[{pk+4}:{pk+7}], v{pk+10}, {srd(SWS)}, s{sT1} offen sc1
        buffer_store_dword v{pk+8}, v{pk+11}, {srd(SWS)}, 0 offen sc1
        buffer_store_dword v{pk+9}, v{pk+11}, {srd(SWS)}, s{sT1} offen sc1
        """)
    def shift_load():
        a(f"v_lshrrev_b32 v4, 3, v0\nv_lshlrev_b32 v4, 4, v4\ns_mul_i32 s{sT4}, s{sC80}, 640\nbuffer_load_dwordx4 v[8:11], v4, {srd(SSH)}, s{sT4} offen")
        a(f"v_lshrrev_b32 v4, 5, v0\nv_lshlrev_b32 v4, 4, v4\nbuffer_load_dwordx4 v[{T2}:{T2+3}], v4, {srd(SSH)}, s{sT4} offen offset:512")
    def publish_u(t):
        a(f"s_lshl_b32 s{sT0}, s{sC80}, 2\ns_add_u32 s{sT0}, s{sT0}, s{sWV}\ns_lshl_b32 s{sT0}, s{sT0}, 5\ns_add_u32 s{sT0}, s{sT0}, s{sR64}\ns_mul_i32 s{sT0}, s{sT0}, {cfg.ufs}\ns_add_u32 s{sT0}, s{sT0}, {WS_FU}")
        publish(sT0, t)
    def rounds(RO):
        for k in range(3):
            a(f"""
            s_lshl_b32 s{sT0}, s{sHW}, 6
            s_add_u32 s{sT0}, s{sT0}, {256*k}
            v_add_u32 v2, s{sT0}, v1
            v_mul_u32_u24 v3, 205, v2
            v_lshrrev_b32 v3, 11, v3
            v_mul_u32_u24 v4, 10, v3
            v_sub_u32 v4, v2, v4
            v_mul_u32_u24 v5, 2560, v3
            v_lshl_add_u32 v{RO+k}, v4, 4, v5
            """)
            yield k
    def a2_setup():
        a(f"""
        s_lshl_b32 s{sT0}, s{sWV}, 9
        v_and_b32 v2, 31, v1
        v_lshrrev_b32 v3, 5, v1
        v_lshlrev_b32 v{OS1}, 3, v2
        v_lshlrev_b32 v4, 4, v2
        v_lshl_add_u32 v{OS0}, v3, 15, v4
        v_add_u32 v4, s{sT0}, v4
        v_lshl_add_u32 v5, v3, 12, v4
        v_add_u32 v{QAD0}, {L_Q}, v5
        v_add_u32 v{QAD1}, {L_Q + 8192}, v4
        v_lshl_add_u32 v{AK0}, v3, 13, v4
        v_add_u32 v{AK0}, {L_K}, v{AK0}
        v_lshlrev_b32 v5, 9, v3
        v_sub_u32 v5, v4, v5
        v_add_u32 v{AK1}, {L_K + 16384}, v5
        v_bfe_u32 v4, v1, 2, 2
        v_lshl_add_u32 v4, v3, 2, v4
        v_lshlrev_b32 v4, 4, v4
        v_bfe_u32 v5, v1, 1, 1
        v_mul_u32_u24 v5, {VSTR}, v5
        v_and_b32 v6, 1, v1
        v_lshl_add_u32 v5, v6, 3, v5
        s_and_b32 s{sT1}, s{sHD}, 1
        s_lshl_b32 s{sT2}, s{sT1}, 3
        s_add_u32 s{sT2}, s{sT2}, {2*VSTR}
        v_mov_b32 v6, s{sT2}
        v_and_b32 v7, 16, v1
        v_cmp_ne_u32 vcc, 0, v7
        v_cndmask_b32 v5, v5, v6, vcc
        s_add_u32 s{sT0}, s{sT0}, {L_V + 4096 - 512}
        v_add3_u32 v5, v5, v4, s{sT0}
        v_and_b32 v7, 19, v1
        v_cmp_lt_u32 vcc, 16, v7
        s_add_u32 s{sT0}, s{sWV}, 1
        s_cmp_eq_u32 s{sQB}, 0
        s_cselect_b32 s{sNV}, s{sT0}, 99
        """)
        for p in range(5):
            a(f"""
            s_cmp_gt_u32 s{sNV}, {2*p}
            s_cselect_b32 s{sT0}, {L_ONES - 512 - (L_V + 192)}, 0
            s_add_u32 s{sT0}, s{sT0}, {L_V + 192}
            s_cmp_gt_u32 s{sNV}, {2*p+1}
            s_cselect_b32 s{sT0}, {L_ONES}, s{sT0}
            v_add_u32 v6, s{sT0}, v4
            v_cndmask_b32 v{AVP+p}, v5, v6, vcc
            v_subrev_u32 v5, 1024, v5
            """)
        a(f"""
        s_mov_b32 s{sFB}, 0
        s_cmp_eq_u32 s{sT1}, 0
        s_cselect_b32 s{sT2}, -1, 0
        s_cselect_b32 s{sT3}, 0, -1
        v_cmp_eq_u32 vcc, 0, v3
        v_mov_b32 v5, s{sT2}
        v_mov_b32 v6, s{sT3}
        v_cndmask_b32 v{QM0}, 0, v5, vcc
        v_cndmask_b32 v{QM1}, 0, v6, vcc
        v_cndmask_b32 v{QM2}, v5, 0, vcc
        v_cndmask_b32 v{QM3}, v6, 0, vcc
        s_mov_b32 s{sT4}, 6554
        """)
        for i in range(NWO):
            wo_index(i)
            a(f"""
            s_lshl_b32 s{sT3}, s{sT2}, 6
            v_add_u32 v2, s{sT3}, v1
            v_mul_u32_u24 v3, s{sT4}, v2
            v_lshrrev_b32 v3, 16, v3
            v_mul_u32_u24 v3, 1120, v3
            v_lshl_add_u32 v{WOV+i}, v2, 4, v3
            """)
    def wo_index(i):
        a(f"s_add_u32 s{sT2}, s{sWV}, {8*i}")
        if 8 * i + 7 > 99 - cfg.early: a(f"s_min_u32 s{sT2}, s{sT2}, {99 - cfg.early}")
    def wom_setup():
        for i in range(NWO):
            wo_index(i)
            a(f"s_lshl_b32 s{sT2}, s{sT2}, 10\ns_add_u32 s{WOM[i]}, s{sT2}, {L_WO1}")
            if 8 * i + 7 >= 75: a(f"s_sub_u32 s{sT2}, s{sT2}, 76800\ns_min_u32 s{WOM[i]}, s{WOM[i]}, s{sT2}")
    def wo_early_addr():
        for i in range(5):
            a(f"v_add_u32 v2, {64*i}, v1\nv_mul_u32_u24 v3, 205, v2\nv_lshrrev_b32 v3, 11, v3\nv_mul_u32_u24 v3, 1120, v3\nv_lshl_add_u32 v{32+i}, v2, 4, v3")
    def wo_early():
        lastp = -1
        for n in range(100 - cfg.early, 100):
            if n // 5 != lastp:
                lastp = n // 5; a(f"s_add_u32 s{sT0}, s{sC160}, {lastp*32*1280}")
            dma(32 + n % 5, SWO, f"s{sT0}", L_WO1 + 1024 * n if n < 75 else L_WO2 + 1024 * (n - 75))

    L_SYNC = 119712
    sizes = {SX: 2621440, SW: 2457600, SWO: 819200, SQ: 2621440, SK: 2621440, SV: 2621440, SSH: 5120, SH: 2621440, SD: 1280, SOUT: 5242880, SDBG: 256, SWS: WS_SIZE}
    assert cfg.b1a < 0 and cfg.b1b < 0 and cfg.b1c < 0
    for s, slot in ((SK, 4), (SV, 5), (SSH, 6), (SX, 0), (SW, 1)): a(f"s_load_dwordx2 s[{s}:{s+1}], s[0:1], {slot*8}")
    a("s_cmp_ge_u32 s2, 256\ns_cbranch_scc1 L_exit")
    a(f"""
    v_lshrrev_b32 v2, 6, v0
    v_and_b32 v1, 63, v0
    s_and_b32 s{sXC}, s2, 7
    v_readfirstlane_b32 s{sWV}, v2
    s_lshr_b32 s{sJ}, s2, 3
    v_mul_u32_u24 v2, 26, v1
    s_and_b32 s{sT0}, s{sJ}, 3
    v_lshrrev_b32 v2, 8, v2
    s_lshl2_add_u32 s{sR64}, s{sXC}, s{sT0}
    v_mul_u32_u24 v2, 1120, v2
    s_lshr_b32 s{sC80}, s{sJ}, 2
    v_lshl_add_u32 v12, v1, 4, v2
    s_mul_i32 s{sC160}, s{sC80}, 160
    s_lshl3_add_u32 s{sT1}, s{sR64}, s{sWV}
    s_mul_i32 s{sT1}, s{sT1}, {8*1280}
    s_add_u32 s{sT1}, s{sT1}, s{sC160}
    s_mul_i32 s{sB}, s{sWV}, 1296
    s_mov_b32 s{SK+2}, {sizes[SK]}
    s_mov_b32 s{SK+3}, 0x20000
    s_mov_b32 s{SV+2}, {sizes[SV]}
    s_mov_b32 s{SV+3}, 0x20000
    s_add_u32 s{sT2}, s{sT1}, {4*1280}
    s_cmp_lg_u32 s{sWV}, 7
    s_cbranch_scc1 L_nocp
    s_getpc_b64 s[4:5]
    L_pc:
    s_mul_i32 s3, s{sJ}, 1408
    v_lshl_add_u32 v2, v1, 7, s3
    v_min_u32 v2, L_end-L_pc, v2
    v_mov_b32 v3, {L_SYNC + 16}
    v_mov_b32 v4, 0
    s_mov_b64 exec, 0x7ff
    global_load_dword v62, v2, s[4:5]
    ds_write_b32 v3, v4
    s_mov_b32 exec_lo, -1
    L_nocp:
    s_mov_b32 exec_hi, 0xff
    s_add_u32 m0, s{sB}, {L_KB+656}
    s_waitcnt lgkmcnt(0)
    buffer_load_dwordx4 v12, {srd(SK)}, s{sT1} offen {cfg.nt_in} lds
    """)
    dma(12, SV, f"s{sT1}", f"s_add_u32 m0, s{sB}, {L_VB}", cfg.nt_in)
    dma(12, SK, f"s{sT2}", f"s_add_u32 m0, s{sB}, {L_KB+656+640}", cfg.nt_in)
    dma(12, SV, f"s{sT2}", f"s_add_u32 m0, s{sB}, {L_VB+640}", cfg.nt_in)
    a(f"s_cmp_lg_u32 s{sWV}, 0\ns_cbranch_scc1 L_nohalo\ns_sub_u32 s{sT1}, s{sT1}, {4*1280}\nv_add_u32 v13, s{sT1}, v12")
    dma(13, SK, "0", L_KB, cfg.nt_in)
    a(f"L_nohalo:\ns_mov_b32 exec_hi, -1\ns_mov_b32 s{SSH+2}, {sizes[SSH]}\ns_mov_b32 s{SSH+3}, 0x20000\ns_cmp_ge_u32 s{sWV}, 4\ns_cbranch_scc1 L_nosh")
    shift_load()
    a("L_nosh:")
    stamp(0)
    for s, slot in ((SDBG, 10), (SWS, 11), (SH, 7), (SD, 8), (SWO, 2), (SQ, 3), (SOUT, 9)): a(f"s_load_dwordx2 s[{s}:{s+1}], s[0:1], {slot*8}")
    def srd_consts(lst):
        for s in lst: a(f"s_mov_b32 s{s+2}, {sizes[s]}\ns_mov_b32 s{s+3}, 0x20000")
    a(f"""
    s_and_b32 s{sHW}, s{sWV}, 3
    s_and_b32 s{sT0}, s{sXC}, 1
    s_mul_i32 s{sT0}, s{sT0}, 30
    s_add_u32 s{sT0}, s{sT0}, s{sJ}
    s_lshr_b32 s{sCT}, s{sT0}, 2
    s_cmp_ge_u32 s{sJ}, 30
    s_cselect_b32 s{sCT}, 7, s{sCT}
    s_and_b32 s{sT0}, s{sT0}, 3
    s_lshr_b32 s{sRB}, s{sXC}, 1
    s_lshl2_add_u32 s{sRB}, s{sRB}, s{sT0}
    s_barrier
    """)
    if cfg.map2 == "head": a(f"s_mov_b32 s{sHD}, s{sR64}\ns_mov_b32 s{sQB}, s{sC80}")
    else: a(f"s_mov_b32 s{sHD}, s{sJ}\ns_mov_b32 s{sQB}, s{sXC}")
    a(f"s_cmp_lt_u32 s{sWV}, 4\ns_cbranch_scc1 L_C")

    vX = 16; vW = 20; vW2 = 63; vD = 21; vNH = 22; vHA = 64; vHB = 80
    srd_consts((SX, SW))
    a(f"""
    v_lshrrev_b32 v2, 3, v1
    v_lshrrev_b32 v3, 4, v1
    v_xor_b32 v4, v3, v1
    v_and_b32 v4, 7, v4
    v_mul_u32_u24 v2, 1280, v2
    v_lshl_add_u32 v{vX}, v4, 4, v2
    v_xor_b32 v4, 4, v4
    v_lshl_add_u32 v{vX+1}, v4, 4, v2
    v_add_u32 v{vX+1}, {8*1280}, v{vX+1}
    v_add_u32 v{vX+2}, {16*1280}, v{vX}
    v_add_u32 v{vX+3}, {16*1280}, v{vX+1}
    v_lshlrev_b32 v4, 2, v3
    v_xor_b32 v4, v4, v1
    v_and_b32 v4, 15, v4
    v_mul_u32_u24 v3, 3840, v3
    v_lshl_add_u32 v{vW}, v4, 4, v3
    v_xor_b32 v{vW2}, {32 if cfg.m16 else 0}, v{vW}
    s_mul_i32 s{sA}, s{sRB}, {128*1280}
    s_mul_i32 s{sT0}, s{sHW}, {32*1280}
    s_add_u32 s{sA}, s{sA}, s{sT0}
    s_lshl_b32 s{sB}, s{sCT}, 8
    s_mul_i32 s{sT0}, s{sHW}, {16*3840}
    s_add_u32 s{sB}, s{sB}, s{sT0}
    s_lshl_b32 s{sT5}, s{sHW}, 12
    """)
    if cfg.ncls == 10:
        a(f"s_and_b32 s{sT0}, s{sRB}, 3\ns_mul_i32 s{sT0}, s{sT0}, 5\ns_add_u32 s{sT0}, s{sT0}, 1\ns_lshr_b32 s{sT0}, s{sT0}, 1\ns_lshr_b32 s{sT1}, s{sRB}, 2\ns_add_u32 s{sT0}, s{sT0}, s{sT1}\ns_add_u32 s{sKC}, s{sT0}, s{sCT}")
    elif cfg.ncls == 2:
        a(f"s_add_u32 s{sT0}, s{sRB}, s{sCT}\ns_and_b32 s{sT0}, s{sT0}, 1\ns_mul_i32 s{sT0}, s{sT0}, 5\ns_add_u32 s{sKC}, s{sT0}, s{sXC}")
    elif cfg.ncls == 4:
        a(f"s_add_u32 s{sT0}, s{sRB}, s{sCT}\ns_and_b32 s{sT0}, s{sT0}, 3\ns_mul_i32 s{sT0}, s{sT0}, 5\ns_add_u32 s{sT0}, s{sT0}, 1\ns_lshr_b32 s{sT0}, s{sT0}, 1\ns_add_u32 s{sKC}, s{sT0}, s{sXC}")
    elif cfg.ncls == 3:
        a(f"s_add_u32 s{sT0}, s{sRB}, s{sCT}\ns_mul_i32 s{sT1}, s{sT0}, 86\ns_lshr_b32 s{sT1}, s{sT1}, 8\ns_mul_i32 s{sT1}, s{sT1}, 3\ns_sub_u32 s{sT0}, s{sT0}, s{sT1}\ns_mul_i32 s{sT0}, s{sT0}, 7\ns_lshr_b32 s{sT0}, s{sT0}, 1\ns_add_u32 s{sKC}, s{sT0}, s{sXC}")
    else:
        a(f"s_mov_b32 s{sKC}, s{sXC}")
    a(f"s_mul_i32 s{sT0}, s{sKC}, 205\ns_lshr_b32 s{sT0}, s{sT0}, 11\ns_mul_i32 s{sT0}, s{sT0}, 10\ns_sub_u32 s{sKC}, s{sKC}, s{sT0}")
    def ring_issue(c):
        slot = ((c + 1) % 3) * 32768
        a(f"s_lshl_b32 s{sT0}, s{sKC}, 7\ns_add_u32 s{sT0}, s{sT0}, s{sA}\ns_mul_i32 s{sT1}, s{sKC}, {64*3840}\ns_add_u32 s{sT1}, s{sT1}, s{sB}")
        for i in range(4):
            dma(vX + i, SX, f"s{sT0}", f"s_add_u32 m0, s{sT5}, {slot + i*1024}")
            dma(vW if i < 2 else vW2, SW, f"s{sT1}", f"s_add_u32 m0, s{sT5}, {slot + 16384 + i*1024}")
            if i < 3: a(f"s_add_u32 s{sT1}, s{sT1}, {4*3840}")
        a(f"s_add_u32 s{sKC}, s{sKC}, 1\ns_cmp_eq_u32 s{sKC}, 10\ns_cselect_b32 s{sKC}, 0, s{sKC}")
    def h_chan():
        a(f"""
        s_mul_i32 s{sT0}, s{sJ}, 3
        s_lshl_b32 s{sT1}, s{sJ}, 1
        s_add_u32 s{sT1}, s{sT1}, 16
        s_cmp_lt_u32 s{sJ}, 16
        s_cselect_b32 s{sT0}, s{sT0}, s{sT1}
        s_cselect_b32 s{sT1}, 3, 2
        s_cmp_lt_u32 s{sHW}, s{sT1}
        s_cselect_b32 s{sCHV}, 1, 0
        s_cselect_b32 s{sT1}, s{sHW}, 0
        s_add_u32 s{sT0}, s{sT0}, s{sT1}
        s_mul_i32 s{sCH}, s{sXC}, 80
        s_add_u32 s{sCH}, s{sCH}, s{sT0}
        s_bfe_u32 s{sT1}, s{sT0}, 0x20002
        s_cmp_lt_u32 s{sT0}, 64
        s_cselect_b32 s{sT2}, 4, 31
        s_cselect_b32 s{sT1}, 0, s{sT1}
        s_lshr_b32 s{sT0}, s{sT0}, s{sT2}
        s_add_u32 s{sT0}, s{sT0}, s{sT1}
        s_lshl_b32 s{sT1}, s{sXC}, 2
        s_add_u32 s{sT0}, s{sT0}, s{sT1}
        s_lshl_b32 s{sT0}, s{sT0}, 5
        v_and_b32 v12, 31, v1
        v_add_u32 v12, s{sT0}, v12
        v_mul_u32_u24 v12, {cfg.ufs}, v12
        v_add_u32 v12, {WS_FU}, v12
        """)
    def f_load():
        a(f"buffer_load_dwordx2 v[14:15], v12, {srd(SWS)}, 0 offen sc1")
    def h_loads():
        a(f"""
        s_mul_i32 s{sT3}, s{sHW}, {HSTR}
        s_mul_i32 s{sT3}, s{sT3}, s{sCHV}
        s_lshl_b32 s{sT0}, s{sCH}, 12
        s_add_u32 m0, s{sT3}, {L_H + 32}
        s_lshl_b32 s{sT4}, s{sCH}, 1
        v_mov_b32 v4, s{sT4}
        """)
        for i in range(4): a(f"buffer_load_dwordx4 v13, {srd(SH)}, s{sT0} offen offset:{1024*i} {cfg.nt_in} lds")
        a(f"buffer_load_ushort v{vD}, v4, {srd(SD)}, 0 offen")
    def u_loads():
        check_or_poll(12, 14)
        a(f"s_mul_i32 s{sT2}, s{sHW}, {USTR}\ns_lshl_b32 s{sT0}, s{sCH}, 12\ns_add_u32 s{sT1}, s{sT0}, {WS_U}\ns_add_u32 m0, s{sT2}, {L_U}")
        for i in range(4): a(f"buffer_load_dwordx4 v13, {srd(SWS)}, s{sT1} offen offset:{1024*i} sc1 lds")
    def hu_loads():
        h_loads(); a("s_waitcnt vmcnt(5)"); u_loads()
    AA = 26; AB = 30; BACC = 96; BF = 32; AF = 128; NAF = 5; DF = 148
    def b3_setup():
        a(f"s_mul_i32 s{sT2}, s{sR64}, {64*1280}\ns_add_u32 s{sT2}, s{sT2}, s{sC160}")
        for k in rounds(ROH):
            a(f"""
            v_mul_u32_u24 v5, 1280, v3
            v_lshl_add_u32 v5, v4, 4, v5
            v_add_u32 v{QA+k}, s{sT2}, v5
            v_lshlrev_b32 v5, 3, v4
            v_xor_b32 v5, v5, v3
            v_and_b32 v5, 63, v5
            v_lshlrev_b32 v5, 1, v5
            v_lshl_add_u32 v5, v4, 10, v5
            v_cmp_lt_u32 vcc, 6, v4
            v_add_u32 v6, {L_ZA}, v5
            v_add_u32 v5, {L_ZB - 7*1024}, v5
            v_cndmask_b32 v{ZA+k}, v6, v5, vcc
            """)
        a(f"""
        s_cmp_ge_u32 s{sHW}, 2
        s_cselect_b32 s{sT2}, 15, 23
        v_min_u32 v2, s{sT2}, v1
        v_lshrrev_b32 v3, 3, v2
        v_and_b32 v2, 7, v2
        v_lshl_add_u32 v2, v3, 5, v2
        s_mul_i32 s{sT0}, s{sC80}, 80
        s_lshl_b32 s{sT2}, s{sHW}, 3
        s_add_u32 s{sT0}, s{sT0}, s{sT2}
        v_add_u32 v2, s{sT0}, v2
        v_mul_u32_u24 v2, {FS}, v2
        v_add_u32 v{FZA}, {WS_FZ}, v2
        v_lshrrev_b32 v2, 3, v1
        v_and_b32 v3, 7, v1
        v_lshlrev_b32 v2, 12, v2
        v_lshl_add_u32 v2, v3, 4, v2
        s_mul_i32 s{sT0}, s{sC80}, {80*4096}
        s_lshl_b32 s{sT1}, s{sR64}, 7
        s_add_u32 s{sT0}, s{sT0}, s{sT1}
        s_add_u32 s{sT0}, s{sT0}, {WS_Z}
        """)
        for k in range(3):
            a(f"""
            s_add_u32 s{sT1}, s{sHW}, {4*k}
            s_min_u32 s{sT1}, s{sT1}, 9
            s_and_b32 s{sT2}, s{sT1}, 7
            s_lshl_b32 s{sT2}, s{sT2}, 4
            v_xor_b32 v3, s{sT2}, v2
            s_lshl_b32 s{sT2}, s{sT1}, 15
            s_add_u32 s{sT2}, s{sT2}, s{sT0}
            v_add_u32 v{ZD+k}, s{sT2}, v3
            s_lshl_b32 s{sT2}, s{sT1}, 10
            s_cmp_gt_u32 s{sT1}, 6
            s_cselect_b32 s{sT1}, {L_ZB - 7*1024 - L_ZA}, 0
            s_add_u32 s{sT2}, s{sT2}, s{sT1}
            s_add_u32 s{ZM[k]}, s{sT2}, {L_ZA}
            """)
    def b2_setup():
        a(f"""
        v_and_b32 v2, 15, v1
        v_lshrrev_b32 v3, 4, v1
        v_add_u32 v4, 1, v2
        v_lshrrev_b32 v4, 1, v4
        v_lshl_add_u32 v4, v3, 2, v4
        v_lshlrev_b32 v4, 2, v4
        v_and_b32 v5, 1, v2
        v_cmp_eq_u32 vcc, 0, v5
        v_mov_b32 v5, {HODD}
        v_cndmask_b32 v5, 0, v5, vcc
        s_min_u32 s{sT1}, s{sHW}, 2
        s_mul_i32 s{sT0}, s{sT1}, {HSTR}
        s_add_u32 s{sT0}, s{sT0}, {L_H}
        v_add3_u32 v{AA}, v4, v5, s{sT0}
        v_add_u32 v{AA+1}, 1024, v{AA}
        v_add_u32 v{AA+2}, 2048, v{AA}
        v_add_u32 v{AA+3}, 3072, v{AA}
        v_lshlrev_b32 v13, 4, v1
        v_add_u32 v25, s{sT0}, v13
        v_lshlrev_b32 v4, 5, v2
        v_lshl_add_u32 v4, v3, 3, v4
        v_add_u32 v31, s{sT0}, v4
        v_sub_u32 v4, 15, v2
        v_lshlrev_b32 v4, 5, v4
        v_lshl_add_u32 v4, v3, 4, v4
        s_mul_i32 s{sT1}, s{sT1}, {USTR}
        s_add_u32 s{sT1}, s{sT1}, {L_U}
        v_add_u32 v{AB}, s{sT1}, v4
        v_lshl_add_u32 v2, v1, 3, s{sT1}
        v_mov_b32 v4, 0
        v_mov_b32 v5, 0
        v_mov_b32 v6, 0
        v_mov_b32 v7, 0
        ds_write_b64 v2, v[4:5] offset:4096
        s_mov_b64 exec, 3
        ds_write_b128 v25, v[4:7]
        ds_write_b128 v25, v[4:7] offset:{HODD}
        s_mov_b64 exec, -1
        """)
    def h_late():
        b3_setup(); a2_setup(); build_masks(None); wom_setup()
    def oc_read():
        for i in range(4):
            a(f"ds_read_b128 v[{vHA+6*i}:{vHA+6*i+3}], v25 offset:{32+1024*i}\nds_read_b32 v{vHA+6*i+4}, v25 offset:{48+1024*i}")
    def oc_part(i):
        if i == 0:
            a(f"s_waitcnt lgkmcnt(0)\nv_lshlrev_b32 v11, 16, v{vHA}\ns_mov_b64 exec, 1\nds_write_b32 v25, v11 offset:{HODD+28}\ns_mov_b64 exec, -1")
        for j in range(4): a(f"v_alignbit_b32 v{vHA+6*i+j}, v{vHA+6*i+j+1}, v{vHA+6*i+j}, 16")
        a(f"ds_write_b128 v25, v[{vHA+6*i}:{vHA+6*i+3}] offset:{HODD+32+1024*i}")
    def oc_d():
        a(f"""
        v_and_b32 v2, 15, v1
        v_sub_u32 v2, 15, v2
        v_lshrrev_b32 v3, 4, v1
        v_lshlrev_b32 v3, 2, v3
        v_lshrrev_b32 v4, 1, v2
        v_sub_u32 v4, v4, v3
        v_and_b32 v2, 1, v2
        v_lshlrev_b32 v2, 4, v2
        v_lshlrev_b32 v2, v2, v{vD}
        """)
        for rr in range(4): a(f"v_cmp_eq_u32 vcc, {rr}, v4\nv_cndmask_b32 v{DF+rr}, 0, v2, vcc")
    def odd_copy(nw):
        a(f"s_waitcnt vmcnt({nw})"); oc_read(); oc_d()
        for i in range(4): oc_part(i)
    def ifch(f):
        L = a.lab("L_ifch")
        a(f"s_cmp_eq_u32 s{sCHV}, 0\ns_cbranch_scc1 {L}"); f(); a(f"{L}:")
    def b1_arrive(n):
        a(f"v_mov_b32 v2, {L_SYNC + 16}\nv_mov_b32 v3, 1\ns_waitcnt vmcnt({n})\ns_mov_b64 exec, 1\nds_add_u32 v2, v3\ns_mov_b64 exec, -1")
    rest_srd = (SWO, SQ, SH, SD, SOUT, SDBG, SWS)
    a(f"s_cmp_ge_u32 s{sJ}, 30\ns_cbranch_scc1 L_h_idle")
    stamp(1, "st")
    ring_issue(0)
    stamp(2, "st")
    if cfg.grp == "st":
        a("s_waitcnt vmcnt(7)"); stamp(3, "st"); a("s_waitcnt vmcnt(0)"); stamp(4, "st")
    b1_arrive(8)
    if cfg.r1first: ring_issue(1)
    srd_consts(rest_srd)
    h_chan(); b2_setup()
    a("v_mov_b32 v199, 0\ns_waitcnt lgkmcnt(0)")
    if not cfg.nfill:
        for i, f in enumerate((b3_setup, a2_setup, lambda: (build_masks(None), wom_setup()))):
            if cfg.lset[i] == "s": f()
    stamp(5, "st")
    if not cfg.r1first: ring_issue(1)
    stamp(6, "st")
    if cfg.grp == "st":
        a("s_waitcnt vmcnt(0)"); stamp(7, "st")
    pubc = max(cfg.b1c, cfg.ust) + cfg.upub
    for c in range(10):
        w = {1: 9, 7: 9 if cfg.fld == 6 else 8, 9: 9 if cfg.hc == 8 else 4}.get(c, 8)
        if c == cfg.hc + 1 and c < 9: w += 5
        a(f"s_waitcnt vmcnt({w})")
        if c in (0, 1, 2, 3, 5, 7, 9): stamp(1 + (0, 1, 2, 3, 5, 7, 9).index(c), "a1")
        a("s_barrier")
        if c == 0: nonce_issue(vNH)
        if c == cfg.fld: f_load()
        if c == cfg.hc and c < 8: h_loads()
        spread = cfg.ocs and cfg.hc <= 4
        if spread and c == 6: oc_read()
        if c + 2 <= 9: ring_issue(c + 2)
        if spread and c == 6: ifch(lambda: oc_part(0))
        if c == 2: nonce_take(vNH)
        if c == 7: a(f"s_cmp_eq_u32 s{sCHV}, 0\ns_cbranch_scc1 L_h_nob2a")
        if spread and c == 7: oc_part(1)
        if c == 8:
            if cfg.hc == 8: h_loads()
            u_loads()
            if spread: oc_part(2); oc_part(3)
            elif cfg.hc < 8 and not cfg.oc9: odd_copy(12)
        if spread and c == 9: oc_d()
    a("L_h_post:")
    def h_idle():
        a("L_h_idle:")
        srd_consts(rest_srd)
        h_chan(); b2_setup()
        a("s_waitcnt vmcnt(0) lgkmcnt(0)")
        a("v_mov_b32 v199, 0")
        if not cfg.nfill: h_late()
        if cfg.assist:
            L = a.lab("L_as")
            a(f"""
            s_cmp_ge_u32 s{sHW}, {cfg.assist}
            s_cbranch_scc1 {L}
            s_add_u32 s{sT0}, s{sKC}, s{sHW}
            s_sub_u32 s{sT1}, s{sT0}, 10
            s_min_u32 s{sT0}, s{sT0}, s{sT1}
            s_mul_i32 s{sT0}, s{sT0}, {64*3840}
            s_add_u32 s{sT0}, s{sT0}, {7*256}
            v_mul_u32_u24 v2, 3840, v1
            s_waitcnt vmcnt(0)
            buffer_load_dword v62, v2, {srd(SW)}, s{sT0} offen
            buffer_load_dword v62, v2, {srd(SW)}, s{sT0} offen offset:128
            {L}:
            """)
        a("s_barrier")
        nonce_issue(vNH)
        a("s_barrier\ns_waitcnt vmcnt(0)")
        nonce_take(vNH)
        a(f"s_cmp_eq_u32 s{sCHV}, 0\ns_cbranch_scc1 L_h_nob2")
        f_load()
        hu_loads()
        if cfg.hc < 8 and not cfg.oc9: odd_copy(4)
        a("s_branch L_h_post")
    ool.append(h_idle)
    stamp(2)
    if cfg.stop <= 1: a("s_branch L_fin")
    def q_loads():
        for k in range(3): a(f"buffer_load_dwordx4 v[{QV+4*k}:{QV+4*k+3}], v{QA+k}, {srd(SQ)}, 0 offen {cfg.nt_in}")
    def h_nob2():
        a("L_h_nob2a:")
        if cfg.wtouch:
            a(f"s_lshl_b32 s{sT0}, s{sJ}, 6\ns_add_u32 s{sT0}, s{sT0}, {4480 - 1920}\nv_add_lshl_u32 v2, v1, s{sT0}, 7\nbuffer_load_dword v62, v2, {srd(SWO)}, 0 offen")
        wo_early_addr()
        a(f"s_waitcnt vmcnt({8 + cfg.wtouch})\ns_barrier\ns_waitcnt vmcnt({cfg.wtouch})\ns_barrier\ns_branch L_h_nob2b\nL_h_nob2:")
        if cfg.uwarm:
            a(f"s_lshl_b32 s{sT0}, s{sXC}, 10\ns_add_u32 s{sT0}, s{sT0}, {WS_FU}\ns_and_b32 s{sT1}, s{sWV}, 1\ns_lshl_b32 s{sT1}, s{sT1}, 9\ns_add_u32 s{sT0}, s{sT0}, s{sT1}\nv_lshl_add_u32 v7, v1, 3, s{sT0}")
            poll(7, 8)
        wo_early_addr()
        a("L_h_nob2b:")
        if cfg.stop <= 1: a("s_branch L_fin")
        if cfg.nfill and cfg.elate: h_late()
        a(f"s_cmp_lg_u32 s{sWV}, 7\ns_cbranch_scc1 L_h_nob2c")
        wo_early()
        a("L_h_nob2c:")
        if cfg.nfill and not cfg.elate: h_late()
        a("v_mov_b32 v144, 0\ns_waitcnt vmcnt(0)\ns_branch L_join_a")
    ool.append(h_nob2)
    if cfg.hc == 8 or cfg.oc9: odd_copy(4)
    a(f"s_lshl_b32 s{sA}, s{sCH}, 12\ns_add_u32 s{sA}, s{sA}, {WS_Z}")
    a("s_waitcnt vmcnt(0) lgkmcnt(0)")
    stamp(3)
    def b_read(r, nn):
        d = BF + 32 * (r & 1) + 4 * nn
        a(f"ds_read_b128 v[{d}:{d+3}], v{AB} offset:{2*(1792 - 32*(8*nn - r))}"); issue(("B", r, nn), 1)
    def a_read(gi):
        r, mu = groups[gi]; kap = 8 * mu + r
        d = AF + 4 * (gi % NAF); o = 16 * (kap % 16)
        a(f"ds_read2_b32 v[{d}:{d+1}], v{AA + kap//16} offset0:{o} offset1:{o+1}")
        a(f"ds_read2_b32 v[{d+2}:{d+3}], v{AA + kap//16} offset0:{o+2} offset1:{o+3}"); issue(("A", gi), 2)
    groups = [(r, mu) for r in range(7) for mu in (0, 7, 1, 6, 2, 5, 3, 4)] + [(7, mu) for mu in (7, 6, 5, 4, 3, 2, 1, 0)]
    q.clear()
    LA = NAF - 1
    for nn in range(8): b_read(0, nn)
    for gi in range(3): a_read(gi)
    fill = capture(h_late) if cfg.nfill else []
    for i in range(8):
        wait_for({("B", 0, i)})
        d = BACC + 4 * i; f = BF + 4 * i
        a(f"v_mfma_f32_16x16x32_bf16 v[{d}:{d+3}], v[{DF}:{DF+3}], v[{f}:{f+3}], 0")
    for gi in range(3, LA): a_read(gi)
    PZ = 8
    for gi, (r, mu) in enumerate(groups):
        wait_for({("A", gi)} | {("B", r, nn) for nn in range(8 - mu)})
        pend = []
        if gi + LA < 64: pend.append(lambda g=gi + LA: a_read(g))
        if r < 7 and gi % 2 == 0:
            pend.append(lambda nn=gi % 8, r=r: b_read(r + 1, nn)); pend.append(lambda nn=gi % 8 + 1, r=r: b_read(r + 1, nn))
        tiles = list(range(mu, 8))
        for n, i in enumerate(tiles):
            d = BACC + 4 * i; f = BF + 32 * (r & 1) + 4 * (i - mu); s = AF + 4 * (gi % NAF)
            a(f"v_mfma_f32_16x16x32_bf16 v[{d}:{d+3}], v[{s}:{s+3}], v[{f}:{f+3}], v[{d}:{d+3}]")
            if pend: pend.pop(0)()
            elif gi < 63:
                nv = 0
                while fill and nv < cfg.nfill:
                    t = fill.pop(0); a(t); nv += 1 if t.startswith("v_") else 0.5
            if gi == 63 and n >= 3:
                j = n - 3; dd = BACC + 4 * j; p = PZ + 2 * (j & 1)
                a(f"v_cvt_pk_bf16_f32 v{p}, v{dd}, v{dd+1}\nv_cvt_pk_bf16_f32 v{p+1}, v{dd+2}, v{dd+3}\nds_write_b64 v31, v[{p}:{p+1}] offset:{512*j}")
        for f_ in pend: f_()
    for t in fill: a(t)
    stamp(4)
    for j in range(5, 8):
        dd = BACC + 4 * j; p = PZ + 2 * (j & 1)
        a(f"v_cvt_pk_bf16_f32 v{p}, v{dd}, v{dd+1}\nv_cvt_pk_bf16_f32 v{p+1}, v{dd+2}, v{dd+3}\nds_write_b64 v31, v[{p}:{p+1}] offset:{512*j}")
    ZR = 128 if cfg.zst >= 0 else 32
    for i in range(4): a(f"ds_read_b128 v[{ZR+4*i}:{ZR+3+4*i}], v25 offset:{1024*i}")
    if cfg.zst >= 0:
        a(f"v_add_u32 v144, s{sA}, v13\ns_waitcnt lgkmcnt(0)")
    else:
        for i in range(4):
            a(f"s_waitcnt lgkmcnt({3-i})\nbuffer_store_dwordx4 v[{32+4*i}:{35+4*i}], v13, {srd(SWS)}, s{sA} offen offset:{1024*i} sc1")
    a("s_branch L_join_a")

    a("L_C:")
    vNC = 60
    srd_consts((SX, SW) + rest_srd)
    a(f"s_mov_b32 s{sCHV}, 0\ns_mov_b32 s{sCH}, 0")
    a(f"""
    s_waitcnt lgkmcnt(0)
    s_or_b32 s{sT0}, s2, s{sWV}
    s_cmp_lg_u32 s{sT0}, 0
    s_cbranch_scc1 L_nonon
    s_memrealtime s[{sN}:{sN+1}]
    s_waitcnt lgkmcnt(0)
    s_or_b32 s{sN}, s{sN}, 1
    v_mov_b32 v6, s{sN}
    v_mov_b32 v7, s{sN+1}
    v_mov_b32 v5, 0
    s_mov_b64 exec, 1
    buffer_store_dwordx2 v[6:7], v5, {srd(SDBG)}, 0 offen sc1
    s_mov_b64 exec, -1
    L_nonon:
    s_cmp_ge_u32 s{sJ}, 30
    s_cbranch_scc1 L_c_idle
    """)
    def tlb():
        if not cfg.tlb: return
        L = a.lab("L_tlb")
        a(f"s_cmp_lg_u32 s{sWV}, 1\ns_cbranch_scc1 {L}\nv_lshlrev_b32 v5, {cfg.tlb}, v1")
        for sr in (SWS, SOUT, SQ, SH, SWO, SD): a(f"buffer_load_dword v63, v5, {srd(sr)}, 0 offen")
        a(f"{L}:")
    GFA = 207; OFA = 199; GPA = 200; sGA, sGB = 0, 1; L_SYNC = 119712
    def qkv_addr():
        a(f"""
        s_lshr_b32 s{sT0}, s{sHD}, 1
        s_mul_i32 s{sT0}, s{sT0}, 5
        s_and_b32 s{sT1}, s{sHD}, 1
        s_lshl_b32 s{sT2}, s{sT1}, 1
        s_add_u32 s{sT2}, s{sT2}, s{sT0}
        s_add_u32 s{sT3}, s{sT2}, 2
        s_lshr_b32 s{sT2}, s{sT2}, 3
        s_lshr_b32 s{sT3}, s{sT3}, 3
        s_lshr_b32 s{sT4}, s{sHD}, 2
        s_mul_i32 s{sGA}, s{sT4}, 10
        s_lshr_b32 s{sGA}, s{sGA}, 3
        s_sub_u32 s{sT2}, s{sT2}, s{sGA}
        s_sub_u32 s{sT3}, s{sT3}, s{sGA}
        s_cmp_eq_u32 s{sQB}, 0
        s_cselect_b32 s{sGA}, 2, 4
        v_lshrrev_b32 v2, 1, v1
        v_min_u32 v2, s{sGA}, v2
        v_and_b32 v4, 1, v1
        v_cmp_eq_u32 vcc, 1, v4
        v_mov_b32 v4, s{sT2}
        v_mov_b32 v5, s{sT3}
        v_cndmask_b32 v4, v4, v5, vcc
        v_lshl_add_u32 v2, v2, 1, v4
        s_lshl_b32 s{sGA}, s{sT4}, 5
        s_lshl_b32 s{sT4}, s{sQB}, 2
        s_add_u32 s{sT4}, s{sT4}, s{sWV}
        s_add_u32 s{sGA}, s{sGA}, s{sT4}
        s_lshl_b32 s{sGA}, s{sGA}, 7
        s_add_u32 s{sGA}, s{sGA}, {WS_FG}
        v_lshl_add_u32 v{GFA}, v2, 3, s{sGA}
        s_lshl_b32 s{sGB}, s{sR64}, 2
        s_add_u32 s{sGB}, s{sGB}, s{sWV}
        s_lshl_b32 s{sGB}, s{sGB}, 7
        s_add_u32 s{sGB}, s{sGB}, {WS_FO}
        v_and_b32 v2, 15, v1
        v_lshl_add_u32 v{OFA}, v2, 3, s{sGB}
        s_mul_i32 s{sT1}, s{sT1}, 3
        s_add_u32 s{sGA}, s{sT0}, s{sT1}
        s_add_u32 s{sGB}, s{sT0}, 2
        s_lshl_b32 s{sGA}, s{sGA}, 15
        s_lshl_b32 s{sGB}, s{sGB}, 15
        s_lshl_b32 s{sT4}, s{sT4}, 10
        s_add_u32 s{sGA}, s{sGA}, s{sT4}
        s_add_u32 s{sGB}, s{sGB}, s{sT4}
        v_lshlrev_b32 v14, 4, v1
        v_bfrev_b32 v15, 1
        s_cmp_eq_u32 s{sQB}, 0
        s_cselect_b64 vcc, -1, 0
        v_cndmask_b32 v15, v14, v15, vcc
        s_lshl_b32 s{sT5}, s{sWV}, 10
        """)
    def gpub_addr():
        a(f"""
        s_and_b32 s{sT0}, s{sWV}, 1
        s_lshl_b32 s{sT2}, s{sCT}, 1
        s_add_u32 s{sT2}, s{sT2}, s{sT0}
        s_mul_i32 s{sT0}, s{sT2}, 26
        s_lshr_b32 s{sT0}, s{sT0}, 8
        s_mul_i32 s{sT1}, s{sT0}, 10
        s_sub_u32 s{sT2}, s{sT2}, s{sT1}
        s_cmp_ge_u32 s{sT2}, 5
        s_cselect_b32 s{sT1}, 5, 0
        s_cselect_b32 s{sT4}, 4, 0
        s_sub_u32 s{sT2}, s{sT2}, s{sT1}
        s_lshr_b32 s{sT1}, s{sWV}, 1
        s_lshl_b32 s{sT3}, s{sRB}, 1
        s_add_u32 s{sT3}, s{sT3}, s{sT1}
        v_and_b32 v2, 1, v1
        v_lshrrev_b32 v3, 1, v1
        v_sub_u32 v4, s{sT2}, v2
        v_cmp_gt_u32 vcc, 4, v4
        v_add_u32 v4, s{sT4}, v4
        v_lshl_add_u32 v5, v3, 2, s{sT3}
        v_cmp_gt_u32 s[{sEX}:{sEX+1}], 32, v5
        s_and_b64 vcc, vcc, s[{sEX}:{sEX+1}]
        s_cmp_eq_u32 s{sT0}, 0
        s_cselect_b32 s{sT1}, 3, 15
        s_and_b32 vcc_lo, vcc_lo, s{sT1}
        s_mov_b32 vcc_hi, 0
        v_lshl_add_u32 v4, v4, 5, v5
        v_lshlrev_b32 v4, 7, v4
        v_lshl_add_u32 v5, v3, 1, s{sT0}
        v_lshl_add_u32 v5, v5, 1, v2
        v_lshl_add_u32 v4, v5, 3, v4
        v_add_u32 v4, {WS_FG}, v4
        v_bfrev_b32 v5, 1
        v_cndmask_b32 v{GPA}, v5, v4, vcc
        """)
    def prewarm():
        a(f"buffer_load_dword v63, v{GFA}, {srd(SWS)}, 0 offen sc1\nbuffer_load_dword v63, v{OFA}, {srd(SWS)}, 0 offen sc1")
    def c_idle():
        a("L_c_idle:")
        build_masks(None); a2_setup(); qkv_addr(); wom_setup()
        a("s_waitcnt vmcnt(0)\ns_barrier")
        nonce_issue(vNC)
        if cfg.prew: prewarm()
        b1_compute(128); b1_store(128)
        a("s_barrier\ns_waitcnt vmcnt(0)")
        nonce_take(vNC); publish_u(2)
        if cfg.wdelay:
            a(f"v_subrev_u32 v7, {2*cfg.ufs}, v4")
            poll(7, 8)
        tlb()
        if cfg.wopre:
            a(f"""
            s_sub_u32 s{sT0}, s{sJ}, 30
            s_lshl_b32 s{sT0}, s{sT0}, 2
            s_add_u32 s{sT0}, s{sT0}, s{sWV}
            s_lshl_b32 s{sT0}, s{sT0}, 6
            v_add_u32 v4, s{sT0}, v1
            s_lshl_b32 s{sT1}, s{sXC}, 9
            v_add_u32 v2, s{sT1}, v4
            """)
            for i in range(cfg.wopre):
                a("s_waitcnt vmcnt(1)")
                if i < 8:
                    a(f"v_and_b32 v2, 4095, v2\nv_add_u32 v3, 4480, v2\nv_subrev_u32 v5, 6400, v3\nv_min_u32 v3, v3, v5\nv_add_u32 v2, 512, v2")
                else:
                    a(f"v_add_u32 v3, {2176 + 512*(i-8)}, v4")
                a(f"v_lshlrev_b32 v3, 7, v3\nbuffer_load_dword v63, v3, {srd(SWO)}, 0 offen")
        a("s_branch L_c_post")
    ool.append(c_idle)
    stamp(1, "st")
    stamp(2, "st")
    if cfg.tlball: tlb()
    if cfg.tlbs:
        L = a.lab("L_tlbs")
        a(f"s_cmp_lg_u32 s{sWV}, 1\ns_cbranch_scc1 {L}")
        for sr, n in ((SWS, 10), (SOUT, 3), (SQ, 2), (SH, 2), (SWO, 1), (SD, 1)):
            for i in range(n):
                a(f"s_mov_b32 s{sT0}, {i << 21}\ns_load_dword s3, s[{sr}:{sr+1}], s{sT0}")
        a(f"{L}:")
    ACC = 64
    FS4 = [128, 144, 16, 32]
    if not cfg.m16:
        AX = 48; AW = 56
        a(f"""
        s_and_b32 s{sT0}, s{sWV}, 1
        s_lshr_b32 s{sT1}, s{sWV}, 1
        v_and_b32 v2, 31, v1
        v_lshrrev_b32 v3, 5, v1
        v_bfe_u32 v4, v2, 1, 3
        v_xor_b32 v4, v4, v3
        s_lshl_b32 s{sT2}, s{sT1}, 13
        v_lshlrev_b32 v5, 7, v2
        v_add_u32 v5, s{sT2}, v5
        """)
        for ks in range(4):
            a(f"v_xor_b32 v6, {2*ks}, v4\nv_lshl_add_u32 v{AX+ks}, v6, 4, v5\nv_add_u32 v{AX+4+ks}, 0x10000, v{AX+ks}")
        a(f"""
        v_bfe_u32 v4, v1, 2, 2
        v_lshl_add_u32 v5, v3, 3, v4
        v_lshlrev_b32 v5, 8, v5
        v_and_b32 v6, 3, v1
        v_lshl_add_u32 v5, v6, 3, v5
        v_and_b32 v6, 16, v1
        v_lshl_add_u32 v5, v6, 1, v5
        v_add_u32 v5, 16384, v5
        s_lshl_b32 s{sT2}, s{sT0}, 1
        """)
        for mt in range(2):
            a(f"s_add_u32 s{sT3}, s{sT2}, {mt}\nv_xor_b32 v6, s{sT3}, v4\nv_lshl_add_u32 v{AW+mt}, v6, 6, v5\nv_add_u32 v{AW+2+mt}, 0x10000, v{AW+mt}")

    else:
        AX = 48; AW = 52
        a(f"""
        s_and_b32 s{sT0}, s{sWV}, 1
        s_lshr_b32 s{sT1}, s{sWV}, 1
        v_and_b32 v2, 15, v1
        v_lshrrev_b32 v3, 4, v1
        v_lshrrev_b32 v4, 1, v2
        v_xor_b32 v4, v4, v3
        s_lshl_b32 s{sT2}, s{sT1}, 13
        v_lshlrev_b32 v5, 7, v2
        v_add_u32 v5, s{sT2}, v5
        """)
        for ks in range(2):
            a(f"v_xor_b32 v6, {4*ks}, v4\nv_lshl_add_u32 v{AX+ks}, v6, 4, v5\nv_add_u32 v{AX+2+ks}, 0x10000, v{AX+ks}")
        a(f"""
        v_bfe_u32 v4, v1, 2, 2
        v_lshl_add_u32 v5, v3, 3, v4
        v_lshlrev_b32 v5, 8, v5
        v_and_b32 v6, 3, v1
        v_lshl_add_u32 v5, v6, 3, v5
        v_and_b32 v6, 16, v1
        v_lshl_add_u32 v5, v6, 1, v5
        v_add_u32 v5, 16384, v5
        s_lshl_b32 s{sT2}, s{sT0}, 1
        """)
        for m2 in range(2):
            a(f"s_add_u32 s{sT3}, s{sT2}, {m2}\nv_xor_b32 v6, s{sT3}, v4\nv_lshl_add_u32 v{AW+2*m2}, v6, 6, v5\nv_xor_b32 v{AW+2*m2+1}, 32, v{AW+2*m2}")
        for mt in range(4): a(f"v_add_u32 v{AW+4+mt}, 0x10000, v{AW+mt}")
    cset = {"m": lambda: build_masks(None), "a": a2_setup, "q": qkv_addr, "g": gpub_addr, "w": wom_setup}
    for k in cfg.cs0: cset[k]()
    stamp(3, "st")
    if cfg.b1c < 0:
        a(f"""
        v_mov_b32 v2, {L_SYNC + 16}
        v_mov_b32 v3, 1
        s_mov_b32 s{sCNT}, 0
        s_waitcnt vmcnt(0)
        s_mov_b64 exec, 1
        ds_add_u32 v2, v3
        s_mov_b64 exec, -1
        """)
        nonce_issue(vNC)
        if cfg.prew: prewarm()
        a(f"""
        L_b1s:
        ds_read_b32 v3, v2
        s_add_u32 s{sCNT}, s{sCNT}, 1
        s_waitcnt lgkmcnt(0)
        v_cmp_ne_u32 vcc, 8, v3
        s_cmp_gt_u32 s{sCNT}, 0x100000
        s_cbranch_scc1 L_b1t
        s_cbranch_vccnz L_b1s
        L_b1t:
        """)
        stamp(1)
        b1_compute(128)
        if cfg.ust < 0: b1_store(128)
    def a1_reads(c, ks):
        F = FS4[ks]
        slot = (c + 1) % 3; hi = slot >> 1; o = (slot & 1) * 32768
        r = []
        for half in range(2):
            for t in range(2):
                r.append(f"ds_read_b64_tr_b16 v[{F+4*half+2*t}:{F+4*half+2*t+1}], v{AW+2*hi+half} offset:{o + (16*ks+4*t)*256}")
            r.append(f"ds_read_b128 v[{F+8+4*half}:{F+8+4*half+3}], v{AX+4*hi+ks} offset:{o + half*4096}")
        return [] if cfg.noread else r
    def a1_mfma(ks, first):
        F = FS4[ks]; r = []
        for mt, nt in ((0, 0), (1, 0), (1, 1), (0, 1)):
            d = ACC + 16 * (2 * mt + nt)
            r.append(f"v_mfma_f32_32x32x16_bf16 v[{d}:{d+15}], v[{F+4*mt}:{F+4*mt+3}], v[{F+8+4*nt}:{F+8+4*nt+3}], " + ("0" if first else f"v[{d}:{d+15}]"))
        return [] if cfg.nomfma else r
    def weave(reads, mf, per):
        reads = list(reads)
        for m in mf:
            for _ in range(per):
                if reads: a(reads.pop(0))
            a(m)
        for r in reads: a(r)
    FS2 = [128, 16]
    def r16(c, ks):
        F = FS2[ks]; slot = (c + 1) % 3; hi = slot >> 1; o = (slot & 1) * 32768; r = []
        for i in range(4):
            for t in range(2):
                r.append(f"ds_read_b64_tr_b16 v[{F+4*i+2*t}:{F+4*i+2*t+1}], v{AW+4*hi+i} offset:{o + (32*ks+4*t)*256}")
            r.append(f"ds_read_b128 v[{F+16+4*i}:{F+16+4*i+3}], v{AX+2*hi+ks} offset:{o + i*2048}")
        return r
    def m16(ks, first):
        F = FS2[ks]; r = []
        for mt in range(4):
            for nt in (range(4) if mt % 2 == 0 else range(3, -1, -1)):
                d = ACC + 4 * (4 * mt + nt)
                r.append(f"v_mfma_f32_16x16x32_bf16 v[{d}:{d+3}], v[{F+4*mt}:{F+4*mt+3}], v[{F+16+4*nt}:{F+16+4*nt+3}], " + ("0" if first else f"v[{d}:{d+3}]"))
        if cfg.nomfma: r = ["s_nop 3"] * 16
        return r
    def rd16(c, ks):
        r = r16(c, ks)
        return [(r[3*i+2], ("X", ks)) for i in range(4)] + [(r[3*i+t], ("W", ks, i)) for i in range(4) for t in range(2)]
    def phase(mm, ks, reads, lo, hi):
        for i in range(lo, hi):
            if i % 4 == 0: wait_for({("X", ks), ("W", ks, i // 4)})
            a(mm[i])
            if reads:
                t, tag = reads.pop(0); a(t); issue(tag, 1)
    PRE = cfg.pre
    q.clear()
    for c in range(10):
        if c > 0: phase(m16(1, False), 1, [], 0, PRE)
        a("s_waitcnt lgkmcnt(0)"); q.clear()
        if c > 0 and c - 1 == cfg.b1c:
            stamp(1); nonce_issue(vNC)
            if cfg.prew: prewarm()
            b1_compute(128)
        if c > 0 and c - 1 == max(cfg.ust, cfg.b1c): b1_store(128)
        if c == 1:
            for k in cfg.cs1: cset[k]()
        if c == 2:
            for k in cfg.cs2: cset[k]()
        if c == pubc + 1:
            a("s_waitcnt vmcnt(0)")
            nonce_take(vNC); publish_u(2)
        if c in (0, 1, 2, 3, 5, 7, 9): stamp(1 + (0, 1, 2, 3, 5, 7, 9).index(c), "a1")
        a("s_barrier")
        if c == cfg.cprio: a("s_setprio 3")
        if c == 9: break
        rd = rd16(c, 0)
        for _ in range(2 if c > 0 else 12):
            t, tag = rd.pop(0); a(t); issue(tag, 1)
        if c > 0: phase(m16(1, False), 1, rd, PRE, 16)
        assert not rd
        phase(m16(0, c == 0), 0, rd16(c, 1), 0, 16)
    qs = f2u(20 ** -0.5 * math.log2(math.e))
    def epi_addr():
        a(f"""
        s_and_b32 s{sT0}, s{sWV}, 1
        s_lshr_b32 s{sT1}, s{sWV}, 1
        s_lshl_b32 s{sT2}, s{sCT}, 1
        s_add_u32 s{sT2}, s{sT2}, s{sT0}
        s_lshl_b32 s{sT3}, s{sRB}, 1
        s_add_u32 s{sT3}, s{sT3}, s{sT1}
        s_lshl_b32 s{sA}, s{sT2}, 18
        s_lshl_b32 s{sT4}, s{sT3}, 10
        s_add_u32 s{sA}, s{sA}, s{sT4}
        s_lshl_b32 s{sB}, s{sT2}, 5
        s_add_u32 s{sB}, s{sB}, s{sT3}
        s_mul_i32 s{sB}, s{sB}, {FS}
        s_add_u32 s{sB}, s{sB}, {WS_FG}
        v_and_b32 v2, 31, v1
        v_lshrrev_b32 v3, 5, v1
        v_lshlrev_b32 v2, 4, v2
        v_lshl_add_u32 v2, v3, 15, v2
        s_mov_b32 s{sT2}, {qs:#x}
        s_mov_b32 s{sT3}, {qs:#x}
        """)
    if cfg.tmaj:
        X2 = 160
        r0 = r16(9, 0); r1 = r16(9, 1)
        xr1 = [r1[3*i+2].replace(f"v[{FS2[1]+16+4*i}:{FS2[1]+16+4*i+3}]", f"v[{X2+4*i}:{X2+4*i+3}]") for i in range(4)]
        wr1 = [r1[3*i:3*i+2] for i in range(4)]
        pm = m16(1, False)
        sc = capture(epi_addr) + [f"s_cmp_lt_u32 s{sCT}, 5", f"s_cselect_b32 s{sT2}, s{sT2}, 1.0", f"s_cselect_b32 s{sT3}, s{sT3}, 1.0"]
        first = [r0[2], r0[5], r0[8], r0[11], r0[0], r0[1]] + xr1
        rest = [r0[3:5], r0[6:8], r0[9:11]]
        q.clear()
        seq = [(t, ("F",)) for t in first[:6]] + [(t, ("W", 0)) for t in wr1[0]] + [(t, ("F",)) for t in first[6:]]
        late = {8: [(t, ("W", 1)) for t in rest[0] + wr1[1]], 12: [(t, ("W", 2)) for t in rest[1] + wr1[2]]}
        assert PRE == 4
        for i in range(PRE, 16):
            seq += late.get(i, [])
            for _ in range(2):
                if seq:
                    t, tag = seq.pop(0); a(t); issue(tag, 1)
            a(pm[i])
            for _ in range(2):
                if sc: a(sc.pop(0))
        for t in rest[2] + wr1[3]: a(t)
        issue(("W", 3), 4)
        for t in sc: a(t)
        def epi_tile(mt):
            r = [f"s_add_u32 s{sT0}, s{sA}, {2*mt*32768}"]
            for n2 in range(2):
                d = ACC + 4 * (4 * mt + 2 * n2); p = 4 + 4 * n2 if mt % 2 == 0 else 176 if n2 == 0 else 48
                if cfg.tscale:
                    for k in range(8): r.append(f"v_mul_f32 v{d+k}, s{sT2}, v{d+k}")
                for k in range(4): r.append(f"v_cvt_pk_bf16_f32 v{p+k}, v{d+2*k}, v{d+2*k+1}")
                r += [f"v_permlane16_swap_b32 v{p}, v{p+2}", f"v_permlane16_swap_b32 v{p+1}, v{p+3}"]
                r.append(f"buffer_store_dwordx4 v[{p}:{p+3}], v2, {srd(SWS)}, s{sT0} offen offset:{n2*512} sc1")
            return r
        pend = []
        for mt in range(4):
            wait_for({("F",), ("W", mt)})
            for ks in range(2):
                for nt in range(4):
                    d = ACC + 4 * (4 * mt + nt); F = FS2[ks]; xb = (F + 16 if ks == 0 else X2) + 4 * nt
                    a(f"v_mfma_f32_16x16x32_bf16 v[{d}:{d+3}], v[{F+4*mt}:{F+4*mt+3}], v[{xb}:{xb+3}], v[{d}:{d+3}]")
                    if ks + nt > 0:
                        for _ in range(5 if cfg.tscale else 3):
                            if pend: a(pend.pop(0))
            for t in pend: a(t)
            pend = epi_tile(mt)
        stamp(2)
        for t in pend: a(t)
    else:
        mlast = m16(1, False) if cfg.m16 else a1_mfma(2, False) + a1_mfma(3, False)
        weave([], mlast[:4], 0)
        epi_addr()
        weave([], mlast[4:], 0)
        stamp(2)
        def a1_epi(scale):
            n = 0
            if cfg.m16:
                for mt in range(4):
                    a(f"s_add_u32 s{sT0}, s{sA}, {2*mt*32768}")
                    for n2 in range(2):
                        d = ACC + 4 * (4 * mt + 2 * n2); p = 128 + 4 * n; n += 1
                        for k in range(4): a(f"v_cvt_pk_bf16_f32 v{p+k}, v{d+2*k}, v{d+2*k+1}")
                        a(f"v_permlane16_swap_b32 v{p}, v{p+2}\nv_permlane16_swap_b32 v{p+1}, v{p+3}")
                        a(f"buffer_store_dwordx4 v[{p}:{p+3}], v2, {srd(SWS)}, s{sT0} offen offset:{n2*512} sc1")
                return
            for mt, nt in ((0, 0), (1, 0), (1, 1), (0, 1)):
                for i in (0, 2):
                    d = ACC + 16 * (2 * mt + nt) + 4 * i
                    p = 128 + 4 * n; n += 1
                    if scale:
                        for k in range(4): a(f"v_pk_mul_f32 {pr(d+2*k)}, {pr(d+2*k)}, s[{sT2}:{sT3}]")
                    for k in range(4): a(f"v_cvt_pk_bf16_f32 v{p+k}, v{d+2*k}, v{d+2*k+1}")
                    a(f"s_add_u32 s{sT0}, s{sA}, {(4*mt+i)*32768}")
                    a(f"v_permlane32_swap_b32 v{p}, v{p+2}\nv_permlane32_swap_b32 v{p+1}, v{p+3}")
                    a(f"buffer_store_dwordx4 v[{p}:{p+3}], v2, {srd(SWS)}, s{sT0} offen offset:{nt*512} sc1")
        a(f"s_cmp_ge_u32 s{sCT}, 5\ns_cbranch_scc1 L_epi_d")
        for mt, nt in ((0, 0), (0, 1), (1, 0), (1, 1)) if cfg.m16 else ((0, 0), (1, 0), (1, 1), (0, 1)):
            for k in range(8):
                d = ACC + 16 * (2 * mt + nt) + 2 * k
                a(f"v_mul_f32 v{d}, s{sT2}, v{d}\nv_mul_f32 v{d+1}, s{sT2}, v{d+1}")
        a("L_epi_d:\ns_nop 6")
        a1_epi(False)
    a(f"""
    v_mov_b32 v16, s{sN}
    v_mov_b32 v17, s{sN+1}
    s_lshl_b32 s{sT0}, s{sWV}, 2
    s_add_u32 s{sT0}, s{sT0}, {L_SYNC}
    v_mov_b32 v18, s{sT0}
    v_and_b32 v19, 3, v1
    v_lshlrev_b32 v19, 2, v19
    v_add_u32 v19, {L_SYNC}, v19
    ds_write_b32 v18, v16
    s_waitcnt vmcnt(0)
    s_mov_b64 exec, 15
    buffer_store_dwordx2 v[16:17], v{GPA}, {srd(SWS)}, 0 offen sc1
    s_mov_b64 exec, -1
    s_mov_b32 s{sCNT}, 0
    L_sync:
    ds_read_b32 v18, v19
    s_add_u32 s{sCNT}, s{sCNT}, 1
    s_waitcnt lgkmcnt(0)
    v_cmp_ne_u32 vcc, s{sN}, v18
    s_cmp_gt_u32 s{sCNT}, 0x100000
    s_cbranch_scc1 L_c_post
    s_cbranch_vccnz L_sync
    """)
    a("L_c_post:")
    stamp(3)
    if cfg.stop <= 1: a("s_branch L_fin")
    a("v_mov_b32 v10, 0x3f803f80\nv_mov_b32 v11, 0x3f803f80\nv_mov_b32 v12, 0\nv_mov_b32 v13, 0\nv_lshlrev_b32 v7, 3, v1")
    if cfg.gdelay: a("s_waitcnt vmcnt(0)")
    if cfg.gdelay > 1: a(f"s_sleep {cfg.gdelay}")
    poll(GFA, 8)
    stamp(4)
    for half in (1, 0):
        for sec, lds, lstr in ((0, L_Q, 4096), (1, L_K, 8192), (2, L_V, VSTR)):
            if sec == 0 and half == 0: continue
            for slot in range(3):
                base = (sGA, 32768 * slot) if slot < 2 else (sGB, 0)
                off = base[1] + sec * 80 * 32768 - (0 if half else 4096)
                a(f"s_add_u32 s{sT0}, s{base[0]}, {off}")
                dma(14 if half else 15, SWS, f"s{sT0}", f"s_add_u32 m0, s{sT5}, {lds + slot*lstr + (4096 if (half and sec) else 0)}", "sc1")
    a(f"ds_write_b64 v7, v[10:11] offset:{L_ONES}\nds_write_b64 v7, v[10:11] offset:{L_ONES + 512}\nds_write_b64 v7, v[12:13] offset:{L_ONES - 512}")
    a("s_setprio 0\ns_waitcnt vmcnt(0) lgkmcnt(0)")

    for r in (ROH, ROH + 1, ROH + 2, FZA, ZD, ZD + 1, ZD + 2, QA, QA + 1, QA + 2, 144): a(f"v_mov_b32 v{r}, 0")
    if cfg.prio: a("s_branch L_join_b\nL_join_a:\ns_setprio 1\nL_join_b:\ns_barrier")
    else: a("L_join_a:\ns_barrier")
    stamp(5)
    if cfg.stop <= 2: a("s_branch L_fin")
    Q0, Q1, Q1B = 16, 20, 60; K0F = 24; K1F = 32; VF = 40; AV = 58; S = 64; PP = 96; O = 112
    def wo_dma(i):
        if cfg.nowo: return
        a(f"s_mov_b32 m0, s{WOM[i]}\nbuffer_load_dwordx4 v{WOV+i}, {srd(SWO)}, s{sC160} offen lds")
    def k_read(b):
        f = K0F + 4 * (b & 1); o = (8 - b) * 512
        a(f"ds_read_b128 v[{f}:{f+3}], v{AK0} offset:{o}")
        if b % 2 == 0:
            f = K1F + 4 * ((b >> 1) & 1)
            a(f"ds_read_b128 v[{f}:{f+3}], v{AK1} offset:{o}")
    def v_read(b):
        f = VF + 8 * (b & 1); o = 0 if b & 1 else 512
        for s in range(2):
            for t in range(2):
                a(f"ds_read_b64_tr_b16 v[{f+4*s+2*t}:{f+4*s+2*t+1}], v{AVP + b//2} offset:{o + (16*s+8*t)*16}")
    def hook(b):
        L = a.lab("L_hook")
        a(f"s_cmp_lg_u32 s{sNV}, {b}\ns_cbranch_scc1 {L}\ns_nop 7")
        for r in range(16): a(f"v_mov_b32 v{vCZ+r}, v59\nv_mov_b32 v{vCF+r}, v59")
        a(f"s_nop 1\n{L}:")
    def qk(b, half, gen_):
        d = S + 16 * (b & 1)
        if half == 0:
            f = K0F + 4 * (b & 1)
            c = vCD if b == 0 else (vCF if b == 8 else vCZ)
            cs = f"v[{c}:{c+15}]" if (gen_ or c != vCZ) else "0"
            a(f"v_mfma_f32_32x32x16_bf16 v[{d}:{d+15}], v[{f}:{f+3}], v[{Q0}:{Q0+3}], {cs}")
        else:
            f = K1F + 4 * ((b >> 1) & 1); qq = Q1B if b & 1 else Q1
            a(f"v_mfma_f32_32x32x16_bf16 v[{d}:{d+15}], v[{f}:{f+3}], v[{qq}:{qq+3}], v[{d}:{d+15}]")
    def pv(b, s):
        p = PP + 8 * (b & 1); f = VF + 8 * (b & 1)
        a(f"v_mfma_f32_32x32x16_bf16 v[{O}:{O+15}], v[{f+4*s}:{f+4*s+3}], v[{p+4*s}:{p+4*s+3}], " + ("0" if (b == 0 and s == 0) else f"v[{O}:{O+15}]"))
    def cv(b, g):
        d = S + 16 * (b & 1) + 4 * g; p = PP + 8 * (b & 1) + 2 * g
        a(f"v_cvt_pk_bf16_f32 v{p}, v{d}, v{d+1}\nv_cvt_pk_bf16_f32 v{p+1}, v{d+2}, v{d+3}")
    def ex(b, g):
        d = S + 16 * (b & 1) + 4 * g
        a(f"v_exp_f32 v{d}, v{d}\nv_exp_f32 v{d+1}, v{d+1}")
        if g > 0: cv(b, g - 1)
        elif b > 0: cv(b - 1, 3)
        a(f"v_exp_f32 v{d+2}, v{d+2}\nv_exp_f32 v{d+3}, v{d+3}")
    wsched = {}
    i = 0
    for n in range(17):
        k = cfg.wfirst if n == 0 else 1
        wsched[n] = list(range(i, min(i + k, NWO))); i += k
    assert cfg.qn >= NWO - cfg.wfirst and cfg.fzn > cfg.qn and cfg.wbar >= cfg.fzn
    def side(b, k, gen_):
        n = 2 * b + k - 1
        if gen_ or n < 0: return
        if n == 0: a("s_barrier")
        if n == cfg.zst:
            L4 = a.lab("L_zs")
            a(f"s_cmp_eq_u32 s{sCHV}, 0\ns_cbranch_scc1 {L4}")
            for i in range(4): a(f"buffer_store_dwordx4 v[{128+4*i}:{131+4*i}], v144, {srd(SWS)}, 0 offen offset:{1024*i} sc1")
            a(f"{L4}:")
        if n == cfg.zpub:
            L2 = a.lab("L_zp"); R = a.lab("L_zpr")
            a(f"s_cmp_lg_u32 s{sCHV}, 0\ns_cbranch_scc1 {L2}\n{R}:")
            def body():
                a(f"{L2}:\ns_waitcnt vmcnt({0 if cfg.nowo else sum(len(wsched[j]) for j in range(max(cfg.zst, 0), n))})")
                a(f"s_mul_i32 s{sT0}, s{sCH}, {FS}\ns_add_u32 s{sT0}, s{sT0}, {WS_FZ}")
                publish(sT0, 4)
                a(f"s_branch {R}")
            ool.append(body)
        for i in wsched.get(n, []): wo_dma(i)
        if n == cfg.qn or n == cfg.fzn:
            L = a.lab("L_hq")
            a(f"s_cmp_lt_u32 s{sWV}, 4\ns_cbranch_scc1 {L}")
            if n == cfg.qn: q_loads()
            else: a(f"buffer_load_dwordx2 v[{FZR}:{FZR+1}], v{FZA}, {srd(SWS)}, 0 offen sc1")
            a(f"{L}:")
        if n == cfg.wbar:
            L = a.lab("L_wb")
            a(f"s_waitcnt vmcnt(4)\ns_cmp_ge_u32 s{sWV}, 4\ns_cbranch_scc1 {L}\ns_waitcnt vmcnt(0)\n{L}:\ns_barrier")
    def a2_loop(gen_):
        if gen_: a(f"v_mov_b32 v59, {BIGNEG:#x}")
        a("s_waitcnt lgkmcnt(1)")
        qk(0, 0, gen_)
        qk(0, 1, gen_)
        for b in range(9):
            if b in (1, 3, 5, 7) and not gen_: stamp(2 + b // 2, "a2")
            if cfg.prio and b == cfg.prio: a("s_setprio 0")
            if b > 0:
                a("s_waitcnt lgkmcnt(0)")
                pv(b - 1, 0)
            v_read(b)
            if b < 7: k_read(b + 2)
            ex(b, 0)
            if b < 8:
                if gen_: hook(b + 1)
                if b == 0: a("s_waitcnt lgkmcnt(6)")
                qk(b + 1, 0, gen_)
            else: pv(b - 1, 1)
            side(b, 0, gen_)
            ex(b, 1)
            if b < 8: qk(b + 1, 1, gen_)
            ex(b, 2)
            if 0 < b < 8: pv(b - 1, 1)
            if b == 8:
                a("s_waitcnt lgkmcnt(0)"); pv(8, 0)
            side(b, 1, gen_)
            ex(b, 3)
        cv(8, 3)
        pv(8, 1)
    a(f"ds_read_b128 v[{Q1}:{Q1+3}], v{QAD1}\nds_read_b128 v[{Q0}:{Q0+3}], v{QAD0}")
    k_read(0); k_read(1)
    a(f"""
    s_lshl_b32 s{sT0}, s{sQB}, 3
    s_add_u32 s{sT0}, s{sT0}, s{sWV}
    s_lshl_b32 s{sT4}, s{sHD}, 16
    s_lshl_b32 s{sT2}, s{sT0}, 9
    s_add_u32 s{sT4}, s{sT4}, s{sT2}
    s_add_u32 s{sT4}, s{sT4}, {WS_O}
    s_lshl_b32 s{sT5}, s{sHD}, 14
    s_lshl_b32 s{sT3}, s{sT0}, 8
    s_add_u32 s{sT5}, s{sT5}, s{sT3}
    s_add_u32 s{sT5}, s{sT5}, {WS_O8}
    s_lshr_b32 s{sA}, s{sT0}, 1
    s_lshl_b32 s{sA}, s{sA}, 2
    s_and_b32 s{sT2}, s{sHD}, 3
    s_add_u32 s{sA}, s{sA}, s{sT2}
    s_lshl_b32 s{sA}, s{sA}, 4
    s_and_b32 s{sT2}, s{sT0}, 1
    s_lshl_b32 s{sT2}, s{sT2}, 3
    s_add_u32 s{sA}, s{sA}, s{sT2}
    s_lshr_b32 s{sT2}, s{sHD}, 2
    s_add_u32 s{sA}, s{sA}, s{sT2}
    s_lshl_b32 s{sA}, s{sA}, 3
    s_add_u32 s{sA}, s{sA}, {WS_FO}
    s_waitcnt lgkmcnt(4)
    v_and_b32 v{Q1B}, v{QM2}, v{Q1}
    v_and_b32 v{Q1B+1}, v{QM2}, v{Q1+1}
    v_and_b32 v{Q1B+2}, v{QM3}, v{Q1+2}
    v_and_b32 v{Q1B+3}, v{QM3}, v{Q1+3}
    v_and_b32 v{Q1}, v{QM0}, v{Q1}
    v_and_b32 v{Q1+1}, v{QM0}, v{Q1+1}
    v_and_b32 v{Q1+2}, v{QM1}, v{Q1+2}
    v_and_b32 v{Q1+3}, v{QM1}, v{Q1+3}
    """)
    stamp(1, "a2")
    a2_loop(False)
    a("L_a2_done:")
    def gen_loop():
        a("L_a2_gen:"); a2_loop(True); a("s_nop 10\ns_branch L_a2_done")
    stamp(6, "a2")
    lo = f2u(2.0 ** -24); hi = f2u(2.0 ** 40); fin = f2u(3.0e38)
    a(f"v_rcp_f32 v2, v{O+12}\nv_mov_b32 v3, v2")
    for i in range(6): a(f"v_pk_mul_f32 {pr(40+2*i)}, {pr(O+2*i)}, v[2:3]")
    for i in range(6): a(f"v_cvt_pk_bf16_f32 v{24+i}, v{40+2*i}, v{41+2*i}")
    a(f"""
    buffer_store_dwordx4 v[24:27], v{OS0}, {srd(SWS)}, s{sT4} offen sc1
    s_mov_b32 exec_hi, 0
    buffer_store_dwordx2 v[28:29], v{OS1}, {srd(SWS)}, s{sT5} offen sc1
    s_mov_b32 exec_hi, -1
    """)
    stamp(6); stamp(7, "a2"); stamp(1, "g2")
    a(f"v_cmp_nle_f32 vcc, {lo:#x}, v{O+12}\ns_mov_b64 s[{sEX}:{sEX+1}], vcc\nv_cmp_nge_f32 vcc, {hi:#x}, v{O+12}\ns_or_b64 s[{sEX}:{sEX+1}], s[{sEX}:{sEX+1}], vcc")
    for i in range(6): a(f"v_add_f32 v{4+i}, abs(v{O+2*i}), abs(v{O+2*i+1})")
    a("v_add_f32 v4, v4, v5\nv_add_f32 v6, v6, v7\nv_add_f32 v8, v8, v9\nv_add_f32 v4, v4, v6\nv_add_f32 v4, v4, v8")
    a(f"v_cmp_nge_f32 vcc, {fin:#x}, v4\ns_or_b64 vcc, s[{sEX}:{sEX+1}], vcc")
    if cfg.force_fb: a("s_mov_b64 vcc, -1")
    a("s_cbranch_vccnz L_a2_fb\nL_a2_ok:")
    def fallback():
        a(f"L_a2_fb:\ns_cmp_lg_u32 s{sFB}, 0\ns_cbranch_scc1 L_a2_ok\ns_mov_b32 s{sFB}, 1\ns_waitcnt vmcnt(0)")
        build_masks("0")
        a(f"v_mov_b32 v4, {BIGNEG:#x}\nv_mov_b32 v59, {BIGNEG:#x}")
        for b in range(9):
            if b > 0: hook(b)
            k_read(b); a("s_waitcnt lgkmcnt(0)"); qk(b, 0, True); qk(b, 1, True)
            d = S + 16 * (b & 1)
            for i in range(8): a(f"v_max3_f32 v4, v4, v{d+2*i}, v{d+2*i+1}")
        a("v_mov_b32 v5, v4\nv_permlane32_swap_b32 v4, v5\nv_max_f32 v4, v4, v5\nv_sub_f32 v4, 0, v4")
        build_masks("v4")
        k_read(0); k_read(1)
        a("s_branch L_a2_gen")
    WA, WA2, WA3, WB, WB3, OA, OB = 52, 53, 54, 55, 56, 57, 58
    RO = 59; STA = 62
    a(f"""
    v_lshrrev_b32 v2, 4, v1
    v_bfe_u32 v3, v1, 2, 2
    v_and_b32 v4, 3, v1
    s_cmp_ge_u32 s{sWV}, 4
    s_cselect_b32 s{sT0}, 96, 0
    v_lshl_add_u32 v4, v4, 3, s{sT0}
    v_lshrrev_b32 v5, 1, v2
    v_mul_u32_u24 v5, 24, v5
    v_and_b32 v6, 1, v2
    v_lshl_add_u32 v5, v6, 2, v5
    v_add_u32 v5, v5, v3
    v_mul_u32_u24 v5, 160, v5
    v_add_u32 v{WA3}, v5, v4
    v_add_u32 v{WA2}, {L_WO1 + 6*6400}, v{WA3}
    v_add_u32 v{WA}, {L_WO1}, v{WA3}
    v_mul_u32_u24 v5, 40, v2
    v_add3_u32 v5, v5, v3, 16
    v_mul_u32_u24 v5, 160, v5
    v_add_u32 v{WB3}, v5, v4
    v_add_u32 v{WB}, {L_WO1}, v{WB3}
    """)
    def a3_addr():
        a(f"""
        v_lshrrev_b32 v2, 4, v1
        v_and_b32 v5, 15, v1
        s_lshl_b32 s{sT0}, s{sHW}, 4
        v_add_u32 v5, s{sT0}, v5
        v_lshlrev_b32 v6, 10, v2
        v_lshl_add_u32 v{OA}, v5, 4, v6
        v_add_u32 v{OA}, {L_O16}, v{OA}
        v_and_b32 v6, 1, v2
        v_lshlrev_b32 v6, 11, v6
        v_lshrrev_b32 v7, 1, v2
        v_lshl_add_u32 v6, v7, 9, v6
        v_lshl_add_u32 v{OB}, v5, 3, v6
        v_add_u32 v{OB}, {L_O8}, v{OB}
        v_mul_u32_u24 v5, 160, v5
        v_lshl_add_u32 v5, v2, 3, v5
        v_add_u32 v{STA}, {L_ST}, v5
        """)
    def wo_frag(step, ct, d):
        for t in range(2):
            if step < 6: r, o = WA, (40 * step + 8 * t) * 160
            elif step < 12: r, o = WA2, (40 * (step - 6) + 8 * t) * 160
            elif step < 16: r, o = WA3, (40 * (step - 12) + 8 * t) * 160
            elif step < 19: r, o = WB, (160 * (step - 16) + 4 * t) * 160
            else: r, o = WB3, 4 * t * 160
            a(f"ds_read_b64_tr_b16 v[{d+2*t}:{d+2*t+1}], v{r} offset:{o + 32*ct}")
    def o_frag(step, d):
        if step < 16:
            a(f"ds_read_b128 v[{d}:{d+3}], v{OA} offset:{4096*step}"); return 1
        for t in range(2):
            a(f"ds_read_b64 v[{d+2*t}:{d+2*t+1}], v{OB} offset:{4096*(step-16) + 1024*t}")
        return 2
    def a3_loop(nct, fr, ct0):
        ACC3 = 16
        OFS = [28, 28]
        q.clear()
        stages = [[4 * sg + k for k in range(4)] + [16 + sg] for sg in range(4)]
        seq = [st for sg in stages for st in sg]
        slot = {st: 28 + 4 * (i % 6) for i, st in enumerate(seq)}
        nread = [0]
        def reads_upto(lim):
            while nread[0] < lim:
                st = seq[nread[0]]
                if nread[0] % 5 == 0:
                    sg = nread[0] // 5
                    if nct == 3: a(f"s_waitcnt vmcnt({15 - 5*sg + (1 if (cfg.otouch > 2 and sg == 0) else 0)})")
                    a("s_barrier"); stamp(3 + sg, "a3")
                n = o_frag(st, slot[st]); issue(("O", st), n); nread[0] += 1
        for i, st in enumerate(seq):
            reads_upto(min(i + cfg.a3la, 20))
            wait_for({("O", st), ("W", st)})
            for ct in range(nct):
                w = fr[(st, ct)]; d = ACC3 + 4 * ct; o = slot[st]
                a(f"v_mfma_f32_16x16x32_bf16 v[{d}:{d+3}], v[{w}:{w+3}], v[{o}:{o+3}], " + ("0" if i == 0 else f"v[{d}:{d+3}]"))
            if nct == 3 and i in (5, 7, 9, 11):
                st2 = 12 + (i - 5) // 2
                for ct in range(3):
                    fr[(st2, ct)] = fr[(st2 - 12, ct)]
                    wo_frag(st2, ct, fr[(st2, ct)]); issue(("W", st2), 2)
        for ct in range(nct):
            d = ACC3 + 4 * ct
            a(f"v_cvt_pk_bf16_f32 v{2+2*ct}, v{d}, v{d+1}\nv_cvt_pk_bf16_f32 v{3+2*ct}, v{d+2}, v{d+3}\nds_write_b64 v{STA}, v[{2+2*ct}:{3+2*ct}] offset:{32*(ct+ct0)}")
        a("s_waitcnt lgkmcnt(0)\ns_barrier"); stamp(7, "a3")
    stamp(2, "g2")
    a(f"s_cmp_ge_u32 s{sWV}, 4\ns_cbranch_scc1 L_g2_h")
    a(f"v_mov_b32 v8, v{OFA}")
    csteps = list(range(12)) + [16, 17, 18, 19]
    cfr = {}
    for n, st in enumerate(csteps):
        for ct in range(3):
            cfr[(st, ct)] = 64 + 4 * (3 * n + ct)
            wo_frag(st, ct, cfr[(st, ct)])
        if n == cfg.cpub:
            a("s_waitcnt vmcnt(0)"); publish(sA, 4); stamp(3, "g2")
    for k in rounds(RO): pass
    a3_addr()
    a(f"""
    v_lshlrev_b32 v12, 4, v1
    v_and_b32 v13, 31, v1
    v_lshrrev_b32 v9, 5, v1
    v_lshlrev_b32 v13, 4, v13
    v_lshl_add_u32 v13, v9, 16, v13
    s_lshl_b32 s{sA}, s{sWV}, 16
    s_lshl_b32 s{sT0}, s{sR64}, 10
    s_add_u32 s{sA}, s{sA}, s{sT0}
    s_lshl_b32 s{sB}, s{sWV}, 14
    s_lshl_b32 s{sT0}, s{sR64}, 9
    s_add_u32 s{sB}, s{sB}, s{sT0}
    s_lshl_b32 s{sT4}, s{sWV}, 11
    s_lshl_b32 s{sT5}, s{sWV}, 10
    s_add_u32 s{sT0}, s{sT5}, {L_ST}
    v_add_u32 v14, s{sT0}, v12
    s_mul_i32 s{sT3}, s{sR64}, {64*2560}
    s_add_u32 s{sT3}, s{sT3}, s{sC160}
    s_lshl_b32 s{sT0}, s{sC80}, 18
    s_add_u32 s{sT0}, s{sT0}, s{sA}
    s_add_u32 s{sT0}, s{sT0}, {WS_O}
    s_lshl_b32 s{sT1}, s{sC80}, 16
    s_add_u32 s{sT1}, s{sT1}, s{sB}
    s_add_u32 s{sT1}, s{sT1}, {WS_O8}
    v_and_b32 v2, 7, v1
    v_lshlrev_b32 v2, 7, v2
    v_bfe_u32 v3, v1, 3, 1
    v_lshl_add_u32 v3, v3, 15, v2
    v_add_u32 v3, s{sT0}, v3
    v_add_u32 v2, s{sT1}, v2
    v_cmp_gt_u32 vcc, 16, v1
    v_cndmask_b32 v15, v2, v3, vcc
    s_waitcnt lgkmcnt(0)
    s_barrier
    """)
    stamp(4, "g2")
    poll(8, 10)
    stamp(7); stamp(5, "g2"); stamp(1, "a3")
    for i in range(8):
        if cfg.otouch and i == cfg.otouch - 1:
            a(f"s_mov_b64 exec, 0xfffff\nbuffer_load_dword v63, v15, {srd(SWS)}, 0 offen sc1\ns_mov_b64 exec, -1")
        for hh in range(2):
            a(f"s_add_u32 s{sT0}, s{sA}, {WS_O + 32768*(8*i + hh)}")
            dma(12, SWS, f"s{sT0}", f"s_add_u32 m0, s{sT4}, {L_O16 + 1024*(8*i + hh)}", "sc1")
        if i & 1:
            a(f"s_add_u32 s{sT0}, s{sB}, {WS_O8 + 16384*8*(i >> 1)}")
            dma(13, SWS, f"s{sT0}", f"s_add_u32 m0, s{sT5}, {L_O8 + 4096*(i >> 1)}", "sc1")
    a3_loop(3, cfr, 0)
    a(f"""
    ds_read_b128 v[16:19], v14
    ds_read_b128 v[20:23], v14 offset:4096
    ds_read_b128 v[24:27], v14 offset:8192
    s_waitcnt lgkmcnt(2)
    buffer_store_dwordx4 v[16:19], v{RO}, {srd(SOUT)}, s{sT3} offen {cfg.outa}
    s_waitcnt lgkmcnt(1)
    buffer_store_dwordx4 v[20:23], v{RO+1}, {srd(SOUT)}, s{sT3} offen {cfg.outa}
    s_cmp_ge_u32 s{sHW}, 2
    s_cbranch_scc1 L_fin
    s_waitcnt lgkmcnt(0)
    buffer_store_dwordx4 v[24:27], v{RO+2}, {srd(SOUT)}, s{sT3} offen {cfg.outa}
    s_branch L_fin
    """)
    a("L_g2_h:")
    hfr = {}; ZV = 40
    a("s_waitcnt vmcnt(2)")
    check_or_poll(FZA, FZR)
    for k in range(3): a(f"s_mov_b32 m0, s{ZM[k]}\nbuffer_load_dwordx4 v{ZD+k}, {srd(SWS)}, 0 offen sc1 lds")
    for st in range(20):
        for ct in range(2):
            i = 2 * st + ct
            hfr[(st, ct)] = 64 + 4 * i if i < 22 else 184 + 4 * (i - 22)
            wo_frag(st, ct, hfr[(st, ct)])
        if st == cfg.hpub:
            a("s_waitcnt vmcnt(3)"); publish(sA, 4); stamp(3, "g2")
    a3_addr()
    a("s_waitcnt vmcnt(1) lgkmcnt(0)\ns_barrier")
    stamp(4, "g2"); stamp(7); stamp(1, "a3")
    a(f"s_mul_i32 s{sT2}, s{sR64}, {64*2560}\ns_add_u32 s{sT2}, s{sT2}, s{sC160}\ns_add_u32 s{sT2}, s{sT2}, 1280")
    for k in range(3):
        if k == 2: a(f"s_cmp_ge_u32 s{sHW}, 2\ns_cbranch_scc1 L_b3d")
        for j in range(8): a(f"v_mov_b32 v{ZV+j}, 0")
        for j in range(8): a(f"ds_read_u16_d16_hi v{ZV+j}, v{ZA+k} offset:{128*j}")
        for j in range(4):
            a(f"v_lshlrev_b32 v{ZT+2*j}, 16, v{QV+4*k+j}\nv_and_b32 v{ZT+1+2*j}, 0xffff0000, v{QV+4*k+j}")
        a("s_waitcnt lgkmcnt(0)")
        for j in range(8): a(f"v_mul_f32 v{ZT+j}, v{ZT+j}, v{ZV+j}")
        for j in range(4): a(f"v_cvt_pk_bf16_f32 v{QV+4*k+j}, v{ZT+2*j}, v{ZT+1+2*j}")
        a(f"buffer_store_dwordx4 v[{QV+4*k}:{QV+4*k+3}], v{ROH+k}, {srd(SOUT)}, s{sT2} offen {cfg.outb}")
    a("L_b3d:")
    stamp(5, "g2"); stamp(2, "a3")
    a3_loop(2, hfr, 3)
    a("L_fin:")
    if cfg.stamps:
        a("s_waitcnt vmcnt(0)")
        stamp(8)
        if cfg.dbgst:
            a(f"s_cmp_lg_u32 s2, 41\ns_cbranch_scc1 L_exit\ns_cmp_lg_u32 s{sWV}, 0\ns_cbranch_scc1 L_exit\ns_mov_b64 exec, 1\nv_mov_b32 v2, 0")
            for i in range(9):
                a(f"s_sub_u32 s{sT0}, s{sSTAMP+2*i}, s{sSTAMP}\nv_mov_b32 v4, s{sT0}\nbuffer_store_dword v4, v2, {srd(SDBG)}, 0 offen offset:{8+4*i}\ns_waitcnt vmcnt(0)")
            a(f"s_sub_u32 s{sT0}, s{sN}, s{sSTAMP}\nv_mov_b32 v4, s{sT0}\nbuffer_store_dword v4, v2, {srd(SDBG)}, 0 offen offset:48\ns_waitcnt vmcnt(0)")
            a("s_endpgm")
        a(f"s_lshl_b32 s{sT0}, s2, 3\ns_add_u32 s{sT0}, s{sT0}, s{sWV}\ns_lshl_b32 s{sT0}, s{sT0}, 7\ns_add_u32 s{sT0}, s{sT0}, {WS_T}\nv_mov_b32 v2, s{sT0}\ns_mov_b64 exec, 1")
        for i in range(9):
            a(f"v_mov_b32 v4, s{sSTAMP+2*i}\nv_mov_b32 v5, s{sSTAMP+2*i+1}\nbuffer_store_dwordx2 v[4:5], v2, {srd(SWS)}, 0 offen offset:{8*i}\ns_waitcnt vmcnt(0)")
    a("L_exit:\ns_endpgm")
    i = 0
    while i < len(ool):
        ool[i](); i += 1
    a("L_end:")
    fallback(); gen_loop()
    while i < len(ool):
        ool[i](); i += 1
    body = a.finish()
    hdr = open("cdna_kernels/" + NAME + ".s.ref").read().split("; Override launch")[0]
    src = hdr + f"""; Single persistent kernel, one 512-thread workgroup per CU; generated by the author's own script.
; @launch grid=(256,1,1) block=(512,1,1) lds=163840
.amdgcn_target "amdgcn-amd-amdhsa--gfx950"
.text
.globl {NAME}_kernel
.p2align 8
.type {NAME}_kernel,@function
{NAME}_kernel:
{body}.section .rodata,"a"
.p2align 6
.amdhsa_kernel {NAME}_kernel
  .amdhsa_next_free_vgpr 256
  .amdhsa_next_free_sgpr 102
  .amdhsa_accum_offset 256
  .amdhsa_group_segment_fixed_size 0
  .amdhsa_kernarg_size 96
  .amdhsa_user_sgpr_count 2
  .amdhsa_user_sgpr_kernarg_segment_ptr 1
  .amdhsa_system_sgpr_workgroup_id_x 1
.end_amdhsa_kernel
"""
    return src

if __name__ == "__main__":
    cfg = Cfg()
    out = sys.argv[1]
    for kv in sys.argv[2:]:
        k, v = kv.split("=")
        old = getattr(cfg, k)
        setattr(cfg, k, (v == "1") if isinstance(old, bool) else (int(v) if isinstance(old, int) else v))
    open(out, "w").write(gen(cfg))
```

```python
import sys, math, struct
from asmdsl import Asm

NAME = "concat_heads__sliding_block__ssm_conv_h3__prompt"

class Cfg:
    stamps = False
    grp = ""
    stop = 99
    nt_in = ""
    fstr = 128
    slp = 1
    force_fb = False
    ncls = 3
    b1a = -1
    b1b = -1
    b1c = -1
    map2 = "head"
    outa = "sc1"
    outb = "sc1"
    m16 = True
    nfill = 2
    a3la = 5
    a3x = 3
    ebar = "02"
    sstr = 176
    otouch = 0
    dbgst = False
    tmaj = True
    tscale = True
    cprio = 99
    prew = True
    gdelay = 1
    assist = 4
    lset = "s01"
    usplit = True
    upub = 3
    ust = -1
    wdelay = False
    fld = 6
    pre = 4
    uwarm = False
    r1first = True
    cs0 = "maqgw"
    cs1 = ""
    cs2 = ""
    elate = False
    hc = 4
    oc9 = False
    ocs = False
    zst = -1
    pfirst = False
    odelay = 0
    oup = 20
    b3st = 4
    bdl = 2
    z0 = 10
    zafter = True
    zsync = True
    hack1 = 0
    otn = -1
    otb = False
    otf = ""
    ot3 = -1
    wstart = 0
    wsch = ""
    x4 = 0
    bal = False
    orc = 0
    hl1 = 60
    zfs = 128
    orc2 = 0
    orc3 = 0
    hpre = 0
    wlin = 0
    n3 = 16
    prog = False
    sp1 = True
    nodup = True
    tlb = 0
    tlball = False
    tlbs = False
    zpub = 1
    early = 20
    wtouch = 0
    wfirst = 2
    qn = -1
    fzn = 14
    wbar = 16
    cpub = 3
    hpub = 5
    prio = 5
    ufs = 8
    wopre = 9
    noread = False; nomfma = False; nowo = False

WS_G = 0x0; WS_U = 0x800000; WS_Z = 0xB00000; WS_O = 0xE00000; WS_O8 = 0x1000000
WS_FG = 0x1100000; WS_FU = 0x1140000; WS_FZ = 0x1180000; WS_FO = 0x11C0000; WS_T = 0x1200000
WS_SIZE = 0x1800000
L_KB = 98304; L_VB = L_KB + 11024
L_H = 119808; HSTR = 8320; HODD = 4160
L_U = 144768; USTR = 4608
L_V = 32768; VSTR = 8256; L_ONES = L_V + 24768 + 512; L_K = 59136; L_Q = 83712
L_WO1 = 87040
L_WO2 = 0
L_ZA = 25600; L_ZB = 83712
L_OS = [32768, 53248, 87040, 107520]; L_ST = 73728
SX, SW, SWO, SQ, SK, SV, SSH, SH, SD, SOUT, SDBG, SWS = [8 + 4 * i for i in range(12)]
def srd(b): return f"s[{b}:{b+3}]"
sWON, sC160 = 6, 7; sKX = 6
sWV, sXC, sJ, sHW = 56, 57, 58, 59
sN = 60
sR64, sC80, sRB, sCT, sCH, sCHV, sHD, sQB = 62, 63, 64, 65, 66, 67, 68, 69
sT0, sT1, sT2, sT3, sT4, sT5 = 70, 71, 72, 73, 74, 75
sCNT, sNV, sFB, sKC = 76, 77, 78, 79
sEX = 80
sA, sB = 82, 83
sSTAMP = 84
WOM = list(range(24, 36))
ZM = [0, 1, 3]
BIGNEG = 0xf149f2ca
vCZ, vCD, vCF = 208, 224, 240
QV = 152; ROH = 164; ZA = 167; FZA = 170; FZR = 172; QA = 174; ZD = 177; ZT = 174; QM2, QM3 = 182, 183
WOV = 208; AVP = 190; AK0, AK1, AVD, AV0, QAD0, QAD1, QM0, QM1, OS0, OS1 = 197, 198, 199, 200, 201, 202, 203, 204, 205, 206

def f2u(x): return struct.unpack("<I", struct.pack("<f", x))[0]
def pr(b): return f"v[{b}:{b+1}]"

def gen(cfg):
    a = Asm()
    FS = cfg.fstr
    NWO = (100 - cfg.early + 7) // 8
    ool = []
    def stamp(i, grp=""):
        if cfg.stamps and (grp == cfg.grp or i in (0, 8) and grp == ""):
            a(f"s_memrealtime s[{sSTAMP+2*i}:{sSTAMP+2*i+1}]\ns_memtime s[4:5]\ns_waitcnt lgkmcnt(0)\ns_mov_b32 s{sSTAMP+2*i+1}, s4")
    def dma(vaddr, s, soff, m0, flags=""):
        if isinstance(m0, int): a(f"s_mov_b32 m0, {m0}")
        else: a(m0)
        a(f"buffer_load_dwordx4 v{vaddr}, {srd(s)}, {soff} offen {flags} lds")
    def cmpflag(t):
        a(f"v_cmp_ne_u32 vcc, s{sN}, v{t}\nv_cmp_ne_u32 s[{sEX}:{sEX+1}], s{sN+1}, v{t+1}\ns_or_b64 vcc, vcc, s[{sEX}:{sEX+1}]")
    def poll(vaddr, t):
        L = a.lab("L_poll"); D = a.lab("L_polld")
        a(f"s_mov_b32 s{sCNT}, 0\n{L}:")
        a(f"buffer_load_dwordx2 v[{t}:{t+1}], v{vaddr}, {srd(SWS)}, 0 offen sc1\ns_waitcnt vmcnt(0)")
        cmpflag(t)
        a(f"s_cbranch_vccz {D}\ns_add_u32 s{sCNT}, s{sCNT}, 1\ns_cmp_lt_u32 s{sCNT}, 0x40000\ns_cbranch_scc0 {D}\ns_sleep {cfg.slp}\ns_branch {L}\n{D}:")
    def check_or_poll(vaddr, t):
        L = a.lab("L_cp"); R = a.lab("L_cpr")
        cmpflag(t)
        a(f"s_cbranch_vccnz {L}\n{R}:")
        def body():
            a(f"{L}:"); poll(vaddr, t); a(f"s_branch {R}")
        ool.append(body)
    def publish(soff_sgpr, t):
        a(f"v_mov_b32 v{t}, s{sN}\nv_mov_b32 v{t+1}, s{sN+1}\nv_mov_b32 v{t+2}, s{soff_sgpr}")
        a(f"s_mov_b64 exec, 1\nbuffer_store_dwordx2 v[{t}:{t+1}], v{t+2}, {srd(SWS)}, 0 offen sc1\ns_mov_b64 exec, -1")
    def nonce_issue(t):
        a(f"v_mov_b32 v{t+2}, 0\nbuffer_load_dwordx2 v[{t}:{t+1}], v{t+2}, {srd(SDBG)}, 0 offen sc1")
    def nonce_take(t):
        L = a.lab("L_non"); R = a.lab("L_nonr"); D = a.lab("L_nond")
        a(f"s_mov_b32 s{sCNT}, 0\n{R}:\nv_readfirstlane_b32 s{sN}, v{t}\nv_readfirstlane_b32 s{sN+1}, v{t+1}")
        a(f"s_cmp_eq_u32 s{sN}, 0\ns_cbranch_scc1 {L}\n{D}:")
        def body():
            a(f"{L}:\ns_add_u32 s{sCNT}, s{sCNT}, 1\ns_cmp_lt_u32 s{sCNT}, 0x40000\ns_cbranch_scc0 {D}")
            a(f"buffer_load_dwordx2 v[{t}:{t+1}], v{t+2}, {srd(SDBG)}, 0 offen sc1\ns_waitcnt vmcnt(0)\ns_branch {R}")
        ool.append(body)
    def build_masks(val):
        a(f"v_and_b32 v2, 31, v1\nv_lshrrev_b32 v3, 5, v1\nv_lshlrev_b32 v3, 2, v3\nv_sub_u32 v2, v2, v3\nv_mov_b32 v3, {BIGNEG:#x}")
        for r in range(0, 16, 2):
            m0 = 8 * (r >> 2) + (r & 3)
            if val is None:
                a(f"v_cmp_gt_i32 vcc, {m0}, v2\nv_cmp_gt_i32 s[{sEX}:{sEX+1}], {m0+1}, v2")
                if r > 0: a(f"v_xor_b32 v{vCF+r-2}, v3, v{vCD+r-2}\nv_xor_b32 v{vCF+r-1}, v3, v{vCD+r-1}")
                a(f"v_cndmask_b32 v{vCD+r}, 0, v3, vcc\nv_cndmask_b32 v{vCD+r+1}, 0, v3, s[{sEX}:{sEX+1}]")
                if r == 14: a(f"v_xor_b32 v{vCF+r}, v3, v{vCD+r}\nv_xor_b32 v{vCF+r+1}, v3, v{vCD+r+1}")
                continue
            a(f"v_cmp_le_i32 vcc, {m0}, v2\nv_cmp_le_i32 s[{sEX}:{sEX+1}], {m0+1}, v2\nv_mov_b32 v{vCZ+r}, {val}\nv_mov_b32 v{vCZ+r+1}, {val}")
            a(f"v_cndmask_b32 v{vCD+r}, v3, v{vCZ+r}, vcc\nv_cndmask_b32 v{vCF+r}, v{vCZ+r}, v3, vcc")
            a(f"v_cndmask_b32 v{vCD+r+1}, v3, v{vCZ+r+1}, s[{sEX}:{sEX+1}]\nv_cndmask_b32 v{vCF+r+1}, v{vCZ+r+1}, v3, s[{sEX}:{sEX+1}]")
    def capture(f):
        n0 = len(a.ins); f(); r = [i.text for i in a.ins[n0:]]; del a.ins[n0:]; return r
    q = []
    def issue(tag, n): q.extend([tag] * n)
    def wait_for(tags):
        last = max((i for i, t in enumerate(q) if t in tags), default=-1)
        if last >= 0:
            a(f"s_waitcnt lgkmcnt({min(len(q) - 1 - last, 15)})")
            del q[:last + 1]

    T2 = 184
    def taps(tp, r):
        a(f"""
        v_lshlrev_b32 v{tp+0}, 16, v{r}
        v_lshlrev_b32 v{tp+1}, 16, v{r+2}
        v_and_b32 v{tp+2}, 0xffff0000, v{r}
        v_and_b32 v{tp+3}, 0xffff0000, v{r+2}
        v_lshlrev_b32 v{tp+4}, 16, v{r+1}
        v_lshlrev_b32 v{tp+5}, 16, v{r+3}
        v_and_b32 v{tp+6}, 0xffff0000, v{r+1}
        v_and_b32 v{tp+7}, 0xffff0000, v{r+3}
        """)
    def b1_compute(B):
        kr = B; rs = B; vv = B + 16; ku = B + 24; tp = B + 46; vu = ku; pk = B + 40
        a(f"""
        v_and_b32 v2, 7, v0
        v_lshrrev_b32 v3, 3, v0
        v_mul_u32_u24 v4, 1296, v2
        v_lshl_add_u32 v4, v3, 2, v4
        v_add_u32 v4, {L_KB}, v4
        """)
        for i in range(-3, 8): a(f"ds_read_b32 v{kr+3+i}, v4 offset:{(640 if i < 0 else 656) + 160*i}")
        for i in range(8): a(f"ds_read_b32 v{vv+i}, v4 offset:{11024 + 160*i}")
        a(f"""
        v_lshlrev_b32 v3, 13, v3
        v_sub_u32 v2, 7, v2
        v_lshl_add_u32 v3, v2, 4, v3
        v_and_b32 v2, 31, v0
        v_lshrrev_b32 v4, 5, v0
        v_mul_u32_u24 v5, 320, v2
        v_lshl_add_u32 v5, v4, 2, v5
        v_add_u32 v5, {L_KB + 128}, v5
        v_add_u32 v6, 3, v2
        v_lshrrev_b32 v6, 2, v6
        v_lshl_add_u32 v6, v6, 4, v5
        v_add_u32 v7, 2, v2
        v_lshrrev_b32 v7, 2, v7
        v_lshl_add_u32 v7, v7, 4, v5
        v_lshrrev_b32 v188, 2, v2
        v_lshl_add_u32 v5, v188, 4, v5
        ds_read_b32 v7, v7 offset:160
        ds_read_b32 v188, v6 offset:320
        ds_read_b32 v6, v6 offset:480
        ds_read_b32 v189, v5 offset:656
        ds_read_b32 v195, v5 offset:816
        ds_read_b32 v196, v5 offset:11024
        ds_read_b32 v5, v5 offset:11184
        v_lshlrev_b32 v2, 2, v2
        v_sub_u32 v2, {32*8192 + 124}, v2
        v_lshl_add_u32 v2, v4, 13, v2
        """)
        taps(tp, 8)
        a(f"""
        s_mul_i32 s{sT0}, s{sC80}, {80*4096}
        s_lshl_b32 s{sT1}, s{sR64}, 7
        s_sub_u32 s{sT0}, s{sT0}, s{sT1}
        s_add_u32 s{sT0}, s{sT0}, {WS_U + 4080 - 112}
        s_waitcnt lgkmcnt(15)
        """)
        def unp(d, r): a(f"v_lshlrev_b32 v{d}, 16, v{r}\nv_and_b32 v{d+1}, 0xffff0000, v{r}")
        for i in range(11): unp(ku + 2 * i, kr + i)
        for i in range(8): a(f"v_pk_mul_f32 {pr(rs+2*i)}, {pr(ku+2*(i+3))}, {pr(tp)}")
        for j in range(1, 4):
            for i in range(8): a(f"v_pk_fma_f32 {pr(rs+2*i)}, {pr(ku+2*(i+3-j))}, {pr(tp+2*j)}, {pr(rs+2*i)}")
        a("s_waitcnt lgkmcnt(7)")
        for i in range(8): unp(vu + 2 * i, vv + i)
        for i in range(8): a(f"v_pk_mul_f32 {pr(rs+2*i)}, {pr(rs+2*i)}, {pr(vu+2*i)}")
        for ch in range(2):
            for d in range(4): a(f"v_cvt_pk_bf16_f32 v{pk+4*ch+d}, v{rs+2*(7-2*d)+ch}, v{rs+2*(6-2*d)+ch}")
        ku = B + 4; tp = B + 18
        taps(tp, T2)
        a("s_waitcnt lgkmcnt(0)")
        for i, r in enumerate((7, 188, 6, 189, 195, 196, 5)): unp(ku + 2 * i, r)
        for i in range(2): a(f"v_pk_mul_f32 {pr(rs+2*i)}, {pr(ku+2*(i+3))}, {pr(tp)}")
        for j in range(1, 4):
            for i in range(2): a(f"v_pk_fma_f32 {pr(rs+2*i)}, {pr(ku+2*(i+3-j))}, {pr(tp+2*j)}, {pr(rs+2*i)}")
        for i in range(2): a(f"v_pk_mul_f32 {pr(rs+2*i)}, {pr(rs+2*i)}, {pr(ku+10+2*i)}")
        a(f"v_cvt_pk_bf16_f32 v{pk+8}, v{rs+2}, v{rs}\nv_cvt_pk_bf16_f32 v{pk+9}, v{rs+3}, v{rs+1}")
        a(f"v_add_u32 v{pk+10}, s{sT0}, v3\nv_add_u32 v{pk+11}, s{sT0}, v2")
    def b1_store(B):
        pk = B + 40
        a(f"""
        s_movk_i32 s{sT1}, 0x1000
        buffer_store_dwordx4 v[{pk}:{pk+3}], v{pk+10}, {srd(SWS)}, 0 offen sc1
        buffer_store_dwordx4 v[{pk+4}:{pk+7}], v{pk+10}, {srd(SWS)}, s{sT1} offen sc1
        buffer_store_dword v{pk+8}, v{pk+11}, {srd(SWS)}, 0 offen sc1
        buffer_store_dword v{pk+9}, v{pk+11}, {srd(SWS)}, s{sT1} offen sc1
        """)
    def shift_load():
        a(f"v_lshrrev_b32 v4, 3, v0\nv_lshlrev_b32 v4, 4, v4\ns_mul_i32 s{sT4}, s{sC80}, 640\nbuffer_load_dwordx4 v[8:11], v4, {srd(SSH)}, s{sT4} offen")
        a(f"v_lshrrev_b32 v4, 5, v0\nv_lshlrev_b32 v4, 4, v4\nbuffer_load_dwordx4 v[{T2}:{T2+3}], v4, {srd(SSH)}, s{sT4} offen offset:512")
    def publish_u(t):
        a(f"s_lshl_b32 s{sT0}, s{sC80}, 2\ns_add_u32 s{sT0}, s{sT0}, s{sWV}\ns_lshl_b32 s{sT0}, s{sT0}, 5\ns_add_u32 s{sT0}, s{sT0}, s{sR64}\ns_mul_i32 s{sT0}, s{sT0}, {cfg.ufs}\ns_add_u32 s{sT0}, s{sT0}, {WS_FU}")
        publish(sT0, t)
    def rounds(RO):
        for k in range(3):
            a(f"""
            s_lshl_b32 s{sT0}, s{sHW}, 6
            s_add_u32 s{sT0}, s{sT0}, {256*k}
            v_add_u32 v2, s{sT0}, v1
            v_mul_u32_u24 v3, 205, v2
            v_lshrrev_b32 v3, 11, v3
            v_mul_u32_u24 v4, 10, v3
            v_sub_u32 v4, v2, v4
            v_mul_u32_u24 v5, 2560, v3
            v_lshl_add_u32 v{RO+k}, v4, 4, v5
            """)
            yield k
    def a2_setup():
        a(f"""
        s_lshl_b32 s{sT0}, s{sWV}, 9
        v_and_b32 v2, 31, v1
        v_lshrrev_b32 v3, 5, v1
        v_lshlrev_b32 v{OS1}, 3, v2
        v_lshlrev_b32 v4, 4, v2
        v_lshl_add_u32 v{OS0}, v3, 15, v4
        v_add_u32 v4, s{sT0}, v4
        v_lshl_add_u32 v5, v3, 12, v4
        v_add_u32 v{QAD0}, {L_Q}, v5
        v_add_u32 v{QAD1}, {L_Q + 8192}, v4
        v_lshl_add_u32 v{AK0}, v3, 13, v4
        v_add_u32 v{AK0}, {L_K}, v{AK0}
        v_lshlrev_b32 v5, 9, v3
        v_sub_u32 v5, v4, v5
        v_add_u32 v{AK1}, {L_K + 16384}, v5
        v_bfe_u32 v4, v1, 2, 2
        v_lshl_add_u32 v4, v3, 2, v4
        v_lshlrev_b32 v4, 4, v4
        v_bfe_u32 v5, v1, 1, 1
        v_mul_u32_u24 v5, {VSTR}, v5
        v_and_b32 v6, 1, v1
        v_lshl_add_u32 v5, v6, 3, v5
        s_and_b32 s{sT1}, s{sHD}, 1
        s_lshl_b32 s{sT2}, s{sT1}, 3
        s_add_u32 s{sT2}, s{sT2}, {2*VSTR}
        v_mov_b32 v6, s{sT2}
        v_and_b32 v7, 16, v1
        v_cmp_ne_u32 vcc, 0, v7
        v_cndmask_b32 v5, v5, v6, vcc
        s_add_u32 s{sT0}, s{sT0}, {L_V + 4096 - 512}
        v_add3_u32 v5, v5, v4, s{sT0}
        v_and_b32 v7, 2, v1
        v_sub_u32 v7, 2, v7
        v_lshl_add_u32 v4, v7, {2 if cfg.sp1 else 31}, v4
        v_and_b32 v7, 19, v1
        v_cmp_lt_u32 vcc, 16, v7
        s_add_u32 s{sT0}, s{sWV}, 1
        s_cmp_eq_u32 s{sQB}, 0
        s_cselect_b32 s{sNV}, s{sT0}, 99
        """)
        for p in range(5):
            a(f"""
            s_cmp_gt_u32 s{sNV}, {2*p}
            s_cselect_b32 s{sT0}, {L_ONES - 512 - (L_V + 192)}, 0
            s_add_u32 s{sT0}, s{sT0}, {L_V + 192}
            s_cmp_gt_u32 s{sNV}, {2*p+1}
            s_cselect_b32 s{sT0}, {L_ONES}, s{sT0}
            v_add_u32 v6, s{sT0}, v4
            v_cndmask_b32 v{AVP+p}, v5, v6, vcc
            v_subrev_u32 v5, 1024, v5
            """)
        a(f"""
        s_mov_b32 s{sFB}, 0
        s_cmp_eq_u32 s{sT1}, 0
        s_cselect_b32 s{sT2}, -1, 0
        s_cselect_b32 s{sT3}, 0, -1
        v_cmp_eq_u32 vcc, 0, v3
        v_mov_b32 v5, s{sT2}
        v_mov_b32 v6, s{sT3}
        v_cndmask_b32 v{QM0}, 0, v5, vcc
        v_cndmask_b32 v{QM1}, 0, v6, vcc
        v_cndmask_b32 v{QM2}, v5, 0, vcc
        v_cndmask_b32 v{QM3}, v6, 0, vcc
        s_mov_b32 s{sT4}, 6554
        """)
        for i in range(NWO):
            wo_index(i)
            if cfg.orc2: a(f"s_and_b32 s{sT2}, s{sT2}, 31")
            a(f"""
            s_lshl_b32 s{sT3}, s{sT2}, 6
            v_add_u32 v2, s{sT3}, v1
            v_mul_u32_u24 v3, s{sT4}, v2
            v_lshrrev_b32 v3, 16, v3
            v_mul_u32_u24 v3, 1120, v3
            v_lshl_add_u32 v{WOV+i}, v2, 4, v3
            """)
    def wo_index(i):
        a(f"s_add_u32 s{sT2}, s{sWV}, {8*i}")
        if 8 * i + 7 > 99 - cfg.early: a(f"s_min_u32 s{sT2}, s{sT2}, {99 - cfg.early}")
    def wom_setup():
        for i in range(NWO):
            wo_index(i)
            a(f"s_lshl_b32 s{sT2}, s{sT2}, 10\ns_add_u32 s{WOM[i]}, s{sT2}, {L_WO1}")
            if 8 * i + 7 >= 75: a(f"s_sub_u32 s{sT2}, s{sT2}, 76800\ns_min_u32 s{WOM[i]}, s{WOM[i]}, s{sT2}")
    def wo_early_addr():
        for i in range(5):
            a(f"v_add_u32 v2, {64*i}, v1\nv_mul_u32_u24 v3, 205, v2\nv_lshrrev_b32 v3, 11, v3\nv_mul_u32_u24 v3, 1120, v3\nv_lshl_add_u32 v{32+i}, v2, 4, v3")
    def wo_early():
        lastp = -1
        for n in range(100 - cfg.early, 100):
            if n // 5 != lastp:
                lastp = n // 5; a(f"s_add_u32 s{sT0}, s{sC160}, {lastp*32*1280}")
            dma(32 + n % 5, SWO, f"s{sT0}", L_WO1 + 1024 * n if n < 75 else L_WO2 + 1024 * (n - 75))

    L_SYNC = 119712
    sizes = {SX: 2621440, SW: 2457600, SWO: 819200, SQ: 2621440, SK: 2621440, SV: 2621440, SSH: 5120, SH: 2621440, SD: 1280, SOUT: 5242880, SDBG: 256, SWS: WS_SIZE}
    assert cfg.b1a < 0 and cfg.b1b < 0 and cfg.b1c < 0
    for s, slot in ((SK, 4), (SV, 5), (SSH, 6), (SX, 0), (SW, 1)): a(f"s_load_dwordx2 s[{s}:{s+1}], s[0:1], {slot*8}")
    a("s_cmp_ge_u32 s2, 256\ns_cbranch_scc1 L_exit")
    a(f"""
    v_lshrrev_b32 v2, 6, v0
    v_and_b32 v1, 63, v0
    s_and_b32 s{sXC}, s2, 7
    v_readfirstlane_b32 s{sWV}, v2
    s_lshr_b32 s{sJ}, s2, 3
    v_mul_u32_u24 v2, 26, v1
    s_and_b32 s{sT0}, s{sJ}, 3
    v_lshrrev_b32 v2, 8, v2
    s_lshl2_add_u32 s{sR64}, s{sXC}, s{sT0}
    v_mul_u32_u24 v2, 1120, v2
    s_lshr_b32 s{sC80}, s{sJ}, 2
    v_lshl_add_u32 v12, v1, 4, v2
    s_mul_i32 s{sC160}, s{sC80}, 160
    s_lshl3_add_u32 s{sT1}, s{sR64}, s{sWV}
    s_mul_i32 s{sT1}, s{sT1}, {8*1280}
    s_add_u32 s{sT1}, s{sT1}, s{sC160}
    s_mul_i32 s{sB}, s{sWV}, 1296
    s_mov_b32 s{SK+2}, {sizes[SK]}
    s_mov_b32 s{SK+3}, 0x20000
    s_mov_b32 s{SV+2}, {sizes[SV]}
    s_mov_b32 s{SV+3}, 0x20000
    s_add_u32 s{sT2}, s{sT1}, {4*1280}
    s_cmp_lg_u32 s{sWV}, 7
    s_cbranch_scc1 L_nocp
    s_getpc_b64 s[4:5]
    L_pc:
    s_mul_i32 s3, s{sJ}, 1408
    v_lshl_add_u32 v2, v1, 7, s3
    v_min_u32 v2, L_end-L_pc, v2
    v_mov_b32 v3, {L_SYNC + 16}
    v_mov_b32 v4, 0
    s_mov_b64 exec, 0x7ff
    global_load_dword v62, v2, s[4:5]
    ds_write_b32 v3, v4
    s_mov_b32 exec_lo, -1
    L_nocp:
    s_mov_b32 exec_hi, 0xff
    s_add_u32 m0, s{sB}, {L_KB+656}
    s_waitcnt lgkmcnt(0)
    buffer_load_dwordx4 v12, {srd(SK)}, s{sT1} offen {cfg.nt_in} lds
    """)
    dma(12, SV, f"s{sT1}", f"s_add_u32 m0, s{sB}, {L_VB}", cfg.nt_in)
    dma(12, SK, f"s{sT2}", f"s_add_u32 m0, s{sB}, {L_KB+656+640}", cfg.nt_in)
    dma(12, SV, f"s{sT2}", f"s_add_u32 m0, s{sB}, {L_VB+640}", cfg.nt_in)
    a(f"s_cmp_lg_u32 s{sWV}, 0\ns_cbranch_scc1 L_nohalo\ns_sub_u32 s{sT1}, s{sT1}, {4*1280}\nv_add_u32 v13, s{sT1}, v12")
    dma(13, SK, "0", L_KB, cfg.nt_in)
    a(f"L_nohalo:\ns_mov_b32 exec_hi, -1\ns_mov_b32 s{SSH+2}, {sizes[SSH]}\ns_mov_b32 s{SSH+3}, 0x20000\ns_cmp_ge_u32 s{sWV}, 4\ns_cbranch_scc1 L_nosh")
    shift_load()
    a("L_nosh:")
    stamp(0)
    for s, slot in ((SDBG, 10), (SWS, 11), (SH, 7), (SD, 8), (SWO, 2), (SQ, 3), (SOUT, 9)): a(f"s_load_dwordx2 s[{s}:{s+1}], s[0:1], {slot*8}")
    def srd_consts(lst):
        for s in lst: a(f"s_mov_b32 s{s+2}, {sizes[s]}\ns_mov_b32 s{s+3}, 0x20000")
    a(f"""
    s_and_b32 s{sHW}, s{sWV}, 3
    s_and_b32 s{sT0}, s{sXC}, 1
    s_mul_i32 s{sT0}, s{sT0}, 30
    s_add_u32 s{sT0}, s{sT0}, s{sJ}
    s_lshr_b32 s{sCT}, s{sT0}, 2
    s_cmp_ge_u32 s{sJ}, 30
    s_cselect_b32 s{sCT}, 7, s{sCT}
    s_and_b32 s{sT0}, s{sT0}, 3
    s_lshr_b32 s{sRB}, s{sXC}, 1
    s_lshl2_add_u32 s{sRB}, s{sRB}, s{sT0}
    s_barrier
    """)
    if cfg.map2 == "head": a(f"s_mov_b32 s{sHD}, s{sR64}\ns_mov_b32 s{sQB}, s{sC80}")
    else: a(f"s_mov_b32 s{sHD}, s{sJ}\ns_mov_b32 s{sQB}, s{sXC}")
    a(f"s_cmp_lt_u32 s{sWV}, 4\ns_cbranch_scc1 L_C")

    vX = 16; vW = 20; vW2 = 63; vD = 21; vNH = 22; vHA = 64; vHB = 80
    srd_consts((SX, SW))
    a(f"""
    v_lshrrev_b32 v2, 3, v1
    v_lshrrev_b32 v3, 4, v1
    v_xor_b32 v4, v3, v1
    v_and_b32 v4, 7, v4
    v_mul_u32_u24 v2, 1280, v2
    v_lshl_add_u32 v{vX}, v4, 4, v2
    v_xor_b32 v4, 4, v4
    v_lshl_add_u32 v{vX+1}, v4, 4, v2
    v_add_u32 v{vX+1}, {8*1280}, v{vX+1}
    v_add_u32 v{vX+2}, {16*1280}, v{vX}
    v_add_u32 v{vX+3}, {16*1280}, v{vX+1}
    v_lshlrev_b32 v4, 2, v3
    v_xor_b32 v4, v4, v1
    v_and_b32 v4, 15, v4
    v_mul_u32_u24 v3, 3840, v3
    v_lshl_add_u32 v{vW}, v4, 4, v3
    v_xor_b32 v{vW2}, {32 if cfg.m16 else 0}, v{vW}
    s_mul_i32 s{sA}, s{sRB}, {128*1280}
    s_mul_i32 s{sT0}, s{sHW}, {32*1280}
    s_add_u32 s{sA}, s{sA}, s{sT0}
    s_lshl_b32 s{sB}, s{sCT}, 8
    s_mul_i32 s{sT0}, s{sHW}, {16*3840}
    s_add_u32 s{sB}, s{sB}, s{sT0}
    s_lshl_b32 s{sT5}, s{sHW}, 12
    """)
    if cfg.ncls == 10:
        a(f"s_and_b32 s{sT0}, s{sRB}, 3\ns_mul_i32 s{sT0}, s{sT0}, 5\ns_add_u32 s{sT0}, s{sT0}, 1\ns_lshr_b32 s{sT0}, s{sT0}, 1\ns_lshr_b32 s{sT1}, s{sRB}, 2\ns_add_u32 s{sT0}, s{sT0}, s{sT1}\ns_add_u32 s{sKC}, s{sT0}, s{sCT}")
    elif cfg.ncls == 2:
        a(f"s_add_u32 s{sT0}, s{sRB}, s{sCT}\ns_and_b32 s{sT0}, s{sT0}, 1\ns_mul_i32 s{sT0}, s{sT0}, 5\ns_add_u32 s{sKC}, s{sT0}, s{sXC}")
    elif cfg.ncls == 4:
        a(f"s_add_u32 s{sT0}, s{sRB}, s{sCT}\ns_and_b32 s{sT0}, s{sT0}, 3\ns_mul_i32 s{sT0}, s{sT0}, 5\ns_add_u32 s{sT0}, s{sT0}, 1\ns_lshr_b32 s{sT0}, s{sT0}, 1\ns_add_u32 s{sKC}, s{sT0}, s{sXC}")
    elif cfg.ncls == 3:
        a(f"s_add_u32 s{sT0}, s{sRB}, s{sCT}\ns_mul_i32 s{sT1}, s{sT0}, 86\ns_lshr_b32 s{sT1}, s{sT1}, 8\ns_mul_i32 s{sT1}, s{sT1}, 3\ns_sub_u32 s{sT0}, s{sT0}, s{sT1}\ns_mul_i32 s{sT0}, s{sT0}, 7\ns_lshr_b32 s{sT0}, s{sT0}, 1\ns_add_u32 s{sKC}, s{sT0}, s{sXC}")
    else:
        a(f"s_mov_b32 s{sKC}, s{sXC}")
    a(f"s_mul_i32 s{sT0}, s{sKC}, 205\ns_lshr_b32 s{sT0}, s{sT0}, 11\ns_mul_i32 s{sT0}, s{sT0}, 10\ns_sub_u32 s{sKC}, s{sKC}, s{sT0}")
    def ring_issue(c):
        slot = ((c + 1) % 3) * 32768
        a(f"s_lshl_b32 s{sT0}, s{sKC}, 7\ns_add_u32 s{sT0}, s{sT0}, s{sA}\ns_mul_i32 s{sT1}, s{sKC}, {64*3840}\ns_add_u32 s{sT1}, s{sT1}, s{sB}")
        for i in range(4):
            dma(vX + i, SX, f"s{sT0}", f"s_add_u32 m0, s{sT5}, {slot + i*1024}")
            dma(vW if i < 2 else vW2, SW, f"s{sT1}", f"s_add_u32 m0, s{sT5}, {slot + 16384 + i*1024}")
            if i < 3: a(f"s_add_u32 s{sT1}, s{sT1}, {4*3840}")
        a(f"s_add_u32 s{sKC}, s{sKC}, 1\ns_cmp_eq_u32 s{sKC}, 10\ns_cselect_b32 s{sKC}, 0, s{sKC}")
    def x_issue(c):
        a(f"s_lshl_b32 s{sT0}, s{sKX}, 7\ns_add_u32 s{sT0}, s{sT0}, s{sA}")
        for i in range(4): dma(vX + i, SX, f"s{sT0}", f"s_add_u32 m0, s{sT5}, {(c % 4) * 32768 + i*1024}")
        a(f"s_add_u32 s{sKX}, s{sKX}, 1\ns_cmp_eq_u32 s{sKX}, 10\ns_cselect_b32 s{sKX}, 0, s{sKX}")
    def w_issue(c):
        a(f"s_mul_i32 s{sT1}, s{sKC}, {64*3840}\ns_add_u32 s{sT1}, s{sT1}, s{sB}")
        for i in range(4):
            dma(vW if i < 2 else vW2, SW, f"s{sT1}", f"s_add_u32 m0, s{sT5}, {((c + 1) % 3) * 32768 + 16384 + i*1024}")
            if i < 3: a(f"s_add_u32 s{sT1}, s{sT1}, {4*3840}")
        a(f"s_add_u32 s{sKC}, s{sKC}, 1\ns_cmp_eq_u32 s{sKC}, 10\ns_cselect_b32 s{sKC}, 0, s{sKC}")
    if cfg.x4:
        a(f"s_mov_b32 s{sKX}, s{sKC}")
        def ring_issue(c):
            if c < 2:
                x_issue(c); w_issue(c)
                if c == 1 and cfg.x4 == 1: x_issue(2)
            else:
                if c == 2 and cfg.x4 == 2: x_issue(2)
                w_issue(c)
                if c + 1 <= 9: x_issue(c + 1)
    def h_chan():
        a(f"""
        s_mul_i32 s{sT0}, s{sJ}, 3
        s_lshl_b32 s{sT1}, s{sJ}, 1
        s_add_u32 s{sT1}, s{sT1}, {cfg.n3}
        s_cmp_lt_u32 s{sJ}, {cfg.n3}
        s_cselect_b32 s{sT0}, s{sT0}, s{sT1}
        s_cselect_b32 s{sT1}, 3, 2
        s_cmp_lt_u32 s{sT0}, 80
        s_cselect_b32 s{sT1}, s{sT1}, 0
        s_cselect_b32 s{sT0}, s{sT0}, 0
        s_cmp_lt_u32 s{sHW}, s{sT1}
        s_cselect_b32 s{sCHV}, 1, 0
        s_cselect_b32 s{sT1}, s{sHW}, 0
        s_add_u32 s{sT0}, s{sT0}, s{sT1}
        s_mul_i32 s{sCH}, s{sXC}, 80
        s_add_u32 s{sCH}, s{sCH}, s{sT0}
        s_bfe_u32 s{sT1}, s{sT0}, 0x20002
        s_cmp_lt_u32 s{sT0}, 64
        s_cselect_b32 s{sT2}, 4, 31
        s_cselect_b32 s{sT1}, 0, s{sT1}
        s_lshr_b32 s{sT0}, s{sT0}, s{sT2}
        s_add_u32 s{sT0}, s{sT0}, s{sT1}
        s_lshl_b32 s{sT1}, s{sXC}, 2
        s_add_u32 s{sT0}, s{sT0}, s{sT1}
        s_lshl_b32 s{sT0}, s{sT0}, 5
        v_and_b32 v12, 31, v1
        v_add_u32 v12, s{sT0}, v12
        v_mul_u32_u24 v12, {cfg.ufs}, v12
        v_add_u32 v12, {WS_FU}, v12
        """)
    def f_load():
        a(f"buffer_load_dwordx2 v[14:15], v12, {srd(SWS)}, 0 offen sc1")
    def h_loads():
        a(f"""
        s_mul_i32 s{sT3}, s{sHW}, {HSTR}
        s_mul_i32 s{sT3}, s{sT3}, s{sCHV}
        s_lshl_b32 s{sT0}, s{sCH}, {12 if not cfg.orc3 else 4}
        s_add_u32 m0, s{sT3}, {L_H + 32}
        s_lshl_b32 s{sT4}, s{sCH}, 1
        v_mov_b32 v4, s{sT4}
        """)
        for i in range(4): a(f"buffer_load_dwordx4 v13, {srd(SH if not cfg.orc3 else SW)}, s{sT0} offen offset:{1024*i} {cfg.nt_in} lds")
        a(f"buffer_load_ushort v{vD}, v4, {srd(SD)}, 0 offen")
    def u_loads():
        check_or_poll(12, 14)
        a(f"s_mul_i32 s{sT2}, s{sHW}, {USTR}\ns_lshl_b32 s{sT0}, s{sCH}, 12\ns_add_u32 s{sT1}, s{sT0}, {WS_U}\ns_add_u32 m0, s{sT2}, {L_U}")
        for i in range(4): a(f"buffer_load_dwordx4 v13, {srd(SWS)}, s{sT1} offen offset:{1024*i} sc1 lds")
    def hu_loads():
        h_loads(); a("s_waitcnt vmcnt(5)"); u_loads()
    ZL = 180; ZPA = 171; sZP = 2; WS_FZ2 = WS_FZ + 0x20000
    AA = 26; AB = 30; BACC = 96; BF = 32; AF = 128; NAF = 5; DF = 148
    def b3_setup():
        a(f"s_mul_i32 s{sT2}, s{sR64}, {64*1280}\ns_add_u32 s{sT2}, s{sT2}, s{sC160}")
        for k in rounds(ROH):
            a(f"""
            v_mul_u32_u24 v5, 1280, v3
            v_lshl_add_u32 v5, v4, 4, v5
            v_add_u32 v{QA+k}, s{sT2}, v5
            v_lshlrev_b32 v5, 3, v4
            v_xor_b32 v5, v5, v3
            v_and_b32 v5, 63, v5
            v_lshlrev_b32 v5, 1, v5
            v_lshl_add_u32 v5, v4, 10, v5
            v_cmp_lt_u32 vcc, 6, v4
            v_add_u32 v6, {L_ZA}, v5
            v_add_u32 v5, {L_ZB - 7*1024}, v5
            v_cndmask_b32 v{ZA+k}, v6, v5, vcc
            """)
        a(f"""
        s_cmp_ge_u32 s{sHW}, 2
        s_cselect_b32 s{sT2}, 15, 23
        v_min_u32 v2, s{sT2}, v1
        v_lshrrev_b32 v3, 3, v2
        v_and_b32 v2, 7, v2
        v_lshl_add_u32 v2, v3, 5, v2
        s_mul_i32 s{sT0}, s{sC80}, 80
        s_lshl_b32 s{sT2}, s{sHW}, 3
        s_add_u32 s{sT0}, s{sT0}, s{sT2}
        v_add_u32 v2, s{sT0}, v2
        v_mul_u32_u24 v2, {cfg.zfs}, v2
        s_sub_u32 s{sT0}, s{sXC}, 1
        s_cmp_lt_u32 s{sT0}, {3 if cfg.bal else 0}
        s_cselect_b32 s{sT0}, {WS_FZ2 - WS_FZ}, 0
        s_add_u32 s{sT0}, s{sT0}, {WS_FZ}
        v_add_u32 v{FZA}, s{sT0}, v2
        s_cmp_lt_u32 s{sJ}, 16
        s_cselect_b32 s{sT2}, 3, 2
        s_cmp_eq_u32 s{sCHV}, 0
        s_cselect_b32 s{sT2}, s{sT2}, 1
        s_cselect_b32 s{sT0}, {WS_FZ2 - WS_FZ}, 0
        s_add_u32 s{sT0}, s{sT0}, {WS_FZ}
        v_add_u32 v2, s{sCH}, v1
        v_mul_u32_u24 v2, {cfg.zfs}, v2
        v_add_u32 v2, s{sT0}, v2
        v_bfrev_b32 v3, 1
        v_cmp_gt_u32 vcc, s{sT2}, v1
        v_cndmask_b32 v{ZPA}, v3, v2, vcc
        v_lshrrev_b32 v2, 3, v1
        v_and_b32 v3, 7, v1
        v_lshlrev_b32 v2, 12, v2
        v_lshl_add_u32 v2, v3, 4, v2
        s_mul_i32 s{sT0}, s{sC80}, {80*4096}
        s_lshl_b32 s{sT1}, s{sR64}, 7
        s_add_u32 s{sT0}, s{sT0}, s{sT1}
        s_add_u32 s{sT0}, s{sT0}, {WS_Z}
        """)
        for k in range(3):
            a(f"""
            s_add_u32 s{sT1}, s{sHW}, {4*k}
            s_min_u32 s{sT1}, s{sT1}, 9
            s_and_b32 s{sT2}, s{sT1}, 7
            s_lshl_b32 s{sT2}, s{sT2}, 4
            v_xor_b32 v3, s{sT2}, v2
            s_lshl_b32 s{sT2}, s{sT1}, 15
            s_add_u32 s{sT2}, s{sT2}, s{sT0}
            v_add_u32 v{ZD+k}, s{sT2}, v3
            s_lshl_b32 s{sT2}, s{sT1}, 10
            s_cmp_gt_u32 s{sT1}, 6
            s_cselect_b32 s{sT1}, {L_ZB - 7*1024 - L_ZA}, 0
            s_add_u32 s{sT2}, s{sT2}, s{sT1}
            s_add_u32 s{ZM[k]}, s{sT2}, {L_ZA}
            """)
    def b2_setup():
        a(f"""
        v_and_b32 v2, 15, v1
        v_lshrrev_b32 v3, 4, v1
        v_add_u32 v4, 1, v2
        v_lshrrev_b32 v4, 1, v4
        v_lshl_add_u32 v4, v3, 2, v4
        v_lshlrev_b32 v4, 2, v4
        v_and_b32 v5, 1, v2
        v_cmp_eq_u32 vcc, 0, v5
        v_mov_b32 v5, {HODD}
        v_cndmask_b32 v5, 0, v5, vcc
        s_mul_i32 s{sT1}, s{sHW}, s{sCHV}
        s_mul_i32 s{sT0}, s{sT1}, {HSTR}
        s_add_u32 s{sT0}, s{sT0}, {L_H}
        v_add3_u32 v{AA}, v4, v5, s{sT0}
        v_add_u32 v{AA+1}, 1024, v{AA}
        v_add_u32 v{AA+2}, 2048, v{AA}
        v_add_u32 v{AA+3}, 3072, v{AA}
        v_lshlrev_b32 v13, 4, v1
        v_add_u32 v25, s{sT0}, v13
        v_lshlrev_b32 v4, 5, v2
        v_lshl_add_u32 v4, v3, 3, v4
        s_lshl_b32 s{sT0}, s{sHW}, 12
        s_add_u32 s{sT0}, s{sT0}, {L_KB}
        v_add_u32 v31, s{sT0}, v4
        v_add_u32 v{ZL}, s{sT0}, v13
        v_sub_u32 v4, 15, v2
        v_lshlrev_b32 v4, 5, v4
        v_lshl_add_u32 v4, v3, 4, v4
        s_mul_i32 s{sT1}, s{sT1}, {USTR}
        s_add_u32 s{sT1}, s{sT1}, {L_U}
        v_add_u32 v{AB}, s{sT1}, v4
        v_lshl_add_u32 v2, v1, 3, s{sT1}
        v_mov_b32 v4, 0
        v_mov_b32 v5, 0
        v_mov_b32 v6, 0
        v_mov_b32 v7, 0
        ds_write_b64 v2, v[4:5] offset:4096
        s_mov_b64 exec, 3
        ds_write_b128 v25, v[4:7]
        ds_write_b128 v25, v[4:7] offset:{HODD}
        s_mov_b64 exec, -1
        """)
    def h_late():
        b3_setup(); a2_setup(); build_masks(None); wom_setup()
    def oc_read():
        for i in range(4):
            a(f"ds_read_b128 v[{vHA+6*i}:{vHA+6*i+3}], v25 offset:{32+1024*i}\nds_read_b32 v{vHA+6*i+4}, v25 offset:{48+1024*i}")
    def oc_part(i):
        if i == 0:
            a(f"s_waitcnt lgkmcnt(0)\nv_lshlrev_b32 v11, 16, v{vHA}\ns_mov_b64 exec, 1\nds_write_b32 v25, v11 offset:{HODD+28}\ns_mov_b64 exec, -1")
        for j in range(4): a(f"v_alignbit_b32 v{vHA+6*i+j}, v{vHA+6*i+j+1}, v{vHA+6*i+j}, 16")
        a(f"ds_write_b128 v25, v[{vHA+6*i}:{vHA+6*i+3}] offset:{HODD+32+1024*i}")
    def oc_d():
        a(f"""
        v_and_b32 v2, 15, v1
        v_sub_u32 v2, 15, v2
        v_lshrrev_b32 v3, 4, v1
        v_lshlrev_b32 v3, 2, v3
        v_lshrrev_b32 v4, 1, v2
        v_sub_u32 v4, v4, v3
        v_and_b32 v2, 1, v2
        v_lshlrev_b32 v2, 4, v2
        v_lshlrev_b32 v2, v2, v{vD}
        """)
        for rr in range(4): a(f"v_cmp_eq_u32 vcc, {rr}, v4\nv_cndmask_b32 v{DF+rr}, 0, v2, vcc")
    def odd_copy(nw):
        a(f"s_waitcnt vmcnt({nw})"); oc_read(); oc_d()
        for i in range(4): oc_part(i)
    def ifch(f):
        L = a.lab("L_ifch")
        a(f"s_cmp_eq_u32 s{sCHV}, 0\ns_cbranch_scc1 {L}"); f(); a(f"{L}:")
    def b1_arrive(n):
        a(f"v_mov_b32 v2, {L_SYNC + 16}\nv_mov_b32 v3, 1\ns_waitcnt vmcnt({n})\ns_mov_b64 exec, 1\nds_add_u32 v2, v3\ns_mov_b64 exec, -1")
    rest_srd = (SWO, SQ, SH, SD, SOUT, SDBG, SWS)
    a(f"s_cmp_ge_u32 s{sJ}, 30\ns_cbranch_scc1 L_h_idle")
    stamp(1, "st")
    ring_issue(0)
    stamp(2, "st")
    if cfg.grp == "st":
        a("s_waitcnt vmcnt(7)"); stamp(3, "st"); a("s_waitcnt vmcnt(0)"); stamp(4, "st")
    b1_arrive(8)
    if cfg.r1first: ring_issue(1)
    srd_consts(rest_srd)
    h_chan(); b2_setup()
    a("v_mov_b32 v199, 0\nv_mov_b32 v189, 0\ns_waitcnt lgkmcnt(0)")
    if not cfg.nfill:
        for i, f in enumerate((b3_setup, a2_setup, lambda: (build_masks(None), wom_setup()))):
            if cfg.lset[i] == "s": f()
    stamp(5, "st")
    if not cfg.r1first: ring_issue(1)
    stamp(6, "st")
    if cfg.grp == "st":
        a("s_waitcnt vmcnt(0)"); stamp(7, "st")
    pubc = max(cfg.b1c, cfg.ust) + cfg.upub
    for c in range(10):
        w = {1: 9, 7: 9 if cfg.fld == 6 else 8, 9: 9 if cfg.hc == 8 else 4}.get(c, 8)
        if c == cfg.hc + 1 and c < 9: w += 5
        if cfg.x4 and c <= 7 and not (c == 0 and cfg.x4 == 2): w += 4
        a(f"s_waitcnt vmcnt({w})")
        if c == cfg.hc + 1 and c < 8 and cfg.nodup:
            L = a.lab("L_nd"); a(f"s_cmp_lg_u32 s{sCHV}, 0\ns_cbranch_scc1 {L}\ns_waitcnt vmcnt({w - 5})\n{L}:")
        if c in (0, 1, 2, 3, 5, 7, 9): stamp(1 + (0, 1, 2, 3, 5, 7, 9).index(c), "a1")
        a("s_barrier")
        if c == 0: nonce_issue(vNH)
        if c == cfg.fld: f_load()
        if c == cfg.hc and c < 8:
            if cfg.nodup: ifch(h_loads)
            else: h_loads()
        spread = cfg.ocs and cfg.hc <= 4
        if spread and c == 6: oc_read()
        if c + 2 <= 9: ring_issue(c + 2)
        if spread and c == 6: ifch(lambda: oc_part(0))
        if c == 2: nonce_take(vNH)
        if c == 7: a(f"s_cmp_eq_u32 s{sCHV}, 0\ns_cbranch_scc1 L_h_nob2a")
        if spread and c == 7: oc_part(1)
        if c == 8:
            if cfg.hc == 8: h_loads()
            u_loads()
            if spread: oc_part(2); oc_part(3)
            elif cfg.hc < 8 and not cfg.oc9: odd_copy(12)
        if spread and c == 9: oc_d()
    a("L_h_post:")
    def h_idle():
        a("L_h_idle:")
        srd_consts(rest_srd)
        h_chan(); b2_setup()
        a("s_waitcnt vmcnt(0) lgkmcnt(0)")
        a("v_mov_b32 v199, 0\nv_mov_b32 v189, 0")
        if not cfg.nfill: h_late()
        if cfg.assist:
            L = a.lab("L_as")
            a(f"""
            s_cmp_ge_u32 s{sHW}, {cfg.assist}
            s_cbranch_scc1 {L}
            s_add_u32 s{sT0}, s{sKC}, s{sHW}
            s_sub_u32 s{sT1}, s{sT0}, 10
            s_min_u32 s{sT0}, s{sT0}, s{sT1}
            s_mul_i32 s{sT0}, s{sT0}, {64*3840}
            s_add_u32 s{sT0}, s{sT0}, {7*256}
            v_mul_u32_u24 v2, 3840, v1
            s_waitcnt vmcnt(0)
            buffer_load_dword v62, v2, {srd(SW)}, s{sT0} offen
            buffer_load_dword v62, v2, {srd(SW)}, s{sT0} offen offset:128
            {L}:
            """)
        a("s_barrier")
        nonce_issue(vNH)
        a("s_barrier\ns_waitcnt vmcnt(0)")
        nonce_take(vNH)
        a(f"s_cmp_eq_u32 s{sCHV}, 0\ns_cbranch_scc1 L_h_nob2")
        f_load()
        hu_loads()
        if cfg.hc < 8 and not cfg.oc9: odd_copy(4)
        a("s_branch L_h_post")
    ool.append(h_idle)
    stamp(2)
    if cfg.stop <= 1: a("s_branch L_fin")
    def q_loads():
        for k in range(3): a(f"buffer_load_dwordx4 v[{QV+4*k}:{QV+4*k+3}], v{QA+k}, {srd(SQ)}, 0 offen {cfg.nt_in}")
    def conv(tiles, fill):
        mus = [mu for mu in range(8) if mu <= max(tiles)]
        order = []
        lo_, hi_ = 0, len(mus) - 1
        while lo_ <= hi_:
            order.append(mus[lo_]); lo_ += 1
            if lo_ <= hi_: order.append(mus[hi_]); hi_ -= 1
        groups = [(r, mu) for r in range(7) for mu in order] + [(7, mu) for mu in reversed(mus)]
        G = len(mus); NG = len(groups); LA = NAF - 1
        def b_read(r, nn):
            d = BF + 32 * (r & 1) + 4 * nn
            return [(f"ds_read_b128 v[{d}:{d+3}], v{AB} offset:{2*(1792 - 32*(8*nn - r))}", ("B", r, nn))]
        def a_read(gi):
            r, mu = groups[gi]; kap = 8 * mu + r
            d = AF + 4 * (gi % NAF); o = 16 * (kap % 16)
            return [(f"ds_read2_b32 v[{d}:{d+1}], v{AA + kap//16} offset0:{o} offset1:{o+1}", ("A", gi)),
                    (f"ds_read2_b32 v[{d+2}:{d+3}], v{AA + kap//16} offset0:{o+2} offset1:{o+3}", ("A", gi))]
        def emit(l):
            for t, tag in l: a(t); issue(tag, 1)
        def fin(j):
            dd = BACC + 4 * j; p = 8 + 2 * (j & 1)
            a(f"v_cvt_pk_bf16_f32 v{p}, v{dd}, v{dd+1}\nv_cvt_pk_bf16_f32 v{p+1}, v{dd+2}, v{dd+3}\nds_write_b64 v31, v[{p}:{p+1}] offset:{512*j}")
        q.clear()
        for nn in tiles + [n_ for n_ in range(G) if n_ not in tiles]: emit(b_read(0, nn))
        for gi in range(3): emit(a_read(gi))
        for i in tiles:
            wait_for({("B", 0, i)})
            d = BACC + 4 * i; f = BF + 4 * i
            a(f"v_mfma_f32_16x16x32_bf16 v[{d}:{d+3}], v[{DF}:{DF+3}], v[{f}:{f+3}], 0")
        for gi in range(3, LA): emit(a_read(gi))
        done = []
        for gi, (r, mu) in enumerate(groups):
            tl = [i for i in tiles if i >= mu]
            wait_for({("A", gi)} | {("B", r, i - mu) for i in tl})
            pend = []
            if gi + LA < NG: pend += a_read(gi + LA)
            if r < 7 and gi % 2 == 0: pend += b_read(r + 1, gi % G) + b_read(r + 1, gi % G + 1)
            for n, i in enumerate(tl):
                d = BACC + 4 * i; f = BF + 32 * (r & 1) + 4 * (i - mu); s = AF + 4 * (gi % NAF)
                a(f"v_mfma_f32_16x16x32_bf16 v[{d}:{d+3}], v[{s}:{s+3}], v[{f}:{f+3}], v[{d}:{d+3}]")
                k = -(-len(pend) // (len(tl) - n))
                emit(pend[:k]); del pend[:k]
                if gi < NG - 1:
                    nv = k
                    while fill and nv < cfg.nfill:
                        t = fill.pop(0); a(t); nv += 1 if t.startswith("v_") else 0.5
                elif n >= 3:
                    fin(tl[n - 3]); done.append(tl[n - 3])
        for t in fill: a(t)
        for j in tiles:
            if j not in done: fin(j)
    def z_out(pieces):
        for k, (o, half) in enumerate(pieces): a(f"ds_read_b128 v[{32+4*k}:{35+4*k}], v{ZL} offset:{o}")
        for k, (o, half) in enumerate(pieces):
            a(f"s_waitcnt lgkmcnt({len(pieces)-1-k})")
            if half: a("s_mov_b32 exec_hi, 0")
            a(f"buffer_store_dwordx4 v[{32+4*k}:{35+4*k}], v13, {srd(SWS)}, s{sA} offen offset:{o} sc1")
            if half: a("s_mov_b32 exec_hi, -1")
    def h_nob2():
        late = capture(h_late)
        def safe(p):
            while True:
                for t in late[p:]:
                    if t.startswith("s_cselect"): break
                    if t.startswith("s_cmp"): return p
                else: return p
                p += 1
        n1 = safe(cfg.hl1) if cfg.bal else 0
        a("L_h_nob2a:")
        wo_early_addr()
        a("s_waitcnt vmcnt(8)\ns_barrier")
        for t in late[:n1]: a(t)
        a("s_waitcnt vmcnt(0)\ns_barrier\ns_branch L_h_nob2b\nL_h_nob2:")
        wo_early_addr()
        for t in late[:n1]: a(t)
        a("L_h_nob2b:")
        if cfg.stop <= 1: a("s_branch L_fin")
        a(f"s_lshl_b32 s{sB}, s{sCH}, 1\nv_mov_b32 v12, s{sB}")
        for k in range(3): a(f"buffer_load_ushort v{21+k}, v12, {srd(SD)}, 0 offen offset:{2*k}")
        a(f"s_cmp_lg_u32 s{sWV}, 7\ns_cbranch_scc1 L_h_nob2c")
        sv = capture(wo_early)
        for t in sv: a(t.replace(f"s{sT0},", f"s{sB},").replace(f", s{sT0} ", f", s{sB} "))
        a("L_h_nob2c:")
        for t in late[n1:]: a(t)
        a("s_waitcnt vmcnt(0)")
        if not cfg.bal:
            a("s_branch L_join_a"); return
        a(f"""
        s_cmp_lg_u32 s{sWV}, 7
        s_cbranch_scc1 L_join_a
        s_mov_b32 s{sCHV}, 1
        s_lshl_b32 s{sA}, s{sCH}, 12
        s_add_u32 s{sA}, s{sA}, {WS_Z}
        s_cmp_lt_u32 s{sJ}, 16
        s_cselect_b32 s{sB}, 3, 2
        v_mov_b32 v12, {L_SYNC + 32}
        L_help:
        """)
        oc_d()
        a(f"""
        v_mov_b32 v21, v22
        v_mov_b32 v22, v23
        s_mov_b32 s{sCNT}, 0
        L_hw:
        ds_read_b32 v14, v12
        s_add_u32 s{sCNT}, s{sCNT}, 1
        s_waitcnt lgkmcnt(0)
        v_cmp_ne_u32 vcc, s{sN}, v14
        s_cmp_gt_u32 s{sCNT}, 0x400000
        s_cbranch_scc1 L_hwd
        s_cbranch_vccnz L_hw
        L_hwd:
        """)
        conv([1, 2, 3], [])
        a(f"v_add_u32 v{AA}, {HSTR}, v{AA}\nv_add_u32 v{AA+1}, {HSTR}, v{AA+1}\nv_add_u32 v{AB}, {USTR}, v{AB}\nv_add_u32 v12, 4, v12")
        z_out([(512, False), (1536, True)])
        a(f"s_add_u32 s{sA}, s{sA}, 4096\ns_sub_u32 s{sB}, s{sB}, 1\ns_cmp_lg_u32 s{sB}, 0\ns_cbranch_scc1 L_help")
        stamp(4)
        a("s_branch L_join_a")
    ool.append(h_nob2)
    if cfg.hc == 8 or cfg.oc9: odd_copy(4)
    a(f"s_lshl_b32 s{sA}, s{sCH}, 12\ns_add_u32 s{sA}, s{sA}, {WS_Z}")
    a(f"s_lshl_b32 s{sT0}, s{sHW}, 2\ns_add_u32 s{sT0}, s{sT0}, {L_SYNC + 32}\nv_mov_b32 v2, s{sT0}\nv_mov_b32 v3, s{sN}")
    a("s_waitcnt vmcnt(0) lgkmcnt(0)")
    if cfg.bal: a("ds_write_b32 v2, v3")
    stamp(3)
    conv([0, 4, 5, 6, 7] if cfg.bal else [0, 1, 2, 3, 4, 5] if cfg.orc else list(range(8)), capture(h_late))
    stamp(4)
    z_out([(2048, False), (3072, False), (0, True)] if cfg.bal else [(1024 * i, False) for i in range(4)])
    a("s_branch L_join_a")

    a("L_C:")
    vNC = 60
    srd_consts((SX, SW) + rest_srd)
    a(f"s_mov_b32 s{sCHV}, 0\ns_mov_b32 s{sCH}, 0")
    a(f"""
    s_waitcnt lgkmcnt(0)
    s_or_b32 s{sT0}, s2, s{sWV}
    s_cmp_lg_u32 s{sT0}, 0
    s_cbranch_scc1 L_nonon
    s_memrealtime s[{sN}:{sN+1}]
    s_waitcnt lgkmcnt(0)
    s_or_b32 s{sN}, s{sN}, 1
    v_mov_b32 v6, s{sN}
    v_mov_b32 v7, s{sN+1}
    v_mov_b32 v5, 0
    s_mov_b64 exec, 1
    buffer_store_dwordx2 v[6:7], v5, {srd(SDBG)}, 0 offen sc1
    s_mov_b64 exec, -1
    L_nonon:
    s_cmp_ge_u32 s{sJ}, 30
    s_cbranch_scc1 L_c_idle
    """)
    def tlb():
        if not cfg.tlb: return
        L = a.lab("L_tlb")
        a(f"s_cmp_lg_u32 s{sWV}, 1\ns_cbranch_scc1 {L}\nv_lshlrev_b32 v5, {cfg.tlb}, v1")
        for sr in (SWS, SOUT, SQ, SH, SWO, SD): a(f"buffer_load_dword v63, v5, {srd(sr)}, 0 offen")
        a(f"{L}:")
    GFA = 207; OFA = 199; GPA = 200; sGA, sGB = 0, 1; L_SYNC = 119712
    def qkv_addr():
        a(f"""
        s_lshr_b32 s{sT0}, s{sHD}, 1
        s_mul_i32 s{sT0}, s{sT0}, 5
        s_and_b32 s{sT1}, s{sHD}, 1
        s_lshl_b32 s{sT2}, s{sT1}, 1
        s_add_u32 s{sT2}, s{sT2}, s{sT0}
        s_add_u32 s{sT3}, s{sT2}, 2
        s_lshr_b32 s{sT2}, s{sT2}, 3
        s_lshr_b32 s{sT3}, s{sT3}, 3
        s_lshr_b32 s{sT4}, s{sHD}, 2
        s_mul_i32 s{sGA}, s{sT4}, 10
        s_lshr_b32 s{sGA}, s{sGA}, 3
        s_sub_u32 s{sT2}, s{sT2}, s{sGA}
        s_sub_u32 s{sT3}, s{sT3}, s{sGA}
        s_cmp_eq_u32 s{sQB}, 0
        s_cselect_b32 s{sGA}, 2, 4
        v_lshrrev_b32 v2, 1, v1
        v_min_u32 v2, s{sGA}, v2
        v_and_b32 v4, 1, v1
        v_cmp_eq_u32 vcc, 1, v4
        v_mov_b32 v4, s{sT2}
        v_mov_b32 v5, s{sT3}
        v_cndmask_b32 v4, v4, v5, vcc
        v_lshl_add_u32 v2, v2, 1, v4
        s_lshl_b32 s{sGA}, s{sT4}, 5
        s_lshl_b32 s{sT4}, s{sQB}, 2
        s_add_u32 s{sT4}, s{sT4}, s{sWV}
        s_add_u32 s{sGA}, s{sGA}, s{sT4}
        s_lshl_b32 s{sGA}, s{sGA}, 7
        s_add_u32 s{sGA}, s{sGA}, {WS_FG}
        v_lshl_add_u32 v{GFA}, v2, 3, s{sGA}
        s_lshl_b32 s{sGB}, s{sR64}, 2
        s_add_u32 s{sGB}, s{sGB}, s{sWV}
        s_lshl_b32 s{sGB}, s{sGB}, 7
        s_add_u32 s{sGB}, s{sGB}, {WS_FO}
        v_and_b32 v2, 15, v1
        v_lshl_add_u32 v{OFA}, v2, 3, s{sGB}
        s_mul_i32 s{sT1}, s{sT1}, 3
        s_add_u32 s{sGA}, s{sT0}, s{sT1}
        s_add_u32 s{sGB}, s{sT0}, 2
        s_lshl_b32 s{sGA}, s{sGA}, 15
        s_lshl_b32 s{sGB}, s{sGB}, 15
        s_lshl_b32 s{sT4}, s{sT4}, 10
        s_add_u32 s{sGA}, s{sGA}, s{sT4}
        s_add_u32 s{sGB}, s{sGB}, s{sT4}
        v_lshlrev_b32 v14, 4, v1
        v_bfrev_b32 v15, 1
        s_cmp_eq_u32 s{sQB}, 0
        s_cselect_b64 vcc, -1, 0
        v_cndmask_b32 v15, v14, v15, vcc
        s_lshl_b32 s{sT5}, s{sWV}, 10
        """)
    def gpub_addr():
        a(f"""
        s_and_b32 s{sT0}, s{sWV}, 1
        s_lshl_b32 s{sT2}, s{sCT}, 1
        s_add_u32 s{sT2}, s{sT2}, s{sT0}
        s_mul_i32 s{sT0}, s{sT2}, 26
        s_lshr_b32 s{sT0}, s{sT0}, 8
        s_mul_i32 s{sT1}, s{sT0}, 10
        s_sub_u32 s{sT2}, s{sT2}, s{sT1}
        s_cmp_ge_u32 s{sT2}, 5
        s_cselect_b32 s{sT1}, 5, 0
        s_cselect_b32 s{sT4}, 4, 0
        s_sub_u32 s{sT2}, s{sT2}, s{sT1}
        s_lshr_b32 s{sT1}, s{sWV}, 1
        s_lshl_b32 s{sT3}, s{sRB}, 1
        s_add_u32 s{sT3}, s{sT3}, s{sT1}
        v_and_b32 v2, 1, v1
        v_lshrrev_b32 v3, 1, v1
        v_sub_u32 v4, s{sT2}, v2
        v_cmp_gt_u32 vcc, 4, v4
        v_add_u32 v4, s{sT4}, v4
        v_lshl_add_u32 v5, v3, 2, s{sT3}
        v_cmp_gt_u32 s[{sEX}:{sEX+1}], 32, v5
        s_and_b64 vcc, vcc, s[{sEX}:{sEX+1}]
        s_cmp_eq_u32 s{sT0}, 0
        s_cselect_b32 s{sT1}, 3, 15
        s_and_b32 vcc_lo, vcc_lo, s{sT1}
        s_mov_b32 vcc_hi, 0
        v_lshl_add_u32 v4, v4, 5, v5
        v_lshlrev_b32 v4, 7, v4
        v_lshl_add_u32 v5, v3, 1, s{sT0}
        v_lshl_add_u32 v5, v5, 1, v2
        v_lshl_add_u32 v4, v5, 3, v4
        v_add_u32 v4, {WS_FG}, v4
        v_bfrev_b32 v5, 1
        v_cndmask_b32 v{GPA}, v5, v4, vcc
        """)
    OTA = 189
    def ot_addr(OTA):
        a(f"""
        s_lshl2_add_u32 s{sT0}, s{sR64}, s{sHW}
        s_mul_i32 s{sT0}, s{sT0}, {16*2560}
        s_add_u32 s{sT0}, s{sT0}, s{sC160}
        v_bfe_u32 v2, v1, 1, 4
        v_mul_u32_u24 v2, 2560, v2
        v_and_b32 v3, 1, v1
        v_mul_u32_u24 v3, 156, v3
        v_add3_u32 v2, v2, v3, s{sT0}
        v_lshrrev_b32 v3, 5, v1
        v_mul_u32_u24 v3, {1280 if cfg.otb else 0}, v3
        v_add_u32 v{OTA}, v2, v3
        """)
    def prewarm():
        a(f"buffer_load_dword v63, v{GFA}, {srd(SWS)}, 0 offen sc1\nbuffer_load_dword v63, v{OFA}, {srd(SWS)}, 0 offen sc1")
    def c_idle():
        a("L_c_idle:")
        build_masks(None); a2_setup(); qkv_addr(); wom_setup()
        a("s_waitcnt vmcnt(0)\ns_barrier")
        nonce_issue(vNC)
        if cfg.prew: prewarm()
        b1_compute(128); b1_store(128)
        a("s_barrier\ns_waitcnt vmcnt(0)")
        nonce_take(vNC); publish_u(2)
        if cfg.wdelay:
            a(f"v_subrev_u32 v7, {2*cfg.ufs}, v4")
            poll(7, 8)
        tlb()
        if cfg.wopre:
            a(f"""
            s_sub_u32 s{sT0}, s{sJ}, 30
            s_lshl_b32 s{sT0}, s{sT0}, 2
            s_add_u32 s{sT0}, s{sT0}, s{sWV}
            s_lshl_b32 s{sT0}, s{sT0}, 6
            v_add_u32 v4, s{sT0}, v1
            s_lshl_b32 s{sT1}, s{sXC}, 9
            v_add_u32 v2, s{sT1}, v4
            """)
            if cfg.hpre:
                a(f"s_mul_i32 s{sT1}, s{sXC}, {80*4096}\nv_lshlrev_b32 v6, 7, v4")
            for i in range(cfg.hpre):
                a(f"s_waitcnt vmcnt(1)\nbuffer_load_dword v63, v6, {srd(SH)}, s{sT1} offen\ns_add_u32 s{sT1}, s{sT1}, {512*128}")
            for i in range(cfg.wopre):
                a("s_waitcnt vmcnt(1)")
                if cfg.wlin:
                    a(f"v_add_u32 v3, {cfg.wlin + 512*i}, v4\nv_subrev_u32 v5, 6400, v3\nv_min_u32 v3, v3, v5")
                elif i < 8:
                    a(f"v_and_b32 v2, 4095, v2\nv_add_u32 v3, 4480, v2\nv_subrev_u32 v5, 6400, v3\nv_min_u32 v3, v3, v5\nv_add_u32 v2, 512, v2")
                else:
                    a(f"v_add_u32 v3, {2176 + 512*(i-8)}, v4")
                a(f"v_lshlrev_b32 v3, 7, v3\nbuffer_load_dword v63, v3, {srd(SWO)}, 0 offen")
        a("s_branch L_c_post")
    ool.append(c_idle)
    stamp(1, "st")
    stamp(2, "st")
    if cfg.tlball: tlb()
    if cfg.tlbs:
        L = a.lab("L_tlbs")
        a(f"s_cmp_lg_u32 s{sWV}, 1\ns_cbranch_scc1 {L}")
        for sr, n in ((SWS, 10), (SOUT, 3), (SQ, 2), (SH, 2), (SWO, 1), (SD, 1)):
            for i in range(n):
                a(f"s_mov_b32 s{sT0}, {i << 21}\ns_load_dword s3, s[{sr}:{sr+1}], s{sT0}")
        a(f"{L}:")
    ACC = 64
    FS4 = [128, 144, 16, 32]
    if not cfg.m16:
        AX = 48; AW = 56
        a(f"""
        s_and_b32 s{sT0}, s{sWV}, 1
        s_lshr_b32 s{sT1}, s{sWV}, 1
        v_and_b32 v2, 31, v1
        v_lshrrev_b32 v3, 5, v1
        v_bfe_u32 v4, v2, 1, 3
        v_xor_b32 v4, v4, v3
        s_lshl_b32 s{sT2}, s{sT1}, 13
        v_lshlrev_b32 v5, 7, v2
        v_add_u32 v5, s{sT2}, v5
        """)
        for ks in range(4):
            a(f"v_xor_b32 v6, {2*ks}, v4\nv_lshl_add_u32 v{AX+ks}, v6, 4, v5\nv_add_u32 v{AX+4+ks}, 0x10000, v{AX+ks}")
        a(f"""
        v_bfe_u32 v4, v1, 2, 2
        v_lshl_add_u32 v5, v3, 3, v4
        v_lshlrev_b32 v5, 8, v5
        v_and_b32 v6, 3, v1
        v_lshl_add_u32 v5, v6, 3, v5
        v_and_b32 v6, 16, v1
        v_lshl_add_u32 v5, v6, 1, v5
        v_add_u32 v5, 16384, v5
        s_lshl_b32 s{sT2}, s{sT0}, 1
        """)
        for mt in range(2):
            a(f"s_add_u32 s{sT3}, s{sT2}, {mt}\nv_xor_b32 v6, s{sT3}, v4\nv_lshl_add_u32 v{AW+mt}, v6, 6, v5\nv_add_u32 v{AW+2+mt}, 0x10000, v{AW+mt}")

    else:
        AX = 48; AW = 52
        a(f"""
        s_and_b32 s{sT0}, s{sWV}, 1
        s_lshr_b32 s{sT1}, s{sWV}, 1
        v_and_b32 v2, 15, v1
        v_lshrrev_b32 v3, 4, v1
        v_lshrrev_b32 v4, 1, v2
        v_xor_b32 v4, v4, v3
        s_lshl_b32 s{sT2}, s{sT1}, 13
        v_lshlrev_b32 v5, 7, v2
        v_add_u32 v5, s{sT2}, v5
        """)
        for ks in range(2):
            a(f"v_xor_b32 v6, {4*ks}, v4\nv_lshl_add_u32 v{AX+ks}, v6, 4, v5\nv_add_u32 v{AX+2+ks}, 0x10000, v{AX+ks}")
        a(f"""
        v_bfe_u32 v4, v1, 2, 2
        v_lshl_add_u32 v5, v3, 3, v4
        v_lshlrev_b32 v5, 8, v5
        v_and_b32 v6, 3, v1
        v_lshl_add_u32 v5, v6, 3, v5
        v_and_b32 v6, 16, v1
        v_lshl_add_u32 v5, v6, 1, v5
        v_add_u32 v5, 16384, v5
        s_lshl_b32 s{sT2}, s{sT0}, 1
        """)
        for m2 in range(2):
            a(f"s_add_u32 s{sT3}, s{sT2}, {m2}\nv_xor_b32 v6, s{sT3}, v4\nv_lshl_add_u32 v{AW+2*m2}, v6, 6, v5\nv_xor_b32 v{AW+2*m2+1}, 32, v{AW+2*m2}")
        for mt in range(4): a(f"v_add_u32 v{AW+4+mt}, 0x10000, v{AW+mt}")
    cset = {"m": lambda: build_masks(None), "a": a2_setup, "q": qkv_addr, "g": gpub_addr, "w": wom_setup}
    for k in cfg.cs0: cset[k]()
    stamp(3, "st")
    if cfg.b1c < 0:
        a(f"""
        v_mov_b32 v2, {L_SYNC + 16}
        v_mov_b32 v3, 1
        s_mov_b32 s{sCNT}, 0
        s_waitcnt vmcnt(0)
        s_mov_b64 exec, 1
        ds_add_u32 v2, v3
        s_mov_b64 exec, -1
        """)
        nonce_issue(vNC)
        if cfg.prew: prewarm()
        a(f"""
        L_b1s:
        ds_read_b32 v3, v2
        s_add_u32 s{sCNT}, s{sCNT}, 1
        s_waitcnt lgkmcnt(0)
        v_cmp_ne_u32 vcc, 8, v3
        s_cmp_gt_u32 s{sCNT}, 0x100000
        s_cbranch_scc1 L_b1t
        s_cbranch_vccnz L_b1s
        L_b1t:
        """)
        stamp(1)
        b1_compute(128)
        if cfg.ust < 0: b1_store(128)
    def a1_reads(c, ks):
        F = FS4[ks]
        slot = (c + 1) % 3; hi = slot >> 1; o = (slot & 1) * 32768
        r = []
        for half in range(2):
            for t in range(2):
                r.append(f"ds_read_b64_tr_b16 v[{F+4*half+2*t}:{F+4*half+2*t+1}], v{AW+2*hi+half} offset:{o + (16*ks+4*t)*256}")
            r.append(f"ds_read_b128 v[{F+8+4*half}:{F+8+4*half+3}], v{AX+4*hi+ks} offset:{o + half*4096}")
        return [] if cfg.noread else r
    def a1_mfma(ks, first):
        F = FS4[ks]; r = []
        for mt, nt in ((0, 0), (1, 0), (1, 1), (0, 1)):
            d = ACC + 16 * (2 * mt + nt)
            r.append(f"v_mfma_f32_32x32x16_bf16 v[{d}:{d+15}], v[{F+4*mt}:{F+4*mt+3}], v[{F+8+4*nt}:{F+8+4*nt+3}], " + ("0" if first else f"v[{d}:{d+15}]"))
        return [] if cfg.nomfma else r
    def weave(reads, mf, per):
        reads = list(reads)
        for m in mf:
            for _ in range(per):
                if reads: a(reads.pop(0))
            a(m)
        for r in reads: a(r)
    FS2 = [128, 16]
    def r16(c, ks):
        F = FS2[ks]; slot = (c + 1) % 3; hi = slot >> 1; o = (slot & 1) * 32768; r = []
        for i in range(4):
            for t in range(2):
                r.append(f"ds_read_b64_tr_b16 v[{F+4*i+2*t}:{F+4*i+2*t+1}], v{AW+4*hi+i} offset:{o + (32*ks+4*t)*256}")
            xs = c % 4 if cfg.x4 else slot
            r.append(f"ds_read_b128 v[{F+16+4*i}:{F+16+4*i+3}], v{AX+2*(xs >> 1)+ks} offset:{(xs & 1) * 32768 + i*2048}")
        return r
    def m16(ks, first):
        F = FS2[ks]; r = []
        for mt in range(4):
            for nt in (range(4) if mt % 2 == 0 else range(3, -1, -1)):
                d = ACC + 4 * (4 * mt + nt)
                r.append(f"v_mfma_f32_16x16x32_bf16 v[{d}:{d+3}], v[{F+4*mt}:{F+4*mt+3}], v[{F+16+4*nt}:{F+16+4*nt+3}], " + ("0" if first else f"v[{d}:{d+3}]"))
        if cfg.nomfma: r = ["s_nop 3"] * 16
        return r
    def rd16(c, ks):
        r = r16(c, ks)
        return [(r[3*i+2], ("X", ks)) for i in range(4)] + [(r[3*i+t], ("W", ks, i)) for i in range(4) for t in range(2)]
    def phase(mm, ks, reads, lo, hi):
        for i in range(lo, hi):
            if i % 4 == 0: wait_for({("X", ks), ("W", ks, i // 4)})
            a(mm[i])
            if reads:
                t, tag = reads.pop(0); a(t); issue(tag, 1)
    PRE = cfg.pre
    q.clear()
    for c in range(10):
        if c > 0: phase(m16(1, False), 1, [], 0, PRE)
        a("s_waitcnt lgkmcnt(0)"); q.clear()
        if c > 0 and c - 1 == cfg.b1c:
            stamp(1); nonce_issue(vNC)
            if cfg.prew: prewarm()
            b1_compute(128)
        if c > 0 and c - 1 == max(cfg.ust, cfg.b1c): b1_store(128)
        if c == 1:
            for k in cfg.cs1: cset[k]()
        if c == 2:
            for k in cfg.cs2: cset[k]()
        if c == pubc + 1:
            a("s_waitcnt vmcnt(0)")
            nonce_take(vNC); publish_u(2)
        if c in (0, 1, 2, 3, 5, 7, 9): stamp(1 + (0, 1, 2, 3, 5, 7, 9).index(c), "a1")
        a("s_barrier")
        if c == cfg.cprio: a("s_setprio 3")
        if c == 9: break
        rd = rd16(c, 0)
        for _ in range(2 if c > 0 else 12):
            t, tag = rd.pop(0); a(t); issue(tag, 1)
        if c > 0: phase(m16(1, False), 1, rd, PRE, 16)
        assert not rd
        phase(m16(0, c == 0), 0, rd16(c, 1), 0, 16)
    qs = f2u(20 ** -0.5 * math.log2(math.e))
    def epi_addr():
        a(f"""
        s_and_b32 s{sT0}, s{sWV}, 1
        s_lshr_b32 s{sT1}, s{sWV}, 1
        s_lshl_b32 s{sT2}, s{sCT}, 1
        s_add_u32 s{sT2}, s{sT2}, s{sT0}
        s_lshl_b32 s{sT3}, s{sRB}, 1
        s_add_u32 s{sT3}, s{sT3}, s{sT1}
        s_lshl_b32 s{sA}, s{sT2}, 18
        s_lshl_b32 s{sT4}, s{sT3}, 10
        s_add_u32 s{sA}, s{sA}, s{sT4}
        s_lshl_b32 s{sB}, s{sT2}, 5
        s_add_u32 s{sB}, s{sB}, s{sT3}
        s_mul_i32 s{sB}, s{sB}, {FS}
        s_add_u32 s{sB}, s{sB}, {WS_FG}
        v_and_b32 v2, 31, v1
        v_lshrrev_b32 v3, 5, v1
        v_lshlrev_b32 v2, 4, v2
        v_lshl_add_u32 v2, v3, 15, v2
        s_mov_b32 s{sT2}, {qs:#x}
        s_mov_b32 s{sT3}, {qs:#x}
        """)
    if cfg.tmaj:
        X2 = 160
        r0 = r16(9, 0); r1 = r16(9, 1)
        xr1 = [r1[3*i+2].replace(f"v[{FS2[1]+16+4*i}:{FS2[1]+16+4*i+3}]", f"v[{X2+4*i}:{X2+4*i+3}]") for i in range(4)]
        wr1 = [r1[3*i:3*i+2] for i in range(4)]
        pm = m16(1, False)
        sc = capture(epi_addr) + [f"s_cmp_lt_u32 s{sCT}, 5", f"s_cselect_b32 s{sT2}, s{sT2}, 1.0", f"s_cselect_b32 s{sT3}, s{sT3}, 1.0"]
        first = [r0[2], r0[5], r0[8], r0[11], r0[0], r0[1]] + xr1
        rest = [r0[3:5], r0[6:8], r0[9:11]]
        q.clear()
        seq = [(t, ("F",)) for t in first[:6]] + [(t, ("W", 0)) for t in wr1[0]] + [(t, ("F",)) for t in first[6:]]
        late = {8: [(t, ("W", 1)) for t in rest[0] + wr1[1]], 12: [(t, ("W", 2)) for t in rest[1] + wr1[2]]}
        assert PRE == 4
        for i in range(PRE, 16):
            seq += late.get(i, [])
            for _ in range(2):
                if seq:
                    t, tag = seq.pop(0); a(t); issue(tag, 1)
            a(pm[i])
            for _ in range(2):
                if sc: a(sc.pop(0))
        for t in rest[2] + wr1[3]: a(t)
        issue(("W", 3), 4)
        for t in sc: a(t)
        def epi_tile(mt):
            r = [f"s_add_u32 s{sT0}, s{sA}, {2*mt*32768}"]
            for n2 in range(2):
                d = ACC + 4 * (4 * mt + 2 * n2); p = 4 + 4 * n2 if mt % 2 == 0 else 176 if n2 == 0 else 48
                if cfg.tscale:
                    for k in range(8): r.append(f"v_mul_f32 v{d+k}, s{sT2}, v{d+k}")
                for k in range(4): r.append(f"v_cvt_pk_bf16_f32 v{p+k}, v{d+2*k}, v{d+2*k+1}")
                r += [f"v_permlane16_swap_b32 v{p}, v{p+2}", f"v_permlane16_swap_b32 v{p+1}, v{p+3}"]
                r.append(f"buffer_store_dwordx4 v[{p}:{p+3}], v2, {srd(SWS)}, s{sT0} offen offset:{n2*512} sc1")
            return r
        pend = []
        for mt in range(4):
            wait_for({("F",), ("W", mt)})
            for ks in range(2):
                for nt in range(4):
                    d = ACC + 4 * (4 * mt + nt); F = FS2[ks]; xb = (F + 16 if ks == 0 else X2) + 4 * nt
                    a(f"v_mfma_f32_16x16x32_bf16 v[{d}:{d+3}], v[{F+4*mt}:{F+4*mt+3}], v[{xb}:{xb+3}], v[{d}:{d+3}]")
                    if ks + nt > 0:
                        for _ in range(5 if cfg.tscale else 3):
                            if pend: a(pend.pop(0))
            for t in pend: a(t)
            pend = epi_tile(mt)
        stamp(2)
        for t in pend: a(t)
    else:
        mlast = m16(1, False) if cfg.m16 else a1_mfma(2, False) + a1_mfma(3, False)
        weave([], mlast[:4], 0)
        epi_addr()
        weave([], mlast[4:], 0)
        stamp(2)
        def a1_epi(scale):
            n = 0
            if cfg.m16:
                for mt in range(4):
                    a(f"s_add_u32 s{sT0}, s{sA}, {2*mt*32768}")
                    for n2 in range(2):
                        d = ACC + 4 * (4 * mt + 2 * n2); p = 128 + 4 * n; n += 1
                        for k in range(4): a(f"v_cvt_pk_bf16_f32 v{p+k}, v{d+2*k}, v{d+2*k+1}")
                        a(f"v_permlane16_swap_b32 v{p}, v{p+2}\nv_permlane16_swap_b32 v{p+1}, v{p+3}")
                        a(f"buffer_store_dwordx4 v[{p}:{p+3}], v2, {srd(SWS)}, s{sT0} offen offset:{n2*512} sc1")
                return
            for mt, nt in ((0, 0), (1, 0), (1, 1), (0, 1)):
                for i in (0, 2):
                    d = ACC + 16 * (2 * mt + nt) + 4 * i
                    p = 128 + 4 * n; n += 1
                    if scale:
                        for k in range(4): a(f"v_pk_mul_f32 {pr(d+2*k)}, {pr(d+2*k)}, s[{sT2}:{sT3}]")
                    for k in range(4): a(f"v_cvt_pk_bf16_f32 v{p+k}, v{d+2*k}, v{d+2*k+1}")
                    a(f"s_add_u32 s{sT0}, s{sA}, {(4*mt+i)*32768}")
                    a(f"v_permlane32_swap_b32 v{p}, v{p+2}\nv_permlane32_swap_b32 v{p+1}, v{p+3}")
                    a(f"buffer_store_dwordx4 v[{p}:{p+3}], v2, {srd(SWS)}, s{sT0} offen offset:{nt*512} sc1")
        a(f"s_cmp_ge_u32 s{sCT}, 5\ns_cbranch_scc1 L_epi_d")
        for mt, nt in ((0, 0), (0, 1), (1, 0), (1, 1)) if cfg.m16 else ((0, 0), (1, 0), (1, 1), (0, 1)):
            for k in range(8):
                d = ACC + 16 * (2 * mt + nt) + 2 * k
                a(f"v_mul_f32 v{d}, s{sT2}, v{d}\nv_mul_f32 v{d+1}, s{sT2}, v{d+1}")
        a("L_epi_d:\ns_nop 6")
        a1_epi(False)
    a(f"""
    v_mov_b32 v16, s{sN}
    v_mov_b32 v17, s{sN+1}
    s_lshl_b32 s{sT0}, s{sWV}, 2
    s_add_u32 s{sT0}, s{sT0}, {L_SYNC}
    v_mov_b32 v18, s{sT0}
    v_and_b32 v19, 3, v1
    v_lshlrev_b32 v19, 2, v19
    v_add_u32 v19, {L_SYNC}, v19
    ds_write_b32 v18, v16
    s_waitcnt vmcnt(0)
    s_mov_b64 exec, 15
    buffer_store_dwordx2 v[16:17], v{GPA}, {srd(SWS)}, 0 offen sc1
    s_mov_b64 exec, -1
    s_mov_b32 s{sCNT}, 0
    L_sync:
    ds_read_b32 v18, v19
    s_add_u32 s{sCNT}, s{sCNT}, 1
    s_waitcnt lgkmcnt(0)
    v_cmp_ne_u32 vcc, s{sN}, v18
    s_cmp_gt_u32 s{sCNT}, 0x100000
    s_cbranch_scc1 L_c_post
    s_cbranch_vccnz L_sync
    """)
    a("L_c_post:")
    stamp(3)
    if cfg.stop <= 1: a("s_branch L_fin")
    if cfg.otn >= 0: ot_addr(OTA)
    if cfg.sp1: a("v_and_b32 v10, 1, v1\nv_subrev_u32 v10, 1, v10\nv_and_b32 v10, 0x3f80, v10\nv_mov_b32 v11, 0")
    else: a("v_mov_b32 v10, 0x3f803f80\nv_mov_b32 v11, 0x3f803f80")
    a("v_mov_b32 v12, 0\nv_mov_b32 v13, 0\nv_lshlrev_b32 v7, 3, v1")
    if cfg.gdelay: a("s_waitcnt vmcnt(0)")
    if cfg.gdelay > 1: a(f"s_sleep {cfg.gdelay}")
    def g_dma(sec, half):
        lds, lstr = ((L_Q, 4096), (L_K, 8192), (L_V, VSTR))[sec]
        for slot in range(3):
            base = (sGA, 32768 * slot) if slot < 2 else (sGB, 0)
            off = base[1] + sec * 80 * 32768 - (0 if half else 4096)
            a(f"s_add_u32 s{sT0}, s{base[0]}, {off}")
            dma(14 if half else 15, SWS, f"s{sT0}", f"s_add_u32 m0, s{sT5}, {lds + slot*lstr + (4096 if (half and sec) else 0)}", "sc1")
    combos = ((0, 1), (1, 1), (2, 1), (1, 0), (2, 0))
    if cfg.prog:
        a(f"s_mov_b32 s{sCNT}, 0\ns_mov_b32 s{sA}, 0\nL_gp:")
        a(f"buffer_load_dwordx2 v[8:9], v{GFA}, {srd(SWS)}, 0 offen sc1\ns_waitcnt vmcnt(0)")
        cmpflag(8)
        a(f"s_add_u32 s{sCNT}, s{sCNT}, 1\ns_cmp_lt_u32 s{sCNT}, 0x40000\ns_cselect_b32 s{sB}, vcc_lo, 0\ns_or_b32 s{sB}, s{sB}, s{sA}")
        for k, (sec, half) in enumerate(combos):
            L = a.lab("L_gs")
            a(f"s_and_b32 s{sT1}, s{sB}, {3 << (2*k)}\ns_cbranch_scc1 {L}\ns_or_b32 s{sA}, s{sA}, {3 << (2*k)}")
            g_dma(sec, half)
            a(f"{L}:")
        a(f"s_cmp_lg_u32 s{sA}, 0x3ff\ns_cbranch_scc1 L_gp")
        stamp(4)
    else:
        poll(GFA, 8)
        stamp(4)
        for sec, half in combos: g_dma(sec, half)
    a(f"ds_write_b64 v7, v[10:11] offset:{L_ONES}\nds_write_b64 v7, v[10:11] offset:{L_ONES + 512}\nds_write_b64 v7, v[12:13] offset:{L_ONES - 512}")
    a("s_setprio 0\ns_waitcnt vmcnt(0) lgkmcnt(0)")

    for r in (ROH, ROH + 1, ROH + 2, FZA, ZD, ZD + 1, ZD + 2, QA, QA + 1, QA + 2, ZPA): a(f"v_mov_b32 v{r}, 0")
    if cfg.qn < 0:
        a("s_branch L_join_b\nL_join_a:\ns_setprio 1\nL_join_b:\ns_barrier")
    elif cfg.prio: a("s_branch L_join_b\nL_join_a:\ns_setprio 1\nL_join_b:\ns_barrier")
    else: a("L_join_a:\ns_barrier")
    stamp(5)
    if cfg.stop <= 2: a("s_branch L_fin")
    Q0, Q1, Q1B = 16, 20, 60; K0F = 24; K1F = 32; VF = 40; AV = 58; S = 64; PP = 96; O = 112
    def wo_dma(i):
        if cfg.nowo: return
        a(f"s_mov_b32 m0, s{WOM[i]}\nbuffer_load_dwordx4 v{WOV+i}, {srd(SWO)}, s{sC160} offen lds")
    def k_read(b):
        f = K0F + 4 * (b & 1); o = (8 - b) * 512
        a(f"ds_read_b128 v[{f}:{f+3}], v{AK0} offset:{o}")
        if b % 2 == 0:
            f = K1F + 4 * ((b >> 1) & 1)
            a(f"ds_read_b128 v[{f}:{f+3}], v{AK1} offset:{o}")
    def v_read(b):
        f = VF + 8 * (b & 1); o = 0 if b & 1 else 512
        for s in range(2):
            for t in range(2):
                a(f"ds_read_b64_tr_b16 v[{f+4*s+2*t}:{f+4*s+2*t+1}], v{AVP + b//2} offset:{o + (16*s+8*t)*16}")
    def hook(b):
        L = a.lab("L_hook")
        a(f"s_cmp_lg_u32 s{sNV}, {b}\ns_cbranch_scc1 {L}\ns_nop 7")
        for r in range(16): a(f"v_mov_b32 v{vCZ+r}, v59\nv_mov_b32 v{vCF+r}, v59")
        a(f"s_nop 1\n{L}:")
    def qk(b, half, gen_):
        d = S + 16 * (b & 1)
        if half == 0:
            f = K0F + 4 * (b & 1)
            c = vCD if b == 0 else (vCF if b == 8 else vCZ)
            cs = f"v[{c}:{c+15}]" if (gen_ or c != vCZ) else "0"
            a(f"v_mfma_f32_32x32x16_bf16 v[{d}:{d+15}], v[{f}:{f+3}], v[{Q0}:{Q0+3}], {cs}")
        else:
            f = K1F + 4 * ((b >> 1) & 1); qq = Q1B if b & 1 else Q1
            a(f"v_mfma_f32_32x32x16_bf16 v[{d}:{d+15}], v[{f}:{f+3}], v[{qq}:{qq+3}], v[{d}:{d+15}]")
    def pv(b, s):
        p = PP + 8 * (b & 1); f = VF + 8 * (b & 1)
        a(f"v_mfma_f32_32x32x16_bf16 v[{O}:{O+15}], v[{f+4*s}:{f+4*s+3}], v[{p+4*s}:{p+4*s+3}], " + ("0" if (b == 0 and s == 0) else f"v[{O}:{O+15}]"))
    def cv(b, g):
        d = S + 16 * (b & 1) + 4 * g; p = PP + 8 * (b & 1) + 2 * g
        a(f"v_cvt_pk_bf16_f32 v{p}, v{d}, v{d+1}\nv_cvt_pk_bf16_f32 v{p+1}, v{d+2}, v{d+3}")
    def ex(b, g):
        d = S + 16 * (b & 1) + 4 * g
        a(f"v_exp_f32 v{d}, v{d}\nv_exp_f32 v{d+1}, v{d+1}")
        if g > 0: cv(b, g - 1)
        elif b > 0: cv(b - 1, 3)
        a(f"v_exp_f32 v{d+2}, v{d+2}\nv_exp_f32 v{d+3}, v{d+3}")
    wsched = {}
    i = 0
    for n in range(17):
        k = 0 if n < cfg.wstart else cfg.wfirst if n == cfg.wstart else 1
        wsched[n] = list(range(i, min(i + k, NWO))); i += k
    if cfg.wsch:
        i = 0
        for n, ch in enumerate(cfg.wsch):
            wsched[n] = list(range(i, min(i + int(ch), NWO))); i += int(ch)
        assert i >= NWO and len(cfg.wsch) == 18 and cfg.wbar > 16
    NLATE = len(wsched.get(17, []))
    assert (cfg.qn < 0 or cfg.qn >= NWO - cfg.wfirst) and cfg.fzn > cfg.qn and cfg.wbar >= cfg.fzn
    def side(b, k, gen_):
        n = 2 * b + k - 1
        if gen_ or n < 0: return
        if n == 0: a("s_barrier")
        if n == cfg.zst:
            L4 = a.lab("L_zs")
            a(f"s_cmp_eq_u32 s{sCHV}, 0\ns_cbranch_scc1 {L4}")
            for i in range(4): a(f"buffer_store_dwordx4 v[{128+4*i}:{131+4*i}], v144, {srd(SWS)}, 0 offen offset:{1024*i} sc1")
            a(f"{L4}:")
        if n == cfg.zpub:
            L2 = a.lab("L_zp"); R = a.lab("L_zpr")
            a(f"s_cmp_lg_u32 s{sCHV}, 0\ns_cbranch_scc1 {L2}\n{R}:")
            def body():
                a(f"{L2}:\nv_mov_b32 v4, s{sN}\nv_mov_b32 v5, s{sN+1}\ns_waitcnt vmcnt({0 if cfg.nowo else sum(len(wsched[j]) for j in range(n)) + (3 if cfg.qn < 0 else 0)})")
                a(f"s_mov_b64 exec, 7\nbuffer_store_dwordx2 v[4:5], v{ZPA}, {srd(SWS)}, 0 offen sc1\ns_mov_b64 exec, -1\ns_branch {R}")
            ool.append(body)
        for i in wsched.get(n, []): wo_dma(i)
        if n == cfg.otn:
            L = a.lab("L_ot")
            a(f"s_cmp_ge_u32 s{sWV}, 4\ns_cbranch_scc1 {L}\nbuffer_load_dword v57, v{OTA}, {srd(SOUT)}, 0 offen {cfg.otf}\n{L}:")
        if n == cfg.qn or n == cfg.fzn:
            L = a.lab("L_hq")
            a(f"s_cmp_lt_u32 s{sWV}, 4\ns_cbranch_scc1 {L}")
            if n == cfg.qn: q_loads()
            else: a(f"buffer_load_dwordx2 v[{FZR}:{FZR+1}], v{FZA}, {srd(SWS)}, 0 offen sc1")
            a(f"{L}:")
        if n == cfg.wbar:
            L = a.lab("L_wb")
            a(f"s_waitcnt vmcnt({1 if cfg.qn < 0 else 4})\ns_cmp_ge_u32 s{sWV}, 4\ns_cbranch_scc1 {L}\ns_waitcnt vmcnt({1 if cfg.otn >= 0 else 0})\n{L}:\ns_barrier")
    def a2_loop(gen_):
        if gen_: a(f"v_mov_b32 v59, {BIGNEG:#x}")
        a("s_waitcnt lgkmcnt(1)")
        qk(0, 0, gen_)
        qk(0, 1, gen_)
        for b in range(9):
            if b in (1, 3, 5, 7) and not gen_: stamp(2 + b // 2, "a2")
            if cfg.prio and b == cfg.prio: a("s_setprio 0")
            if b > 0:
                a("s_waitcnt lgkmcnt(0)")
                pv(b - 1, 0)
            v_read(b)
            if b < 7: k_read(b + 2)
            ex(b, 0)
            if b < 8:
                if gen_: hook(b + 1)
                if b == 0: a("s_waitcnt lgkmcnt(6)")
                qk(b + 1, 0, gen_)
            else: pv(b - 1, 1)
            side(b, 0, gen_)
            ex(b, 1)
            if b < 8: qk(b + 1, 1, gen_)
            ex(b, 2)
            if 0 < b < 8: pv(b - 1, 1)
            if b == 8:
                a("s_waitcnt lgkmcnt(0)"); pv(8, 0)
            side(b, 1, gen_)
            ex(b, 3)
        cv(8, 3)
        pv(8, 1)
    a(f"ds_read_b128 v[{Q1}:{Q1+3}], v{QAD1}\nds_read_b128 v[{Q0}:{Q0+3}], v{QAD0}")
    k_read(0); k_read(1)
    if cfg.qn < 0:
        a(f"s_cmp_lt_u32 s{sWV}, 4\ns_cbranch_scc1 L_noq"); q_loads(); a("L_noq:")
    a(f"""
    s_lshl_b32 s{sT0}, s{sQB}, 3
    s_add_u32 s{sT0}, s{sT0}, s{sWV}
    s_lshl_b32 s{sT4}, s{sHD}, 16
    s_lshl_b32 s{sT2}, s{sT0}, 9
    s_add_u32 s{sT4}, s{sT4}, s{sT2}
    s_add_u32 s{sT4}, s{sT4}, {WS_O}
    s_lshl_b32 s{sT5}, s{sHD}, 14
    s_lshl_b32 s{sT3}, s{sT0}, 8
    s_add_u32 s{sT5}, s{sT5}, s{sT3}
    s_add_u32 s{sT5}, s{sT5}, {WS_O8}
    s_lshr_b32 s{sA}, s{sT0}, 1
    s_lshl_b32 s{sA}, s{sA}, 2
    s_and_b32 s{sT2}, s{sHD}, 3
    s_add_u32 s{sA}, s{sA}, s{sT2}
    s_lshl_b32 s{sA}, s{sA}, 4
    s_and_b32 s{sT2}, s{sT0}, 1
    s_lshl_b32 s{sT2}, s{sT2}, 3
    s_add_u32 s{sA}, s{sA}, s{sT2}
    s_lshr_b32 s{sT2}, s{sHD}, 2
    s_add_u32 s{sA}, s{sA}, s{sT2}
    s_lshl_b32 s{sA}, s{sA}, 3
    s_add_u32 s{sA}, s{sA}, {WS_FO}
    s_waitcnt lgkmcnt(4)
    v_and_b32 v{Q1B}, v{QM2}, v{Q1}
    v_and_b32 v{Q1B+1}, v{QM2}, v{Q1+1}
    v_and_b32 v{Q1B+2}, v{QM3}, v{Q1+2}
    v_and_b32 v{Q1B+3}, v{QM3}, v{Q1+3}
    v_and_b32 v{Q1}, v{QM0}, v{Q1}
    v_and_b32 v{Q1+1}, v{QM0}, v{Q1+1}
    v_and_b32 v{Q1+2}, v{QM1}, v{Q1+2}
    v_and_b32 v{Q1+3}, v{QM1}, v{Q1+3}
    """)
    stamp(1, "a2")
    a2_loop(False)
    a("L_a2_done:")
    def gen_loop():
        a("L_a2_gen:"); a2_loop(True); a("s_nop 10\ns_branch L_a2_done")
    stamp(6, "a2")
    lo = f2u(2.0 ** -24); hi = f2u(2.0 ** 40); fin = f2u(3.0e38)
    a(f"v_rcp_f32 v2, v{O+12}\nv_mov_b32 v3, v2")
    for i in range(6): a(f"v_pk_mul_f32 {pr(40+2*i)}, {pr(O+2*i)}, v[2:3]")
    for i in range(6): a(f"v_cvt_pk_bf16_f32 v{24+i}, v{40+2*i}, v{41+2*i}")
    a(f"""
    buffer_store_dwordx4 v[24:27], v{OS0}, {srd(SWS)}, s{sT4} offen sc1
    s_mov_b32 exec_hi, 0
    buffer_store_dwordx2 v[28:29], v{OS1}, {srd(SWS)}, s{sT5} offen sc1
    s_mov_b32 exec_hi, -1
    """)
    stamp(6); stamp(7, "a2"); stamp(1, "g2")
    a(f"v_cmp_nle_f32 vcc, {lo:#x}, v{O+12}\ns_mov_b64 s[{sEX}:{sEX+1}], vcc\nv_cmp_nge_f32 vcc, {hi:#x}, v{O+12}\ns_or_b64 s[{sEX}:{sEX+1}], s[{sEX}:{sEX+1}], vcc")
    for i in range(6): a(f"v_add_f32 v{4+i}, abs(v{O+2*i}), abs(v{O+2*i+1})")
    a("v_add_f32 v4, v4, v5\nv_add_f32 v6, v6, v7\nv_add_f32 v8, v8, v9\nv_add_f32 v4, v4, v6\nv_add_f32 v4, v4, v8")
    a(f"v_cmp_nge_f32 vcc, {fin:#x}, v4\ns_or_b64 vcc, s[{sEX}:{sEX+1}], vcc")
    if cfg.force_fb: a("s_mov_b64 vcc, -1")
    a("s_cbranch_vccnz L_a2_fb\nL_a2_ok:")
    def fallback():
        a(f"L_a2_fb:\ns_cmp_lg_u32 s{sFB}, 0\ns_cbranch_scc1 L_a2_ok\ns_mov_b32 s{sFB}, 1\ns_waitcnt vmcnt(0)")
        build_masks("0")
        a(f"v_mov_b32 v4, {BIGNEG:#x}\nv_mov_b32 v59, {BIGNEG:#x}")
        for b in range(9):
            if b > 0: hook(b)
            k_read(b); a("s_waitcnt lgkmcnt(0)"); qk(b, 0, True); qk(b, 1, True)
            d = S + 16 * (b & 1)
            for i in range(8): a(f"v_max3_f32 v4, v4, v{d+2*i}, v{d+2*i+1}")
        a("v_mov_b32 v5, v4\nv_permlane32_swap_b32 v4, v5\nv_max_f32 v4, v4, v5\nv_sub_f32 v4, 0, v4")
        build_masks("v4")
        k_read(0); k_read(1)
        a("s_branch L_a2_gen")
    WA, WA2, WA3, WB, WB3, OA, OB = 52, 53, 54, 55, 56, 57, 58
    RO = 59; STA = 62; OA2 = 63; OB2 = 15
    a(f"""
    v_lshrrev_b32 v2, 4, v1
    v_bfe_u32 v3, v1, 2, 2
    v_and_b32 v4, 3, v1
    s_cmp_ge_u32 s{sWV}, 4
    s_cselect_b32 s{sT0}, 96, 0
    v_lshl_add_u32 v4, v4, 3, s{sT0}
    v_lshrrev_b32 v5, 1, v2
    v_mul_u32_u24 v5, 24, v5
    v_and_b32 v6, 1, v2
    v_lshl_add_u32 v5, v6, 2, v5
    v_add_u32 v5, v5, v3
    v_mul_u32_u24 v5, 160, v5
    v_add_u32 v{WA3}, v5, v4
    v_add_u32 v{WA2}, {L_WO1 + 6*6400}, v{WA3}
    v_add_u32 v{WA}, {L_WO1}, v{WA3}
    v_mul_u32_u24 v5, 40, v2
    v_add3_u32 v5, v5, v3, 16
    v_mul_u32_u24 v5, 160, v5
    v_add_u32 v{WB3}, v5, v4
    v_add_u32 v{WB}, {L_WO1}, v{WB3}
    """)
    if cfg.wbar > 16 and not cfg.wsch: a("s_waitcnt vmcnt(2)\ns_barrier")
    if cfg.wsch:
        for i in wsched[17]: wo_dma(i)
        a(f"s_waitcnt vmcnt({NLATE})"); publish(sA, 4); stamp(3, "g2")
        a("s_waitcnt vmcnt(1)\ns_barrier")
    def fin_addr(n):
        a(f"""
        s_and_b32 s{sT0}, s{sC80}, 3
        s_lshl_b32 s{sT0}, s{sT0}, 1
        v_and_b32 v2, 15, v1
        v_subrev_u32 v2, s{sT0}, v2
        v_cmp_gt_u32 vcc, 10, v2
        v_min_u32 v2, 9, v2
        v_lshlrev_b32 v2, 4, v2
        v_lshrrev_b32 v3, 4, v1
        s_lshl_b32 s{sT0}, s{sWV}, 3
        v_add_u32 v3, s{sT0}, v3
        v_mul_u32_u24 v4, 2560, v3
        v_add_u32 v4, v4, v2
        v_bfrev_b32 v5, 1
        v_cndmask_b32 v{RO}, v5, v4, vcc
        v_mul_u32_u24 v4, {cfg.sstr}, v3
        v_add_u32 v4, {L_ST}, v4
        v_add_u32 v14, v2, v4
        s_mul_i32 s{sT3}, s{sR64}, {64*2560}
        s_add_u32 s{sT3}, s{sT3}, s{sC160}
        s_add_u32 s{sKC}, s{sT3}, {4*2560}
        """)
    def fin_store():
        a(f"""
        ds_read_b128 v[16:19], v14
        ds_read_b128 v[20:23], v14 offset:{4*cfg.sstr}
        s_waitcnt lgkmcnt(1)
        buffer_store_dwordx4 v[16:19], v{RO}, {srd(SOUT)}, s{sT3} offen {cfg.outa}
        s_waitcnt lgkmcnt(0)
        buffer_store_dwordx4 v[20:23], v{RO}, {srd(SOUT)}, s{sKC} offen {cfg.outa}
        """)
    def a3_addr():
        a(f"""
        v_lshrrev_b32 v2, 4, v1
        v_and_b32 v5, 15, v1
        s_lshl_b32 s{sT0}, s{sHW}, 4
        v_add_u32 v5, s{sT0}, v5
        v_lshlrev_b32 v6, 10, v2
        v_lshl_add_u32 v{OA}, v5, 4, v6
        v_add_u32 v{OA2}, {L_OS[2]}, v{OA}
        v_add_u32 v{OA}, {L_OS[0]}, v{OA}
        v_and_b32 v6, 1, v2
        v_lshlrev_b32 v6, 11, v6
        v_lshrrev_b32 v7, 1, v2
        v_lshl_add_u32 v6, v7, 9, v6
        v_lshl_add_u32 v{OB}, v5, 3, v6
        v_add_u32 v{OB2}, {L_OS[2] + 16384}, v{OB}
        v_add_u32 v{OB}, {L_OS[0] + 16384}, v{OB}
        v_mul_u32_u24 v5, {cfg.sstr}, v5
        v_lshl_add_u32 v5, v2, 3, v5
        v_add_u32 v{STA}, {L_ST}, v5
        """)
    def wo_frag(step, ct, d):
        for t in range(2):
            if step < 6: r, o = WA, (40 * step + 8 * t) * 160
            elif step < 12: r, o = WA2, (40 * (step - 6) + 8 * t) * 160
            elif step < 16: r, o = WA3, (40 * (step - 12) + 8 * t) * 160
            elif step < 19: r, o = WB, (160 * (step - 16) + 4 * t) * 160
            else: r, o = WB3, 4 * t * 160
            a(f"ds_read_b64_tr_b16 v[{d+2*t}:{d+2*t+1}], v{r} offset:{o + 32*ct}")
    def o_frag(step, d):
        if step < 16:
            sg = step // 4
            a(f"ds_read_b128 v[{d}:{d+3}], v{OA if sg < 2 else OA2} offset:{20480*(sg & 1) + 4096*(step % 4)}"); return 1
        sg = step - 16
        for t in range(2):
            a(f"ds_read_b64 v[{d+2*t}:{d+2*t+1}], v{OB if sg < 2 else OB2} offset:{20480*(sg & 1) + 1024*t}")
        return 2
    def b3_stores():
        for k in range(3):
            if k == 2: a(f"s_cmp_ge_u32 s{sHW}, 2\ns_cbranch_scc1 L_b3e")
            a(f"buffer_store_dwordx4 v[{QV+4*k}:{QV+4*k+3}], v{ROH+k}, {srd(SOUT)}, s{sT2} offen {cfg.outb}")
        a("L_b3e:")
    def a3_loop(nct, fr, ct0):
        ACC3 = 16
        OFS = [28, 28]
        q.clear()
        stages = [[4 * sg + k for k in range(4)] + [16 + sg] for sg in range(4)]
        seq = [st for sg in stages for st in sg]
        slot = {st: 28 + 4 * (i % 6) for i, st in enumerate(seq)}
        nread = [0]
        bars = [int(ch) for ch in cfg.ebar]
        def reads_upto(i):
            while nread[0] < min(i + cfg.a3la, 20):
                st = seq[nread[0]]
                if nread[0] % 5 == 0 and nread[0] // 5 in bars:
                    if nread[0] >= i + cfg.a3x: break
                    sg = nread[0] // 5
                    nxt = min([b for b in bars if b > sg] + [4])
                    if nct == 3:
                        assert nissued[0] >= 5 * nxt
                        a(f"s_waitcnt vmcnt({nissued[0] - 5*nxt})")
                    a("s_barrier"); stamp(3 + sg, "a3")
                n = o_frag(st, slot[st]); issue(("O", st), n); nread[0] += 1
        for i, st in enumerate(seq):
            reads_upto(i)
            wait_for({("O", st), ("W", st)})
            for ct in range(nct):
                w = fr[(st, ct)]; d = ACC3 + 4 * ct; o = slot[st]
                a(f"v_mfma_f32_16x16x32_bf16 v[{d}:{d+3}], v[{w}:{w+3}], v[{o}:{o+3}], " + ("0" if i == 0 else f"v[{d}:{d+3}]"))
            if nct == 3:
                for _ in range(2):
                    if olate: olate.pop(0)(); nissued[0] += 1
            if nct == 2 and i == cfg.ot3: a(f"s_mov_b32 exec_hi, 0\nbuffer_load_dword v10, v9, {srd(SOUT)}, 0 offen {cfg.otf}\ns_mov_b32 exec_hi, -1")
            if nct == 2 and i == cfg.b3st: b3_stores()
            if nct == 3 and i in (5, 7, 9, 11):
                st2 = 12 + (i - 5) // 2
                for ct in range(3):
                    fr[(st2, ct)] = fr[(st2 - 12, ct)]
                    wo_frag(st2, ct, fr[(st2, ct)]); issue(("W", st2), 2)
        for ct in range(nct):
            d = ACC3 + 4 * ct
            a(f"v_cvt_pk_bf16_f32 v{2+2*ct}, v{d}, v{d+1}\nv_cvt_pk_bf16_f32 v{3+2*ct}, v{d+2}, v{d+3}\nds_write_b64 v{STA}, v[{2+2*ct}:{3+2*ct}] offset:{32*(ct+ct0)}")
        a("s_waitcnt lgkmcnt(0)\ns_barrier"); stamp(7, "a3"); stamp(7, "ar")
    stamp(2, "g2")
    a(f"s_cmp_ge_u32 s{sWV}, 4\ns_cbranch_scc1 L_g2_h")
    a(f"v_mov_b32 v8, v{OFA}")
    must = [0, 1, 2, 3, 4, 5, 6, 16, 17]
    csteps = must + [7, 8, 9, 10, 11, 18, 19]
    cfr = {}
    for n, st in enumerate(csteps):
        for ct in range(3):
            cfr[(st, ct)] = 64 + 4 * (3 * n + ct)
            wo_frag(st, ct, cfr[(st, ct)])
        if n == cfg.cpub and not cfg.wsch:
            a("s_waitcnt vmcnt(0)"); publish(sA, 4); stamp(3, "g2")
        if n == len(must) - 1 + cfg.bdl:
            a(f"s_waitcnt lgkmcnt({6*cfg.bdl})\ns_barrier"); stamp(4, "g2")
    fin_addr(2)
    a3_addr()
    a(f"""
    v_lshlrev_b32 v12, 4, v1
    v_and_b32 v13, 31, v1
    v_lshrrev_b32 v7, 5, v1
    v_lshlrev_b32 v13, 4, v13
    v_lshl_add_u32 v13, v7, 16, v13
    s_lshl_b32 s{sA}, s{sWV}, 16
    s_lshl_b32 s{sT0}, s{sR64}, 10
    s_add_u32 s{sA}, s{sA}, s{sT0}
    s_lshl_b32 s{sB}, s{sWV}, 14
    s_lshl_b32 s{sT0}, s{sR64}, 9
    s_add_u32 s{sB}, s{sB}, s{sT0}
    s_lshl_b32 s{sT4}, s{sWV}, 11
    s_lshl_b32 s{sT5}, s{sWV}, 10
    """)
    if cfg.odelay: a(f"s_sleep {cfg.odelay}")
    poll(8, 10)
    stamp(7); stamp(5, "g2"); stamp(1, "a3"); stamp(1, "ar")
    odma = []
    def o16(g):
        a(f"s_add_u32 s{sT0}, s{sA}, {WS_O + 32768*g}")
        dma(12, SWS, f"s{sT0}", f"s_add_u32 m0, s{sT4}, {L_OS[g // 16] + 1024*(g % 16)}", "sc1")
    def o8(k):
        a(f"s_add_u32 s{sT0}, s{sB}, {WS_O8 + 16384*8*k}")
        dma(13, SWS, f"s{sT0}", f"s_add_u32 m0, s{sT5}, {L_OS[k] + 16384}", "sc1")
    for i in range(8):
        for hh in range(2): odma.append(lambda g=8*i+hh: o16(g))
        if i & 1: odma.append(lambda k=i >> 1: o8(k))
    for i, f in enumerate(odma[:cfg.oup]):
        f()
        if i == cfg.z0 - 1 and not cfg.zsync: a("s_barrier")
    a("s_waitcnt lgkmcnt(0)")
    olate = odma[cfg.oup:]; nissued = [cfg.oup]
    if cfg.grp == "ar":
        stamp(2, "ar")
        for i in range(4):
            a(f"s_waitcnt vmcnt({15-5*i})"); stamp(3 + i, "ar")
    a3_loop(3, cfr, 0)
    fin_store()
    a("s_branch L_fin")
    a("L_g2_h:")
    hfr = {}; ZV = 40
    def zdma():
        check_or_poll(FZA, FZR)
        for k in range(3): a(f"s_mov_b32 m0, s{ZM[k]}\nbuffer_load_dwordx4 v{ZD+k}, {srd(SWS)}, 0 offen sc1 lds")
    if not cfg.zafter:
        a("s_waitcnt vmcnt(2)"); zdma()
    hsteps = must + [st for st in range(20) if st not in must]
    for n, st in enumerate(hsteps):
        for ct in range(2):
            i = 2 * n + ct
            hfr[(st, ct)] = 64 + 4 * i if i < 22 else 184 + 4 * (i - 22)
            wo_frag(st, ct, hfr[(st, ct)])
        if cfg.wsch:
            if n == 0: zdma()
        elif n == cfg.hpub:
            a(f"s_waitcnt vmcnt({0 if cfg.zafter else 3})"); publish(sA, 4); stamp(3, "g2")
            if cfg.zafter: zdma()
        if n == len(must) - 1 + cfg.bdl:
            a(f"s_waitcnt lgkmcnt({4*cfg.bdl})\ns_barrier")
    a3_addr(); fin_addr(1)
    if cfg.ot3 >= 0: ot_addr(9)
    if cfg.zsync:
        a(f"""
        s_lshl_b32 s{sT0}, s{sHW}, 2
        s_add_u32 s{sT0}, s{sT0}, 86784
        v_mov_b32 v2, s{sT0}
        v_mov_b32 v3, s{sN}
        v_and_b32 v4, 3, v1
        v_lshlrev_b32 v4, 2, v4
        v_add_u32 v4, 86784, v4
        s_mov_b32 s{sCNT}, 0
        s_waitcnt vmcnt({0 if cfg.zafter else 1})
        ds_write_b32 v2, v3
        L_zs:
        ds_read_b32 v5, v4
        s_add_u32 s{sCNT}, s{sCNT}, 1
        s_waitcnt lgkmcnt(0)
        v_cmp_ne_u32 vcc, s{sN}, v5
        s_cmp_gt_u32 s{sCNT}, 0x400000
        s_cbranch_scc1 L_zsd
        s_cbranch_vccnz L_zs
        L_zsd:
        """)
    else:
        a(f"s_waitcnt vmcnt({0 if cfg.zafter else 1}) lgkmcnt(0)\ns_barrier")
    stamp(4, "g2"); stamp(7); stamp(1, "a3")
    a(f"s_mul_i32 s{sT2}, s{sR64}, {64*2560}\ns_add_u32 s{sT2}, s{sT2}, s{sC160}\ns_add_u32 s{sT2}, s{sT2}, 1280")
    for k in range(3):
        if k == 2: a(f"s_cmp_ge_u32 s{sHW}, 2\ns_cbranch_scc1 L_b3d")
        for j in range(8): a(f"v_mov_b32 v{ZV+j}, 0")
        for j in range(8): a(f"ds_read_u16_d16_hi v{ZV+j}, v{ZA+k} offset:{128*j}")
        for j in range(4):
            a(f"v_lshlrev_b32 v{ZT+2*j}, 16, v{QV+4*k+j}\nv_and_b32 v{ZT+1+2*j}, 0xffff0000, v{QV+4*k+j}")
        a("s_waitcnt lgkmcnt(0)")
        for j in range(8): a(f"v_mul_f32 v{ZT+j}, v{ZT+j}, v{ZV+j}")
        for j in range(4): a(f"v_cvt_pk_bf16_f32 v{QV+4*k+j}, v{ZT+2*j}, v{ZT+1+2*j}")
        if cfg.b3st < 0: a(f"buffer_store_dwordx4 v[{QV+4*k}:{QV+4*k+3}], v{ROH+k}, {srd(SOUT)}, s{sT2} offen {cfg.outb}")
    a("L_b3d:")
    stamp(5, "g2"); stamp(2, "a3")
    a3_loop(2, hfr, 3)
    fin_store()
    a("L_fin:")
    if cfg.stamps:
        a("s_waitcnt vmcnt(0)")
        stamp(8)
        if cfg.dbgst:
            a(f"s_cmp_lg_u32 s2, 41\ns_cbranch_scc1 L_exit\ns_cmp_lg_u32 s{sWV}, 0\ns_cbranch_scc1 L_exit\ns_mov_b64 exec, 1\nv_mov_b32 v2, 0")
            for i in range(9):
                a(f"s_sub_u32 s{sT0}, s{sSTAMP+2*i}, s{sSTAMP}\nv_mov_b32 v4, s{sT0}\nbuffer_store_dword v4, v2, {srd(SDBG)}, 0 offen offset:{8+4*i}\ns_waitcnt vmcnt(0)")
            a(f"s_sub_u32 s{sT0}, s{sN}, s{sSTAMP}\nv_mov_b32 v4, s{sT0}\nbuffer_store_dword v4, v2, {srd(SDBG)}, 0 offen offset:48\ns_waitcnt vmcnt(0)")
            a("s_endpgm")
        a(f"s_lshl_b32 s{sT0}, s2, 3\ns_add_u32 s{sT0}, s{sT0}, s{sWV}\ns_lshl_b32 s{sT0}, s{sT0}, 7\ns_add_u32 s{sT0}, s{sT0}, {WS_T}\nv_mov_b32 v2, s{sT0}\ns_mov_b64 exec, 1")
        for i in range(9):
            a(f"v_mov_b32 v4, s{sSTAMP+2*i}\nv_mov_b32 v5, s{sSTAMP+2*i+1}\nbuffer_store_dwordx2 v[4:5], v2, {srd(SWS)}, 0 offen offset:{8*i}\ns_waitcnt vmcnt(0)")
    a("L_exit:\ns_endpgm")
    i = 0
    while i < len(ool):
        ool[i](); i += 1
    a("L_end:")
    fallback(); gen_loop()
    while i < len(ool):
        ool[i](); i += 1
    body = a.finish()
    hdr = open("cdna_kernels/" + NAME + ".s.ref").read().split("; Override launch")[0]
    src = hdr + f"""; Single persistent kernel, one 512-thread workgroup per CU; generated by the author's own script.
; @launch grid=(256,1,1) block=(512,1,1) lds=163840
.amdgcn_target "amdgcn-amd-amdhsa--gfx950"
.text
.globl {NAME}_kernel
.p2align 8
.type {NAME}_kernel,@function
{NAME}_kernel:
{body}.section .rodata,"a"
.p2align 6
.amdhsa_kernel {NAME}_kernel
  .amdhsa_next_free_vgpr 256
  .amdhsa_next_free_sgpr 102
  .amdhsa_accum_offset 256
  .amdhsa_group_segment_fixed_size 0
  .amdhsa_kernarg_size 96
  .amdhsa_user_sgpr_count 2
  .amdhsa_user_sgpr_kernarg_segment_ptr 1
  .amdhsa_system_sgpr_workgroup_id_x 1
.end_amdhsa_kernel
"""
    return src

if __name__ == "__main__":
    cfg = Cfg()
    out = sys.argv[1]
    for kv in sys.argv[2:]:
        k, v = kv.split("=")
        old = getattr(cfg, k)
        setattr(cfg, k, (v == "1") if isinstance(old, bool) else (int(v) if isinstance(old, int) else v))
    open(out, "w").write(gen(cfg))
```

```python
import sys, math, struct
from asmdsl import Asm

NAME = "concat_heads__sliding_block__ssm_conv_h3__prompt"

class Cfg:
    stamps = False
    grp = ""
    stop = 99
    nt_in = ""
    fstr = 128
    slp = 1
    force_fb = False
    ncls = 3
    b1a = -1
    b1b = -1
    b1c = -1
    map2 = "head"
    outa = ""
    outb = "sc1"
    m16 = True
    nfill = 2
    a3la = 5
    a3x = 3
    ebar = "02"
    sstr = 176
    otouch = 0
    dbgst = False
    tmaj = True
    tscale = True
    cprio = 99
    prew = True
    gdelay = 1
    assist = 4
    lset = "s01"
    usplit = True
    upub = 3
    ust = -1
    wdelay = False
    fld = 6
    pre = 4
    uwarm = False
    r1first = True
    cs0 = "maqgw"
    cs1 = ""
    cs2 = ""
    elate = False
    hc = 4
    oc9 = False
    ocs = False
    zst = -1
    pfirst = False
    odelay = 0
    oup = 20
    b3st = 4
    bdl = 2
    z0 = 10
    zafter = True
    zsync = True
    hack1 = 0
    otn = -1
    otb = False
    otf = ""
    ot3 = -1
    wstart = 0
    wsch = ""
    x4 = 0
    bal = False
    orc = 0
    hl1 = 60
    zfs = 128
    orc2 = 0
    orc3 = 0
    hpre = 0
    wlin = 0
    n3 = 16
    prog = False
    sp1 = True
    nodup = True
    diagd = 0
    tlb = 0
    tlball = False
    tlbs = False
    zpub = 1
    early = 20
    wtouch = 0
    wfirst = 2
    qn = -1
    fzn = 14
    wbar = 16
    cpub = 3
    hpub = 5
    prio = 5
    ufs = 8
    wopre = 9
    noread = False; nomfma = False; nowo = False

WS_G = 0x0; WS_U = 0x800000; WS_Z = 0xB00000; WS_O = 0xE00000; WS_O8 = 0x1000000
WS_FG = 0x1100000; WS_FU = 0x1140000; WS_FZ = 0x1180000; WS_FO = 0x11C0000; WS_T = 0x1200000
WS_SIZE = 0x1800000
L_KB = 98304; L_VB = L_KB + 11024
L_H = 119808; HSTR = 8320; HODD = 4160
L_U = 144768; USTR = 4608
L_V = 32768; VSTR = 8256; L_ONES = L_V + 24768 + 512; L_K = 59136; L_Q = 83712
L_WO1 = 87040
L_WO2 = 0
L_ZA = 25600; L_ZB = 83712
L_OS = [32768, 53248, 87040, 107520]; L_ST = 73728
SX, SW, SWO, SQ, SK, SV, SSH, SH, SD, SOUT, SDBG, SWS = [8 + 4 * i for i in range(12)]
def srd(b): return f"s[{b}:{b+3}]"
sWON, sC160 = 6, 7; sKX = 6
sWV, sXC, sJ, sHW = 56, 57, 58, 59
sN = 60
sR64, sC80, sRB, sCT, sCH, sCHV, sHD, sQB = 62, 63, 64, 65, 66, 67, 68, 69
sT0, sT1, sT2, sT3, sT4, sT5 = 70, 71, 72, 73, 74, 75
sCNT, sNV, sFB, sKC = 76, 77, 78, 79
sEX = 80
sA, sB = 82, 83
sSTAMP = 84
WOM = list(range(24, 36))
ZM = [0, 1, 3]
BIGNEG = 0xf149f2ca
vCZ, vCD, vCF = 208, 224, 240
QV = 152; ROH = 164; ZA = 167; FZA = 170; FZR = 172; QA = 174; ZD = 177; ZT = 174; QM2, QM3 = 182, 183
WOV = 208; AVP = 190; AK0, AK1, AVD, AV0, QAD0, QAD1, QM0, QM1, OS0, OS1 = 197, 198, 199, 200, 201, 202, 203, 204, 205, 206

def f2u(x): return struct.unpack("<I", struct.pack("<f", x))[0]
def pr(b): return f"v[{b}:{b+1}]"

def gen(cfg):
    a = Asm()
    FS = cfg.fstr
    NWO = (100 - cfg.early + 7) // 8
    ool = []
    def stamp(i, grp=""):
        if cfg.stamps and (grp == cfg.grp or i in (0, 8) and grp == ""):
            a(f"s_memrealtime s[{sSTAMP+2*i}:{sSTAMP+2*i+1}]\ns_memtime s[4:5]\ns_waitcnt lgkmcnt(0)\ns_mov_b32 s{sSTAMP+2*i+1}, s4")
    def dma(vaddr, s, soff, m0, flags=""):
        if isinstance(m0, int): a(f"s_mov_b32 m0, {m0}")
        else: a(m0)
        a(f"buffer_load_dwordx4 v{vaddr}, {srd(s)}, {soff} offen {flags} lds")
    def cmpflag(t):
        a(f"v_cmp_ne_u32 vcc, s{sN}, v{t}\nv_cmp_ne_u32 s[{sEX}:{sEX+1}], s{sN+1}, v{t+1}\ns_or_b64 vcc, vcc, s[{sEX}:{sEX+1}]")
    def poll(vaddr, t):
        L = a.lab("L_poll"); D = a.lab("L_polld")
        a(f"s_mov_b32 s{sCNT}, 0\n{L}:")
        a(f"buffer_load_dwordx2 v[{t}:{t+1}], v{vaddr}, {srd(SWS)}, 0 offen sc1\ns_waitcnt vmcnt(0)")
        cmpflag(t)
        a(f"s_cbranch_vccz {D}\ns_add_u32 s{sCNT}, s{sCNT}, 1\ns_cmp_lt_u32 s{sCNT}, 0x40000\ns_cbranch_scc0 {D}\ns_sleep {cfg.slp}\ns_branch {L}\n{D}:")
    def check_or_poll(vaddr, t):
        L = a.lab("L_cp"); R = a.lab("L_cpr")
        cmpflag(t)
        a(f"s_cbranch_vccnz {L}\n{R}:")
        def body():
            a(f"{L}:"); poll(vaddr, t); a(f"s_branch {R}")
        ool.append(body)
    def publish(soff_sgpr, t):
        a(f"v_mov_b32 v{t}, s{sN}\nv_mov_b32 v{t+1}, s{sN+1}\nv_mov_b32 v{t+2}, s{soff_sgpr}")
        a(f"s_mov_b64 exec, 1\nbuffer_store_dwordx2 v[{t}:{t+1}], v{t+2}, {srd(SWS)}, 0 offen sc1\ns_mov_b64 exec, -1")
    def nonce_issue(t):
        a(f"v_mov_b32 v{t+2}, 0\nbuffer_load_dwordx2 v[{t}:{t+1}], v{t+2}, {srd(SDBG)}, 0 offen sc1")
    def nonce_take(t):
        L = a.lab("L_non"); R = a.lab("L_nonr"); D = a.lab("L_nond")
        a(f"s_mov_b32 s{sCNT}, 0\n{R}:\nv_readfirstlane_b32 s{sN}, v{t}\nv_readfirstlane_b32 s{sN+1}, v{t+1}")
        a(f"s_cmp_eq_u32 s{sN}, 0\ns_cbranch_scc1 {L}\n{D}:")
        def body():
            a(f"{L}:\ns_add_u32 s{sCNT}, s{sCNT}, 1\ns_cmp_lt_u32 s{sCNT}, 0x40000\ns_cbranch_scc0 {D}")
            a(f"buffer_load_dwordx2 v[{t}:{t+1}], v{t+2}, {srd(SDBG)}, 0 offen sc1\ns_waitcnt vmcnt(0)\ns_branch {R}")
        ool.append(body)
    def build_masks(val):
        a(f"v_and_b32 v2, 31, v1\nv_lshrrev_b32 v3, 5, v1\nv_lshlrev_b32 v3, 2, v3\nv_sub_u32 v2, v2, v3\nv_mov_b32 v3, {BIGNEG:#x}")
        for r in range(0, 16, 2):
            m0 = 8 * (r >> 2) + (r & 3)
            if val is None:
                a(f"v_cmp_gt_i32 vcc, {m0}, v2\nv_cmp_gt_i32 s[{sEX}:{sEX+1}], {m0+1}, v2")
                if r > 0: a(f"v_xor_b32 v{vCF+r-2}, v3, v{vCD+r-2}\nv_xor_b32 v{vCF+r-1}, v3, v{vCD+r-1}")
                a(f"v_cndmask_b32 v{vCD+r}, 0, v3, vcc\nv_cndmask_b32 v{vCD+r+1}, 0, v3, s[{sEX}:{sEX+1}]")
                if r == 14: a(f"v_xor_b32 v{vCF+r}, v3, v{vCD+r}\nv_xor_b32 v{vCF+r+1}, v3, v{vCD+r+1}")
                continue
            a(f"v_cmp_le_i32 vcc, {m0}, v2\nv_cmp_le_i32 s[{sEX}:{sEX+1}], {m0+1}, v2\nv_mov_b32 v{vCZ+r}, {val}\nv_mov_b32 v{vCZ+r+1}, {val}")
            a(f"v_cndmask_b32 v{vCD+r}, v3, v{vCZ+r}, vcc\nv_cndmask_b32 v{vCF+r}, v{vCZ+r}, v3, vcc")
            a(f"v_cndmask_b32 v{vCD+r+1}, v3, v{vCZ+r+1}, s[{sEX}:{sEX+1}]\nv_cndmask_b32 v{vCF+r+1}, v{vCZ+r+1}, v3, s[{sEX}:{sEX+1}]")
    def capture(f):
        n0 = len(a.ins); f(); r = [i.text for i in a.ins[n0:]]; del a.ins[n0:]; return r
    q = []
    def issue(tag, n): q.extend([tag] * n)
    def wait_for(tags):
        last = max((i for i, t in enumerate(q) if t in tags), default=-1)
        if last >= 0:
            a(f"s_waitcnt lgkmcnt({min(len(q) - 1 - last, 15)})")
            del q[:last + 1]

    T2 = 184
    def taps(tp, r):
        a(f"""
        v_lshlrev_b32 v{tp+0}, 16, v{r}
        v_lshlrev_b32 v{tp+1}, 16, v{r+2}
        v_and_b32 v{tp+2}, 0xffff0000, v{r}
        v_and_b32 v{tp+3}, 0xffff0000, v{r+2}
        v_lshlrev_b32 v{tp+4}, 16, v{r+1}
        v_lshlrev_b32 v{tp+5}, 16, v{r+3}
        v_and_b32 v{tp+6}, 0xffff0000, v{r+1}
        v_and_b32 v{tp+7}, 0xffff0000, v{r+3}
        """)
    def b1_compute(B):
        kr = B; rs = B; vv = B + 16; ku = B + 24; tp = B + 46; vu = ku; pk = B + 40
        a(f"""
        v_and_b32 v2, 7, v0
        v_lshrrev_b32 v3, 3, v0
        v_mul_u32_u24 v4, 1296, v2
        v_lshl_add_u32 v4, v3, 2, v4
        v_add_u32 v4, {L_KB}, v4
        """)
        for i in range(-3, 8): a(f"ds_read_b32 v{kr+3+i}, v4 offset:{(640 if i < 0 else 656) + 160*i}")
        for i in range(8): a(f"ds_read_b32 v{vv+i}, v4 offset:{11024 + 160*i}")
        a(f"""
        v_lshlrev_b32 v3, 13, v3
        v_sub_u32 v2, 7, v2
        v_lshl_add_u32 v3, v2, 4, v3
        v_and_b32 v2, 31, v0
        v_lshrrev_b32 v4, 5, v0
        v_mul_u32_u24 v5, 320, v2
        v_lshl_add_u32 v5, v4, 2, v5
        v_add_u32 v5, {L_KB + 128}, v5
        v_add_u32 v6, 3, v2
        v_lshrrev_b32 v6, 2, v6
        v_lshl_add_u32 v6, v6, 4, v5
        v_add_u32 v7, 2, v2
        v_lshrrev_b32 v7, 2, v7
        v_lshl_add_u32 v7, v7, 4, v5
        v_lshrrev_b32 v188, 2, v2
        v_lshl_add_u32 v5, v188, 4, v5
        ds_read_b32 v7, v7 offset:160
        ds_read_b32 v188, v6 offset:320
        ds_read_b32 v6, v6 offset:480
        ds_read_b32 v189, v5 offset:656
        ds_read_b32 v195, v5 offset:816
        ds_read_b32 v196, v5 offset:11024
        ds_read_b32 v5, v5 offset:11184
        v_lshlrev_b32 v2, 2, v2
        v_sub_u32 v2, {32*8192 + 124}, v2
        v_lshl_add_u32 v2, v4, 13, v2
        """)
        taps(tp, 8)
        a(f"""
        s_mul_i32 s{sT0}, s{sC80}, {80*4096}
        s_lshl_b32 s{sT1}, s{sR64}, 7
        s_sub_u32 s{sT0}, s{sT0}, s{sT1}
        s_add_u32 s{sT0}, s{sT0}, {WS_U + 4080 - 112}
        s_waitcnt lgkmcnt(15)
        """)
        def unp(d, r): a(f"v_lshlrev_b32 v{d}, 16, v{r}\nv_and_b32 v{d+1}, 0xffff0000, v{r}")
        for i in range(11): unp(ku + 2 * i, kr + i)
        for i in range(8): a(f"v_pk_mul_f32 {pr(rs+2*i)}, {pr(ku+2*(i+3))}, {pr(tp)}")
        for j in range(1, 4):
            for i in range(8): a(f"v_pk_fma_f32 {pr(rs+2*i)}, {pr(ku+2*(i+3-j))}, {pr(tp+2*j)}, {pr(rs+2*i)}")
        a("s_waitcnt lgkmcnt(7)")
        for i in range(8): unp(vu + 2 * i, vv + i)
        for i in range(8): a(f"v_pk_mul_f32 {pr(rs+2*i)}, {pr(rs+2*i)}, {pr(vu+2*i)}")
        for ch in range(2):
            for d in range(4): a(f"v_cvt_pk_bf16_f32 v{pk+4*ch+d}, v{rs+2*(7-2*d)+ch}, v{rs+2*(6-2*d)+ch}")
        ku = B + 4; tp = B + 18
        taps(tp, T2)
        a("s_waitcnt lgkmcnt(0)")
        for i, r in enumerate((7, 188, 6, 189, 195, 196, 5)): unp(ku + 2 * i, r)
        for i in range(2): a(f"v_pk_mul_f32 {pr(rs+2*i)}, {pr(ku+2*(i+3))}, {pr(tp)}")
        for j in range(1, 4):
            for i in range(2): a(f"v_pk_fma_f32 {pr(rs+2*i)}, {pr(ku+2*(i+3-j))}, {pr(tp+2*j)}, {pr(rs+2*i)}")
        for i in range(2): a(f"v_pk_mul_f32 {pr(rs+2*i)}, {pr(rs+2*i)}, {pr(ku+10+2*i)}")
        a(f"v_cvt_pk_bf16_f32 v{pk+8}, v{rs+2}, v{rs}\nv_cvt_pk_bf16_f32 v{pk+9}, v{rs+3}, v{rs+1}")
        a(f"v_add_u32 v{pk+10}, s{sT0}, v3\nv_add_u32 v{pk+11}, s{sT0}, v2")
    def b1_store(B):
        pk = B + 40
        a(f"""
        s_movk_i32 s{sT1}, 0x1000
        buffer_store_dwordx4 v[{pk}:{pk+3}], v{pk+10}, {srd(SWS)}, 0 offen sc1
        buffer_store_dwordx4 v[{pk+4}:{pk+7}], v{pk+10}, {srd(SWS)}, s{sT1} offen sc1
        buffer_store_dword v{pk+8}, v{pk+11}, {srd(SWS)}, 0 offen sc1
        buffer_store_dword v{pk+9}, v{pk+11}, {srd(SWS)}, s{sT1} offen sc1
        """)
    def shift_load():
        a(f"v_lshrrev_b32 v4, 3, v0\nv_lshlrev_b32 v4, 4, v4\ns_mul_i32 s{sT4}, s{sC80}, 640\nbuffer_load_dwordx4 v[8:11], v4, {srd(SSH)}, s{sT4} offen")
        a(f"v_lshrrev_b32 v4, 5, v0\nv_lshlrev_b32 v4, 4, v4\nbuffer_load_dwordx4 v[{T2}:{T2+3}], v4, {srd(SSH)}, s{sT4} offen offset:512")
    def publish_u(t):
        a(f"s_lshl_b32 s{sT0}, s{sC80}, 2\ns_add_u32 s{sT0}, s{sT0}, s{sWV}\ns_lshl_b32 s{sT0}, s{sT0}, 5\ns_add_u32 s{sT0}, s{sT0}, s{sR64}\ns_mul_i32 s{sT0}, s{sT0}, {cfg.ufs}\ns_add_u32 s{sT0}, s{sT0}, {WS_FU}")
        publish(sT0, t)
    def rounds(RO):
        for k in range(3):
            a(f"""
            s_lshl_b32 s{sT0}, s{sHW}, 6
            s_add_u32 s{sT0}, s{sT0}, {256*k}
            v_add_u32 v2, s{sT0}, v1
            v_mul_u32_u24 v3, 205, v2
            v_lshrrev_b32 v3, 11, v3
            v_mul_u32_u24 v4, 10, v3
            v_sub_u32 v4, v2, v4
            v_mul_u32_u24 v5, 2560, v3
            v_lshl_add_u32 v{RO+k}, v4, 4, v5
            """)
            yield k
    def a2_setup():
        a(f"""
        s_lshl_b32 s{sT0}, s{sWV}, 9
        v_and_b32 v2, 31, v1
        v_lshrrev_b32 v3, 5, v1
        v_lshlrev_b32 v{OS1}, 3, v2
        v_lshlrev_b32 v4, 4, v2
        v_lshl_add_u32 v{OS0}, v3, 15, v4
        v_add_u32 v4, s{sT0}, v4
        v_lshl_add_u32 v5, v3, 12, v4
        v_add_u32 v{QAD0}, {L_Q}, v5
        v_add_u32 v{QAD1}, {L_Q + 8192}, v4
        v_lshl_add_u32 v{AK0}, v3, 13, v4
        v_add_u32 v{AK0}, {L_K}, v{AK0}
        v_lshlrev_b32 v5, 9, v3
        v_sub_u32 v5, v4, v5
        v_add_u32 v{AK1}, {L_K + 16384}, v5
        v_bfe_u32 v4, v1, 2, 2
        v_lshl_add_u32 v4, v3, 2, v4
        v_lshlrev_b32 v4, 4, v4
        v_bfe_u32 v5, v1, 1, 1
        v_mul_u32_u24 v5, {VSTR}, v5
        v_and_b32 v6, 1, v1
        v_lshl_add_u32 v5, v6, 3, v5
        s_and_b32 s{sT1}, s{sHD}, 1
        s_lshl_b32 s{sT2}, s{sT1}, 3
        s_add_u32 s{sT2}, s{sT2}, {2*VSTR}
        v_mov_b32 v6, s{sT2}
        v_and_b32 v7, 16, v1
        v_cmp_ne_u32 vcc, 0, v7
        v_cndmask_b32 v5, v5, v6, vcc
        s_add_u32 s{sT0}, s{sT0}, {L_V + 4096 - 512}
        v_add3_u32 v5, v5, v4, s{sT0}
        v_and_b32 v7, 2, v1
        v_sub_u32 v7, 2, v7
        v_lshl_add_u32 v4, v7, {2 if cfg.sp1 else 31}, v4
        v_and_b32 v7, 19, v1
        v_cmp_lt_u32 vcc, 16, v7
        s_add_u32 s{sT0}, s{sWV}, 1
        s_cmp_eq_u32 s{sQB}, 0
        s_cselect_b32 s{sNV}, s{sT0}, 99
        """)
        for p in range(5):
            a(f"""
            s_cmp_gt_u32 s{sNV}, {2*p}
            s_cselect_b32 s{sT0}, {L_ONES - 512 - (L_V + 192)}, 0
            s_add_u32 s{sT0}, s{sT0}, {L_V + 192}
            s_cmp_gt_u32 s{sNV}, {2*p+1}
            s_cselect_b32 s{sT0}, {L_ONES}, s{sT0}
            v_add_u32 v6, s{sT0}, v4
            v_cndmask_b32 v{AVP+p}, v5, v6, vcc
            v_subrev_u32 v5, 1024, v5
            """)
        a(f"""
        s_mov_b32 s{sFB}, 0
        s_cmp_eq_u32 s{sT1}, 0
        s_cselect_b32 s{sT2}, -1, 0
        s_cselect_b32 s{sT3}, 0, -1
        v_cmp_eq_u32 vcc, 0, v3
        v_mov_b32 v5, s{sT2}
        v_mov_b32 v6, s{sT3}
        v_cndmask_b32 v{QM0}, 0, v5, vcc
        v_cndmask_b32 v{QM1}, 0, v6, vcc
        v_cndmask_b32 v{QM2}, v5, 0, vcc
        v_cndmask_b32 v{QM3}, v6, 0, vcc
        s_mov_b32 s{sT4}, 6554
        """)
        for i in range(NWO):
            wo_index(i)
            if cfg.orc2: a(f"s_and_b32 s{sT2}, s{sT2}, 31")
            a(f"""
            s_lshl_b32 s{sT3}, s{sT2}, 6
            v_add_u32 v2, s{sT3}, v1
            v_mul_u32_u24 v3, s{sT4}, v2
            v_lshrrev_b32 v3, 16, v3
            v_mul_u32_u24 v3, 1120, v3
            v_lshl_add_u32 v{WOV+i}, v2, 4, v3
            """)
    def wo_index(i):
        a(f"s_add_u32 s{sT2}, s{sWV}, {8*i}")
        if 8 * i + 7 > 99 - cfg.early: a(f"s_min_u32 s{sT2}, s{sT2}, {99 - cfg.early}")
    def wom_setup():
        for i in range(NWO):
            wo_index(i)
            a(f"s_lshl_b32 s{sT2}, s{sT2}, 10\ns_add_u32 s{WOM[i]}, s{sT2}, {L_WO1}")
            if 8 * i + 7 >= 75: a(f"s_sub_u32 s{sT2}, s{sT2}, 76800\ns_min_u32 s{WOM[i]}, s{WOM[i]}, s{sT2}")
    def wo_early_addr():
        for i in range(5):
            a(f"v_add_u32 v2, {64*i}, v1\nv_mul_u32_u24 v3, 205, v2\nv_lshrrev_b32 v3, 11, v3\nv_mul_u32_u24 v3, 1120, v3\nv_lshl_add_u32 v{32+i}, v2, 4, v3")
    def wo_early():
        lastp = -1
        for n in range(100 - cfg.early, 100):
            if n // 5 != lastp:
                lastp = n // 5; a(f"s_add_u32 s{sT0}, s{sC160}, {lastp*32*1280}")
            dma(32 + n % 5, SWO, f"s{sT0}", L_WO1 + 1024 * n if n < 75 else L_WO2 + 1024 * (n - 75))

    L_SYNC = 119712
    sizes = {SX: 2621440, SW: 2457600, SWO: 819200, SQ: 2621440, SK: 2621440, SV: 2621440, SSH: 5120, SH: 2621440, SD: 1280, SOUT: 5242880, SDBG: 256, SWS: WS_SIZE}
    assert cfg.b1a < 0 and cfg.b1b < 0 and cfg.b1c < 0
    for s, slot in ((SK, 4), (SV, 5), (SSH, 6), (SX, 0), (SW, 1)): a(f"s_load_dwordx2 s[{s}:{s+1}], s[0:1], {slot*8}")
    a("s_cmp_ge_u32 s2, 256\ns_cbranch_scc1 L_exit")
    if cfg.diagd: a("s_memrealtime s[100:101]")
    a(f"""
    v_lshrrev_b32 v2, 6, v0
    v_and_b32 v1, 63, v0
    s_and_b32 s{sXC}, s2, 7
    v_readfirstlane_b32 s{sWV}, v2
    s_lshr_b32 s{sJ}, s2, 3
    v_mul_u32_u24 v2, 26, v1
    s_and_b32 s{sT0}, s{sJ}, 3
    v_lshrrev_b32 v2, 8, v2
    s_lshl2_add_u32 s{sR64}, s{sXC}, s{sT0}
    v_mul_u32_u24 v2, 1120, v2
    s_lshr_b32 s{sC80}, s{sJ}, 2
    v_lshl_add_u32 v12, v1, 4, v2
    s_mul_i32 s{sC160}, s{sC80}, 160
    s_lshl3_add_u32 s{sT1}, s{sR64}, s{sWV}
    s_mul_i32 s{sT1}, s{sT1}, {8*1280}
    s_add_u32 s{sT1}, s{sT1}, s{sC160}
    s_mul_i32 s{sB}, s{sWV}, 1296
    s_mov_b32 s{SK+2}, {sizes[SK]}
    s_mov_b32 s{SK+3}, 0x20000
    s_mov_b32 s{SV+2}, {sizes[SV]}
    s_mov_b32 s{SV+3}, 0x20000
    s_add_u32 s{sT2}, s{sT1}, {4*1280}
    s_cmp_lg_u32 s{sWV}, 7
    s_cbranch_scc1 L_nocp
    s_getpc_b64 s[4:5]
    L_pc:
    s_mul_i32 s3, s{sJ}, 1408
    v_lshl_add_u32 v2, v1, 7, s3
    v_min_u32 v2, L_end-L_pc, v2
    v_mov_b32 v3, {L_SYNC + 16}
    v_mov_b32 v4, 0
    s_mov_b64 exec, 0x7ff
    global_load_dword v62, v2, s[4:5]
    ds_write_b32 v3, v4
    s_mov_b32 exec_lo, -1
    L_nocp:
    s_mov_b32 exec_hi, 0xff
    s_add_u32 m0, s{sB}, {L_KB+656}
    s_waitcnt lgkmcnt(0)
    buffer_load_dwordx4 v12, {srd(SK)}, s{sT1} offen {cfg.nt_in} lds
    """)
    dma(12, SV, f"s{sT1}", f"s_add_u32 m0, s{sB}, {L_VB}", cfg.nt_in)
    dma(12, SK, f"s{sT2}", f"s_add_u32 m0, s{sB}, {L_KB+656+640}", cfg.nt_in)
    dma(12, SV, f"s{sT2}", f"s_add_u32 m0, s{sB}, {L_VB+640}", cfg.nt_in)
    a(f"s_cmp_lg_u32 s{sWV}, 0\ns_cbranch_scc1 L_nohalo\ns_sub_u32 s{sT1}, s{sT1}, {4*1280}\nv_add_u32 v13, s{sT1}, v12")
    dma(13, SK, "0", L_KB, cfg.nt_in)
    a(f"L_nohalo:\ns_mov_b32 exec_hi, -1\ns_mov_b32 s{SSH+2}, {sizes[SSH]}\ns_mov_b32 s{SSH+3}, 0x20000\ns_cmp_ge_u32 s{sWV}, 4\ns_cbranch_scc1 L_nosh")
    shift_load()
    a("L_nosh:")
    stamp(0)
    for s, slot in ((SDBG, 10), (SWS, 11), (SH, 7), (SD, 8), (SWO, 2), (SQ, 3), (SOUT, 9)): a(f"s_load_dwordx2 s[{s}:{s+1}], s[0:1], {slot*8}")
    def srd_consts(lst):
        for s in lst: a(f"s_mov_b32 s{s+2}, {sizes[s]}\ns_mov_b32 s{s+3}, 0x20000")
    a(f"""
    s_and_b32 s{sHW}, s{sWV}, 3
    s_and_b32 s{sT0}, s{sXC}, 1
    s_mul_i32 s{sT0}, s{sT0}, 30
    s_add_u32 s{sT0}, s{sT0}, s{sJ}
    s_lshr_b32 s{sCT}, s{sT0}, 2
    s_cmp_ge_u32 s{sJ}, 30
    s_cselect_b32 s{sCT}, 7, s{sCT}
    s_and_b32 s{sT0}, s{sT0}, 3
    s_lshr_b32 s{sRB}, s{sXC}, 1
    s_lshl2_add_u32 s{sRB}, s{sRB}, s{sT0}
    s_barrier
    """)
    if cfg.map2 == "head": a(f"s_mov_b32 s{sHD}, s{sR64}\ns_mov_b32 s{sQB}, s{sC80}")
    else: a(f"s_mov_b32 s{sHD}, s{sJ}\ns_mov_b32 s{sQB}, s{sXC}")
    a(f"s_cmp_lt_u32 s{sWV}, 4\ns_cbranch_scc1 L_C")

    vX = 16; vW = 20; vW2 = 63; vD = 21; vNH = 22; vHA = 64; vHB = 80
    srd_consts((SX, SW))
    a(f"""
    v_lshrrev_b32 v2, 3, v1
    v_lshrrev_b32 v3, 4, v1
    v_xor_b32 v4, v3, v1
    v_and_b32 v4, 7, v4
    v_mul_u32_u24 v2, 1280, v2
    v_lshl_add_u32 v{vX}, v4, 4, v2
    v_xor_b32 v4, 4, v4
    v_lshl_add_u32 v{vX+1}, v4, 4, v2
    v_add_u32 v{vX+1}, {8*1280}, v{vX+1}
    v_add_u32 v{vX+2}, {16*1280}, v{vX}
    v_add_u32 v{vX+3}, {16*1280}, v{vX+1}
    v_lshlrev_b32 v4, 2, v3
    v_xor_b32 v4, v4, v1
    v_and_b32 v4, 15, v4
    v_mul_u32_u24 v3, 3840, v3
    v_lshl_add_u32 v{vW}, v4, 4, v3
    v_xor_b32 v{vW2}, {32 if cfg.m16 else 0}, v{vW}
    s_mul_i32 s{sA}, s{sRB}, {128*1280}
    s_mul_i32 s{sT0}, s{sHW}, {32*1280}
    s_add_u32 s{sA}, s{sA}, s{sT0}
    s_lshl_b32 s{sB}, s{sCT}, 8
    s_mul_i32 s{sT0}, s{sHW}, {16*3840}
    s_add_u32 s{sB}, s{sB}, s{sT0}
    s_lshl_b32 s{sT5}, s{sHW}, 12
    """)
    if cfg.ncls == 10:
        a(f"s_and_b32 s{sT0}, s{sRB}, 3\ns_mul_i32 s{sT0}, s{sT0}, 5\ns_add_u32 s{sT0}, s{sT0}, 1\ns_lshr_b32 s{sT0}, s{sT0}, 1\ns_lshr_b32 s{sT1}, s{sRB}, 2\ns_add_u32 s{sT0}, s{sT0}, s{sT1}\ns_add_u32 s{sKC}, s{sT0}, s{sCT}")
    elif cfg.ncls == 2:
        a(f"s_add_u32 s{sT0}, s{sRB}, s{sCT}\ns_and_b32 s{sT0}, s{sT0}, 1\ns_mul_i32 s{sT0}, s{sT0}, 5\ns_add_u32 s{sKC}, s{sT0}, s{sXC}")
    elif cfg.ncls == 4:
        a(f"s_add_u32 s{sT0}, s{sRB}, s{sCT}\ns_and_b32 s{sT0}, s{sT0}, 3\ns_mul_i32 s{sT0}, s{sT0}, 5\ns_add_u32 s{sT0}, s{sT0}, 1\ns_lshr_b32 s{sT0}, s{sT0}, 1\ns_add_u32 s{sKC}, s{sT0}, s{sXC}")
    elif cfg.ncls == 3:
        a(f"s_add_u32 s{sT0}, s{sRB}, s{sCT}\ns_mul_i32 s{sT1}, s{sT0}, 86\ns_lshr_b32 s{sT1}, s{sT1}, 8\ns_mul_i32 s{sT1}, s{sT1}, 3\ns_sub_u32 s{sT0}, s{sT0}, s{sT1}\ns_mul_i32 s{sT0}, s{sT0}, 7\ns_lshr_b32 s{sT0}, s{sT0}, 1\ns_add_u32 s{sKC}, s{sT0}, s{sXC}")
    else:
        a(f"s_mov_b32 s{sKC}, s{sXC}")
    a(f"s_mul_i32 s{sT0}, s{sKC}, 205\ns_lshr_b32 s{sT0}, s{sT0}, 11\ns_mul_i32 s{sT0}, s{sT0}, 10\ns_sub_u32 s{sKC}, s{sKC}, s{sT0}")
    def ring_issue(c):
        slot = ((c + 1) % 3) * 32768
        a(f"s_lshl_b32 s{sT0}, s{sKC}, 7\ns_add_u32 s{sT0}, s{sT0}, s{sA}\ns_mul_i32 s{sT1}, s{sKC}, {64*3840}\ns_add_u32 s{sT1}, s{sT1}, s{sB}")
        for i in range(4):
            dma(vX + i, SX, f"s{sT0}", f"s_add_u32 m0, s{sT5}, {slot + i*1024}")
            dma(vW if i < 2 else vW2, SW, f"s{sT1}", f"s_add_u32 m0, s{sT5}, {slot + 16384 + i*1024}")
            if i < 3: a(f"s_add_u32 s{sT1}, s{sT1}, {4*3840}")
        a(f"s_add_u32 s{sKC}, s{sKC}, 1\ns_cmp_eq_u32 s{sKC}, 10\ns_cselect_b32 s{sKC}, 0, s{sKC}")
    def x_issue(c):
        a(f"s_lshl_b32 s{sT0}, s{sKX}, 7\ns_add_u32 s{sT0}, s{sT0}, s{sA}")
        for i in range(4): dma(vX + i, SX, f"s{sT0}", f"s_add_u32 m0, s{sT5}, {(c % 4) * 32768 + i*1024}")
        a(f"s_add_u32 s{sKX}, s{sKX}, 1\ns_cmp_eq_u32 s{sKX}, 10\ns_cselect_b32 s{sKX}, 0, s{sKX}")
    def w_issue(c):
        a(f"s_mul_i32 s{sT1}, s{sKC}, {64*3840}\ns_add_u32 s{sT1}, s{sT1}, s{sB}")
        for i in range(4):
            dma(vW if i < 2 else vW2, SW, f"s{sT1}", f"s_add_u32 m0, s{sT5}, {((c + 1) % 3) * 32768 + 16384 + i*1024}")
            if i < 3: a(f"s_add_u32 s{sT1}, s{sT1}, {4*3840}")
        a(f"s_add_u32 s{sKC}, s{sKC}, 1\ns_cmp_eq_u32 s{sKC}, 10\ns_cselect_b32 s{sKC}, 0, s{sKC}")
    if cfg.x4:
        a(f"s_mov_b32 s{sKX}, s{sKC}")
        def ring_issue(c):
            if c < 2:
                x_issue(c); w_issue(c)
                if c == 1 and cfg.x4 == 1: x_issue(2)
            else:
                if c == 2 and cfg.x4 == 2: x_issue(2)
                w_issue(c)
                if c + 1 <= 9: x_issue(c + 1)
    def h_chan():
        a(f"""
        s_mul_i32 s{sT0}, s{sJ}, 3
        s_lshl_b32 s{sT1}, s{sJ}, 1
        s_add_u32 s{sT1}, s{sT1}, {cfg.n3}
        s_cmp_lt_u32 s{sJ}, {cfg.n3}
        s_cselect_b32 s{sT0}, s{sT0}, s{sT1}
        s_cselect_b32 s{sT1}, 3, 2
        s_cmp_lt_u32 s{sT0}, 80
        s_cselect_b32 s{sT1}, s{sT1}, 0
        s_cselect_b32 s{sT0}, s{sT0}, 0
        s_cmp_lt_u32 s{sHW}, s{sT1}
        s_cselect_b32 s{sCHV}, 1, 0
        s_cselect_b32 s{sT1}, s{sHW}, 0
        s_add_u32 s{sT0}, s{sT0}, s{sT1}
        s_mul_i32 s{sCH}, s{sXC}, 80
        s_add_u32 s{sCH}, s{sCH}, s{sT0}
        s_bfe_u32 s{sT1}, s{sT0}, 0x20002
        s_cmp_lt_u32 s{sT0}, 64
        s_cselect_b32 s{sT2}, 4, 31
        s_cselect_b32 s{sT1}, 0, s{sT1}
        s_lshr_b32 s{sT0}, s{sT0}, s{sT2}
        s_add_u32 s{sT0}, s{sT0}, s{sT1}
        s_lshl_b32 s{sT1}, s{sXC}, 2
        s_add_u32 s{sT0}, s{sT0}, s{sT1}
        s_lshl_b32 s{sT0}, s{sT0}, 5
        v_and_b32 v12, 31, v1
        v_add_u32 v12, s{sT0}, v12
        v_mul_u32_u24 v12, {cfg.ufs}, v12
        v_add_u32 v12, {WS_FU}, v12
        """)
    def f_load():
        a(f"buffer_load_dwordx2 v[14:15], v12, {srd(SWS)}, 0 offen sc1")
    def h_loads():
        a(f"""
        s_mul_i32 s{sT3}, s{sHW}, {HSTR}
        s_mul_i32 s{sT3}, s{sT3}, s{sCHV}
        s_lshl_b32 s{sT0}, s{sCH}, {12 if not cfg.orc3 else 4}
        s_add_u32 m0, s{sT3}, {L_H + 32}
        s_lshl_b32 s{sT4}, s{sCH}, 1
        v_mov_b32 v4, s{sT4}
        """)
        for i in range(4): a(f"buffer_load_dwordx4 v13, {srd(SH if not cfg.orc3 else SW)}, s{sT0} offen offset:{1024*i} {cfg.nt_in} lds")
        a(f"buffer_load_ushort v{vD}, v4, {srd(SD)}, 0 offen")
    def u_loads():
        check_or_poll(12, 14)
        a(f"s_mul_i32 s{sT2}, s{sHW}, {USTR}\ns_lshl_b32 s{sT0}, s{sCH}, 12\ns_add_u32 s{sT1}, s{sT0}, {WS_U}\ns_add_u32 m0, s{sT2}, {L_U}")
        for i in range(4): a(f"buffer_load_dwordx4 v13, {srd(SWS)}, s{sT1} offen offset:{1024*i} sc1 lds")
    def hu_loads():
        h_loads(); a("s_waitcnt vmcnt(5)"); u_loads()
    ZL = 180; ZPA = 171; sZP = 2; WS_FZ2 = WS_FZ + 0x20000
    AA = 26; AB = 30; BACC = 96; BF = 32; AF = 128; NAF = 5; DF = 148
    def b3_setup():
        a(f"s_mul_i32 s{sT2}, s{sR64}, {64*1280}\ns_add_u32 s{sT2}, s{sT2}, s{sC160}")
        for k in rounds(ROH):
            a(f"""
            v_mul_u32_u24 v5, 1280, v3
            v_lshl_add_u32 v5, v4, 4, v5
            v_add_u32 v{QA+k}, s{sT2}, v5
            v_lshlrev_b32 v5, 3, v4
            v_xor_b32 v5, v5, v3
            v_and_b32 v5, 63, v5
            v_lshlrev_b32 v5, 1, v5
            v_lshl_add_u32 v5, v4, 10, v5
            v_cmp_lt_u32 vcc, 6, v4
            v_add_u32 v6, {L_ZA}, v5
            v_add_u32 v5, {L_ZB - 7*1024}, v5
            v_cndmask_b32 v{ZA+k}, v6, v5, vcc
            """)
        a(f"""
        s_cmp_ge_u32 s{sHW}, 2
        s_cselect_b32 s{sT2}, 15, 23
        v_min_u32 v2, s{sT2}, v1
        v_lshrrev_b32 v3, 3, v2
        v_and_b32 v2, 7, v2
        v_lshl_add_u32 v2, v3, 5, v2
        s_mul_i32 s{sT0}, s{sC80}, 80
        s_lshl_b32 s{sT2}, s{sHW}, 3
        s_add_u32 s{sT0}, s{sT0}, s{sT2}
        v_add_u32 v2, s{sT0}, v2
        v_mul_u32_u24 v2, {cfg.zfs}, v2
        s_sub_u32 s{sT0}, s{sXC}, 1
        s_cmp_lt_u32 s{sT0}, {3 if cfg.bal else 0}
        s_cselect_b32 s{sT0}, {WS_FZ2 - WS_FZ}, 0
        s_add_u32 s{sT0}, s{sT0}, {WS_FZ}
        v_add_u32 v{FZA}, s{sT0}, v2
        s_cmp_lt_u32 s{sJ}, 16
        s_cselect_b32 s{sT2}, 3, 2
        s_cmp_eq_u32 s{sCHV}, 0
        s_cselect_b32 s{sT2}, s{sT2}, 1
        s_cselect_b32 s{sT0}, {WS_FZ2 - WS_FZ}, 0
        s_add_u32 s{sT0}, s{sT0}, {WS_FZ}
        v_add_u32 v2, s{sCH}, v1
        v_mul_u32_u24 v2, {cfg.zfs}, v2
        v_add_u32 v2, s{sT0}, v2
        v_bfrev_b32 v3, 1
        v_cmp_gt_u32 vcc, s{sT2}, v1
        v_cndmask_b32 v{ZPA}, v3, v2, vcc
        v_lshrrev_b32 v2, 3, v1
        v_and_b32 v3, 7, v1
        v_lshlrev_b32 v2, 12, v2
        v_lshl_add_u32 v2, v3, 4, v2
        s_mul_i32 s{sT0}, s{sC80}, {80*4096}
        s_lshl_b32 s{sT1}, s{sR64}, 7
        s_add_u32 s{sT0}, s{sT0}, s{sT1}
        s_add_u32 s{sT0}, s{sT0}, {WS_Z}
        """)
        for k in range(3):
            a(f"""
            s_add_u32 s{sT1}, s{sHW}, {4*k}
            s_min_u32 s{sT1}, s{sT1}, 9
            s_and_b32 s{sT2}, s{sT1}, 7
            s_lshl_b32 s{sT2}, s{sT2}, 4
            v_xor_b32 v3, s{sT2}, v2
            s_lshl_b32 s{sT2}, s{sT1}, 15
            s_add_u32 s{sT2}, s{sT2}, s{sT0}
            v_add_u32 v{ZD+k}, s{sT2}, v3
            s_lshl_b32 s{sT2}, s{sT1}, 10
            s_cmp_gt_u32 s{sT1}, 6
            s_cselect_b32 s{sT1}, {L_ZB - 7*1024 - L_ZA}, 0
            s_add_u32 s{sT2}, s{sT2}, s{sT1}
            s_add_u32 s{ZM[k]}, s{sT2}, {L_ZA}
            """)
    def b2_setup():
        a(f"""
        v_and_b32 v2, 15, v1
        v_lshrrev_b32 v3, 4, v1
        v_add_u32 v4, 1, v2
        v_lshrrev_b32 v4, 1, v4
        v_lshl_add_u32 v4, v3, 2, v4
        v_lshlrev_b32 v4, 2, v4
        v_and_b32 v5, 1, v2
        v_cmp_eq_u32 vcc, 0, v5
        v_mov_b32 v5, {HODD}
        v_cndmask_b32 v5, 0, v5, vcc
        s_mul_i32 s{sT1}, s{sHW}, s{sCHV}
        s_mul_i32 s{sT0}, s{sT1}, {HSTR}
        s_add_u32 s{sT0}, s{sT0}, {L_H}
        v_add3_u32 v{AA}, v4, v5, s{sT0}
        v_add_u32 v{AA+1}, 1024, v{AA}
        v_add_u32 v{AA+2}, 2048, v{AA}
        v_add_u32 v{AA+3}, 3072, v{AA}
        v_lshlrev_b32 v13, 4, v1
        v_add_u32 v25, s{sT0}, v13
        v_lshlrev_b32 v4, 5, v2
        v_lshl_add_u32 v4, v3, 3, v4
        s_lshl_b32 s{sT0}, s{sHW}, 12
        s_add_u32 s{sT0}, s{sT0}, {L_KB}
        v_add_u32 v31, s{sT0}, v4
        v_add_u32 v{ZL}, s{sT0}, v13
        v_sub_u32 v4, 15, v2
        v_lshlrev_b32 v4, 5, v4
        v_lshl_add_u32 v4, v3, 4, v4
        s_mul_i32 s{sT1}, s{sT1}, {USTR}
        s_add_u32 s{sT1}, s{sT1}, {L_U}
        v_add_u32 v{AB}, s{sT1}, v4
        v_lshl_add_u32 v2, v1, 3, s{sT1}
        v_mov_b32 v4, 0
        v_mov_b32 v5, 0
        v_mov_b32 v6, 0
        v_mov_b32 v7, 0
        ds_write_b64 v2, v[4:5] offset:4096
        s_mov_b64 exec, 3
        ds_write_b128 v25, v[4:7]
        ds_write_b128 v25, v[4:7] offset:{HODD}
        s_mov_b64 exec, -1
        """)
    def h_late():
        b3_setup(); a2_setup(); build_masks(None); wom_setup()
    def oc_read():
        for i in range(4):
            a(f"ds_read_b128 v[{vHA+6*i}:{vHA+6*i+3}], v25 offset:{32+1024*i}\nds_read_b32 v{vHA+6*i+4}, v25 offset:{48+1024*i}")
    def oc_part(i):
        if i == 0:
            a(f"s_waitcnt lgkmcnt(0)\nv_lshlrev_b32 v11, 16, v{vHA}\ns_mov_b64 exec, 1\nds_write_b32 v25, v11 offset:{HODD+28}\ns_mov_b64 exec, -1")
        for j in range(4): a(f"v_alignbit_b32 v{vHA+6*i+j}, v{vHA+6*i+j+1}, v{vHA+6*i+j}, 16")
        a(f"ds_write_b128 v25, v[{vHA+6*i}:{vHA+6*i+3}] offset:{HODD+32+1024*i}")
    def oc_d():
        a(f"""
        v_and_b32 v2, 15, v1
        v_sub_u32 v2, 15, v2
        v_lshrrev_b32 v3, 4, v1
        v_lshlrev_b32 v3, 2, v3
        v_lshrrev_b32 v4, 1, v2
        v_sub_u32 v4, v4, v3
        v_and_b32 v2, 1, v2
        v_lshlrev_b32 v2, 4, v2
        v_lshlrev_b32 v2, v2, v{vD}
        """)
        for rr in range(4): a(f"v_cmp_eq_u32 vcc, {rr}, v4\nv_cndmask_b32 v{DF+rr}, 0, v2, vcc")
    def odd_copy(nw):
        a(f"s_waitcnt vmcnt({nw})"); oc_read(); oc_d()
        for i in range(4): oc_part(i)
    def ifch(f):
        L = a.lab("L_ifch")
        a(f"s_cmp_eq_u32 s{sCHV}, 0\ns_cbranch_scc1 {L}"); f(); a(f"{L}:")
    def b1_arrive(n):
        a(f"v_mov_b32 v2, {L_SYNC + 16}\nv_mov_b32 v3, 1\ns_waitcnt vmcnt({n})\ns_mov_b64 exec, 1\nds_add_u32 v2, v3\ns_mov_b64 exec, -1")
    rest_srd = (SWO, SQ, SH, SD, SOUT, SDBG, SWS)
    a(f"s_cmp_ge_u32 s{sJ}, 30\ns_cbranch_scc1 L_h_idle")
    stamp(1, "st")
    ring_issue(0)
    stamp(2, "st")
    if cfg.grp == "st":
        a("s_waitcnt vmcnt(7)"); stamp(3, "st"); a("s_waitcnt vmcnt(0)"); stamp(4, "st")
    b1_arrive(8)
    if cfg.r1first: ring_issue(1)
    srd_consts(rest_srd)
    h_chan(); b2_setup()
    a("v_mov_b32 v199, 0\nv_mov_b32 v189, 0\ns_waitcnt lgkmcnt(0)")
    if not cfg.nfill:
        for i, f in enumerate((b3_setup, a2_setup, lambda: (build_masks(None), wom_setup()))):
            if cfg.lset[i] == "s": f()
    stamp(5, "st")
    if not cfg.r1first: ring_issue(1)
    stamp(6, "st")
    if cfg.grp == "st":
        a("s_waitcnt vmcnt(0)"); stamp(7, "st")
    pubc = max(cfg.b1c, cfg.ust) + cfg.upub
    for c in range(10):
        w = {1: 9, 7: 9 if cfg.fld == 6 else 8, 9: 9 if cfg.hc == 8 else 4}.get(c, 8)
        if c == cfg.hc + 1 and c < 9: w += 5
        if cfg.x4 and c <= 7 and not (c == 0 and cfg.x4 == 2): w += 4
        a(f"s_waitcnt vmcnt({w})")
        if c == cfg.hc + 1 and c < 8 and cfg.nodup:
            L = a.lab("L_nd"); a(f"s_cmp_lg_u32 s{sCHV}, 0\ns_cbranch_scc1 {L}\ns_waitcnt vmcnt({w - 5})\n{L}:")
        if c in (0, 1, 2, 3, 5, 7, 9): stamp(1 + (0, 1, 2, 3, 5, 7, 9).index(c), "a1")
        a("s_barrier")
        if c == 0: nonce_issue(vNH)
        if c == cfg.fld: f_load()
        if c == cfg.hc and c < 8:
            if cfg.nodup: ifch(h_loads)
            else: h_loads()
        spread = cfg.ocs and cfg.hc <= 4
        if spread and c == 6: oc_read()
        if c + 2 <= 9: ring_issue(c + 2)
        if spread and c == 6: ifch(lambda: oc_part(0))
        if c == 2: nonce_take(vNH)
        if c == 7: a(f"s_cmp_eq_u32 s{sCHV}, 0\ns_cbranch_scc1 L_h_nob2a")
        if spread and c == 7: oc_part(1)
        if c == 8:
            if cfg.hc == 8: h_loads()
            u_loads()
            if spread: oc_part(2); oc_part(3)
            elif cfg.hc < 8 and not cfg.oc9: odd_copy(12)
        if spread and c == 9: oc_d()
    a("L_h_post:")
    def h_idle():
        a("L_h_idle:")
        srd_consts(rest_srd)
        h_chan(); b2_setup()
        a("s_waitcnt vmcnt(0) lgkmcnt(0)")
        a("v_mov_b32 v199, 0\nv_mov_b32 v189, 0")
        if not cfg.nfill: h_late()
        if cfg.assist:
            L = a.lab("L_as")
            a(f"""
            s_cmp_ge_u32 s{sHW}, {cfg.assist}
            s_cbranch_scc1 {L}
            s_add_u32 s{sT0}, s{sKC}, s{sHW}
            s_sub_u32 s{sT1}, s{sT0}, 10
            s_min_u32 s{sT0}, s{sT0}, s{sT1}
            s_mul_i32 s{sT0}, s{sT0}, {64*3840}
            s_add_u32 s{sT0}, s{sT0}, {7*256}
            v_mul_u32_u24 v2, 3840, v1
            s_waitcnt vmcnt(0)
            buffer_load_dword v62, v2, {srd(SW)}, s{sT0} offen
            buffer_load_dword v62, v2, {srd(SW)}, s{sT0} offen offset:128
            {L}:
            """)
        a("s_barrier")
        nonce_issue(vNH)
        a("s_barrier\ns_waitcnt vmcnt(0)")
        nonce_take(vNH)
        a(f"s_cmp_eq_u32 s{sCHV}, 0\ns_cbranch_scc1 L_h_nob2")
        f_load()
        hu_loads()
        if cfg.hc < 8 and not cfg.oc9: odd_copy(4)
        a("s_branch L_h_post")
    ool.append(h_idle)
    stamp(2)
    if cfg.stop <= 1: a("s_branch L_fin")
    def q_loads():
        for k in range(3): a(f"buffer_load_dwordx4 v[{QV+4*k}:{QV+4*k+3}], v{QA+k}, {srd(SQ)}, 0 offen {cfg.nt_in}")
    def conv(tiles, fill):
        mus = [mu for mu in range(8) if mu <= max(tiles)]
        order = []
        lo_, hi_ = 0, len(mus) - 1
        while lo_ <= hi_:
            order.append(mus[lo_]); lo_ += 1
            if lo_ <= hi_: order.append(mus[hi_]); hi_ -= 1
        groups = [(r, mu) for r in range(7) for mu in order] + [(7, mu) for mu in reversed(mus)]
        G = len(mus); NG = len(groups); LA = NAF - 1
        def b_read(r, nn):
            d = BF + 32 * (r & 1) + 4 * nn
            return [(f"ds_read_b128 v[{d}:{d+3}], v{AB} offset:{2*(1792 - 32*(8*nn - r))}", ("B", r, nn))]
        def a_read(gi):
            r, mu = groups[gi]; kap = 8 * mu + r
            d = AF + 4 * (gi % NAF); o = 16 * (kap % 16)
            return [(f"ds_read2_b32 v[{d}:{d+1}], v{AA + kap//16} offset0:{o} offset1:{o+1}", ("A", gi)),
                    (f"ds_read2_b32 v[{d+2}:{d+3}], v{AA + kap//16} offset0:{o+2} offset1:{o+3}", ("A", gi))]
        def emit(l):
            for t, tag in l: a(t); issue(tag, 1)
        def fin(j):
            dd = BACC + 4 * j; p = 8 + 2 * (j & 1)
            a(f"v_cvt_pk_bf16_f32 v{p}, v{dd}, v{dd+1}\nv_cvt_pk_bf16_f32 v{p+1}, v{dd+2}, v{dd+3}\nds_write_b64 v31, v[{p}:{p+1}] offset:{512*j}")
        q.clear()
        for nn in tiles + [n_ for n_ in range(G) if n_ not in tiles]: emit(b_read(0, nn))
        for gi in range(3): emit(a_read(gi))
        for i in tiles:
            wait_for({("B", 0, i)})
            d = BACC + 4 * i; f = BF + 4 * i
            a(f"v_mfma_f32_16x16x32_bf16 v[{d}:{d+3}], v[{DF}:{DF+3}], v[{f}:{f+3}], 0")
        for gi in range(3, LA): emit(a_read(gi))
        done = []
        for gi, (r, mu) in enumerate(groups):
            tl = [i for i in tiles if i >= mu]
            wait_for({("A", gi)} | {("B", r, i - mu) for i in tl})
            pend = []
            if gi + LA < NG: pend += a_read(gi + LA)
            if r < 7 and gi % 2 == 0: pend += b_read(r + 1, gi % G) + b_read(r + 1, gi % G + 1)
            for n, i in enumerate(tl):
                d = BACC + 4 * i; f = BF + 32 * (r & 1) + 4 * (i - mu); s = AF + 4 * (gi % NAF)
                a(f"v_mfma_f32_16x16x32_bf16 v[{d}:{d+3}], v[{s}:{s+3}], v[{f}:{f+3}], v[{d}:{d+3}]")
                k = -(-len(pend) // (len(tl) - n))
                emit(pend[:k]); del pend[:k]
                if gi < NG - 1:
                    nv = k
                    while fill and nv < cfg.nfill:
                        t = fill.pop(0); a(t); nv += 1 if t.startswith("v_") else 0.5
                elif n >= 3:
                    fin(tl[n - 3]); done.append(tl[n - 3])
        for t in fill: a(t)
        for j in tiles:
            if j not in done: fin(j)
    def z_out(pieces):
        for k, (o, half) in enumerate(pieces): a(f"ds_read_b128 v[{32+4*k}:{35+4*k}], v{ZL} offset:{o}")
        for k, (o, half) in enumerate(pieces):
            a(f"s_waitcnt lgkmcnt({len(pieces)-1-k})")
            if half: a("s_mov_b32 exec_hi, 0")
            a(f"buffer_store_dwordx4 v[{32+4*k}:{35+4*k}], v13, {srd(SWS)}, s{sA} offen offset:{o} sc1")
            if half: a("s_mov_b32 exec_hi, -1")
    def h_nob2():
        late = capture(h_late)
        def safe(p):
            while True:
                for t in late[p:]:
                    if t.startswith("s_cselect"): break
                    if t.startswith("s_cmp"): return p
                else: return p
                p += 1
        n1 = safe(cfg.hl1) if cfg.bal else 0
        a("L_h_nob2a:")
        wo_early_addr()
        a("s_waitcnt vmcnt(8)\ns_barrier")
        for t in late[:n1]: a(t)
        a("s_waitcnt vmcnt(0)\ns_barrier\ns_branch L_h_nob2b\nL_h_nob2:")
        wo_early_addr()
        for t in late[:n1]: a(t)
        a("L_h_nob2b:")
        if cfg.stop <= 1: a("s_branch L_fin")
        a(f"s_lshl_b32 s{sB}, s{sCH}, 1\nv_mov_b32 v12, s{sB}")
        for k in range(3): a(f"buffer_load_ushort v{21+k}, v12, {srd(SD)}, 0 offen offset:{2*k}")
        a(f"s_cmp_lg_u32 s{sWV}, 7\ns_cbranch_scc1 L_h_nob2c")
        sv = capture(wo_early)
        for t in sv: a(t.replace(f"s{sT0},", f"s{sB},").replace(f", s{sT0} ", f", s{sB} "))
        a("L_h_nob2c:")
        for t in late[n1:]: a(t)
        a("s_waitcnt vmcnt(0)")
        if not cfg.bal:
            a("s_branch L_join_a"); return
        a(f"""
        s_cmp_lg_u32 s{sWV}, 7
        s_cbranch_scc1 L_join_a
        s_mov_b32 s{sCHV}, 1
        s_lshl_b32 s{sA}, s{sCH}, 12
        s_add_u32 s{sA}, s{sA}, {WS_Z}
        s_cmp_lt_u32 s{sJ}, 16
        s_cselect_b32 s{sB}, 3, 2
        v_mov_b32 v12, {L_SYNC + 32}
        L_help:
        """)
        oc_d()
        a(f"""
        v_mov_b32 v21, v22
        v_mov_b32 v22, v23
        s_mov_b32 s{sCNT}, 0
        L_hw:
        ds_read_b32 v14, v12
        s_add_u32 s{sCNT}, s{sCNT}, 1
        s_waitcnt lgkmcnt(0)
        v_cmp_ne_u32 vcc, s{sN}, v14
        s_cmp_gt_u32 s{sCNT}, 0x400000
        s_cbranch_scc1 L_hwd
        s_cbranch_vccnz L_hw
        L_hwd:
        """)
        conv([1, 2, 3], [])
        a(f"v_add_u32 v{AA}, {HSTR}, v{AA}\nv_add_u32 v{AA+1}, {HSTR}, v{AA+1}\nv_add_u32 v{AB}, {USTR}, v{AB}\nv_add_u32 v12, 4, v12")
        z_out([(512, False), (1536, True)])
        a(f"s_add_u32 s{sA}, s{sA}, 4096\ns_sub_u32 s{sB}, s{sB}, 1\ns_cmp_lg_u32 s{sB}, 0\ns_cbranch_scc1 L_help")
        stamp(4)
        a("s_branch L_join_a")
    ool.append(h_nob2)
    if cfg.hc == 8 or cfg.oc9: odd_copy(4)
    a(f"s_lshl_b32 s{sA}, s{sCH}, 12\ns_add_u32 s{sA}, s{sA}, {WS_Z}")
    a(f"s_lshl_b32 s{sT0}, s{sHW}, 2\ns_add_u32 s{sT0}, s{sT0}, {L_SYNC + 32}\nv_mov_b32 v2, s{sT0}\nv_mov_b32 v3, s{sN}")
    a("s_waitcnt vmcnt(0) lgkmcnt(0)")
    if cfg.bal: a("ds_write_b32 v2, v3")
    stamp(3)
    conv([0, 4, 5, 6, 7] if cfg.bal else [0, 1, 2, 3, 4, 5] if cfg.orc else list(range(8)), capture(h_late))
    stamp(4)
    z_out([(2048, False), (3072, False), (0, True)] if cfg.bal else [(1024 * i, False) for i in range(4)])
    a("s_branch L_join_a")

    a("L_C:")
    vNC = 60
    srd_consts((SX, SW) + rest_srd)
    a(f"s_mov_b32 s{sCHV}, 0\ns_mov_b32 s{sCH}, 0")
    a(f"""
    s_waitcnt lgkmcnt(0)
    s_or_b32 s{sT0}, s2, s{sWV}
    s_cmp_lg_u32 s{sT0}, 0
    s_cbranch_scc1 L_nonon
    s_memrealtime s[{sN}:{sN+1}]
    s_waitcnt lgkmcnt(0)
    s_or_b32 s{sN}, s{sN}, 1
    v_mov_b32 v6, s{sN}
    v_mov_b32 v7, s{sN+1}
    v_mov_b32 v5, 0
    s_mov_b64 exec, 1
    buffer_store_dwordx2 v[6:7], v5, {srd(SDBG)}, 0 offen sc1
    s_mov_b64 exec, -1
    L_nonon:
    s_cmp_ge_u32 s{sJ}, 30
    s_cbranch_scc1 L_c_idle
    """)
    def tlb():
        if not cfg.tlb: return
        L = a.lab("L_tlb")
        a(f"s_cmp_lg_u32 s{sWV}, 1\ns_cbranch_scc1 {L}\nv_lshlrev_b32 v5, {cfg.tlb}, v1")
        for sr in (SWS, SOUT, SQ, SH, SWO, SD): a(f"buffer_load_dword v63, v5, {srd(sr)}, 0 offen")
        a(f"{L}:")
    GFA = 207; OFA = 199; GPA = 200; sGA, sGB = 0, 1; L_SYNC = 119712
    def qkv_addr():
        a(f"""
        s_lshr_b32 s{sT0}, s{sHD}, 1
        s_mul_i32 s{sT0}, s{sT0}, 5
        s_and_b32 s{sT1}, s{sHD}, 1
        s_lshl_b32 s{sT2}, s{sT1}, 1
        s_add_u32 s{sT2}, s{sT2}, s{sT0}
        s_add_u32 s{sT3}, s{sT2}, 2
        s_lshr_b32 s{sT2}, s{sT2}, 3
        s_lshr_b32 s{sT3}, s{sT3}, 3
        s_lshr_b32 s{sT4}, s{sHD}, 2
        s_mul_i32 s{sGA}, s{sT4}, 10
        s_lshr_b32 s{sGA}, s{sGA}, 3
        s_sub_u32 s{sT2}, s{sT2}, s{sGA}
        s_sub_u32 s{sT3}, s{sT3}, s{sGA}
        s_cmp_eq_u32 s{sQB}, 0
        s_cselect_b32 s{sGA}, 2, 4
        v_lshrrev_b32 v2, 1, v1
        v_min_u32 v2, s{sGA}, v2
        v_and_b32 v4, 1, v1
        v_cmp_eq_u32 vcc, 1, v4
        v_mov_b32 v4, s{sT2}
        v_mov_b32 v5, s{sT3}
        v_cndmask_b32 v4, v4, v5, vcc
        v_lshl_add_u32 v2, v2, 1, v4
        s_lshl_b32 s{sGA}, s{sT4}, 5
        s_lshl_b32 s{sT4}, s{sQB}, 2
        s_add_u32 s{sT4}, s{sT4}, s{sWV}
        s_add_u32 s{sGA}, s{sGA}, s{sT4}
        s_lshl_b32 s{sGA}, s{sGA}, 7
        s_add_u32 s{sGA}, s{sGA}, {WS_FG}
        v_lshl_add_u32 v{GFA}, v2, 3, s{sGA}
        s_lshl_b32 s{sGB}, s{sR64}, 2
        s_add_u32 s{sGB}, s{sGB}, s{sWV}
        s_lshl_b32 s{sGB}, s{sGB}, 7
        s_add_u32 s{sGB}, s{sGB}, {WS_FO}
        v_and_b32 v2, 15, v1
        v_lshl_add_u32 v{OFA}, v2, 3, s{sGB}
        s_mul_i32 s{sT1}, s{sT1}, 3
        s_add_u32 s{sGA}, s{sT0}, s{sT1}
        s_add_u32 s{sGB}, s{sT0}, 2
        s_lshl_b32 s{sGA}, s{sGA}, 15
        s_lshl_b32 s{sGB}, s{sGB}, 15
        s_lshl_b32 s{sT4}, s{sT4}, 10
        s_add_u32 s{sGA}, s{sGA}, s{sT4}
        s_add_u32 s{sGB}, s{sGB}, s{sT4}
        v_lshlrev_b32 v14, 4, v1
        v_bfrev_b32 v15, 1
        s_cmp_eq_u32 s{sQB}, 0
        s_cselect_b64 vcc, -1, 0
        v_cndmask_b32 v15, v14, v15, vcc
        s_lshl_b32 s{sT5}, s{sWV}, 10
        """)
    def gpub_addr():
        a(f"""
        s_and_b32 s{sT0}, s{sWV}, 1
        s_lshl_b32 s{sT2}, s{sCT}, 1
        s_add_u32 s{sT2}, s{sT2}, s{sT0}
        s_mul_i32 s{sT0}, s{sT2}, 26
        s_lshr_b32 s{sT0}, s{sT0}, 8
        s_mul_i32 s{sT1}, s{sT0}, 10
        s_sub_u32 s{sT2}, s{sT2}, s{sT1}
        s_cmp_ge_u32 s{sT2}, 5
        s_cselect_b32 s{sT1}, 5, 0
        s_cselect_b32 s{sT4}, 4, 0
        s_sub_u32 s{sT2}, s{sT2}, s{sT1}
        s_lshr_b32 s{sT1}, s{sWV}, 1
        s_lshl_b32 s{sT3}, s{sRB}, 1
        s_add_u32 s{sT3}, s{sT3}, s{sT1}
        v_and_b32 v2, 1, v1
        v_lshrrev_b32 v3, 1, v1
        v_sub_u32 v4, s{sT2}, v2
        v_cmp_gt_u32 vcc, 4, v4
        v_add_u32 v4, s{sT4}, v4
        v_lshl_add_u32 v5, v3, 2, s{sT3}
        v_cmp_gt_u32 s[{sEX}:{sEX+1}], 32, v5
        s_and_b64 vcc, vcc, s[{sEX}:{sEX+1}]
        s_cmp_eq_u32 s{sT0}, 0
        s_cselect_b32 s{sT1}, 3, 15
        s_and_b32 vcc_lo, vcc_lo, s{sT1}
        s_mov_b32 vcc_hi, 0
        v_lshl_add_u32 v4, v4, 5, v5
        v_lshlrev_b32 v4, 7, v4
        v_lshl_add_u32 v5, v3, 1, s{sT0}
        v_lshl_add_u32 v5, v5, 1, v2
        v_lshl_add_u32 v4, v5, 3, v4
        v_add_u32 v4, {WS_FG}, v4
        v_bfrev_b32 v5, 1
        v_cndmask_b32 v{GPA}, v5, v4, vcc
        """)
    OTA = 189
    def ot_addr(OTA):
        a(f"""
        s_lshl2_add_u32 s{sT0}, s{sR64}, s{sHW}
        s_mul_i32 s{sT0}, s{sT0}, {16*2560}
        s_add_u32 s{sT0}, s{sT0}, s{sC160}
        v_bfe_u32 v2, v1, 1, 4
        v_mul_u32_u24 v2, 2560, v2
        v_and_b32 v3, 1, v1
        v_mul_u32_u24 v3, 156, v3
        v_add3_u32 v2, v2, v3, s{sT0}
        v_lshrrev_b32 v3, 5, v1
        v_mul_u32_u24 v3, {1280 if cfg.otb else 0}, v3
        v_add_u32 v{OTA}, v2, v3
        """)
    def prewarm():
        a(f"buffer_load_dword v63, v{GFA}, {srd(SWS)}, 0 offen sc1\nbuffer_load_dword v63, v{OFA}, {srd(SWS)}, 0 offen sc1")
    def c_idle():
        a("L_c_idle:")
        build_masks(None); a2_setup(); qkv_addr(); wom_setup()
        a("s_waitcnt vmcnt(0)\ns_barrier")
        nonce_issue(vNC)
        if cfg.prew: prewarm()
        b1_compute(128); b1_store(128)
        a("s_barrier\ns_waitcnt vmcnt(0)")
        nonce_take(vNC); publish_u(2)
        if cfg.wdelay:
            a(f"v_subrev_u32 v7, {2*cfg.ufs}, v4")
            poll(7, 8)
        tlb()
        if cfg.wopre:
            a(f"""
            s_sub_u32 s{sT0}, s{sJ}, 30
            s_lshl_b32 s{sT0}, s{sT0}, 2
            s_add_u32 s{sT0}, s{sT0}, s{sWV}
            s_lshl_b32 s{sT0}, s{sT0}, 6
            v_add_u32 v4, s{sT0}, v1
            s_lshl_b32 s{sT1}, s{sXC}, 9
            v_add_u32 v2, s{sT1}, v4
            """)
            if cfg.hpre:
                a(f"s_mul_i32 s{sT1}, s{sXC}, {80*4096}\nv_lshlrev_b32 v6, 7, v4")
            for i in range(cfg.hpre):
                a(f"s_waitcnt vmcnt(1)\nbuffer_load_dword v63, v6, {srd(SH)}, s{sT1} offen\ns_add_u32 s{sT1}, s{sT1}, {512*128}")
            for i in range(cfg.wopre):
                a("s_waitcnt vmcnt(1)")
                if cfg.wlin:
                    a(f"v_add_u32 v3, {cfg.wlin + 512*i}, v4\nv_subrev_u32 v5, 6400, v3\nv_min_u32 v3, v3, v5")
                elif i < 8:
                    a(f"v_and_b32 v2, 4095, v2\nv_add_u32 v3, 4480, v2\nv_subrev_u32 v5, 6400, v3\nv_min_u32 v3, v3, v5\nv_add_u32 v2, 512, v2")
                else:
                    a(f"v_add_u32 v3, {2176 + 512*(i-8)}, v4")
                a(f"v_lshlrev_b32 v3, 7, v3\nbuffer_load_dword v63, v3, {srd(SWO)}, 0 offen")
        a("s_branch L_c_post")
    ool.append(c_idle)
    stamp(1, "st")
    stamp(2, "st")
    if cfg.tlball: tlb()
    if cfg.tlbs:
        L = a.lab("L_tlbs")
        a(f"s_cmp_lg_u32 s{sWV}, 1\ns_cbranch_scc1 {L}")
        for sr, n in ((SWS, 10), (SOUT, 3), (SQ, 2), (SH, 2), (SWO, 1), (SD, 1)):
            for i in range(n):
                a(f"s_mov_b32 s{sT0}, {i << 21}\ns_load_dword s3, s[{sr}:{sr+1}], s{sT0}")
        a(f"{L}:")
    ACC = 64
    FS4 = [128, 144, 16, 32]
    if not cfg.m16:
        AX = 48; AW = 56
        a(f"""
        s_and_b32 s{sT0}, s{sWV}, 1
        s_lshr_b32 s{sT1}, s{sWV}, 1
        v_and_b32 v2, 31, v1
        v_lshrrev_b32 v3, 5, v1
        v_bfe_u32 v4, v2, 1, 3
        v_xor_b32 v4, v4, v3
        s_lshl_b32 s{sT2}, s{sT1}, 13
        v_lshlrev_b32 v5, 7, v2
        v_add_u32 v5, s{sT2}, v5
        """)
        for ks in range(4):
            a(f"v_xor_b32 v6, {2*ks}, v4\nv_lshl_add_u32 v{AX+ks}, v6, 4, v5\nv_add_u32 v{AX+4+ks}, 0x10000, v{AX+ks}")
        a(f"""
        v_bfe_u32 v4, v1, 2, 2
        v_lshl_add_u32 v5, v3, 3, v4
        v_lshlrev_b32 v5, 8, v5
        v_and_b32 v6, 3, v1
        v_lshl_add_u32 v5, v6, 3, v5
        v_and_b32 v6, 16, v1
        v_lshl_add_u32 v5, v6, 1, v5
        v_add_u32 v5, 16384, v5
        s_lshl_b32 s{sT2}, s{sT0}, 1
        """)
        for mt in range(2):
            a(f"s_add_u32 s{sT3}, s{sT2}, {mt}\nv_xor_b32 v6, s{sT3}, v4\nv_lshl_add_u32 v{AW+mt}, v6, 6, v5\nv_add_u32 v{AW+2+mt}, 0x10000, v{AW+mt}")

    else:
        AX = 48; AW = 52
        a(f"""
        s_and_b32 s{sT0}, s{sWV}, 1
        s_lshr_b32 s{sT1}, s{sWV}, 1
        v_and_b32 v2, 15, v1
        v_lshrrev_b32 v3, 4, v1
        v_lshrrev_b32 v4, 1, v2
        v_xor_b32 v4, v4, v3
        s_lshl_b32 s{sT2}, s{sT1}, 13
        v_lshlrev_b32 v5, 7, v2
        v_add_u32 v5, s{sT2}, v5
        """)
        for ks in range(2):
            a(f"v_xor_b32 v6, {4*ks}, v4\nv_lshl_add_u32 v{AX+ks}, v6, 4, v5\nv_add_u32 v{AX+2+ks}, 0x10000, v{AX+ks}")
        a(f"""
        v_bfe_u32 v4, v1, 2, 2
        v_lshl_add_u32 v5, v3, 3, v4
        v_lshlrev_b32 v5, 8, v5
        v_and_b32 v6, 3, v1
        v_lshl_add_u32 v5, v6, 3, v5
        v_and_b32 v6, 16, v1
        v_lshl_add_u32 v5, v6, 1, v5
        v_add_u32 v5, 16384, v5
        s_lshl_b32 s{sT2}, s{sT0}, 1
        """)
        for m2 in range(2):
            a(f"s_add_u32 s{sT3}, s{sT2}, {m2}\nv_xor_b32 v6, s{sT3}, v4\nv_lshl_add_u32 v{AW+2*m2}, v6, 6, v5\nv_xor_b32 v{AW+2*m2+1}, 32, v{AW+2*m2}")
        for mt in range(4): a(f"v_add_u32 v{AW+4+mt}, 0x10000, v{AW+mt}")
    cset = {"m": lambda: build_masks(None), "a": a2_setup, "q": qkv_addr, "g": gpub_addr, "w": wom_setup}
    for k in cfg.cs0: cset[k]()
    stamp(3, "st")
    if cfg.b1c < 0:
        a(f"""
        v_mov_b32 v2, {L_SYNC + 16}
        v_mov_b32 v3, 1
        s_mov_b32 s{sCNT}, 0
        s_waitcnt vmcnt(0)
        s_mov_b64 exec, 1
        ds_add_u32 v2, v3
        s_mov_b64 exec, -1
        """)
        nonce_issue(vNC)
        if cfg.prew: prewarm()
        a(f"""
        L_b1s:
        ds_read_b32 v3, v2
        s_add_u32 s{sCNT}, s{sCNT}, 1
        s_waitcnt lgkmcnt(0)
        v_cmp_ne_u32 vcc, 8, v3
        s_cmp_gt_u32 s{sCNT}, 0x100000
        s_cbranch_scc1 L_b1t
        s_cbranch_vccnz L_b1s
        L_b1t:
        """)
        stamp(1)
        b1_compute(128)
        if cfg.ust < 0: b1_store(128)
    def a1_reads(c, ks):
        F = FS4[ks]
        slot = (c + 1) % 3; hi = slot >> 1; o = (slot & 1) * 32768
        r = []
        for half in range(2):
            for t in range(2):
                r.append(f"ds_read_b64_tr_b16 v[{F+4*half+2*t}:{F+4*half+2*t+1}], v{AW+2*hi+half} offset:{o + (16*ks+4*t)*256}")
            r.append(f"ds_read_b128 v[{F+8+4*half}:{F+8+4*half+3}], v{AX+4*hi+ks} offset:{o + half*4096}")
        return [] if cfg.noread else r
    def a1_mfma(ks, first):
        F = FS4[ks]; r = []
        for mt, nt in ((0, 0), (1, 0), (1, 1), (0, 1)):
            d = ACC + 16 * (2 * mt + nt)
            r.append(f"v_mfma_f32_32x32x16_bf16 v[{d}:{d+15}], v[{F+4*mt}:{F+4*mt+3}], v[{F+8+4*nt}:{F+8+4*nt+3}], " + ("0" if first else f"v[{d}:{d+15}]"))
        return [] if cfg.nomfma else r
    def weave(reads, mf, per):
        reads = list(reads)
        for m in mf:
            for _ in range(per):
                if reads: a(reads.pop(0))
            a(m)
        for r in reads: a(r)
    FS2 = [128, 16]
    def r16(c, ks):
        F = FS2[ks]; slot = (c + 1) % 3; hi = slot >> 1; o = (slot & 1) * 32768; r = []
        for i in range(4):
            for t in range(2):
                r.append(f"ds_read_b64_tr_b16 v[{F+4*i+2*t}:{F+4*i+2*t+1}], v{AW+4*hi+i} offset:{o + (32*ks+4*t)*256}")
            xs = c % 4 if cfg.x4 else slot
            r.append(f"ds_read_b128 v[{F+16+4*i}:{F+16+4*i+3}], v{AX+2*(xs >> 1)+ks} offset:{(xs & 1) * 32768 + i*2048}")
        return r
    def m16(ks, first):
        F = FS2[ks]; r = []
        for mt in range(4):
            for nt in (range(4) if mt % 2 == 0 else range(3, -1, -1)):
                d = ACC + 4 * (4 * mt + nt)
                r.append(f"v_mfma_f32_16x16x32_bf16 v[{d}:{d+3}], v[{F+4*mt}:{F+4*mt+3}], v[{F+16+4*nt}:{F+16+4*nt+3}], " + ("0" if first else f"v[{d}:{d+3}]"))
        if cfg.nomfma: r = ["s_nop 3"] * 16
        return r
    def rd16(c, ks):
        r = r16(c, ks)
        return [(r[3*i+2], ("X", ks)) for i in range(4)] + [(r[3*i+t], ("W", ks, i)) for i in range(4) for t in range(2)]
    def phase(mm, ks, reads, lo, hi):
        for i in range(lo, hi):
            if i % 4 == 0: wait_for({("X", ks), ("W", ks, i // 4)})
            a(mm[i])
            if reads:
                t, tag = reads.pop(0); a(t); issue(tag, 1)
    PRE = cfg.pre
    q.clear()
    for c in range(10):
        if c > 0: phase(m16(1, False), 1, [], 0, PRE)
        a("s_waitcnt lgkmcnt(0)"); q.clear()
        if c > 0 and c - 1 == cfg.b1c:
            stamp(1); nonce_issue(vNC)
            if cfg.prew: prewarm()
            b1_compute(128)
        if c > 0 and c - 1 == max(cfg.ust, cfg.b1c): b1_store(128)
        if c == 1:
            for k in cfg.cs1: cset[k]()
        if c == 2:
            for k in cfg.cs2: cset[k]()
        if c == pubc + 1:
            a("s_waitcnt vmcnt(0)")
            nonce_take(vNC); publish_u(2)
        if c in (0, 1, 2, 3, 5, 7, 9): stamp(1 + (0, 1, 2, 3, 5, 7, 9).index(c), "a1")
        a("s_barrier")
        if c == cfg.cprio: a("s_setprio 3")
        if c == 9: break
        rd = rd16(c, 0)
        for _ in range(2 if c > 0 else 12):
            t, tag = rd.pop(0); a(t); issue(tag, 1)
        if c > 0: phase(m16(1, False), 1, rd, PRE, 16)
        assert not rd
        phase(m16(0, c == 0), 0, rd16(c, 1), 0, 16)
    qs = f2u(20 ** -0.5 * math.log2(math.e))
    def epi_addr():
        a(f"""
        s_and_b32 s{sT0}, s{sWV}, 1
        s_lshr_b32 s{sT1}, s{sWV}, 1
        s_lshl_b32 s{sT2}, s{sCT}, 1
        s_add_u32 s{sT2}, s{sT2}, s{sT0}
        s_lshl_b32 s{sT3}, s{sRB}, 1
        s_add_u32 s{sT3}, s{sT3}, s{sT1}
        s_lshl_b32 s{sA}, s{sT2}, 18
        s_lshl_b32 s{sT4}, s{sT3}, 10
        s_add_u32 s{sA}, s{sA}, s{sT4}
        s_lshl_b32 s{sB}, s{sT2}, 5
        s_add_u32 s{sB}, s{sB}, s{sT3}
        s_mul_i32 s{sB}, s{sB}, {FS}
        s_add_u32 s{sB}, s{sB}, {WS_FG}
        v_and_b32 v2, 31, v1
        v_lshrrev_b32 v3, 5, v1
        v_lshlrev_b32 v2, 4, v2
        v_lshl_add_u32 v2, v3, 15, v2
        s_mov_b32 s{sT2}, {qs:#x}
        s_mov_b32 s{sT3}, {qs:#x}
        """)
    if cfg.tmaj:
        X2 = 160
        r0 = r16(9, 0); r1 = r16(9, 1)
        xr1 = [r1[3*i+2].replace(f"v[{FS2[1]+16+4*i}:{FS2[1]+16+4*i+3}]", f"v[{X2+4*i}:{X2+4*i+3}]") for i in range(4)]
        wr1 = [r1[3*i:3*i+2] for i in range(4)]
        pm = m16(1, False)
        sc = capture(epi_addr) + [f"s_cmp_lt_u32 s{sCT}, 5", f"s_cselect_b32 s{sT2}, s{sT2}, 1.0", f"s_cselect_b32 s{sT3}, s{sT3}, 1.0"]
        first = [r0[2], r0[5], r0[8], r0[11], r0[0], r0[1]] + xr1
        rest = [r0[3:5], r0[6:8], r0[9:11]]
        q.clear()
        seq = [(t, ("F",)) for t in first[:6]] + [(t, ("W", 0)) for t in wr1[0]] + [(t, ("F",)) for t in first[6:]]
        late = {8: [(t, ("W", 1)) for t in rest[0] + wr1[1]], 12: [(t, ("W", 2)) for t in rest[1] + wr1[2]]}
        assert PRE == 4
        for i in range(PRE, 16):
            seq += late.get(i, [])
            for _ in range(2):
                if seq:
                    t, tag = seq.pop(0); a(t); issue(tag, 1)
            a(pm[i])
            for _ in range(2):
                if sc: a(sc.pop(0))
        for t in rest[2] + wr1[3]: a(t)
        issue(("W", 3), 4)
        for t in sc: a(t)
        def epi_tile(mt):
            r = [f"s_add_u32 s{sT0}, s{sA}, {2*mt*32768}"]
            for n2 in range(2):
                d = ACC + 4 * (4 * mt + 2 * n2); p = 4 + 4 * n2 if mt % 2 == 0 else 176 if n2 == 0 else 48
                if cfg.tscale:
                    for k in range(8): r.append(f"v_mul_f32 v{d+k}, s{sT2}, v{d+k}")
                for k in range(4): r.append(f"v_cvt_pk_bf16_f32 v{p+k}, v{d+2*k}, v{d+2*k+1}")
                r += [f"v_permlane16_swap_b32 v{p}, v{p+2}", f"v_permlane16_swap_b32 v{p+1}, v{p+3}"]
                r.append(f"buffer_store_dwordx4 v[{p}:{p+3}], v2, {srd(SWS)}, s{sT0} offen offset:{n2*512} sc1")
            return r
        pend = []
        for mt in range(4):
            wait_for({("F",), ("W", mt)})
            for ks in range(2):
                for nt in range(4):
                    d = ACC + 4 * (4 * mt + nt); F = FS2[ks]; xb = (F + 16 if ks == 0 else X2) + 4 * nt
                    a(f"v_mfma_f32_16x16x32_bf16 v[{d}:{d+3}], v[{F+4*mt}:{F+4*mt+3}], v[{xb}:{xb+3}], v[{d}:{d+3}]")
                    if ks + nt > 0:
                        for _ in range(5 if cfg.tscale else 3):
                            if pend: a(pend.pop(0))
            for t in pend: a(t)
            pend = epi_tile(mt)
        stamp(2)
        for t in pend: a(t)
    else:
        mlast = m16(1, False) if cfg.m16 else a1_mfma(2, False) + a1_mfma(3, False)
        weave([], mlast[:4], 0)
        epi_addr()
        weave([], mlast[4:], 0)
        stamp(2)
        def a1_epi(scale):
            n = 0
            if cfg.m16:
                for mt in range(4):
                    a(f"s_add_u32 s{sT0}, s{sA}, {2*mt*32768}")
                    for n2 in range(2):
                        d = ACC + 4 * (4 * mt + 2 * n2); p = 128 + 4 * n; n += 1
                        for k in range(4): a(f"v_cvt_pk_bf16_f32 v{p+k}, v{d+2*k}, v{d+2*k+1}")
                        a(f"v_permlane16_swap_b32 v{p}, v{p+2}\nv_permlane16_swap_b32 v{p+1}, v{p+3}")
                        a(f"buffer_store_dwordx4 v[{p}:{p+3}], v2, {srd(SWS)}, s{sT0} offen offset:{n2*512} sc1")
                return
            for mt, nt in ((0, 0), (1, 0), (1, 1), (0, 1)):
                for i in (0, 2):
                    d = ACC + 16 * (2 * mt + nt) + 4 * i
                    p = 128 + 4 * n; n += 1
                    if scale:
                        for k in range(4): a(f"v_pk_mul_f32 {pr(d+2*k)}, {pr(d+2*k)}, s[{sT2}:{sT3}]")
                    for k in range(4): a(f"v_cvt_pk_bf16_f32 v{p+k}, v{d+2*k}, v{d+2*k+1}")
                    a(f"s_add_u32 s{sT0}, s{sA}, {(4*mt+i)*32768}")
                    a(f"v_permlane32_swap_b32 v{p}, v{p+2}\nv_permlane32_swap_b32 v{p+1}, v{p+3}")
                    a(f"buffer_store_dwordx4 v[{p}:{p+3}], v2, {srd(SWS)}, s{sT0} offen offset:{nt*512} sc1")
        a(f"s_cmp_ge_u32 s{sCT}, 5\ns_cbranch_scc1 L_epi_d")
        for mt, nt in ((0, 0), (0, 1), (1, 0), (1, 1)) if cfg.m16 else ((0, 0), (1, 0), (1, 1), (0, 1)):
            for k in range(8):
                d = ACC + 16 * (2 * mt + nt) + 2 * k
                a(f"v_mul_f32 v{d}, s{sT2}, v{d}\nv_mul_f32 v{d+1}, s{sT2}, v{d+1}")
        a("L_epi_d:\ns_nop 6")
        a1_epi(False)
    a(f"""
    v_mov_b32 v16, s{sN}
    v_mov_b32 v17, s{sN+1}
    s_lshl_b32 s{sT0}, s{sWV}, 2
    s_add_u32 s{sT0}, s{sT0}, {L_SYNC}
    v_mov_b32 v18, s{sT0}
    v_and_b32 v19, 3, v1
    v_lshlrev_b32 v19, 2, v19
    v_add_u32 v19, {L_SYNC}, v19
    ds_write_b32 v18, v16
    s_waitcnt vmcnt(0)
    s_mov_b64 exec, 15
    buffer_store_dwordx2 v[16:17], v{GPA}, {srd(SWS)}, 0 offen sc1
    s_mov_b64 exec, -1
    s_mov_b32 s{sCNT}, 0
    L_sync:
    ds_read_b32 v18, v19
    s_add_u32 s{sCNT}, s{sCNT}, 1
    s_waitcnt lgkmcnt(0)
    v_cmp_ne_u32 vcc, s{sN}, v18
    s_cmp_gt_u32 s{sCNT}, 0x100000
    s_cbranch_scc1 L_c_post
    s_cbranch_vccnz L_sync
    """)
    a("L_c_post:")
    stamp(3)
    if cfg.stop <= 1: a("s_branch L_fin")
    if cfg.otn >= 0: ot_addr(OTA)
    if cfg.sp1: a("v_and_b32 v10, 1, v1\nv_subrev_u32 v10, 1, v10\nv_and_b32 v10, 0x3f80, v10\nv_mov_b32 v11, 0")
    else: a("v_mov_b32 v10, 0x3f803f80\nv_mov_b32 v11, 0x3f803f80")
    a("v_mov_b32 v12, 0\nv_mov_b32 v13, 0\nv_lshlrev_b32 v7, 3, v1")
    if cfg.gdelay: a("s_waitcnt vmcnt(0)")
    if cfg.gdelay > 1: a(f"s_sleep {cfg.gdelay}")
    def g_dma(sec, half):
        lds, lstr = ((L_Q, 4096), (L_K, 8192), (L_V, VSTR))[sec]
        for slot in range(3):
            base = (sGA, 32768 * slot) if slot < 2 else (sGB, 0)
            off = base[1] + sec * 80 * 32768 - (0 if half else 4096)
            a(f"s_add_u32 s{sT0}, s{base[0]}, {off}")
            dma(14 if half else 15, SWS, f"s{sT0}", f"s_add_u32 m0, s{sT5}, {lds + slot*lstr + (4096 if (half and sec) else 0)}", "sc1")
    combos = ((0, 1), (1, 1), (2, 1), (1, 0), (2, 0))
    if cfg.prog:
        a(f"s_mov_b32 s{sCNT}, 0\ns_mov_b32 s{sA}, 0\nL_gp:")
        a(f"buffer_load_dwordx2 v[8:9], v{GFA}, {srd(SWS)}, 0 offen sc1\ns_waitcnt vmcnt(0)")
        cmpflag(8)
        a(f"s_add_u32 s{sCNT}, s{sCNT}, 1\ns_cmp_lt_u32 s{sCNT}, 0x40000\ns_cselect_b32 s{sB}, vcc_lo, 0\ns_or_b32 s{sB}, s{sB}, s{sA}")
        for k, (sec, half) in enumerate(combos):
            L = a.lab("L_gs")
            a(f"s_and_b32 s{sT1}, s{sB}, {3 << (2*k)}\ns_cbranch_scc1 {L}\ns_or_b32 s{sA}, s{sA}, {3 << (2*k)}")
            g_dma(sec, half)
            a(f"{L}:")
        a(f"s_cmp_lg_u32 s{sA}, 0x3ff\ns_cbranch_scc1 L_gp")
        stamp(4)
    else:
        poll(GFA, 8)
        stamp(4)
        for sec, half in combos: g_dma(sec, half)
    a(f"ds_write_b64 v7, v[10:11] offset:{L_ONES}\nds_write_b64 v7, v[10:11] offset:{L_ONES + 512}\nds_write_b64 v7, v[12:13] offset:{L_ONES - 512}")
    a("s_setprio 0\ns_waitcnt vmcnt(0) lgkmcnt(0)")

    for r in (ROH, ROH + 1, ROH + 2, FZA, ZD, ZD + 1, ZD + 2, QA, QA + 1, QA + 2, ZPA): a(f"v_mov_b32 v{r}, 0")
    if cfg.qn < 0:
        a("s_branch L_join_b\nL_join_a:\ns_setprio 1\nL_join_b:\ns_barrier")
    elif cfg.prio: a("s_branch L_join_b\nL_join_a:\ns_setprio 1\nL_join_b:\ns_barrier")
    else: a("L_join_a:\ns_barrier")
    stamp(5)
    if cfg.stop <= 2: a("s_branch L_fin")
    Q0, Q1, Q1B = 16, 20, 60; K0F = 24; K1F = 32; VF = 40; AV = 58; S = 64; PP = 96; O = 112
    def wo_dma(i):
        if cfg.nowo: return
        a(f"s_mov_b32 m0, s{WOM[i]}\nbuffer_load_dwordx4 v{WOV+i}, {srd(SWO)}, s{sC160} offen lds")
    def k_read(b):
        f = K0F + 4 * (b & 1); o = (8 - b) * 512
        a(f"ds_read_b128 v[{f}:{f+3}], v{AK0} offset:{o}")
        if b % 2 == 0:
            f = K1F + 4 * ((b >> 1) & 1)
            a(f"ds_read_b128 v[{f}:{f+3}], v{AK1} offset:{o}")
    def v_read(b):
        f = VF + 8 * (b & 1); o = 0 if b & 1 else 512
        for s in range(2):
            for t in range(2):
                a(f"ds_read_b64_tr_b16 v[{f+4*s+2*t}:{f+4*s+2*t+1}], v{AVP + b//2} offset:{o + (16*s+8*t)*16}")
    def hook(b):
        L = a.lab("L_hook")
        a(f"s_cmp_lg_u32 s{sNV}, {b}\ns_cbranch_scc1 {L}\ns_nop 7")
        for r in range(16): a(f"v_mov_b32 v{vCZ+r}, v59\nv_mov_b32 v{vCF+r}, v59")
        a(f"s_nop 1\n{L}:")
    def qk(b, half, gen_):
        d = S + 16 * (b & 1)
        if half == 0:
            f = K0F + 4 * (b & 1)
            c = vCD if b == 0 else (vCF if b == 8 else vCZ)
            cs = f"v[{c}:{c+15}]" if (gen_ or c != vCZ) else "0"
            a(f"v_mfma_f32_32x32x16_bf16 v[{d}:{d+15}], v[{f}:{f+3}], v[{Q0}:{Q0+3}], {cs}")
        else:
            f = K1F + 4 * ((b >> 1) & 1); qq = Q1B if b & 1 else Q1
            a(f"v_mfma_f32_32x32x16_bf16 v[{d}:{d+15}], v[{f}:{f+3}], v[{qq}:{qq+3}], v[{d}:{d+15}]")
    def pv(b, s):
        p = PP + 8 * (b & 1); f = VF + 8 * (b & 1)
        a(f"v_mfma_f32_32x32x16_bf16 v[{O}:{O+15}], v[{f+4*s}:{f+4*s+3}], v[{p+4*s}:{p+4*s+3}], " + ("0" if (b == 0 and s == 0) else f"v[{O}:{O+15}]"))
    def cv(b, g):
        d = S + 16 * (b & 1) + 4 * g; p = PP + 8 * (b & 1) + 2 * g
        a(f"v_cvt_pk_bf16_f32 v{p}, v{d}, v{d+1}\nv_cvt_pk_bf16_f32 v{p+1}, v{d+2}, v{d+3}")
    def ex(b, g):
        d = S + 16 * (b & 1) + 4 * g
        a(f"v_exp_f32 v{d}, v{d}\nv_exp_f32 v{d+1}, v{d+1}")
        if g > 0: cv(b, g - 1)
        elif b > 0: cv(b - 1, 3)
        a(f"v_exp_f32 v{d+2}, v{d+2}\nv_exp_f32 v{d+3}, v{d+3}")
    wsched = {}
    i = 0
    for n in range(17):
        k = 0 if n < cfg.wstart else cfg.wfirst if n == cfg.wstart else 1
        wsched[n] = list(range(i, min(i + k, NWO))); i += k
    if cfg.wsch:
        i = 0
        for n, ch in enumerate(cfg.wsch):
            wsched[n] = list(range(i, min(i + int(ch), NWO))); i += int(ch)
        assert i >= NWO and len(cfg.wsch) == 18 and cfg.wbar > 16
    NLATE = len(wsched.get(17, []))
    assert (cfg.qn < 0 or cfg.qn >= NWO - cfg.wfirst) and cfg.fzn > cfg.qn and cfg.wbar >= cfg.fzn
    def side(b, k, gen_):
        n = 2 * b + k - 1
        if gen_ or n < 0: return
        if n == 0: a("s_barrier")
        if n == cfg.zst:
            L4 = a.lab("L_zs")
            a(f"s_cmp_eq_u32 s{sCHV}, 0\ns_cbranch_scc1 {L4}")
            for i in range(4): a(f"buffer_store_dwordx4 v[{128+4*i}:{131+4*i}], v144, {srd(SWS)}, 0 offen offset:{1024*i} sc1")
            a(f"{L4}:")
        if n == cfg.zpub:
            L2 = a.lab("L_zp"); R = a.lab("L_zpr")
            a(f"s_cmp_lg_u32 s{sCHV}, 0\ns_cbranch_scc1 {L2}\n{R}:")
            def body():
                a(f"{L2}:\nv_mov_b32 v4, s{sN}\nv_mov_b32 v5, s{sN+1}\ns_waitcnt vmcnt({0 if cfg.nowo else sum(len(wsched[j]) for j in range(n)) + (3 if cfg.qn < 0 else 0)})")
                a(f"s_mov_b64 exec, 7\nbuffer_store_dwordx2 v[4:5], v{ZPA}, {srd(SWS)}, 0 offen sc1\ns_mov_b64 exec, -1\ns_branch {R}")
            ool.append(body)
        for i in wsched.get(n, []): wo_dma(i)
        if n == cfg.otn:
            L = a.lab("L_ot")
            a(f"s_cmp_ge_u32 s{sWV}, 4\ns_cbranch_scc1 {L}\nbuffer_load_dword v57, v{OTA}, {srd(SOUT)}, 0 offen {cfg.otf}\n{L}:")
        if n == cfg.qn or n == cfg.fzn:
            L = a.lab("L_hq")
            a(f"s_cmp_lt_u32 s{sWV}, 4\ns_cbranch_scc1 {L}")
            if n == cfg.qn: q_loads()
            else: a(f"buffer_load_dwordx2 v[{FZR}:{FZR+1}], v{FZA}, {srd(SWS)}, 0 offen sc1")
            a(f"{L}:")
        if n == cfg.wbar:
            L = a.lab("L_wb")
            a(f"s_waitcnt vmcnt({1 if cfg.qn < 0 else 4})\ns_cmp_ge_u32 s{sWV}, 4\ns_cbranch_scc1 {L}\ns_waitcnt vmcnt({1 if cfg.otn >= 0 else 0})\n{L}:\ns_barrier")
    def a2_loop(gen_):
        if gen_: a(f"v_mov_b32 v59, {BIGNEG:#x}")
        a("s_waitcnt lgkmcnt(1)")
        qk(0, 0, gen_)
        qk(0, 1, gen_)
        for b in range(9):
            if b in (1, 3, 5, 7) and not gen_: stamp(2 + b // 2, "a2")
            if cfg.prio and b == cfg.prio: a("s_setprio 0")
            if b > 0:
                a("s_waitcnt lgkmcnt(0)")
                pv(b - 1, 0)
            v_read(b)
            if b < 7: k_read(b + 2)
            ex(b, 0)
            if b < 8:
                if gen_: hook(b + 1)
                if b == 0: a("s_waitcnt lgkmcnt(6)")
                qk(b + 1, 0, gen_)
            else: pv(b - 1, 1)
            side(b, 0, gen_)
            ex(b, 1)
            if b < 8: qk(b + 1, 1, gen_)
            ex(b, 2)
            if 0 < b < 8: pv(b - 1, 1)
            if b == 8:
                a("s_waitcnt lgkmcnt(0)"); pv(8, 0)
            side(b, 1, gen_)
            ex(b, 3)
        cv(8, 3)
        pv(8, 1)
    a(f"ds_read_b128 v[{Q1}:{Q1+3}], v{QAD1}\nds_read_b128 v[{Q0}:{Q0+3}], v{QAD0}")
    k_read(0); k_read(1)
    if cfg.qn < 0:
        a(f"s_cmp_lt_u32 s{sWV}, 4\ns_cbranch_scc1 L_noq"); q_loads(); a("L_noq:")
    a(f"""
    s_lshl_b32 s{sT0}, s{sQB}, 3
    s_add_u32 s{sT0}, s{sT0}, s{sWV}
    s_lshl_b32 s{sT4}, s{sHD}, 16
    s_lshl_b32 s{sT2}, s{sT0}, 9
    s_add_u32 s{sT4}, s{sT4}, s{sT2}
    s_add_u32 s{sT4}, s{sT4}, {WS_O}
    s_lshl_b32 s{sT5}, s{sHD}, 14
    s_lshl_b32 s{sT3}, s{sT0}, 8
    s_add_u32 s{sT5}, s{sT5}, s{sT3}
    s_add_u32 s{sT5}, s{sT5}, {WS_O8}
    s_lshr_b32 s{sA}, s{sT0}, 1
    s_lshl_b32 s{sA}, s{sA}, 2
    s_and_b32 s{sT2}, s{sHD}, 3
    s_add_u32 s{sA}, s{sA}, s{sT2}
    s_lshl_b32 s{sA}, s{sA}, 4
    s_and_b32 s{sT2}, s{sT0}, 1
    s_lshl_b32 s{sT2}, s{sT2}, 3
    s_add_u32 s{sA}, s{sA}, s{sT2}
    s_lshr_b32 s{sT2}, s{sHD}, 2
    s_add_u32 s{sA}, s{sA}, s{sT2}
    s_lshl_b32 s{sA}, s{sA}, 3
    s_add_u32 s{sA}, s{sA}, {WS_FO}
    s_waitcnt lgkmcnt(4)
    v_and_b32 v{Q1B}, v{QM2}, v{Q1}
    v_and_b32 v{Q1B+1}, v{QM2}, v{Q1+1}
    v_and_b32 v{Q1B+2}, v{QM3}, v{Q1+2}
    v_and_b32 v{Q1B+3}, v{QM3}, v{Q1+3}
    v_and_b32 v{Q1}, v{QM0}, v{Q1}
    v_and_b32 v{Q1+1}, v{QM0}, v{Q1+1}
    v_and_b32 v{Q1+2}, v{QM1}, v{Q1+2}
    v_and_b32 v{Q1+3}, v{QM1}, v{Q1+3}
    """)
    stamp(1, "a2")
    a2_loop(False)
    a("L_a2_done:")
    def gen_loop():
        a("L_a2_gen:"); a2_loop(True); a("s_nop 10\ns_branch L_a2_done")
    stamp(6, "a2")
    lo = f2u(2.0 ** -24); hi = f2u(2.0 ** 40); fin = f2u(3.0e38)
    a(f"v_rcp_f32 v2, v{O+12}\nv_mov_b32 v3, v2")
    for i in range(6): a(f"v_pk_mul_f32 {pr(40+2*i)}, {pr(O+2*i)}, v[2:3]")
    for i in range(6): a(f"v_cvt_pk_bf16_f32 v{24+i}, v{40+2*i}, v{41+2*i}")
    a(f"""
    buffer_store_dwordx4 v[24:27], v{OS0}, {srd(SWS)}, s{sT4} offen sc1
    s_mov_b32 exec_hi, 0
    buffer_store_dwordx2 v[28:29], v{OS1}, {srd(SWS)}, s{sT5} offen sc1
    s_mov_b32 exec_hi, -1
    """)
    stamp(6); stamp(7, "a2"); stamp(1, "g2")
    a(f"v_cmp_nle_f32 vcc, {lo:#x}, v{O+12}\ns_mov_b64 s[{sEX}:{sEX+1}], vcc\nv_cmp_nge_f32 vcc, {hi:#x}, v{O+12}\ns_or_b64 s[{sEX}:{sEX+1}], s[{sEX}:{sEX+1}], vcc")
    for i in range(6): a(f"v_add_f32 v{4+i}, abs(v{O+2*i}), abs(v{O+2*i+1})")
    a("v_add_f32 v4, v4, v5\nv_add_f32 v6, v6, v7\nv_add_f32 v8, v8, v9\nv_add_f32 v4, v4, v6\nv_add_f32 v4, v4, v8")
    a(f"v_cmp_nge_f32 vcc, {fin:#x}, v4\ns_or_b64 vcc, s[{sEX}:{sEX+1}], vcc")
    if cfg.force_fb: a("s_mov_b64 vcc, -1")
    a("s_cbranch_vccnz L_a2_fb\nL_a2_ok:")
    def fallback():
        a(f"L_a2_fb:\ns_cmp_lg_u32 s{sFB}, 0\ns_cbranch_scc1 L_a2_ok\ns_mov_b32 s{sFB}, 1\ns_waitcnt vmcnt(0)")
        build_masks("0")
        a(f"v_mov_b32 v4, {BIGNEG:#x}\nv_mov_b32 v59, {BIGNEG:#x}")
        for b in range(9):
            if b > 0: hook(b)
            k_read(b); a("s_waitcnt lgkmcnt(0)"); qk(b, 0, True); qk(b, 1, True)
            d = S + 16 * (b & 1)
            for i in range(8): a(f"v_max3_f32 v4, v4, v{d+2*i}, v{d+2*i+1}")
        a("v_mov_b32 v5, v4\nv_permlane32_swap_b32 v4, v5\nv_max_f32 v4, v4, v5\nv_sub_f32 v4, 0, v4")
        build_masks("v4")
        k_read(0); k_read(1)
        a("s_branch L_a2_gen")
    WA, WA2, WA3, WB, WB3, OA, OB = 52, 53, 54, 55, 56, 57, 58
    RO = 59; STA = 62; OA2 = 63; OB2 = 15
    a(f"""
    v_lshrrev_b32 v2, 4, v1
    v_bfe_u32 v3, v1, 2, 2
    v_and_b32 v4, 3, v1
    s_cmp_ge_u32 s{sWV}, 4
    s_cselect_b32 s{sT0}, 96, 0
    v_lshl_add_u32 v4, v4, 3, s{sT0}
    v_lshrrev_b32 v5, 1, v2
    v_mul_u32_u24 v5, 24, v5
    v_and_b32 v6, 1, v2
    v_lshl_add_u32 v5, v6, 2, v5
    v_add_u32 v5, v5, v3
    v_mul_u32_u24 v5, 160, v5
    v_add_u32 v{WA3}, v5, v4
    v_add_u32 v{WA2}, {L_WO1 + 6*6400}, v{WA3}
    v_add_u32 v{WA}, {L_WO1}, v{WA3}
    v_mul_u32_u24 v5, 40, v2
    v_add3_u32 v5, v5, v3, 16
    v_mul_u32_u24 v5, 160, v5
    v_add_u32 v{WB3}, v5, v4
    v_add_u32 v{WB}, {L_WO1}, v{WB3}
    """)
    if cfg.wbar > 16 and not cfg.wsch: a("s_waitcnt vmcnt(2)\ns_barrier")
    if cfg.wsch:
        for i in wsched[17]: wo_dma(i)
        a(f"s_waitcnt vmcnt({NLATE})"); publish(sA, 4); stamp(3, "g2")
        a("s_waitcnt vmcnt(1)\ns_barrier")
    def fin_addr(n):
        a(f"""
        s_and_b32 s{sT0}, s{sC80}, 3
        s_lshl_b32 s{sT0}, s{sT0}, 1
        v_and_b32 v2, 15, v1
        v_subrev_u32 v2, s{sT0}, v2
        v_cmp_gt_u32 vcc, 10, v2
        v_min_u32 v2, 9, v2
        v_lshlrev_b32 v2, 4, v2
        v_lshrrev_b32 v3, 4, v1
        s_lshl_b32 s{sT0}, s{sWV}, 3
        v_add_u32 v3, s{sT0}, v3
        v_mul_u32_u24 v4, 2560, v3
        v_add_u32 v4, v4, v2
        v_bfrev_b32 v5, 1
        v_cndmask_b32 v{RO}, v5, v4, vcc
        v_mul_u32_u24 v4, {cfg.sstr}, v3
        v_add_u32 v4, {L_ST}, v4
        v_add_u32 v14, v2, v4
        s_mul_i32 s{sT3}, s{sR64}, {64*2560}
        s_add_u32 s{sT3}, s{sT3}, s{sC160}
        s_add_u32 s{sKC}, s{sT3}, {4*2560}
        """)
    def fin_store():
        a(f"""
        ds_read_b128 v[16:19], v14
        ds_read_b128 v[20:23], v14 offset:{4*cfg.sstr}
        s_waitcnt lgkmcnt(1)
        buffer_store_dwordx4 v[16:19], v{RO}, {srd(SOUT)}, s{sT3} offen {cfg.outa}
        s_waitcnt lgkmcnt(0)
        buffer_store_dwordx4 v[20:23], v{RO}, {srd(SOUT)}, s{sKC} offen {cfg.outa}
        """)
    def a3_addr():
        a(f"""
        v_lshrrev_b32 v2, 4, v1
        v_and_b32 v5, 15, v1
        s_lshl_b32 s{sT0}, s{sHW}, 4
        v_add_u32 v5, s{sT0}, v5
        v_lshlrev_b32 v6, 10, v2
        v_lshl_add_u32 v{OA}, v5, 4, v6
        v_add_u32 v{OA2}, {L_OS[2]}, v{OA}
        v_add_u32 v{OA}, {L_OS[0]}, v{OA}
        v_and_b32 v6, 1, v2
        v_lshlrev_b32 v6, 11, v6
        v_lshrrev_b32 v7, 1, v2
        v_lshl_add_u32 v6, v7, 9, v6
        v_lshl_add_u32 v{OB}, v5, 3, v6
        v_add_u32 v{OB2}, {L_OS[2] + 16384}, v{OB}
        v_add_u32 v{OB}, {L_OS[0] + 16384}, v{OB}
        v_mul_u32_u24 v5, {cfg.sstr}, v5
        v_lshl_add_u32 v5, v2, 3, v5
        v_add_u32 v{STA}, {L_ST}, v5
        """)
    def wo_frag(step, ct, d):
        for t in range(2):
            if step < 6: r, o = WA, (40 * step + 8 * t) * 160
            elif step < 12: r, o = WA2, (40 * (step - 6) + 8 * t) * 160
            elif step < 16: r, o = WA3, (40 * (step - 12) + 8 * t) * 160
            elif step < 19: r, o = WB, (160 * (step - 16) + 4 * t) * 160
            else: r, o = WB3, 4 * t * 160
            a(f"ds_read_b64_tr_b16 v[{d+2*t}:{d+2*t+1}], v{r} offset:{o + 32*ct}")
    def o_frag(step, d):
        if step < 16:
            sg = step // 4
            a(f"ds_read_b128 v[{d}:{d+3}], v{OA if sg < 2 else OA2} offset:{20480*(sg & 1) + 4096*(step % 4)}"); return 1
        sg = step - 16
        for t in range(2):
            a(f"ds_read_b64 v[{d+2*t}:{d+2*t+1}], v{OB if sg < 2 else OB2} offset:{20480*(sg & 1) + 1024*t}")
        return 2
    def b3_stores():
        for k in range(3):
            if k == 2: a(f"s_cmp_ge_u32 s{sHW}, 2\ns_cbranch_scc1 L_b3e")
            a(f"buffer_store_dwordx4 v[{QV+4*k}:{QV+4*k+3}], v{ROH+k}, {srd(SOUT)}, s{sT2} offen {cfg.outb}")
        a("L_b3e:")
    def a3_loop(nct, fr, ct0):
        ACC3 = 16
        OFS = [28, 28]
        q.clear()
        stages = [[4 * sg + k for k in range(4)] + [16 + sg] for sg in range(4)]
        seq = [st for sg in stages for st in sg]
        slot = {st: 28 + 4 * (i % 6) for i, st in enumerate(seq)}
        nread = [0]
        bars = [int(ch) for ch in cfg.ebar]
        def reads_upto(i):
            while nread[0] < min(i + cfg.a3la, 20):
                st = seq[nread[0]]
                if nread[0] % 5 == 0 and nread[0] // 5 in bars:
                    if nread[0] >= i + cfg.a3x: break
                    sg = nread[0] // 5
                    nxt = min([b for b in bars if b > sg] + [4])
                    if nct == 3:
                        assert nissued[0] >= 5 * nxt
                        a(f"s_waitcnt vmcnt({nissued[0] - 5*nxt})")
                    a("s_barrier"); stamp(3 + sg, "a3")
                n = o_frag(st, slot[st]); issue(("O", st), n); nread[0] += 1
        for i, st in enumerate(seq):
            reads_upto(i)
            wait_for({("O", st), ("W", st)})
            for ct in range(nct):
                w = fr[(st, ct)]; d = ACC3 + 4 * ct; o = slot[st]
                a(f"v_mfma_f32_16x16x32_bf16 v[{d}:{d+3}], v[{w}:{w+3}], v[{o}:{o+3}], " + ("0" if i == 0 else f"v[{d}:{d+3}]"))
            if nct == 3:
                for _ in range(2):
                    if olate: olate.pop(0)(); nissued[0] += 1
            if nct == 2 and i == cfg.ot3: a(f"s_mov_b32 exec_hi, 0\nbuffer_load_dword v10, v9, {srd(SOUT)}, 0 offen {cfg.otf}\ns_mov_b32 exec_hi, -1")
            if nct == 2 and i == cfg.b3st: b3_stores()
            if nct == 3 and i in (5, 7, 9, 11):
                st2 = 12 + (i - 5) // 2
                for ct in range(3):
                    fr[(st2, ct)] = fr[(st2 - 12, ct)]
                    wo_frag(st2, ct, fr[(st2, ct)]); issue(("W", st2), 2)
        for ct in range(nct):
            d = ACC3 + 4 * ct
            a(f"v_cvt_pk_bf16_f32 v{2+2*ct}, v{d}, v{d+1}\nv_cvt_pk_bf16_f32 v{3+2*ct}, v{d+2}, v{d+3}\nds_write_b64 v{STA}, v[{2+2*ct}:{3+2*ct}] offset:{32*(ct+ct0)}")
        a("s_waitcnt lgkmcnt(0)\ns_barrier"); stamp(7, "a3"); stamp(7, "ar")
    stamp(2, "g2")
    a(f"s_cmp_ge_u32 s{sWV}, 4\ns_cbranch_scc1 L_g2_h")
    a(f"v_mov_b32 v8, v{OFA}")
    must = [0, 1, 2, 3, 4, 5, 6, 16, 17]
    csteps = must + [7, 8, 9, 10, 11, 18, 19]
    cfr = {}
    for n, st in enumerate(csteps):
        for ct in range(3):
            cfr[(st, ct)] = 64 + 4 * (3 * n + ct)
            wo_frag(st, ct, cfr[(st, ct)])
        if n == cfg.cpub and not cfg.wsch:
            a("s_waitcnt vmcnt(0)"); publish(sA, 4); stamp(3, "g2")
        if n == len(must) - 1 + cfg.bdl:
            a(f"s_waitcnt lgkmcnt({6*cfg.bdl})\ns_barrier"); stamp(4, "g2")
    fin_addr(2)
    a3_addr()
    a(f"""
    v_lshlrev_b32 v12, 4, v1
    v_and_b32 v13, 31, v1
    v_lshrrev_b32 v7, 5, v1
    v_lshlrev_b32 v13, 4, v13
    v_lshl_add_u32 v13, v7, 16, v13
    s_lshl_b32 s{sA}, s{sWV}, 16
    s_lshl_b32 s{sT0}, s{sR64}, 10
    s_add_u32 s{sA}, s{sA}, s{sT0}
    s_lshl_b32 s{sB}, s{sWV}, 14
    s_lshl_b32 s{sT0}, s{sR64}, 9
    s_add_u32 s{sB}, s{sB}, s{sT0}
    s_lshl_b32 s{sT4}, s{sWV}, 11
    s_lshl_b32 s{sT5}, s{sWV}, 10
    """)
    if cfg.odelay: a(f"s_sleep {cfg.odelay}")
    poll(8, 10)
    stamp(7); stamp(5, "g2"); stamp(1, "a3"); stamp(1, "ar")
    odma = []
    def o16(g):
        a(f"s_add_u32 s{sT0}, s{sA}, {WS_O + 32768*g}")
        dma(12, SWS, f"s{sT0}", f"s_add_u32 m0, s{sT4}, {L_OS[g // 16] + 1024*(g % 16)}", "sc1")
    def o8(k):
        a(f"s_add_u32 s{sT0}, s{sB}, {WS_O8 + 16384*8*k}")
        dma(13, SWS, f"s{sT0}", f"s_add_u32 m0, s{sT5}, {L_OS[k] + 16384}", "sc1")
    for i in range(8):
        for hh in range(2): odma.append(lambda g=8*i+hh: o16(g))
        if i & 1: odma.append(lambda k=i >> 1: o8(k))
    for i, f in enumerate(odma[:cfg.oup]):
        f()
        if i == cfg.z0 - 1 and not cfg.zsync: a("s_barrier")
    a("s_waitcnt lgkmcnt(0)")
    olate = odma[cfg.oup:]; nissued = [cfg.oup]
    if cfg.grp == "ar":
        stamp(2, "ar")
        for i in range(4):
            a(f"s_waitcnt vmcnt({15-5*i})"); stamp(3 + i, "ar")
    a3_loop(3, cfr, 0)
    fin_store()
    a("s_branch L_fin")
    a("L_g2_h:")
    hfr = {}; ZV = 40
    def zdma():
        check_or_poll(FZA, FZR)
        for k in range(3): a(f"s_mov_b32 m0, s{ZM[k]}\nbuffer_load_dwordx4 v{ZD+k}, {srd(SWS)}, 0 offen sc1 lds")
    if not cfg.zafter:
        a("s_waitcnt vmcnt(2)"); zdma()
    hsteps = must + [st for st in range(20) if st not in must]
    for n, st in enumerate(hsteps):
        for ct in range(2):
            i = 2 * n + ct
            hfr[(st, ct)] = 64 + 4 * i if i < 22 else 184 + 4 * (i - 22)
            wo_frag(st, ct, hfr[(st, ct)])
        if cfg.wsch:
            if n == 0: zdma()
        elif n == cfg.hpub:
            a(f"s_waitcnt vmcnt({0 if cfg.zafter else 3})"); publish(sA, 4); stamp(3, "g2")
            if cfg.zafter: zdma()
        if n == len(must) - 1 + cfg.bdl:
            a(f"s_waitcnt lgkmcnt({4*cfg.bdl})\ns_barrier")
    a3_addr(); fin_addr(1)
    if cfg.ot3 >= 0: ot_addr(9)
    if cfg.zsync:
        a(f"""
        s_lshl_b32 s{sT0}, s{sHW}, 2
        s_add_u32 s{sT0}, s{sT0}, 86784
        v_mov_b32 v2, s{sT0}
        v_mov_b32 v3, s{sN}
        v_and_b32 v4, 3, v1
        v_lshlrev_b32 v4, 2, v4
        v_add_u32 v4, 86784, v4
        s_mov_b32 s{sCNT}, 0
        s_waitcnt vmcnt({0 if cfg.zafter else 1})
        ds_write_b32 v2, v3
        L_zs:
        ds_read_b32 v5, v4
        s_add_u32 s{sCNT}, s{sCNT}, 1
        s_waitcnt lgkmcnt(0)
        v_cmp_ne_u32 vcc, s{sN}, v5
        s_cmp_gt_u32 s{sCNT}, 0x400000
        s_cbranch_scc1 L_zsd
        s_cbranch_vccnz L_zs
        L_zsd:
        """)
    else:
        a(f"s_waitcnt vmcnt({0 if cfg.zafter else 1}) lgkmcnt(0)\ns_barrier")
    stamp(4, "g2"); stamp(7); stamp(1, "a3")
    a(f"s_mul_i32 s{sT2}, s{sR64}, {64*2560}\ns_add_u32 s{sT2}, s{sT2}, s{sC160}\ns_add_u32 s{sT2}, s{sT2}, 1280")
    for k in range(3):
        if k == 2: a(f"s_cmp_ge_u32 s{sHW}, 2\ns_cbranch_scc1 L_b3d")
        for j in range(8): a(f"v_mov_b32 v{ZV+j}, 0")
        for j in range(8): a(f"ds_read_u16_d16_hi v{ZV+j}, v{ZA+k} offset:{128*j}")
        for j in range(4):
            a(f"v_lshlrev_b32 v{ZT+2*j}, 16, v{QV+4*k+j}\nv_and_b32 v{ZT+1+2*j}, 0xffff0000, v{QV+4*k+j}")
        a("s_waitcnt lgkmcnt(0)")
        for j in range(8): a(f"v_mul_f32 v{ZT+j}, v{ZT+j}, v{ZV+j}")
        for j in range(4): a(f"v_cvt_pk_bf16_f32 v{QV+4*k+j}, v{ZT+2*j}, v{ZT+1+2*j}")
        if cfg.b3st < 0: a(f"buffer_store_dwordx4 v[{QV+4*k}:{QV+4*k+3}], v{ROH+k}, {srd(SOUT)}, s{sT2} offen {cfg.outb}")
    a("L_b3d:")
    stamp(5, "g2"); stamp(2, "a3")
    a3_loop(2, hfr, 3)
    fin_store()
    a("L_fin:")
    def diag_wait(tag):
        a(f"L_dw{tag}:\ns_memrealtime s[98:99]\ns_waitcnt lgkmcnt(0)\ns_sub_u32 s98, s98, s100\ns_cmp_lt_u32 s98, {cfg.diagd}\ns_cbranch_scc1 L_dw{tag}")
    if cfg.diagd: diag_wait(0)
    if cfg.stamps:
        a("s_waitcnt vmcnt(0)")
        stamp(8)
        if cfg.dbgst:
            a(f"s_cmp_lg_u32 s2, 41\ns_cbranch_scc1 L_exit\ns_cmp_lg_u32 s{sWV}, 0\ns_cbranch_scc1 L_exit\ns_mov_b64 exec, 1\nv_mov_b32 v2, 0")
            for i in range(9):
                a(f"s_sub_u32 s{sT0}, s{sSTAMP+2*i}, s{sSTAMP}\nv_mov_b32 v4, s{sT0}\nbuffer_store_dword v4, v2, {srd(SDBG)}, 0 offen offset:{8+4*i}\ns_waitcnt vmcnt(0)")
            a(f"s_sub_u32 s{sT0}, s{sN}, s{sSTAMP}\nv_mov_b32 v4, s{sT0}\nbuffer_store_dword v4, v2, {srd(SDBG)}, 0 offen offset:48\ns_waitcnt vmcnt(0)")
            a("s_endpgm")
        a(f"s_lshl_b32 s{sT0}, s2, 3\ns_add_u32 s{sT0}, s{sT0}, s{sWV}\ns_lshl_b32 s{sT0}, s{sT0}, 7\ns_add_u32 s{sT0}, s{sT0}, {WS_T}\nv_mov_b32 v2, s{sT0}\ns_mov_b64 exec, 1")
        for i in range(9):
            a(f"v_mov_b32 v4, s{sSTAMP+2*i}\nv_mov_b32 v5, s{sSTAMP+2*i+1}\nbuffer_store_dwordx2 v[4:5], v2, {srd(SWS)}, 0 offen offset:{8*i}\ns_waitcnt vmcnt(0)")
    a("L_exit:\ns_endpgm")
    i = 0
    while i < len(ool):
        ool[i](); i += 1
    a("L_end:")
    fallback(); gen_loop()
    while i < len(ool):
        ool[i](); i += 1
    body = a.finish()
    hdr = open("cdna_kernels/" + NAME + ".s.ref").read().split("; Override launch")[0]
    src = hdr + f"""; Single persistent kernel, one 512-thread workgroup per CU; generated by the author's own script.
; @launch grid=(256,1,1) block=(512,1,1) lds=163840
.amdgcn_target "amdgcn-amd-amdhsa--gfx950"
.text
.globl {NAME}_kernel
.p2align 8
.type {NAME}_kernel,@function
{NAME}_kernel:
{body}.section .rodata,"a"
.p2align 6
.amdhsa_kernel {NAME}_kernel
  .amdhsa_next_free_vgpr 256
  .amdhsa_next_free_sgpr 102
  .amdhsa_accum_offset 256
  .amdhsa_group_segment_fixed_size 0
  .amdhsa_kernarg_size 96
  .amdhsa_user_sgpr_count 2
  .amdhsa_user_sgpr_kernarg_segment_ptr 1
  .amdhsa_system_sgpr_workgroup_id_x 1
.end_amdhsa_kernel
"""
    return src

if __name__ == "__main__":
    cfg = Cfg()
    out = sys.argv[1]
    for kv in sys.argv[2:]:
        k, v = kv.split("=")
        old = getattr(cfg, k)
        setattr(cfg, k, (v == "1") if isinstance(old, bool) else (int(v) if isinstance(old, int) else v))
    open(out, "w").write(gen(cfg))
```

```python
import sys, math, struct
from asmdsl import Asm

NAME = "concat_heads__sliding_block__ssm_conv_h3__prompt"

class Cfg:
    stamps = False
    grp = ""
    stop = 99
    nt_in = ""
    fstr = 128
    slp = 1
    force_fb = False
    ncls = 3
    b1a = -1
    b1b = -1
    b1c = -1
    map2 = "head"
    outa = ""
    outb = "sc1"
    m16 = True
    nfill = 2
    a3la = 5
    a3x = 3
    ebar = "02"
    sstr = 176
    otouch = 0
    dbgst = False
    tmaj = True
    tscale = True
    cprio = 99
    prew = True
    gdelay = 1
    assist = 4
    lset = "s01"
    usplit = True
    upub = 3
    ust = -1
    wdelay = False
    fld = 6
    pre = 4
    uwarm = False
    r1first = True
    cs0 = "maqgw"
    cs1 = ""
    cs2 = ""
    elate = False
    hc = 4
    oc9 = False
    ocs = False
    zst = -1
    pfirst = False
    odelay = 0
    oup = 20
    b3st = 4
    bdl = 2
    z0 = 10
    zafter = True
    zsync = True
    hack1 = 0
    otn = -1
    otb = False
    otf = ""
    ot3 = -1
    wstart = 0
    wsch = ""
    x4 = 0
    bal = False
    orc = 0
    hl1 = 60
    zfs = 128
    orc2 = 0
    orc3 = 0
    hpre = 0
    wlin = 0
    n3 = 16
    prog = False
    sp1 = True
    nodup = True
    diagd = 0
    diagn = False
    diagw = -1
    tlb = 0
    tlball = False
    tlbs = False
    zpub = 1
    early = 20
    wtouch = 0
    wfirst = 2
    qn = -1
    fzn = 14
    wbar = 16
    cpub = 3
    hpub = 5
    prio = 5
    ufs = 8
    wopre = 9
    noread = False; nomfma = False; nowo = False

WS_G = 0x0; WS_U = 0x800000; WS_Z = 0xB00000; WS_O = 0xE00000; WS_O8 = 0x1000000
WS_FG = 0x1100000; WS_FU = 0x1140000; WS_FZ = 0x1180000; WS_FO = 0x11C0000; WS_T = 0x1200000
WS_SIZE = 0x1800000
L_KB = 98304; L_VB = L_KB + 11024
L_H = 119808; HSTR = 8320; HODD = 4160
L_U = 144768; USTR = 4608
L_V = 32768; VSTR = 8256; L_ONES = L_V + 24768 + 512; L_K = 59136; L_Q = 83712
L_WO1 = 87040
L_WO2 = 0
L_ZA = 25600; L_ZB = 83712
L_OS = [32768, 53248, 87040, 107520]; L_ST = 73728
SX, SW, SWO, SQ, SK, SV, SSH, SH, SD, SOUT, SDBG, SWS = [8 + 4 * i for i in range(12)]
def srd(b): return f"s[{b}:{b+3}]"
sWON, sC160 = 6, 7; sKX = 6
sWV, sXC, sJ, sHW = 56, 57, 58, 59
sN = 60
sR64, sC80, sRB, sCT, sCH, sCHV, sHD, sQB = 62, 63, 64, 65, 66, 67, 68, 69
sT0, sT1, sT2, sT3, sT4, sT5 = 70, 71, 72, 73, 74, 75
sCNT, sNV, sFB, sKC = 76, 77, 78, 79
sEX = 80
sA, sB = 82, 83
sSTAMP = 84
WOM = list(range(24, 36))
ZM = [0, 1, 3]
BIGNEG = 0xf149f2ca
vCZ, vCD, vCF = 208, 224, 240
QV = 152; ROH = 164; ZA = 167; FZA = 170; FZR = 172; QA = 174; ZD = 177; ZT = 174; QM2, QM3 = 182, 183
WOV = 208; AVP = 190; AK0, AK1, AVD, AV0, QAD0, QAD1, QM0, QM1, OS0, OS1 = 197, 198, 199, 200, 201, 202, 203, 204, 205, 206

def f2u(x): return struct.unpack("<I", struct.pack("<f", x))[0]
def pr(b): return f"v[{b}:{b+1}]"

def gen(cfg):
    a = Asm()
    FS = cfg.fstr
    NWO = (100 - cfg.early + 7) // 8
    ool = []
    def stamp(i, grp=""):
        if cfg.stamps and (grp == cfg.grp or i in (0, 8) and grp == ""):
            a(f"s_memrealtime s[{sSTAMP+2*i}:{sSTAMP+2*i+1}]\ns_memtime s[4:5]\ns_waitcnt lgkmcnt(0)\ns_mov_b32 s{sSTAMP+2*i+1}, s4")
    def dma(vaddr, s, soff, m0, flags=""):
        if isinstance(m0, int): a(f"s_mov_b32 m0, {m0}")
        else: a(m0)
        a(f"buffer_load_dwordx4 v{vaddr}, {srd(s)}, {soff} offen {flags} lds")
    def cmpflag(t):
        a(f"v_cmp_ne_u32 vcc, s{sN}, v{t}\nv_cmp_ne_u32 s[{sEX}:{sEX+1}], s{sN+1}, v{t+1}\ns_or_b64 vcc, vcc, s[{sEX}:{sEX+1}]")
    def poll(vaddr, t):
        L = a.lab("L_poll"); D = a.lab("L_polld")
        a(f"s_mov_b32 s{sCNT}, 0\n{L}:")
        a(f"buffer_load_dwordx2 v[{t}:{t+1}], v{vaddr}, {srd(SWS)}, 0 offen sc1\ns_waitcnt vmcnt(0)")
        cmpflag(t)
        a(f"s_cbranch_vccz {D}\ns_add_u32 s{sCNT}, s{sCNT}, 1\ns_cmp_lt_u32 s{sCNT}, 0x40000\ns_cbranch_scc0 {D}\ns_sleep {cfg.slp}\ns_branch {L}\n{D}:")
    def check_or_poll(vaddr, t):
        L = a.lab("L_cp"); R = a.lab("L_cpr")
        cmpflag(t)
        a(f"s_cbranch_vccnz {L}\n{R}:")
        def body():
            a(f"{L}:"); poll(vaddr, t); a(f"s_branch {R}")
        ool.append(body)
    def publish(soff_sgpr, t):
        a(f"v_mov_b32 v{t}, s{sN}\nv_mov_b32 v{t+1}, s{sN+1}\nv_mov_b32 v{t+2}, s{soff_sgpr}")
        a(f"s_mov_b64 exec, 1\nbuffer_store_dwordx2 v[{t}:{t+1}], v{t+2}, {srd(SWS)}, 0 offen sc1\ns_mov_b64 exec, -1")
    def nonce_issue(t):
        a(f"v_mov_b32 v{t+2}, 0\nbuffer_load_dwordx2 v[{t}:{t+1}], v{t+2}, {srd(SDBG)}, 0 offen sc1")
    def nonce_take(t):
        L = a.lab("L_non"); R = a.lab("L_nonr"); D = a.lab("L_nond")
        a(f"s_mov_b32 s{sCNT}, 0\n{R}:\nv_readfirstlane_b32 s{sN}, v{t}\nv_readfirstlane_b32 s{sN+1}, v{t+1}")
        a(f"s_cmp_eq_u32 s{sN}, 0\ns_cbranch_scc1 {L}\n{D}:")
        def body():
            a(f"{L}:\ns_add_u32 s{sCNT}, s{sCNT}, 1\ns_cmp_lt_u32 s{sCNT}, 0x40000\ns_cbranch_scc0 {D}")
            a(f"buffer_load_dwordx2 v[{t}:{t+1}], v{t+2}, {srd(SDBG)}, 0 offen sc1\ns_waitcnt vmcnt(0)\ns_branch {R}")
        ool.append(body)
    def build_masks(val):
        a(f"v_and_b32 v2, 31, v1\nv_lshrrev_b32 v3, 5, v1\nv_lshlrev_b32 v3, 2, v3\nv_sub_u32 v2, v2, v3\nv_mov_b32 v3, {BIGNEG:#x}")
        for r in range(0, 16, 2):
            m0 = 8 * (r >> 2) + (r & 3)
            if val is None:
                a(f"v_cmp_gt_i32 vcc, {m0}, v2\nv_cmp_gt_i32 s[{sEX}:{sEX+1}], {m0+1}, v2")
                if r > 0: a(f"v_xor_b32 v{vCF+r-2}, v3, v{vCD+r-2}\nv_xor_b32 v{vCF+r-1}, v3, v{vCD+r-1}")
                a(f"v_cndmask_b32 v{vCD+r}, 0, v3, vcc\nv_cndmask_b32 v{vCD+r+1}, 0, v3, s[{sEX}:{sEX+1}]")
                if r == 14: a(f"v_xor_b32 v{vCF+r}, v3, v{vCD+r}\nv_xor_b32 v{vCF+r+1}, v3, v{vCD+r+1}")
                continue
            a(f"v_cmp_le_i32 vcc, {m0}, v2\nv_cmp_le_i32 s[{sEX}:{sEX+1}], {m0+1}, v2\nv_mov_b32 v{vCZ+r}, {val}\nv_mov_b32 v{vCZ+r+1}, {val}")
            a(f"v_cndmask_b32 v{vCD+r}, v3, v{vCZ+r}, vcc\nv_cndmask_b32 v{vCF+r}, v{vCZ+r}, v3, vcc")
            a(f"v_cndmask_b32 v{vCD+r+1}, v3, v{vCZ+r+1}, s[{sEX}:{sEX+1}]\nv_cndmask_b32 v{vCF+r+1}, v{vCZ+r+1}, v3, s[{sEX}:{sEX+1}]")
    def capture(f):
        n0 = len(a.ins); f(); r = [i.text for i in a.ins[n0:]]; del a.ins[n0:]; return r
    q = []
    def issue(tag, n): q.extend([tag] * n)
    def wait_for(tags):
        last = max((i for i, t in enumerate(q) if t in tags), default=-1)
        if last >= 0:
            a(f"s_waitcnt lgkmcnt({min(len(q) - 1 - last, 15)})")
            del q[:last + 1]

    T2 = 184
    def taps(tp, r):
        a(f"""
        v_lshlrev_b32 v{tp+0}, 16, v{r}
        v_lshlrev_b32 v{tp+1}, 16, v{r+2}
        v_and_b32 v{tp+2}, 0xffff0000, v{r}
        v_and_b32 v{tp+3}, 0xffff0000, v{r+2}
        v_lshlrev_b32 v{tp+4}, 16, v{r+1}
        v_lshlrev_b32 v{tp+5}, 16, v{r+3}
        v_and_b32 v{tp+6}, 0xffff0000, v{r+1}
        v_and_b32 v{tp+7}, 0xffff0000, v{r+3}
        """)
    def b1_compute(B):
        kr = B; rs = B; vv = B + 16; ku = B + 24; tp = B + 46; vu = ku; pk = B + 40
        a(f"""
        v_and_b32 v2, 7, v0
        v_lshrrev_b32 v3, 3, v0
        v_mul_u32_u24 v4, 1296, v2
        v_lshl_add_u32 v4, v3, 2, v4
        v_add_u32 v4, {L_KB}, v4
        """)
        for i in range(-3, 8): a(f"ds_read_b32 v{kr+3+i}, v4 offset:{(640 if i < 0 else 656) + 160*i}")
        for i in range(8): a(f"ds_read_b32 v{vv+i}, v4 offset:{11024 + 160*i}")
        a(f"""
        v_lshlrev_b32 v3, 13, v3
        v_sub_u32 v2, 7, v2
        v_lshl_add_u32 v3, v2, 4, v3
        v_and_b32 v2, 31, v0
        v_lshrrev_b32 v4, 5, v0
        v_mul_u32_u24 v5, 320, v2
        v_lshl_add_u32 v5, v4, 2, v5
        v_add_u32 v5, {L_KB + 128}, v5
        v_add_u32 v6, 3, v2
        v_lshrrev_b32 v6, 2, v6
        v_lshl_add_u32 v6, v6, 4, v5
        v_add_u32 v7, 2, v2
        v_lshrrev_b32 v7, 2, v7
        v_lshl_add_u32 v7, v7, 4, v5
        v_lshrrev_b32 v188, 2, v2
        v_lshl_add_u32 v5, v188, 4, v5
        ds_read_b32 v7, v7 offset:160
        ds_read_b32 v188, v6 offset:320
        ds_read_b32 v6, v6 offset:480
        ds_read_b32 v189, v5 offset:656
        ds_read_b32 v195, v5 offset:816
        ds_read_b32 v196, v5 offset:11024
        ds_read_b32 v5, v5 offset:11184
        v_lshlrev_b32 v2, 2, v2
        v_sub_u32 v2, {32*8192 + 124}, v2
        v_lshl_add_u32 v2, v4, 13, v2
        """)
        taps(tp, 8)
        a(f"""
        s_mul_i32 s{sT0}, s{sC80}, {80*4096}
        s_lshl_b32 s{sT1}, s{sR64}, 7
        s_sub_u32 s{sT0}, s{sT0}, s{sT1}
        s_add_u32 s{sT0}, s{sT0}, {WS_U + 4080 - 112}
        s_waitcnt lgkmcnt(15)
        """)
        def unp(d, r): a(f"v_lshlrev_b32 v{d}, 16, v{r}\nv_and_b32 v{d+1}, 0xffff0000, v{r}")
        for i in range(11): unp(ku + 2 * i, kr + i)
        for i in range(8): a(f"v_pk_mul_f32 {pr(rs+2*i)}, {pr(ku+2*(i+3))}, {pr(tp)}")
        for j in range(1, 4):
            for i in range(8): a(f"v_pk_fma_f32 {pr(rs+2*i)}, {pr(ku+2*(i+3-j))}, {pr(tp+2*j)}, {pr(rs+2*i)}")
        a("s_waitcnt lgkmcnt(7)")
        for i in range(8): unp(vu + 2 * i, vv + i)
        for i in range(8): a(f"v_pk_mul_f32 {pr(rs+2*i)}, {pr(rs+2*i)}, {pr(vu+2*i)}")
        for ch in range(2):
            for d in range(4): a(f"v_cvt_pk_bf16_f32 v{pk+4*ch+d}, v{rs+2*(7-2*d)+ch}, v{rs+2*(6-2*d)+ch}")
        ku = B + 4; tp = B + 18
        taps(tp, T2)
        a("s_waitcnt lgkmcnt(0)")
        for i, r in enumerate((7, 188, 6, 189, 195, 196, 5)): unp(ku + 2 * i, r)
        for i in range(2): a(f"v_pk_mul_f32 {pr(rs+2*i)}, {pr(ku+2*(i+3))}, {pr(tp)}")
        for j in range(1, 4):
            for i in range(2): a(f"v_pk_fma_f32 {pr(rs+2*i)}, {pr(ku+2*(i+3-j))}, {pr(tp+2*j)}, {pr(rs+2*i)}")
        for i in range(2): a(f"v_pk_mul_f32 {pr(rs+2*i)}, {pr(rs+2*i)}, {pr(ku+10+2*i)}")
        a(f"v_cvt_pk_bf16_f32 v{pk+8}, v{rs+2}, v{rs}\nv_cvt_pk_bf16_f32 v{pk+9}, v{rs+3}, v{rs+1}")
        a(f"v_add_u32 v{pk+10}, s{sT0}, v3\nv_add_u32 v{pk+11}, s{sT0}, v2")
    def b1_store(B):
        pk = B + 40
        a(f"""
        s_movk_i32 s{sT1}, 0x1000
        buffer_store_dwordx4 v[{pk}:{pk+3}], v{pk+10}, {srd(SWS)}, 0 offen sc1
        buffer_store_dwordx4 v[{pk+4}:{pk+7}], v{pk+10}, {srd(SWS)}, s{sT1} offen sc1
        buffer_store_dword v{pk+8}, v{pk+11}, {srd(SWS)}, 0 offen sc1
        buffer_store_dword v{pk+9}, v{pk+11}, {srd(SWS)}, s{sT1} offen sc1
        """)
    def shift_load():
        a(f"v_lshrrev_b32 v4, 3, v0\nv_lshlrev_b32 v4, 4, v4\ns_mul_i32 s{sT4}, s{sC80}, 640\nbuffer_load_dwordx4 v[8:11], v4, {srd(SSH)}, s{sT4} offen")
        a(f"v_lshrrev_b32 v4, 5, v0\nv_lshlrev_b32 v4, 4, v4\nbuffer_load_dwordx4 v[{T2}:{T2+3}], v4, {srd(SSH)}, s{sT4} offen offset:512")
    def publish_u(t):
        a(f"s_lshl_b32 s{sT0}, s{sC80}, 2\ns_add_u32 s{sT0}, s{sT0}, s{sWV}\ns_lshl_b32 s{sT0}, s{sT0}, 5\ns_add_u32 s{sT0}, s{sT0}, s{sR64}\ns_mul_i32 s{sT0}, s{sT0}, {cfg.ufs}\ns_add_u32 s{sT0}, s{sT0}, {WS_FU}")
        publish(sT0, t)
    def rounds(RO):
        for k in range(3):
            a(f"""
            s_lshl_b32 s{sT0}, s{sHW}, 6
            s_add_u32 s{sT0}, s{sT0}, {256*k}
            v_add_u32 v2, s{sT0}, v1
            v_mul_u32_u24 v3, 205, v2
            v_lshrrev_b32 v3, 11, v3
            v_mul_u32_u24 v4, 10, v3
            v_sub_u32 v4, v2, v4
            v_mul_u32_u24 v5, 2560, v3
            v_lshl_add_u32 v{RO+k}, v4, 4, v5
            """)
            yield k
    def a2_setup():
        a(f"""
        s_lshl_b32 s{sT0}, s{sWV}, 9
        v_and_b32 v2, 31, v1
        v_lshrrev_b32 v3, 5, v1
        v_lshlrev_b32 v{OS1}, 3, v2
        v_lshlrev_b32 v4, 4, v2
        v_lshl_add_u32 v{OS0}, v3, 15, v4
        v_add_u32 v4, s{sT0}, v4
        v_lshl_add_u32 v5, v3, 12, v4
        v_add_u32 v{QAD0}, {L_Q}, v5
        v_add_u32 v{QAD1}, {L_Q + 8192}, v4
        v_lshl_add_u32 v{AK0}, v3, 13, v4
        v_add_u32 v{AK0}, {L_K}, v{AK0}
        v_lshlrev_b32 v5, 9, v3
        v_sub_u32 v5, v4, v5
        v_add_u32 v{AK1}, {L_K + 16384}, v5
        v_bfe_u32 v4, v1, 2, 2
        v_lshl_add_u32 v4, v3, 2, v4
        v_lshlrev_b32 v4, 4, v4
        v_bfe_u32 v5, v1, 1, 1
        v_mul_u32_u24 v5, {VSTR}, v5
        v_and_b32 v6, 1, v1
        v_lshl_add_u32 v5, v6, 3, v5
        s_and_b32 s{sT1}, s{sHD}, 1
        s_lshl_b32 s{sT2}, s{sT1}, 3
        s_add_u32 s{sT2}, s{sT2}, {2*VSTR}
        v_mov_b32 v6, s{sT2}
        v_and_b32 v7, 16, v1
        v_cmp_ne_u32 vcc, 0, v7
        v_cndmask_b32 v5, v5, v6, vcc
        s_add_u32 s{sT0}, s{sT0}, {L_V + 4096 - 512}
        v_add3_u32 v5, v5, v4, s{sT0}
        v_and_b32 v7, 2, v1
        v_sub_u32 v7, 2, v7
        v_lshl_add_u32 v4, v7, {2 if cfg.sp1 else 31}, v4
        v_and_b32 v7, 19, v1
        v_cmp_lt_u32 vcc, 16, v7
        s_add_u32 s{sT0}, s{sWV}, 1
        s_cmp_eq_u32 s{sQB}, 0
        s_cselect_b32 s{sNV}, s{sT0}, 99
        """)
        for p in range(5):
            a(f"""
            s_cmp_gt_u32 s{sNV}, {2*p}
            s_cselect_b32 s{sT0}, {L_ONES - 512 - (L_V + 192)}, 0
            s_add_u32 s{sT0}, s{sT0}, {L_V + 192}
            s_cmp_gt_u32 s{sNV}, {2*p+1}
            s_cselect_b32 s{sT0}, {L_ONES}, s{sT0}
            v_add_u32 v6, s{sT0}, v4
            v_cndmask_b32 v{AVP+p}, v5, v6, vcc
            v_subrev_u32 v5, 1024, v5
            """)
        a(f"""
        s_mov_b32 s{sFB}, 0
        s_cmp_eq_u32 s{sT1}, 0
        s_cselect_b32 s{sT2}, -1, 0
        s_cselect_b32 s{sT3}, 0, -1
        v_cmp_eq_u32 vcc, 0, v3
        v_mov_b32 v5, s{sT2}
        v_mov_b32 v6, s{sT3}
        v_cndmask_b32 v{QM0}, 0, v5, vcc
        v_cndmask_b32 v{QM1}, 0, v6, vcc
        v_cndmask_b32 v{QM2}, v5, 0, vcc
        v_cndmask_b32 v{QM3}, v6, 0, vcc
        s_mov_b32 s{sT4}, 6554
        """)
        for i in range(NWO):
            wo_index(i)
            if cfg.orc2: a(f"s_and_b32 s{sT2}, s{sT2}, 31")
            a(f"""
            s_lshl_b32 s{sT3}, s{sT2}, 6
            v_add_u32 v2, s{sT3}, v1
            v_mul_u32_u24 v3, s{sT4}, v2
            v_lshrrev_b32 v3, 16, v3
            v_mul_u32_u24 v3, 1120, v3
            v_lshl_add_u32 v{WOV+i}, v2, 4, v3
            """)
    def wo_index(i):
        a(f"s_add_u32 s{sT2}, s{sWV}, {8*i}")
        if 8 * i + 7 > 99 - cfg.early: a(f"s_min_u32 s{sT2}, s{sT2}, {99 - cfg.early}")
    def wom_setup():
        for i in range(NWO):
            wo_index(i)
            a(f"s_lshl_b32 s{sT2}, s{sT2}, 10\ns_add_u32 s{WOM[i]}, s{sT2}, {L_WO1}")
            if 8 * i + 7 >= 75: a(f"s_sub_u32 s{sT2}, s{sT2}, 76800\ns_min_u32 s{WOM[i]}, s{WOM[i]}, s{sT2}")
    def wo_early_addr():
        for i in range(5):
            a(f"v_add_u32 v2, {64*i}, v1\nv_mul_u32_u24 v3, 205, v2\nv_lshrrev_b32 v3, 11, v3\nv_mul_u32_u24 v3, 1120, v3\nv_lshl_add_u32 v{32+i}, v2, 4, v3")
    def wo_early():
        lastp = -1
        for n in range(100 - cfg.early, 100):
            if n // 5 != lastp:
                lastp = n // 5; a(f"s_add_u32 s{sT0}, s{sC160}, {lastp*32*1280}")
            dma(32 + n % 5, SWO, f"s{sT0}", L_WO1 + 1024 * n if n < 75 else L_WO2 + 1024 * (n - 75))

    L_SYNC = 119712
    sizes = {SX: 2621440, SW: 2457600, SWO: 819200, SQ: 2621440, SK: 2621440, SV: 2621440, SSH: 5120, SH: 2621440, SD: 1280, SOUT: 5242880, SDBG: 256, SWS: WS_SIZE}
    assert cfg.b1a < 0 and cfg.b1b < 0 and cfg.b1c < 0
    for s, slot in ((SK, 4), (SV, 5), (SSH, 6), (SX, 0), (SW, 1)): a(f"s_load_dwordx2 s[{s}:{s+1}], s[0:1], {slot*8}")
    a("s_cmp_ge_u32 s2, 256\ns_cbranch_scc1 L_exit")
    if cfg.diagd: a("s_memrealtime s[100:101]")
    a(f"""
    v_lshrrev_b32 v2, 6, v0
    v_and_b32 v1, 63, v0
    s_and_b32 s{sXC}, s2, 7
    v_readfirstlane_b32 s{sWV}, v2
    s_lshr_b32 s{sJ}, s2, 3
    v_mul_u32_u24 v2, 26, v1
    s_and_b32 s{sT0}, s{sJ}, 3
    v_lshrrev_b32 v2, 8, v2
    s_lshl2_add_u32 s{sR64}, s{sXC}, s{sT0}
    v_mul_u32_u24 v2, 1120, v2
    s_lshr_b32 s{sC80}, s{sJ}, 2
    v_lshl_add_u32 v12, v1, 4, v2
    s_mul_i32 s{sC160}, s{sC80}, 160
    s_lshl3_add_u32 s{sT1}, s{sR64}, s{sWV}
    s_mul_i32 s{sT1}, s{sT1}, {8*1280}
    s_add_u32 s{sT1}, s{sT1}, s{sC160}
    s_mul_i32 s{sB}, s{sWV}, 1296
    s_mov_b32 s{SK+2}, {sizes[SK]}
    s_mov_b32 s{SK+3}, 0x20000
    s_mov_b32 s{SV+2}, {sizes[SV]}
    s_mov_b32 s{SV+3}, 0x20000
    s_add_u32 s{sT2}, s{sT1}, {4*1280}
    s_cmp_lg_u32 s{sWV}, 7
    s_cbranch_scc1 L_nocp
    s_getpc_b64 s[4:5]
    L_pc:
    s_mul_i32 s3, s{sJ}, 1408
    v_lshl_add_u32 v2, v1, 7, s3
    v_min_u32 v2, L_end-L_pc, v2
    v_mov_b32 v3, {L_SYNC + 16}
    v_mov_b32 v4, 0
    s_mov_b64 exec, 0x7ff
    global_load_dword v62, v2, s[4:5]
    ds_write_b32 v3, v4
    s_mov_b32 exec_lo, -1
    L_nocp:
    s_mov_b32 exec_hi, 0xff
    s_add_u32 m0, s{sB}, {L_KB+656}
    s_waitcnt lgkmcnt(0)
    buffer_load_dwordx4 v12, {srd(SK)}, s{sT1} offen {cfg.nt_in} lds
    """)
    dma(12, SV, f"s{sT1}", f"s_add_u32 m0, s{sB}, {L_VB}", cfg.nt_in)
    dma(12, SK, f"s{sT2}", f"s_add_u32 m0, s{sB}, {L_KB+656+640}", cfg.nt_in)
    dma(12, SV, f"s{sT2}", f"s_add_u32 m0, s{sB}, {L_VB+640}", cfg.nt_in)
    a(f"s_cmp_lg_u32 s{sWV}, 0\ns_cbranch_scc1 L_nohalo\ns_sub_u32 s{sT1}, s{sT1}, {4*1280}\nv_add_u32 v13, s{sT1}, v12")
    dma(13, SK, "0", L_KB, cfg.nt_in)
    a(f"L_nohalo:\ns_mov_b32 exec_hi, -1\ns_mov_b32 s{SSH+2}, {sizes[SSH]}\ns_mov_b32 s{SSH+3}, 0x20000\ns_cmp_ge_u32 s{sWV}, 4\ns_cbranch_scc1 L_nosh")
    shift_load()
    a("L_nosh:")
    stamp(0)
    for s, slot in ((SDBG, 10), (SWS, 11), (SH, 7), (SD, 8), (SWO, 2), (SQ, 3), (SOUT, 9)): a(f"s_load_dwordx2 s[{s}:{s+1}], s[0:1], {slot*8}")
    def srd_consts(lst):
        for s in lst: a(f"s_mov_b32 s{s+2}, {sizes[s]}\ns_mov_b32 s{s+3}, 0x20000")
    a(f"""
    s_and_b32 s{sHW}, s{sWV}, 3
    s_and_b32 s{sT0}, s{sXC}, 1
    s_mul_i32 s{sT0}, s{sT0}, 30
    s_add_u32 s{sT0}, s{sT0}, s{sJ}
    s_lshr_b32 s{sCT}, s{sT0}, 2
    s_cmp_ge_u32 s{sJ}, 30
    s_cselect_b32 s{sCT}, 7, s{sCT}
    s_and_b32 s{sT0}, s{sT0}, 3
    s_lshr_b32 s{sRB}, s{sXC}, 1
    s_lshl2_add_u32 s{sRB}, s{sRB}, s{sT0}
    s_barrier
    """)
    if cfg.map2 == "head": a(f"s_mov_b32 s{sHD}, s{sR64}\ns_mov_b32 s{sQB}, s{sC80}")
    else: a(f"s_mov_b32 s{sHD}, s{sJ}\ns_mov_b32 s{sQB}, s{sXC}")
    a(f"s_cmp_lt_u32 s{sWV}, 4\ns_cbranch_scc1 L_C")

    vX = 16; vW = 20; vW2 = 63; vD = 21; vNH = 22; vHA = 64; vHB = 80
    srd_consts((SX, SW))
    a(f"""
    v_lshrrev_b32 v2, 3, v1
    v_lshrrev_b32 v3, 4, v1
    v_xor_b32 v4, v3, v1
    v_and_b32 v4, 7, v4
    v_mul_u32_u24 v2, 1280, v2
    v_lshl_add_u32 v{vX}, v4, 4, v2
    v_xor_b32 v4, 4, v4
    v_lshl_add_u32 v{vX+1}, v4, 4, v2
    v_add_u32 v{vX+1}, {8*1280}, v{vX+1}
    v_add_u32 v{vX+2}, {16*1280}, v{vX}
    v_add_u32 v{vX+3}, {16*1280}, v{vX+1}
    v_lshlrev_b32 v4, 2, v3
    v_xor_b32 v4, v4, v1
    v_and_b32 v4, 15, v4
    v_mul_u32_u24 v3, 3840, v3
    v_lshl_add_u32 v{vW}, v4, 4, v3
    v_xor_b32 v{vW2}, {32 if cfg.m16 else 0}, v{vW}
    s_mul_i32 s{sA}, s{sRB}, {128*1280}
    s_mul_i32 s{sT0}, s{sHW}, {32*1280}
    s_add_u32 s{sA}, s{sA}, s{sT0}
    s_lshl_b32 s{sB}, s{sCT}, 8
    s_mul_i32 s{sT0}, s{sHW}, {16*3840}
    s_add_u32 s{sB}, s{sB}, s{sT0}
    s_lshl_b32 s{sT5}, s{sHW}, 12
    """)
    if cfg.ncls == 10:
        a(f"s_and_b32 s{sT0}, s{sRB}, 3\ns_mul_i32 s{sT0}, s{sT0}, 5\ns_add_u32 s{sT0}, s{sT0}, 1\ns_lshr_b32 s{sT0}, s{sT0}, 1\ns_lshr_b32 s{sT1}, s{sRB}, 2\ns_add_u32 s{sT0}, s{sT0}, s{sT1}\ns_add_u32 s{sKC}, s{sT0}, s{sCT}")
    elif cfg.ncls == 2:
        a(f"s_add_u32 s{sT0}, s{sRB}, s{sCT}\ns_and_b32 s{sT0}, s{sT0}, 1\ns_mul_i32 s{sT0}, s{sT0}, 5\ns_add_u32 s{sKC}, s{sT0}, s{sXC}")
    elif cfg.ncls == 4:
        a(f"s_add_u32 s{sT0}, s{sRB}, s{sCT}\ns_and_b32 s{sT0}, s{sT0}, 3\ns_mul_i32 s{sT0}, s{sT0}, 5\ns_add_u32 s{sT0}, s{sT0}, 1\ns_lshr_b32 s{sT0}, s{sT0}, 1\ns_add_u32 s{sKC}, s{sT0}, s{sXC}")
    elif cfg.ncls == 3:
        a(f"s_add_u32 s{sT0}, s{sRB}, s{sCT}\ns_mul_i32 s{sT1}, s{sT0}, 86\ns_lshr_b32 s{sT1}, s{sT1}, 8\ns_mul_i32 s{sT1}, s{sT1}, 3\ns_sub_u32 s{sT0}, s{sT0}, s{sT1}\ns_mul_i32 s{sT0}, s{sT0}, 7\ns_lshr_b32 s{sT0}, s{sT0}, 1\ns_add_u32 s{sKC}, s{sT0}, s{sXC}")
    else:
        a(f"s_mov_b32 s{sKC}, s{sXC}")
    a(f"s_mul_i32 s{sT0}, s{sKC}, 205\ns_lshr_b32 s{sT0}, s{sT0}, 11\ns_mul_i32 s{sT0}, s{sT0}, 10\ns_sub_u32 s{sKC}, s{sKC}, s{sT0}")
    def ring_issue(c):
        slot = ((c + 1) % 3) * 32768
        a(f"s_lshl_b32 s{sT0}, s{sKC}, 7\ns_add_u32 s{sT0}, s{sT0}, s{sA}\ns_mul_i32 s{sT1}, s{sKC}, {64*3840}\ns_add_u32 s{sT1}, s{sT1}, s{sB}")
        for i in range(4):
            dma(vX + i, SX, f"s{sT0}", f"s_add_u32 m0, s{sT5}, {slot + i*1024}")
            dma(vW if i < 2 else vW2, SW, f"s{sT1}", f"s_add_u32 m0, s{sT5}, {slot + 16384 + i*1024}")
            if i < 3: a(f"s_add_u32 s{sT1}, s{sT1}, {4*3840}")
        a(f"s_add_u32 s{sKC}, s{sKC}, 1\ns_cmp_eq_u32 s{sKC}, 10\ns_cselect_b32 s{sKC}, 0, s{sKC}")
    def x_issue(c):
        a(f"s_lshl_b32 s{sT0}, s{sKX}, 7\ns_add_u32 s{sT0}, s{sT0}, s{sA}")
        for i in range(4): dma(vX + i, SX, f"s{sT0}", f"s_add_u32 m0, s{sT5}, {(c % 4) * 32768 + i*1024}")
        a(f"s_add_u32 s{sKX}, s{sKX}, 1\ns_cmp_eq_u32 s{sKX}, 10\ns_cselect_b32 s{sKX}, 0, s{sKX}")
    def w_issue(c):
        a(f"s_mul_i32 s{sT1}, s{sKC}, {64*3840}\ns_add_u32 s{sT1}, s{sT1}, s{sB}")
        for i in range(4):
            dma(vW if i < 2 else vW2, SW, f"s{sT1}", f"s_add_u32 m0, s{sT5}, {((c + 1) % 3) * 32768 + 16384 + i*1024}")
            if i < 3: a(f"s_add_u32 s{sT1}, s{sT1}, {4*3840}")
        a(f"s_add_u32 s{sKC}, s{sKC}, 1\ns_cmp_eq_u32 s{sKC}, 10\ns_cselect_b32 s{sKC}, 0, s{sKC}")
    if cfg.x4:
        a(f"s_mov_b32 s{sKX}, s{sKC}")
        def ring_issue(c):
            if c < 2:
                x_issue(c); w_issue(c)
                if c == 1 and cfg.x4 == 1: x_issue(2)
            else:
                if c == 2 and cfg.x4 == 2: x_issue(2)
                w_issue(c)
                if c + 1 <= 9: x_issue(c + 1)
    def h_chan():
        a(f"""
        s_mul_i32 s{sT0}, s{sJ}, 3
        s_lshl_b32 s{sT1}, s{sJ}, 1
        s_add_u32 s{sT1}, s{sT1}, {cfg.n3}
        s_cmp_lt_u32 s{sJ}, {cfg.n3}
        s_cselect_b32 s{sT0}, s{sT0}, s{sT1}
        s_cselect_b32 s{sT1}, 3, 2
        s_cmp_lt_u32 s{sT0}, 80
        s_cselect_b32 s{sT1}, s{sT1}, 0
        s_cselect_b32 s{sT0}, s{sT0}, 0
        s_cmp_lt_u32 s{sHW}, s{sT1}
        s_cselect_b32 s{sCHV}, 1, 0
        s_cselect_b32 s{sT1}, s{sHW}, 0
        s_add_u32 s{sT0}, s{sT0}, s{sT1}
        s_mul_i32 s{sCH}, s{sXC}, 80
        s_add_u32 s{sCH}, s{sCH}, s{sT0}
        s_bfe_u32 s{sT1}, s{sT0}, 0x20002
        s_cmp_lt_u32 s{sT0}, 64
        s_cselect_b32 s{sT2}, 4, 31
        s_cselect_b32 s{sT1}, 0, s{sT1}
        s_lshr_b32 s{sT0}, s{sT0}, s{sT2}
        s_add_u32 s{sT0}, s{sT0}, s{sT1}
        s_lshl_b32 s{sT1}, s{sXC}, 2
        s_add_u32 s{sT0}, s{sT0}, s{sT1}
        s_lshl_b32 s{sT0}, s{sT0}, 5
        v_and_b32 v12, 31, v1
        v_add_u32 v12, s{sT0}, v12
        v_mul_u32_u24 v12, {cfg.ufs}, v12
        v_add_u32 v12, {WS_FU}, v12
        """)
    def f_load():
        a(f"buffer_load_dwordx2 v[14:15], v12, {srd(SWS)}, 0 offen sc1")
    def h_loads():
        a(f"""
        s_mul_i32 s{sT3}, s{sHW}, {HSTR}
        s_mul_i32 s{sT3}, s{sT3}, s{sCHV}
        s_lshl_b32 s{sT0}, s{sCH}, {12 if not cfg.orc3 else 4}
        s_add_u32 m0, s{sT3}, {L_H + 32}
        s_lshl_b32 s{sT4}, s{sCH}, 1
        v_mov_b32 v4, s{sT4}
        """)
        for i in range(4): a(f"buffer_load_dwordx4 v13, {srd(SH if not cfg.orc3 else SW)}, s{sT0} offen offset:{1024*i} {cfg.nt_in} lds")
        a(f"buffer_load_ushort v{vD}, v4, {srd(SD)}, 0 offen")
    def u_loads():
        check_or_poll(12, 14)
        a(f"s_mul_i32 s{sT2}, s{sHW}, {USTR}\ns_lshl_b32 s{sT0}, s{sCH}, 12\ns_add_u32 s{sT1}, s{sT0}, {WS_U}\ns_add_u32 m0, s{sT2}, {L_U}")
        for i in range(4): a(f"buffer_load_dwordx4 v13, {srd(SWS)}, s{sT1} offen offset:{1024*i} sc1 lds")
    def hu_loads():
        h_loads(); a("s_waitcnt vmcnt(5)"); u_loads()
    ZL = 180; ZPA = 171; sZP = 2; WS_FZ2 = WS_FZ + 0x20000
    AA = 26; AB = 30; BACC = 96; BF = 32; AF = 128; NAF = 5; DF = 148
    def b3_setup():
        a(f"s_mul_i32 s{sT2}, s{sR64}, {64*1280}\ns_add_u32 s{sT2}, s{sT2}, s{sC160}")
        for k in rounds(ROH):
            a(f"""
            v_mul_u32_u24 v5, 1280, v3
            v_lshl_add_u32 v5, v4, 4, v5
            v_add_u32 v{QA+k}, s{sT2}, v5
            v_lshlrev_b32 v5, 3, v4
            v_xor_b32 v5, v5, v3
            v_and_b32 v5, 63, v5
            v_lshlrev_b32 v5, 1, v5
            v_lshl_add_u32 v5, v4, 10, v5
            v_cmp_lt_u32 vcc, 6, v4
            v_add_u32 v6, {L_ZA}, v5
            v_add_u32 v5, {L_ZB - 7*1024}, v5
            v_cndmask_b32 v{ZA+k}, v6, v5, vcc
            """)
        a(f"""
        s_cmp_ge_u32 s{sHW}, 2
        s_cselect_b32 s{sT2}, 15, 23
        v_min_u32 v2, s{sT2}, v1
        v_lshrrev_b32 v3, 3, v2
        v_and_b32 v2, 7, v2
        v_lshl_add_u32 v2, v3, 5, v2
        s_mul_i32 s{sT0}, s{sC80}, 80
        s_lshl_b32 s{sT2}, s{sHW}, 3
        s_add_u32 s{sT0}, s{sT0}, s{sT2}
        v_add_u32 v2, s{sT0}, v2
        v_mul_u32_u24 v2, {cfg.zfs}, v2
        s_sub_u32 s{sT0}, s{sXC}, 1
        s_cmp_lt_u32 s{sT0}, {3 if cfg.bal else 0}
        s_cselect_b32 s{sT0}, {WS_FZ2 - WS_FZ}, 0
        s_add_u32 s{sT0}, s{sT0}, {WS_FZ}
        v_add_u32 v{FZA}, s{sT0}, v2
        s_cmp_lt_u32 s{sJ}, 16
        s_cselect_b32 s{sT2}, 3, 2
        s_cmp_eq_u32 s{sCHV}, 0
        s_cselect_b32 s{sT2}, s{sT2}, 1
        s_cselect_b32 s{sT0}, {WS_FZ2 - WS_FZ}, 0
        s_add_u32 s{sT0}, s{sT0}, {WS_FZ}
        v_add_u32 v2, s{sCH}, v1
        v_mul_u32_u24 v2, {cfg.zfs}, v2
        v_add_u32 v2, s{sT0}, v2
        v_bfrev_b32 v3, 1
        v_cmp_gt_u32 vcc, s{sT2}, v1
        v_cndmask_b32 v{ZPA}, v3, v2, vcc
        v_lshrrev_b32 v2, 3, v1
        v_and_b32 v3, 7, v1
        v_lshlrev_b32 v2, 12, v2
        v_lshl_add_u32 v2, v3, 4, v2
        s_mul_i32 s{sT0}, s{sC80}, {80*4096}
        s_lshl_b32 s{sT1}, s{sR64}, 7
        s_add_u32 s{sT0}, s{sT0}, s{sT1}
        s_add_u32 s{sT0}, s{sT0}, {WS_Z}
        """)
        for k in range(3):
            a(f"""
            s_add_u32 s{sT1}, s{sHW}, {4*k}
            s_min_u32 s{sT1}, s{sT1}, 9
            s_and_b32 s{sT2}, s{sT1}, 7
            s_lshl_b32 s{sT2}, s{sT2}, 4
            v_xor_b32 v3, s{sT2}, v2
            s_lshl_b32 s{sT2}, s{sT1}, 15
            s_add_u32 s{sT2}, s{sT2}, s{sT0}
            v_add_u32 v{ZD+k}, s{sT2}, v3
            s_lshl_b32 s{sT2}, s{sT1}, 10
            s_cmp_gt_u32 s{sT1}, 6
            s_cselect_b32 s{sT1}, {L_ZB - 7*1024 - L_ZA}, 0
            s_add_u32 s{sT2}, s{sT2}, s{sT1}
            s_add_u32 s{ZM[k]}, s{sT2}, {L_ZA}
            """)
    def b2_setup():
        a(f"""
        v_and_b32 v2, 15, v1
        v_lshrrev_b32 v3, 4, v1
        v_add_u32 v4, 1, v2
        v_lshrrev_b32 v4, 1, v4
        v_lshl_add_u32 v4, v3, 2, v4
        v_lshlrev_b32 v4, 2, v4
        v_and_b32 v5, 1, v2
        v_cmp_eq_u32 vcc, 0, v5
        v_mov_b32 v5, {HODD}
        v_cndmask_b32 v5, 0, v5, vcc
        s_mul_i32 s{sT1}, s{sHW}, s{sCHV}
        s_mul_i32 s{sT0}, s{sT1}, {HSTR}
        s_add_u32 s{sT0}, s{sT0}, {L_H}
        v_add3_u32 v{AA}, v4, v5, s{sT0}
        v_add_u32 v{AA+1}, 1024, v{AA}
        v_add_u32 v{AA+2}, 2048, v{AA}
        v_add_u32 v{AA+3}, 3072, v{AA}
        v_lshlrev_b32 v13, 4, v1
        v_add_u32 v25, s{sT0}, v13
        v_lshlrev_b32 v4, 5, v2
        v_lshl_add_u32 v4, v3, 3, v4
        s_lshl_b32 s{sT0}, s{sHW}, 12
        s_add_u32 s{sT0}, s{sT0}, {L_KB}
        v_add_u32 v31, s{sT0}, v4
        v_add_u32 v{ZL}, s{sT0}, v13
        v_sub_u32 v4, 15, v2
        v_lshlrev_b32 v4, 5, v4
        v_lshl_add_u32 v4, v3, 4, v4
        s_mul_i32 s{sT1}, s{sT1}, {USTR}
        s_add_u32 s{sT1}, s{sT1}, {L_U}
        v_add_u32 v{AB}, s{sT1}, v4
        v_lshl_add_u32 v2, v1, 3, s{sT1}
        v_mov_b32 v4, 0
        v_mov_b32 v5, 0
        v_mov_b32 v6, 0
        v_mov_b32 v7, 0
        ds_write_b64 v2, v[4:5] offset:4096
        s_mov_b64 exec, 3
        ds_write_b128 v25, v[4:7]
        ds_write_b128 v25, v[4:7] offset:{HODD}
        s_mov_b64 exec, -1
        """)
    def h_late():
        b3_setup(); a2_setup(); build_masks(None); wom_setup()
    def oc_read():
        for i in range(4):
            a(f"ds_read_b128 v[{vHA+6*i}:{vHA+6*i+3}], v25 offset:{32+1024*i}\nds_read_b32 v{vHA+6*i+4}, v25 offset:{48+1024*i}")
    def oc_part(i):
        if i == 0:
            a(f"s_waitcnt lgkmcnt(0)\nv_lshlrev_b32 v11, 16, v{vHA}\ns_mov_b64 exec, 1\nds_write_b32 v25, v11 offset:{HODD+28}\ns_mov_b64 exec, -1")
        for j in range(4): a(f"v_alignbit_b32 v{vHA+6*i+j}, v{vHA+6*i+j+1}, v{vHA+6*i+j}, 16")
        a(f"ds_write_b128 v25, v[{vHA+6*i}:{vHA+6*i+3}] offset:{HODD+32+1024*i}")
    def oc_d():
        a(f"""
        v_and_b32 v2, 15, v1
        v_sub_u32 v2, 15, v2
        v_lshrrev_b32 v3, 4, v1
        v_lshlrev_b32 v3, 2, v3
        v_lshrrev_b32 v4, 1, v2
        v_sub_u32 v4, v4, v3
        v_and_b32 v2, 1, v2
        v_lshlrev_b32 v2, 4, v2
        v_lshlrev_b32 v2, v2, v{vD}
        """)
        for rr in range(4): a(f"v_cmp_eq_u32 vcc, {rr}, v4\nv_cndmask_b32 v{DF+rr}, 0, v2, vcc")
    def odd_copy(nw):
        a(f"s_waitcnt vmcnt({nw})"); oc_read(); oc_d()
        for i in range(4): oc_part(i)
    def ifch(f):
        L = a.lab("L_ifch")
        a(f"s_cmp_eq_u32 s{sCHV}, 0\ns_cbranch_scc1 {L}"); f(); a(f"{L}:")
    def b1_arrive(n):
        a(f"v_mov_b32 v2, {L_SYNC + 16}\nv_mov_b32 v3, 1\ns_waitcnt vmcnt({n})\ns_mov_b64 exec, 1\nds_add_u32 v2, v3\ns_mov_b64 exec, -1")
    rest_srd = (SWO, SQ, SH, SD, SOUT, SDBG, SWS)
    a(f"s_cmp_ge_u32 s{sJ}, 30\ns_cbranch_scc1 L_h_idle")
    stamp(1, "st")
    ring_issue(0)
    stamp(2, "st")
    if cfg.grp == "st":
        a("s_waitcnt vmcnt(7)"); stamp(3, "st"); a("s_waitcnt vmcnt(0)"); stamp(4, "st")
    b1_arrive(8)
    if cfg.r1first: ring_issue(1)
    srd_consts(rest_srd)
    h_chan(); b2_setup()
    a("v_mov_b32 v199, 0\nv_mov_b32 v189, 0\ns_waitcnt lgkmcnt(0)")
    if not cfg.nfill:
        for i, f in enumerate((b3_setup, a2_setup, lambda: (build_masks(None), wom_setup()))):
            if cfg.lset[i] == "s": f()
    stamp(5, "st")
    if not cfg.r1first: ring_issue(1)
    stamp(6, "st")
    if cfg.grp == "st":
        a("s_waitcnt vmcnt(0)"); stamp(7, "st")
    pubc = max(cfg.b1c, cfg.ust) + cfg.upub
    for c in range(10):
        w = {1: 9, 7: 9 if cfg.fld == 6 else 8, 9: 9 if cfg.hc == 8 else 4}.get(c, 8)
        if c == cfg.hc + 1 and c < 9: w += 5
        if cfg.x4 and c <= 7 and not (c == 0 and cfg.x4 == 2): w += 4
        a(f"s_waitcnt vmcnt({w})")
        if c == cfg.hc + 1 and c < 8 and cfg.nodup:
            L = a.lab("L_nd"); a(f"s_cmp_lg_u32 s{sCHV}, 0\ns_cbranch_scc1 {L}\ns_waitcnt vmcnt({w - 5})\n{L}:")
        if c in (0, 1, 2, 3, 5, 7, 9): stamp(1 + (0, 1, 2, 3, 5, 7, 9).index(c), "a1")
        a("s_barrier")
        if c == 0: nonce_issue(vNH)
        if c == cfg.fld: f_load()
        if c == cfg.hc and c < 8:
            if cfg.nodup: ifch(h_loads)
            else: h_loads()
        spread = cfg.ocs and cfg.hc <= 4
        if spread and c == 6: oc_read()
        if c + 2 <= 9: ring_issue(c + 2)
        if spread and c == 6: ifch(lambda: oc_part(0))
        if c == 2: nonce_take(vNH)
        if c == 7: a(f"s_cmp_eq_u32 s{sCHV}, 0\ns_cbranch_scc1 L_h_nob2a")
        if spread and c == 7: oc_part(1)
        if c == 8:
            if cfg.hc == 8: h_loads()
            u_loads()
            if spread: oc_part(2); oc_part(3)
            elif cfg.hc < 8 and not cfg.oc9: odd_copy(12)
        if spread and c == 9: oc_d()
    a("L_h_post:")
    def h_idle():
        a("L_h_idle:")
        srd_consts(rest_srd)
        h_chan(); b2_setup()
        a("s_waitcnt vmcnt(0) lgkmcnt(0)")
        a("v_mov_b32 v199, 0\nv_mov_b32 v189, 0")
        if not cfg.nfill: h_late()
        if cfg.assist:
            L = a.lab("L_as")
            a(f"""
            s_cmp_ge_u32 s{sHW}, {cfg.assist}
            s_cbranch_scc1 {L}
            s_add_u32 s{sT0}, s{sKC}, s{sHW}
            s_sub_u32 s{sT1}, s{sT0}, 10
            s_min_u32 s{sT0}, s{sT0}, s{sT1}
            s_mul_i32 s{sT0}, s{sT0}, {64*3840}
            s_add_u32 s{sT0}, s{sT0}, {7*256}
            v_mul_u32_u24 v2, 3840, v1
            s_waitcnt vmcnt(0)
            buffer_load_dword v62, v2, {srd(SW)}, s{sT0} offen
            buffer_load_dword v62, v2, {srd(SW)}, s{sT0} offen offset:128
            {L}:
            """)
        a("s_barrier")
        nonce_issue(vNH)
        a("s_barrier\ns_waitcnt vmcnt(0)")
        nonce_take(vNH)
        a(f"s_cmp_eq_u32 s{sCHV}, 0\ns_cbranch_scc1 L_h_nob2")
        f_load()
        hu_loads()
        if cfg.hc < 8 and not cfg.oc9: odd_copy(4)
        a("s_branch L_h_post")
    ool.append(h_idle)
    stamp(2)
    if cfg.stop <= 1: a("s_branch L_fin")
    def q_loads():
        for k in range(3): a(f"buffer_load_dwordx4 v[{QV+4*k}:{QV+4*k+3}], v{QA+k}, {srd(SQ)}, 0 offen {cfg.nt_in}")
    def conv(tiles, fill):
        mus = [mu for mu in range(8) if mu <= max(tiles)]
        order = []
        lo_, hi_ = 0, len(mus) - 1
        while lo_ <= hi_:
            order.append(mus[lo_]); lo_ += 1
            if lo_ <= hi_: order.append(mus[hi_]); hi_ -= 1
        groups = [(r, mu) for r in range(7) for mu in order] + [(7, mu) for mu in reversed(mus)]
        G = len(mus); NG = len(groups); LA = NAF - 1
        def b_read(r, nn):
            d = BF + 32 * (r & 1) + 4 * nn
            return [(f"ds_read_b128 v[{d}:{d+3}], v{AB} offset:{2*(1792 - 32*(8*nn - r))}", ("B", r, nn))]
        def a_read(gi):
            r, mu = groups[gi]; kap = 8 * mu + r
            d = AF + 4 * (gi % NAF); o = 16 * (kap % 16)
            return [(f"ds_read2_b32 v[{d}:{d+1}], v{AA + kap//16} offset0:{o} offset1:{o+1}", ("A", gi)),
                    (f"ds_read2_b32 v[{d+2}:{d+3}], v{AA + kap//16} offset0:{o+2} offset1:{o+3}", ("A", gi))]
        def emit(l):
            for t, tag in l: a(t); issue(tag, 1)
        def fin(j):
            dd = BACC + 4 * j; p = 8 + 2 * (j & 1)
            a(f"v_cvt_pk_bf16_f32 v{p}, v{dd}, v{dd+1}\nv_cvt_pk_bf16_f32 v{p+1}, v{dd+2}, v{dd+3}\nds_write_b64 v31, v[{p}:{p+1}] offset:{512*j}")
        q.clear()
        for nn in tiles + [n_ for n_ in range(G) if n_ not in tiles]: emit(b_read(0, nn))
        for gi in range(3): emit(a_read(gi))
        for i in tiles:
            wait_for({("B", 0, i)})
            d = BACC + 4 * i; f = BF + 4 * i
            a(f"v_mfma_f32_16x16x32_bf16 v[{d}:{d+3}], v[{DF}:{DF+3}], v[{f}:{f+3}], 0")
        for gi in range(3, LA): emit(a_read(gi))
        done = []
        for gi, (r, mu) in enumerate(groups):
            tl = [i for i in tiles if i >= mu]
            wait_for({("A", gi)} | {("B", r, i - mu) for i in tl})
            pend = []
            if gi + LA < NG: pend += a_read(gi + LA)
            if r < 7 and gi % 2 == 0: pend += b_read(r + 1, gi % G) + b_read(r + 1, gi % G + 1)
            for n, i in enumerate(tl):
                d = BACC + 4 * i; f = BF + 32 * (r & 1) + 4 * (i - mu); s = AF + 4 * (gi % NAF)
                a(f"v_mfma_f32_16x16x32_bf16 v[{d}:{d+3}], v[{s}:{s+3}], v[{f}:{f+3}], v[{d}:{d+3}]")
                k = -(-len(pend) // (len(tl) - n))
                emit(pend[:k]); del pend[:k]
                if gi < NG - 1:
                    nv = k
                    while fill and nv < cfg.nfill:
                        t = fill.pop(0); a(t); nv += 1 if t.startswith("v_") else 0.5
                elif n >= 3:
                    fin(tl[n - 3]); done.append(tl[n - 3])
        for t in fill: a(t)
        for j in tiles:
            if j not in done: fin(j)
    def z_out(pieces):
        for k, (o, half) in enumerate(pieces): a(f"ds_read_b128 v[{32+4*k}:{35+4*k}], v{ZL} offset:{o}")
        for k, (o, half) in enumerate(pieces):
            a(f"s_waitcnt lgkmcnt({len(pieces)-1-k})")
            if half: a("s_mov_b32 exec_hi, 0")
            a(f"buffer_store_dwordx4 v[{32+4*k}:{35+4*k}], v13, {srd(SWS)}, s{sA} offen offset:{o} sc1")
            if half: a("s_mov_b32 exec_hi, -1")
    def h_nob2():
        late = capture(h_late)
        def safe(p):
            while True:
                for t in late[p:]:
                    if t.startswith("s_cselect"): break
                    if t.startswith("s_cmp"): return p
                else: return p
                p += 1
        n1 = safe(cfg.hl1) if cfg.bal else 0
        a("L_h_nob2a:")
        wo_early_addr()
        a("s_waitcnt vmcnt(8)\ns_barrier")
        for t in late[:n1]: a(t)
        a("s_waitcnt vmcnt(0)\ns_barrier\ns_branch L_h_nob2b\nL_h_nob2:")
        wo_early_addr()
        for t in late[:n1]: a(t)
        a("L_h_nob2b:")
        if cfg.stop <= 1: a("s_branch L_fin")
        a(f"s_lshl_b32 s{sB}, s{sCH}, 1\nv_mov_b32 v12, s{sB}")
        for k in range(3): a(f"buffer_load_ushort v{21+k}, v12, {srd(SD)}, 0 offen offset:{2*k}")
        a(f"s_cmp_lg_u32 s{sWV}, 7\ns_cbranch_scc1 L_h_nob2c")
        sv = capture(wo_early)
        for t in sv: a(t.replace(f"s{sT0},", f"s{sB},").replace(f", s{sT0} ", f", s{sB} "))
        a("L_h_nob2c:")
        for t in late[n1:]: a(t)
        a("s_waitcnt vmcnt(0)")
        if not cfg.bal:
            a("s_branch L_join_a"); return
        a(f"""
        s_cmp_lg_u32 s{sWV}, 7
        s_cbranch_scc1 L_join_a
        s_mov_b32 s{sCHV}, 1
        s_lshl_b32 s{sA}, s{sCH}, 12
        s_add_u32 s{sA}, s{sA}, {WS_Z}
        s_cmp_lt_u32 s{sJ}, 16
        s_cselect_b32 s{sB}, 3, 2
        v_mov_b32 v12, {L_SYNC + 32}
        L_help:
        """)
        oc_d()
        a(f"""
        v_mov_b32 v21, v22
        v_mov_b32 v22, v23
        s_mov_b32 s{sCNT}, 0
        L_hw:
        ds_read_b32 v14, v12
        s_add_u32 s{sCNT}, s{sCNT}, 1
        s_waitcnt lgkmcnt(0)
        v_cmp_ne_u32 vcc, s{sN}, v14
        s_cmp_gt_u32 s{sCNT}, 0x400000
        s_cbranch_scc1 L_hwd
        s_cbranch_vccnz L_hw
        L_hwd:
        """)
        conv([1, 2, 3], [])
        a(f"v_add_u32 v{AA}, {HSTR}, v{AA}\nv_add_u32 v{AA+1}, {HSTR}, v{AA+1}\nv_add_u32 v{AB}, {USTR}, v{AB}\nv_add_u32 v12, 4, v12")
        z_out([(512, False), (1536, True)])
        a(f"s_add_u32 s{sA}, s{sA}, 4096\ns_sub_u32 s{sB}, s{sB}, 1\ns_cmp_lg_u32 s{sB}, 0\ns_cbranch_scc1 L_help")
        stamp(4)
        a("s_branch L_join_a")
    ool.append(h_nob2)
    if cfg.hc == 8 or cfg.oc9: odd_copy(4)
    a(f"s_lshl_b32 s{sA}, s{sCH}, 12\ns_add_u32 s{sA}, s{sA}, {WS_Z}")
    a(f"s_lshl_b32 s{sT0}, s{sHW}, 2\ns_add_u32 s{sT0}, s{sT0}, {L_SYNC + 32}\nv_mov_b32 v2, s{sT0}\nv_mov_b32 v3, s{sN}")
    a("s_waitcnt vmcnt(0) lgkmcnt(0)")
    if cfg.bal: a("ds_write_b32 v2, v3")
    stamp(3)
    conv([0, 4, 5, 6, 7] if cfg.bal else [0, 1, 2, 3, 4, 5] if cfg.orc else list(range(8)), capture(h_late))
    stamp(4)
    z_out([(2048, False), (3072, False), (0, True)] if cfg.bal else [(1024 * i, False) for i in range(4)])
    a("s_branch L_join_a")

    a("L_C:")
    vNC = 60
    srd_consts((SX, SW) + rest_srd)
    a(f"s_mov_b32 s{sCHV}, 0\ns_mov_b32 s{sCH}, 0")
    a(f"""
    s_waitcnt lgkmcnt(0)
    s_or_b32 s{sT0}, s2, s{sWV}
    s_cmp_lg_u32 s{sT0}, 0
    s_cbranch_scc1 L_nonon
    s_memrealtime s[{sN}:{sN+1}]
    s_waitcnt lgkmcnt(0)
    s_or_b32 s{sN}, s{sN}, 1
    v_mov_b32 v6, s{sN}
    v_mov_b32 v7, s{sN+1}
    v_mov_b32 v5, 0
    s_mov_b64 exec, 1
    buffer_store_dwordx2 v[6:7], v5, {srd(SDBG)}, 0 offen sc1
    s_mov_b64 exec, -1
    L_nonon:
    s_cmp_ge_u32 s{sJ}, 30
    s_cbranch_scc1 L_c_idle
    """)
    def tlb():
        if not cfg.tlb: return
        L = a.lab("L_tlb")
        a(f"s_cmp_lg_u32 s{sWV}, 1\ns_cbranch_scc1 {L}\nv_lshlrev_b32 v5, {cfg.tlb}, v1")
        for sr in (SWS, SOUT, SQ, SH, SWO, SD): a(f"buffer_load_dword v63, v5, {srd(sr)}, 0 offen")
        a(f"{L}:")
    GFA = 207; OFA = 199; GPA = 200; sGA, sGB = 0, 1; L_SYNC = 119712
    def qkv_addr():
        a(f"""
        s_lshr_b32 s{sT0}, s{sHD}, 1
        s_mul_i32 s{sT0}, s{sT0}, 5
        s_and_b32 s{sT1}, s{sHD}, 1
        s_lshl_b32 s{sT2}, s{sT1}, 1
        s_add_u32 s{sT2}, s{sT2}, s{sT0}
        s_add_u32 s{sT3}, s{sT2}, 2
        s_lshr_b32 s{sT2}, s{sT2}, 3
        s_lshr_b32 s{sT3}, s{sT3}, 3
        s_lshr_b32 s{sT4}, s{sHD}, 2
        s_mul_i32 s{sGA}, s{sT4}, 10
        s_lshr_b32 s{sGA}, s{sGA}, 3
        s_sub_u32 s{sT2}, s{sT2}, s{sGA}
        s_sub_u32 s{sT3}, s{sT3}, s{sGA}
        s_cmp_eq_u32 s{sQB}, 0
        s_cselect_b32 s{sGA}, 2, 4
        v_lshrrev_b32 v2, 1, v1
        v_min_u32 v2, s{sGA}, v2
        v_and_b32 v4, 1, v1
        v_cmp_eq_u32 vcc, 1, v4
        v_mov_b32 v4, s{sT2}
        v_mov_b32 v5, s{sT3}
        v_cndmask_b32 v4, v4, v5, vcc
        v_lshl_add_u32 v2, v2, 1, v4
        s_lshl_b32 s{sGA}, s{sT4}, 5
        s_lshl_b32 s{sT4}, s{sQB}, 2
        s_add_u32 s{sT4}, s{sT4}, s{sWV}
        s_add_u32 s{sGA}, s{sGA}, s{sT4}
        s_lshl_b32 s{sGA}, s{sGA}, 7
        s_add_u32 s{sGA}, s{sGA}, {WS_FG}
        v_lshl_add_u32 v{GFA}, v2, 3, s{sGA}
        s_lshl_b32 s{sGB}, s{sR64}, 2
        s_add_u32 s{sGB}, s{sGB}, s{sWV}
        s_lshl_b32 s{sGB}, s{sGB}, 7
        s_add_u32 s{sGB}, s{sGB}, {WS_FO}
        v_and_b32 v2, 15, v1
        v_lshl_add_u32 v{OFA}, v2, 3, s{sGB}
        s_mul_i32 s{sT1}, s{sT1}, 3
        s_add_u32 s{sGA}, s{sT0}, s{sT1}
        s_add_u32 s{sGB}, s{sT0}, 2
        s_lshl_b32 s{sGA}, s{sGA}, 15
        s_lshl_b32 s{sGB}, s{sGB}, 15
        s_lshl_b32 s{sT4}, s{sT4}, 10
        s_add_u32 s{sGA}, s{sGA}, s{sT4}
        s_add_u32 s{sGB}, s{sGB}, s{sT4}
        v_lshlrev_b32 v14, 4, v1
        v_bfrev_b32 v15, 1
        s_cmp_eq_u32 s{sQB}, 0
        s_cselect_b64 vcc, -1, 0
        v_cndmask_b32 v15, v14, v15, vcc
        s_lshl_b32 s{sT5}, s{sWV}, 10
        """)
    def gpub_addr():
        a(f"""
        s_and_b32 s{sT0}, s{sWV}, 1
        s_lshl_b32 s{sT2}, s{sCT}, 1
        s_add_u32 s{sT2}, s{sT2}, s{sT0}
        s_mul_i32 s{sT0}, s{sT2}, 26
        s_lshr_b32 s{sT0}, s{sT0}, 8
        s_mul_i32 s{sT1}, s{sT0}, 10
        s_sub_u32 s{sT2}, s{sT2}, s{sT1}
        s_cmp_ge_u32 s{sT2}, 5
        s_cselect_b32 s{sT1}, 5, 0
        s_cselect_b32 s{sT4}, 4, 0
        s_sub_u32 s{sT2}, s{sT2}, s{sT1}
        s_lshr_b32 s{sT1}, s{sWV}, 1
        s_lshl_b32 s{sT3}, s{sRB}, 1
        s_add_u32 s{sT3}, s{sT3}, s{sT1}
        v_and_b32 v2, 1, v1
        v_lshrrev_b32 v3, 1, v1
        v_sub_u32 v4, s{sT2}, v2
        v_cmp_gt_u32 vcc, 4, v4
        v_add_u32 v4, s{sT4}, v4
        v_lshl_add_u32 v5, v3, 2, s{sT3}
        v_cmp_gt_u32 s[{sEX}:{sEX+1}], 32, v5
        s_and_b64 vcc, vcc, s[{sEX}:{sEX+1}]
        s_cmp_eq_u32 s{sT0}, 0
        s_cselect_b32 s{sT1}, 3, 15
        s_and_b32 vcc_lo, vcc_lo, s{sT1}
        s_mov_b32 vcc_hi, 0
        v_lshl_add_u32 v4, v4, 5, v5
        v_lshlrev_b32 v4, 7, v4
        v_lshl_add_u32 v5, v3, 1, s{sT0}
        v_lshl_add_u32 v5, v5, 1, v2
        v_lshl_add_u32 v4, v5, 3, v4
        v_add_u32 v4, {WS_FG}, v4
        v_bfrev_b32 v5, 1
        v_cndmask_b32 v{GPA}, v5, v4, vcc
        """)
    OTA = 189
    def ot_addr(OTA):
        a(f"""
        s_lshl2_add_u32 s{sT0}, s{sR64}, s{sHW}
        s_mul_i32 s{sT0}, s{sT0}, {16*2560}
        s_add_u32 s{sT0}, s{sT0}, s{sC160}
        v_bfe_u32 v2, v1, 1, 4
        v_mul_u32_u24 v2, 2560, v2
        v_and_b32 v3, 1, v1
        v_mul_u32_u24 v3, 156, v3
        v_add3_u32 v2, v2, v3, s{sT0}
        v_lshrrev_b32 v3, 5, v1
        v_mul_u32_u24 v3, {1280 if cfg.otb else 0}, v3
        v_add_u32 v{OTA}, v2, v3
        """)
    def prewarm():
        a(f"buffer_load_dword v63, v{GFA}, {srd(SWS)}, 0 offen sc1\nbuffer_load_dword v63, v{OFA}, {srd(SWS)}, 0 offen sc1")
    def c_idle():
        a("L_c_idle:")
        build_masks(None); a2_setup(); qkv_addr(); wom_setup()
        a("s_waitcnt vmcnt(0)\ns_barrier")
        nonce_issue(vNC)
        if cfg.prew: prewarm()
        b1_compute(128); b1_store(128)
        a("s_barrier\ns_waitcnt vmcnt(0)")
        nonce_take(vNC); publish_u(2)
        if cfg.wdelay:
            a(f"v_subrev_u32 v7, {2*cfg.ufs}, v4")
            poll(7, 8)
        tlb()
        if cfg.wopre:
            a(f"""
            s_sub_u32 s{sT0}, s{sJ}, 30
            s_lshl_b32 s{sT0}, s{sT0}, 2
            s_add_u32 s{sT0}, s{sT0}, s{sWV}
            s_lshl_b32 s{sT0}, s{sT0}, 6
            v_add_u32 v4, s{sT0}, v1
            s_lshl_b32 s{sT1}, s{sXC}, 9
            v_add_u32 v2, s{sT1}, v4
            """)
            if cfg.hpre:
                a(f"s_mul_i32 s{sT1}, s{sXC}, {80*4096}\nv_lshlrev_b32 v6, 7, v4")
            for i in range(cfg.hpre):
                a(f"s_waitcnt vmcnt(1)\nbuffer_load_dword v63, v6, {srd(SH)}, s{sT1} offen\ns_add_u32 s{sT1}, s{sT1}, {512*128}")
            for i in range(cfg.wopre):
                a("s_waitcnt vmcnt(1)")
                if cfg.wlin:
                    a(f"v_add_u32 v3, {cfg.wlin + 512*i}, v4\nv_subrev_u32 v5, 6400, v3\nv_min_u32 v3, v3, v5")
                elif i < 8:
                    a(f"v_and_b32 v2, 4095, v2\nv_add_u32 v3, 4480, v2\nv_subrev_u32 v5, 6400, v3\nv_min_u32 v3, v3, v5\nv_add_u32 v2, 512, v2")
                else:
                    a(f"v_add_u32 v3, {2176 + 512*(i-8)}, v4")
                a(f"v_lshlrev_b32 v3, 7, v3\nbuffer_load_dword v63, v3, {srd(SWO)}, 0 offen")
        a("s_branch L_c_post")
    ool.append(c_idle)
    stamp(1, "st")
    stamp(2, "st")
    if cfg.tlball: tlb()
    if cfg.tlbs:
        L = a.lab("L_tlbs")
        a(f"s_cmp_lg_u32 s{sWV}, 1\ns_cbranch_scc1 {L}")
        for sr, n in ((SWS, 10), (SOUT, 3), (SQ, 2), (SH, 2), (SWO, 1), (SD, 1)):
            for i in range(n):
                a(f"s_mov_b32 s{sT0}, {i << 21}\ns_load_dword s3, s[{sr}:{sr+1}], s{sT0}")
        a(f"{L}:")
    ACC = 64
    FS4 = [128, 144, 16, 32]
    if not cfg.m16:
        AX = 48; AW = 56
        a(f"""
        s_and_b32 s{sT0}, s{sWV}, 1
        s_lshr_b32 s{sT1}, s{sWV}, 1
        v_and_b32 v2, 31, v1
        v_lshrrev_b32 v3, 5, v1
        v_bfe_u32 v4, v2, 1, 3
        v_xor_b32 v4, v4, v3
        s_lshl_b32 s{sT2}, s{sT1}, 13
        v_lshlrev_b32 v5, 7, v2
        v_add_u32 v5, s{sT2}, v5
        """)
        for ks in range(4):
            a(f"v_xor_b32 v6, {2*ks}, v4\nv_lshl_add_u32 v{AX+ks}, v6, 4, v5\nv_add_u32 v{AX+4+ks}, 0x10000, v{AX+ks}")
        a(f"""
        v_bfe_u32 v4, v1, 2, 2
        v_lshl_add_u32 v5, v3, 3, v4
        v_lshlrev_b32 v5, 8, v5
        v_and_b32 v6, 3, v1
        v_lshl_add_u32 v5, v6, 3, v5
        v_and_b32 v6, 16, v1
        v_lshl_add_u32 v5, v6, 1, v5
        v_add_u32 v5, 16384, v5
        s_lshl_b32 s{sT2}, s{sT0}, 1
        """)
        for mt in range(2):
            a(f"s_add_u32 s{sT3}, s{sT2}, {mt}\nv_xor_b32 v6, s{sT3}, v4\nv_lshl_add_u32 v{AW+mt}, v6, 6, v5\nv_add_u32 v{AW+2+mt}, 0x10000, v{AW+mt}")

    else:
        AX = 48; AW = 52
        a(f"""
        s_and_b32 s{sT0}, s{sWV}, 1
        s_lshr_b32 s{sT1}, s{sWV}, 1
        v_and_b32 v2, 15, v1
        v_lshrrev_b32 v3, 4, v1
        v_lshrrev_b32 v4, 1, v2
        v_xor_b32 v4, v4, v3
        s_lshl_b32 s{sT2}, s{sT1}, 13
        v_lshlrev_b32 v5, 7, v2
        v_add_u32 v5, s{sT2}, v5
        """)
        for ks in range(2):
            a(f"v_xor_b32 v6, {4*ks}, v4\nv_lshl_add_u32 v{AX+ks}, v6, 4, v5\nv_add_u32 v{AX+2+ks}, 0x10000, v{AX+ks}")
        a(f"""
        v_bfe_u32 v4, v1, 2, 2
        v_lshl_add_u32 v5, v3, 3, v4
        v_lshlrev_b32 v5, 8, v5
        v_and_b32 v6, 3, v1
        v_lshl_add_u32 v5, v6, 3, v5
        v_and_b32 v6, 16, v1
        v_lshl_add_u32 v5, v6, 1, v5
        v_add_u32 v5, 16384, v5
        s_lshl_b32 s{sT2}, s{sT0}, 1
        """)
        for m2 in range(2):
            a(f"s_add_u32 s{sT3}, s{sT2}, {m2}\nv_xor_b32 v6, s{sT3}, v4\nv_lshl_add_u32 v{AW+2*m2}, v6, 6, v5\nv_xor_b32 v{AW+2*m2+1}, 32, v{AW+2*m2}")
        for mt in range(4): a(f"v_add_u32 v{AW+4+mt}, 0x10000, v{AW+mt}")
    cset = {"m": lambda: build_masks(None), "a": a2_setup, "q": qkv_addr, "g": gpub_addr, "w": wom_setup}
    for k in cfg.cs0: cset[k]()
    stamp(3, "st")
    if cfg.b1c < 0:
        a(f"""
        v_mov_b32 v2, {L_SYNC + 16}
        v_mov_b32 v3, 1
        s_mov_b32 s{sCNT}, 0
        s_waitcnt vmcnt(0)
        s_mov_b64 exec, 1
        ds_add_u32 v2, v3
        s_mov_b64 exec, -1
        """)
        nonce_issue(vNC)
        if cfg.prew: prewarm()
        a(f"""
        L_b1s:
        ds_read_b32 v3, v2
        s_add_u32 s{sCNT}, s{sCNT}, 1
        s_waitcnt lgkmcnt(0)
        v_cmp_ne_u32 vcc, 8, v3
        s_cmp_gt_u32 s{sCNT}, 0x100000
        s_cbranch_scc1 L_b1t
        s_cbranch_vccnz L_b1s
        L_b1t:
        """)
        stamp(1)
        b1_compute(128)
        if cfg.ust < 0: b1_store(128)
    def a1_reads(c, ks):
        F = FS4[ks]
        slot = (c + 1) % 3; hi = slot >> 1; o = (slot & 1) * 32768
        r = []
        for half in range(2):
            for t in range(2):
                r.append(f"ds_read_b64_tr_b16 v[{F+4*half+2*t}:{F+4*half+2*t+1}], v{AW+2*hi+half} offset:{o + (16*ks+4*t)*256}")
            r.append(f"ds_read_b128 v[{F+8+4*half}:{F+8+4*half+3}], v{AX+4*hi+ks} offset:{o + half*4096}")
        return [] if cfg.noread else r
    def a1_mfma(ks, first):
        F = FS4[ks]; r = []
        for mt, nt in ((0, 0), (1, 0), (1, 1), (0, 1)):
            d = ACC + 16 * (2 * mt + nt)
            r.append(f"v_mfma_f32_32x32x16_bf16 v[{d}:{d+15}], v[{F+4*mt}:{F+4*mt+3}], v[{F+8+4*nt}:{F+8+4*nt+3}], " + ("0" if first else f"v[{d}:{d+15}]"))
        return [] if cfg.nomfma else r
    def weave(reads, mf, per):
        reads = list(reads)
        for m in mf:
            for _ in range(per):
                if reads: a(reads.pop(0))
            a(m)
        for r in reads: a(r)
    FS2 = [128, 16]
    def r16(c, ks):
        F = FS2[ks]; slot = (c + 1) % 3; hi = slot >> 1; o = (slot & 1) * 32768; r = []
        for i in range(4):
            for t in range(2):
                r.append(f"ds_read_b64_tr_b16 v[{F+4*i+2*t}:{F+4*i+2*t+1}], v{AW+4*hi+i} offset:{o + (32*ks+4*t)*256}")
            xs = c % 4 if cfg.x4 else slot
            r.append(f"ds_read_b128 v[{F+16+4*i}:{F+16+4*i+3}], v{AX+2*(xs >> 1)+ks} offset:{(xs & 1) * 32768 + i*2048}")
        return r
    def m16(ks, first):
        F = FS2[ks]; r = []
        for mt in range(4):
            for nt in (range(4) if mt % 2 == 0 else range(3, -1, -1)):
                d = ACC + 4 * (4 * mt + nt)
                r.append(f"v_mfma_f32_16x16x32_bf16 v[{d}:{d+3}], v[{F+4*mt}:{F+4*mt+3}], v[{F+16+4*nt}:{F+16+4*nt+3}], " + ("0" if first else f"v[{d}:{d+3}]"))
        if cfg.nomfma: r = ["s_nop 3"] * 16
        return r
    def rd16(c, ks):
        r = r16(c, ks)
        return [(r[3*i+2], ("X", ks)) for i in range(4)] + [(r[3*i+t], ("W", ks, i)) for i in range(4) for t in range(2)]
    def phase(mm, ks, reads, lo, hi):
        for i in range(lo, hi):
            if i % 4 == 0: wait_for({("X", ks), ("W", ks, i // 4)})
            a(mm[i])
            if reads:
                t, tag = reads.pop(0); a(t); issue(tag, 1)
    PRE = cfg.pre
    q.clear()
    for c in range(10):
        if c > 0: phase(m16(1, False), 1, [], 0, PRE)
        a("s_waitcnt lgkmcnt(0)"); q.clear()
        if c > 0 and c - 1 == cfg.b1c:
            stamp(1); nonce_issue(vNC)
            if cfg.prew: prewarm()
            b1_compute(128)
        if c > 0 and c - 1 == max(cfg.ust, cfg.b1c): b1_store(128)
        if c == 1:
            for k in cfg.cs1: cset[k]()
        if c == 2:
            for k in cfg.cs2: cset[k]()
        if c == pubc + 1:
            a("s_waitcnt vmcnt(0)")
            nonce_take(vNC); publish_u(2)
        if c in (0, 1, 2, 3, 5, 7, 9): stamp(1 + (0, 1, 2, 3, 5, 7, 9).index(c), "a1")
        a("s_barrier")
        if c == cfg.cprio: a("s_setprio 3")
        if c == 9: break
        rd = rd16(c, 0)
        for _ in range(2 if c > 0 else 12):
            t, tag = rd.pop(0); a(t); issue(tag, 1)
        if c > 0: phase(m16(1, False), 1, rd, PRE, 16)
        assert not rd
        phase(m16(0, c == 0), 0, rd16(c, 1), 0, 16)
    qs = f2u(20 ** -0.5 * math.log2(math.e))
    def epi_addr():
        a(f"""
        s_and_b32 s{sT0}, s{sWV}, 1
        s_lshr_b32 s{sT1}, s{sWV}, 1
        s_lshl_b32 s{sT2}, s{sCT}, 1
        s_add_u32 s{sT2}, s{sT2}, s{sT0}
        s_lshl_b32 s{sT3}, s{sRB}, 1
        s_add_u32 s{sT3}, s{sT3}, s{sT1}
        s_lshl_b32 s{sA}, s{sT2}, 18
        s_lshl_b32 s{sT4}, s{sT3}, 10
        s_add_u32 s{sA}, s{sA}, s{sT4}
        s_lshl_b32 s{sB}, s{sT2}, 5
        s_add_u32 s{sB}, s{sB}, s{sT3}
        s_mul_i32 s{sB}, s{sB}, {FS}
        s_add_u32 s{sB}, s{sB}, {WS_FG}
        v_and_b32 v2, 31, v1
        v_lshrrev_b32 v3, 5, v1
        v_lshlrev_b32 v2, 4, v2
        v_lshl_add_u32 v2, v3, 15, v2
        s_mov_b32 s{sT2}, {qs:#x}
        s_mov_b32 s{sT3}, {qs:#x}
        """)
    if cfg.tmaj:
        X2 = 160
        r0 = r16(9, 0); r1 = r16(9, 1)
        xr1 = [r1[3*i+2].replace(f"v[{FS2[1]+16+4*i}:{FS2[1]+16+4*i+3}]", f"v[{X2+4*i}:{X2+4*i+3}]") for i in range(4)]
        wr1 = [r1[3*i:3*i+2] for i in range(4)]
        pm = m16(1, False)
        sc = capture(epi_addr) + [f"s_cmp_lt_u32 s{sCT}, 5", f"s_cselect_b32 s{sT2}, s{sT2}, 1.0", f"s_cselect_b32 s{sT3}, s{sT3}, 1.0"]
        first = [r0[2], r0[5], r0[8], r0[11], r0[0], r0[1]] + xr1
        rest = [r0[3:5], r0[6:8], r0[9:11]]
        q.clear()
        seq = [(t, ("F",)) for t in first[:6]] + [(t, ("W", 0)) for t in wr1[0]] + [(t, ("F",)) for t in first[6:]]
        late = {8: [(t, ("W", 1)) for t in rest[0] + wr1[1]], 12: [(t, ("W", 2)) for t in rest[1] + wr1[2]]}
        assert PRE == 4
        for i in range(PRE, 16):
            seq += late.get(i, [])
            for _ in range(2):
                if seq:
                    t, tag = seq.pop(0); a(t); issue(tag, 1)
            a(pm[i])
            for _ in range(2):
                if sc: a(sc.pop(0))
        for t in rest[2] + wr1[3]: a(t)
        issue(("W", 3), 4)
        for t in sc: a(t)
        def epi_tile(mt):
            r = [f"s_add_u32 s{sT0}, s{sA}, {2*mt*32768}"]
            for n2 in range(2):
                d = ACC + 4 * (4 * mt + 2 * n2); p = 4 + 4 * n2 if mt % 2 == 0 else 176 if n2 == 0 else 48
                if cfg.tscale:
                    for k in range(8): r.append(f"v_mul_f32 v{d+k}, s{sT2}, v{d+k}")
                for k in range(4): r.append(f"v_cvt_pk_bf16_f32 v{p+k}, v{d+2*k}, v{d+2*k+1}")
                r += [f"v_permlane16_swap_b32 v{p}, v{p+2}", f"v_permlane16_swap_b32 v{p+1}, v{p+3}"]
                r.append(f"buffer_store_dwordx4 v[{p}:{p+3}], v2, {srd(SWS)}, s{sT0} offen offset:{n2*512} sc1")
            return r
        pend = []
        for mt in range(4):
            wait_for({("F",), ("W", mt)})
            for ks in range(2):
                for nt in range(4):
                    d = ACC + 4 * (4 * mt + nt); F = FS2[ks]; xb = (F + 16 if ks == 0 else X2) + 4 * nt
                    a(f"v_mfma_f32_16x16x32_bf16 v[{d}:{d+3}], v[{F+4*mt}:{F+4*mt+3}], v[{xb}:{xb+3}], v[{d}:{d+3}]")
                    if ks + nt > 0:
                        for _ in range(5 if cfg.tscale else 3):
                            if pend: a(pend.pop(0))
            for t in pend: a(t)
            pend = epi_tile(mt)
        stamp(2)
        for t in pend: a(t)
    else:
        mlast = m16(1, False) if cfg.m16 else a1_mfma(2, False) + a1_mfma(3, False)
        weave([], mlast[:4], 0)
        epi_addr()
        weave([], mlast[4:], 0)
        stamp(2)
        def a1_epi(scale):
            n = 0
            if cfg.m16:
                for mt in range(4):
                    a(f"s_add_u32 s{sT0}, s{sA}, {2*mt*32768}")
                    for n2 in range(2):
                        d = ACC + 4 * (4 * mt + 2 * n2); p = 128 + 4 * n; n += 1
                        for k in range(4): a(f"v_cvt_pk_bf16_f32 v{p+k}, v{d+2*k}, v{d+2*k+1}")
                        a(f"v_permlane16_swap_b32 v{p}, v{p+2}\nv_permlane16_swap_b32 v{p+1}, v{p+3}")
                        a(f"buffer_store_dwordx4 v[{p}:{p+3}], v2, {srd(SWS)}, s{sT0} offen offset:{n2*512} sc1")
                return
            for mt, nt in ((0, 0), (1, 0), (1, 1), (0, 1)):
                for i in (0, 2):
                    d = ACC + 16 * (2 * mt + nt) + 4 * i
                    p = 128 + 4 * n; n += 1
                    if scale:
                        for k in range(4): a(f"v_pk_mul_f32 {pr(d+2*k)}, {pr(d+2*k)}, s[{sT2}:{sT3}]")
                    for k in range(4): a(f"v_cvt_pk_bf16_f32 v{p+k}, v{d+2*k}, v{d+2*k+1}")
                    a(f"s_add_u32 s{sT0}, s{sA}, {(4*mt+i)*32768}")
                    a(f"v_permlane32_swap_b32 v{p}, v{p+2}\nv_permlane32_swap_b32 v{p+1}, v{p+3}")
                    a(f"buffer_store_dwordx4 v[{p}:{p+3}], v2, {srd(SWS)}, s{sT0} offen offset:{nt*512} sc1")
        a(f"s_cmp_ge_u32 s{sCT}, 5\ns_cbranch_scc1 L_epi_d")
        for mt, nt in ((0, 0), (0, 1), (1, 0), (1, 1)) if cfg.m16 else ((0, 0), (1, 0), (1, 1), (0, 1)):
            for k in range(8):
                d = ACC + 16 * (2 * mt + nt) + 2 * k
                a(f"v_mul_f32 v{d}, s{sT2}, v{d}\nv_mul_f32 v{d+1}, s{sT2}, v{d+1}")
        a("L_epi_d:\ns_nop 6")
        a1_epi(False)
    a(f"""
    v_mov_b32 v16, s{sN}
    v_mov_b32 v17, s{sN+1}
    s_lshl_b32 s{sT0}, s{sWV}, 2
    s_add_u32 s{sT0}, s{sT0}, {L_SYNC}
    v_mov_b32 v18, s{sT0}
    v_and_b32 v19, 3, v1
    v_lshlrev_b32 v19, 2, v19
    v_add_u32 v19, {L_SYNC}, v19
    ds_write_b32 v18, v16
    s_waitcnt vmcnt(0)
    s_mov_b64 exec, 15
    buffer_store_dwordx2 v[16:17], v{GPA}, {srd(SWS)}, 0 offen sc1
    s_mov_b64 exec, -1
    s_mov_b32 s{sCNT}, 0
    L_sync:
    ds_read_b32 v18, v19
    s_add_u32 s{sCNT}, s{sCNT}, 1
    s_waitcnt lgkmcnt(0)
    v_cmp_ne_u32 vcc, s{sN}, v18
    s_cmp_gt_u32 s{sCNT}, 0x100000
    s_cbranch_scc1 L_c_post
    s_cbranch_vccnz L_sync
    """)
    a("L_c_post:")
    stamp(3)
    if cfg.stop <= 1: a("s_branch L_fin")
    if cfg.otn >= 0: ot_addr(OTA)
    if cfg.sp1: a("v_and_b32 v10, 1, v1\nv_subrev_u32 v10, 1, v10\nv_and_b32 v10, 0x3f80, v10\nv_mov_b32 v11, 0")
    else: a("v_mov_b32 v10, 0x3f803f80\nv_mov_b32 v11, 0x3f803f80")
    a("v_mov_b32 v12, 0\nv_mov_b32 v13, 0\nv_lshlrev_b32 v7, 3, v1")
    if cfg.gdelay: a("s_waitcnt vmcnt(0)")
    if cfg.gdelay > 1: a(f"s_sleep {cfg.gdelay}")
    def g_dma(sec, half):
        lds, lstr = ((L_Q, 4096), (L_K, 8192), (L_V, VSTR))[sec]
        for slot in range(3):
            base = (sGA, 32768 * slot) if slot < 2 else (sGB, 0)
            off = base[1] + sec * 80 * 32768 - (0 if half else 4096)
            a(f"s_add_u32 s{sT0}, s{base[0]}, {off}")
            dma(14 if half else 15, SWS, f"s{sT0}", f"s_add_u32 m0, s{sT5}, {lds + slot*lstr + (4096 if (half and sec) else 0)}", "sc1")
    combos = ((0, 1), (1, 1), (2, 1), (1, 0), (2, 0))
    if cfg.prog:
        a(f"s_mov_b32 s{sCNT}, 0\ns_mov_b32 s{sA}, 0\nL_gp:")
        a(f"buffer_load_dwordx2 v[8:9], v{GFA}, {srd(SWS)}, 0 offen sc1\ns_waitcnt vmcnt(0)")
        cmpflag(8)
        a(f"s_add_u32 s{sCNT}, s{sCNT}, 1\ns_cmp_lt_u32 s{sCNT}, 0x40000\ns_cselect_b32 s{sB}, vcc_lo, 0\ns_or_b32 s{sB}, s{sB}, s{sA}")
        for k, (sec, half) in enumerate(combos):
            L = a.lab("L_gs")
            a(f"s_and_b32 s{sT1}, s{sB}, {3 << (2*k)}\ns_cbranch_scc1 {L}\ns_or_b32 s{sA}, s{sA}, {3 << (2*k)}")
            g_dma(sec, half)
            a(f"{L}:")
        a(f"s_cmp_lg_u32 s{sA}, 0x3ff\ns_cbranch_scc1 L_gp")
        stamp(4)
    else:
        poll(GFA, 8)
        stamp(4)
        for sec, half in combos: g_dma(sec, half)
    a(f"ds_write_b64 v7, v[10:11] offset:{L_ONES}\nds_write_b64 v7, v[10:11] offset:{L_ONES + 512}\nds_write_b64 v7, v[12:13] offset:{L_ONES - 512}")
    a("s_setprio 0\ns_waitcnt vmcnt(0) lgkmcnt(0)")

    for r in (ROH, ROH + 1, ROH + 2, FZA, ZD, ZD + 1, ZD + 2, QA, QA + 1, QA + 2, ZPA): a(f"v_mov_b32 v{r}, 0")
    if cfg.qn < 0:
        a("s_branch L_join_b\nL_join_a:\ns_setprio 1\nL_join_b:\ns_barrier")
    elif cfg.prio: a("s_branch L_join_b\nL_join_a:\ns_setprio 1\nL_join_b:\ns_barrier")
    else: a("L_join_a:\ns_barrier")
    stamp(5)
    if cfg.stop <= 2: a("s_branch L_fin")
    Q0, Q1, Q1B = 16, 20, 60; K0F = 24; K1F = 32; VF = 40; AV = 58; S = 64; PP = 96; O = 112
    def wo_dma(i):
        if cfg.nowo: return
        a(f"s_mov_b32 m0, s{WOM[i]}\nbuffer_load_dwordx4 v{WOV+i}, {srd(SWO)}, s{sC160} offen lds")
    def k_read(b):
        f = K0F + 4 * (b & 1); o = (8 - b) * 512
        a(f"ds_read_b128 v[{f}:{f+3}], v{AK0} offset:{o}")
        if b % 2 == 0:
            f = K1F + 4 * ((b >> 1) & 1)
            a(f"ds_read_b128 v[{f}:{f+3}], v{AK1} offset:{o}")
    def v_read(b):
        f = VF + 8 * (b & 1); o = 0 if b & 1 else 512
        for s in range(2):
            for t in range(2):
                a(f"ds_read_b64_tr_b16 v[{f+4*s+2*t}:{f+4*s+2*t+1}], v{AVP + b//2} offset:{o + (16*s+8*t)*16}")
    def hook(b):
        L = a.lab("L_hook")
        a(f"s_cmp_lg_u32 s{sNV}, {b}\ns_cbranch_scc1 {L}\ns_nop 7")
        for r in range(16): a(f"v_mov_b32 v{vCZ+r}, v59\nv_mov_b32 v{vCF+r}, v59")
        a(f"s_nop 1\n{L}:")
    def qk(b, half, gen_):
        d = S + 16 * (b & 1)
        if half == 0:
            f = K0F + 4 * (b & 1)
            c = vCD if b == 0 else (vCF if b == 8 else vCZ)
            cs = f"v[{c}:{c+15}]" if (gen_ or c != vCZ) else "0"
            a(f"v_mfma_f32_32x32x16_bf16 v[{d}:{d+15}], v[{f}:{f+3}], v[{Q0}:{Q0+3}], {cs}")
        else:
            f = K1F + 4 * ((b >> 1) & 1); qq = Q1B if b & 1 else Q1
            a(f"v_mfma_f32_32x32x16_bf16 v[{d}:{d+15}], v[{f}:{f+3}], v[{qq}:{qq+3}], v[{d}:{d+15}]")
    def pv(b, s):
        p = PP + 8 * (b & 1); f = VF + 8 * (b & 1)
        a(f"v_mfma_f32_32x32x16_bf16 v[{O}:{O+15}], v[{f+4*s}:{f+4*s+3}], v[{p+4*s}:{p+4*s+3}], " + ("0" if (b == 0 and s == 0) else f"v[{O}:{O+15}]"))
    def cv(b, g):
        d = S + 16 * (b & 1) + 4 * g; p = PP + 8 * (b & 1) + 2 * g
        a(f"v_cvt_pk_bf16_f32 v{p}, v{d}, v{d+1}\nv_cvt_pk_bf16_f32 v{p+1}, v{d+2}, v{d+3}")
    def ex(b, g):
        d = S + 16 * (b & 1) + 4 * g
        a(f"v_exp_f32 v{d}, v{d}\nv_exp_f32 v{d+1}, v{d+1}")
        if g > 0: cv(b, g - 1)
        elif b > 0: cv(b - 1, 3)
        a(f"v_exp_f32 v{d+2}, v{d+2}\nv_exp_f32 v{d+3}, v{d+3}")
    wsched = {}
    i = 0
    for n in range(17):
        k = 0 if n < cfg.wstart else cfg.wfirst if n == cfg.wstart else 1
        wsched[n] = list(range(i, min(i + k, NWO))); i += k
    if cfg.wsch:
        i = 0
        for n, ch in enumerate(cfg.wsch):
            wsched[n] = list(range(i, min(i + int(ch), NWO))); i += int(ch)
        assert i >= NWO and len(cfg.wsch) == 18 and cfg.wbar > 16
    NLATE = len(wsched.get(17, []))
    assert (cfg.qn < 0 or cfg.qn >= NWO - cfg.wfirst) and cfg.fzn > cfg.qn and cfg.wbar >= cfg.fzn
    def side(b, k, gen_):
        n = 2 * b + k - 1
        if gen_ or n < 0: return
        if n == 0: a("s_barrier")
        if n == cfg.zst:
            L4 = a.lab("L_zs")
            a(f"s_cmp_eq_u32 s{sCHV}, 0\ns_cbranch_scc1 {L4}")
            for i in range(4): a(f"buffer_store_dwordx4 v[{128+4*i}:{131+4*i}], v144, {srd(SWS)}, 0 offen offset:{1024*i} sc1")
            a(f"{L4}:")
        if n == cfg.zpub:
            L2 = a.lab("L_zp"); R = a.lab("L_zpr")
            a(f"s_cmp_lg_u32 s{sCHV}, 0\ns_cbranch_scc1 {L2}\n{R}:")
            def body():
                a(f"{L2}:\nv_mov_b32 v4, s{sN}\nv_mov_b32 v5, s{sN+1}\ns_waitcnt vmcnt({0 if cfg.nowo else sum(len(wsched[j]) for j in range(n)) + (3 if cfg.qn < 0 else 0)})")
                a(f"s_mov_b64 exec, 7\nbuffer_store_dwordx2 v[4:5], v{ZPA}, {srd(SWS)}, 0 offen sc1\ns_mov_b64 exec, -1\ns_branch {R}")
            ool.append(body)
        for i in wsched.get(n, []): wo_dma(i)
        if n == cfg.otn:
            L = a.lab("L_ot")
            a(f"s_cmp_ge_u32 s{sWV}, 4\ns_cbranch_scc1 {L}\nbuffer_load_dword v57, v{OTA}, {srd(SOUT)}, 0 offen {cfg.otf}\n{L}:")
        if n == cfg.qn or n == cfg.fzn:
            L = a.lab("L_hq")
            a(f"s_cmp_lt_u32 s{sWV}, 4\ns_cbranch_scc1 {L}")
            if n == cfg.qn: q_loads()
            else: a(f"buffer_load_dwordx2 v[{FZR}:{FZR+1}], v{FZA}, {srd(SWS)}, 0 offen sc1")
            a(f"{L}:")
        if n == cfg.wbar:
            L = a.lab("L_wb")
            a(f"s_waitcnt vmcnt({1 if cfg.qn < 0 else 4})\ns_cmp_ge_u32 s{sWV}, 4\ns_cbranch_scc1 {L}\ns_waitcnt vmcnt({1 if cfg.otn >= 0 else 0})\n{L}:\ns_barrier")
    def a2_loop(gen_):
        if gen_: a(f"v_mov_b32 v59, {BIGNEG:#x}")
        a("s_waitcnt lgkmcnt(1)")
        qk(0, 0, gen_)
        qk(0, 1, gen_)
        for b in range(9):
            if b in (1, 3, 5, 7) and not gen_: stamp(2 + b // 2, "a2")
            if cfg.prio and b == cfg.prio: a("s_setprio 0")
            if b > 0:
                a("s_waitcnt lgkmcnt(0)")
                pv(b - 1, 0)
            v_read(b)
            if b < 7: k_read(b + 2)
            ex(b, 0)
            if b < 8:
                if gen_: hook(b + 1)
                if b == 0: a("s_waitcnt lgkmcnt(6)")
                qk(b + 1, 0, gen_)
            else: pv(b - 1, 1)
            side(b, 0, gen_)
            ex(b, 1)
            if b < 8: qk(b + 1, 1, gen_)
            ex(b, 2)
            if 0 < b < 8: pv(b - 1, 1)
            if b == 8:
                a("s_waitcnt lgkmcnt(0)"); pv(8, 0)
            side(b, 1, gen_)
            ex(b, 3)
        cv(8, 3)
        pv(8, 1)
    a(f"ds_read_b128 v[{Q1}:{Q1+3}], v{QAD1}\nds_read_b128 v[{Q0}:{Q0+3}], v{QAD0}")
    k_read(0); k_read(1)
    if cfg.qn < 0:
        a(f"s_cmp_lt_u32 s{sWV}, 4\ns_cbranch_scc1 L_noq"); q_loads(); a("L_noq:")
    a(f"""
    s_lshl_b32 s{sT0}, s{sQB}, 3
    s_add_u32 s{sT0}, s{sT0}, s{sWV}
    s_lshl_b32 s{sT4}, s{sHD}, 16
    s_lshl_b32 s{sT2}, s{sT0}, 9
    s_add_u32 s{sT4}, s{sT4}, s{sT2}
    s_add_u32 s{sT4}, s{sT4}, {WS_O}
    s_lshl_b32 s{sT5}, s{sHD}, 14
    s_lshl_b32 s{sT3}, s{sT0}, 8
    s_add_u32 s{sT5}, s{sT5}, s{sT3}
    s_add_u32 s{sT5}, s{sT5}, {WS_O8}
    s_lshr_b32 s{sA}, s{sT0}, 1
    s_lshl_b32 s{sA}, s{sA}, 2
    s_and_b32 s{sT2}, s{sHD}, 3
    s_add_u32 s{sA}, s{sA}, s{sT2}
    s_lshl_b32 s{sA}, s{sA}, 4
    s_and_b32 s{sT2}, s{sT0}, 1
    s_lshl_b32 s{sT2}, s{sT2}, 3
    s_add_u32 s{sA}, s{sA}, s{sT2}
    s_lshr_b32 s{sT2}, s{sHD}, 2
    s_add_u32 s{sA}, s{sA}, s{sT2}
    s_lshl_b32 s{sA}, s{sA}, 3
    s_add_u32 s{sA}, s{sA}, {WS_FO}
    s_waitcnt lgkmcnt(4)
    v_and_b32 v{Q1B}, v{QM2}, v{Q1}
    v_and_b32 v{Q1B+1}, v{QM2}, v{Q1+1}
    v_and_b32 v{Q1B+2}, v{QM3}, v{Q1+2}
    v_and_b32 v{Q1B+3}, v{QM3}, v{Q1+3}
    v_and_b32 v{Q1}, v{QM0}, v{Q1}
    v_and_b32 v{Q1+1}, v{QM0}, v{Q1+1}
    v_and_b32 v{Q1+2}, v{QM1}, v{Q1+2}
    v_and_b32 v{Q1+3}, v{QM1}, v{Q1+3}
    """)
    stamp(1, "a2")
    a2_loop(False)
    a("L_a2_done:")
    def gen_loop():
        a("L_a2_gen:"); a2_loop(True); a("s_nop 10\ns_branch L_a2_done")
    stamp(6, "a2")
    lo = f2u(2.0 ** -24); hi = f2u(2.0 ** 40); fin = f2u(3.0e38)
    a(f"v_rcp_f32 v2, v{O+12}\nv_mov_b32 v3, v2")
    for i in range(6): a(f"v_pk_mul_f32 {pr(40+2*i)}, {pr(O+2*i)}, v[2:3]")
    for i in range(6): a(f"v_cvt_pk_bf16_f32 v{24+i}, v{40+2*i}, v{41+2*i}")
    a(f"""
    buffer_store_dwordx4 v[24:27], v{OS0}, {srd(SWS)}, s{sT4} offen sc1
    s_mov_b32 exec_hi, 0
    buffer_store_dwordx2 v[28:29], v{OS1}, {srd(SWS)}, s{sT5} offen sc1
    s_mov_b32 exec_hi, -1
    """)
    stamp(6); stamp(7, "a2"); stamp(1, "g2")
    a(f"v_cmp_nle_f32 vcc, {lo:#x}, v{O+12}\ns_mov_b64 s[{sEX}:{sEX+1}], vcc\nv_cmp_nge_f32 vcc, {hi:#x}, v{O+12}\ns_or_b64 s[{sEX}:{sEX+1}], s[{sEX}:{sEX+1}], vcc")
    for i in range(6): a(f"v_add_f32 v{4+i}, abs(v{O+2*i}), abs(v{O+2*i+1})")
    a("v_add_f32 v4, v4, v5\nv_add_f32 v6, v6, v7\nv_add_f32 v8, v8, v9\nv_add_f32 v4, v4, v6\nv_add_f32 v4, v4, v8")
    a(f"v_cmp_nge_f32 vcc, {fin:#x}, v4\ns_or_b64 vcc, s[{sEX}:{sEX+1}], vcc")
    if cfg.force_fb: a("s_mov_b64 vcc, -1")
    a("s_cbranch_vccnz L_a2_fb\nL_a2_ok:")
    def fallback():
        a(f"L_a2_fb:\ns_cmp_lg_u32 s{sFB}, 0\ns_cbranch_scc1 L_a2_ok\ns_mov_b32 s{sFB}, 1\ns_waitcnt vmcnt(0)")
        build_masks("0")
        a(f"v_mov_b32 v4, {BIGNEG:#x}\nv_mov_b32 v59, {BIGNEG:#x}")
        for b in range(9):
            if b > 0: hook(b)
            k_read(b); a("s_waitcnt lgkmcnt(0)"); qk(b, 0, True); qk(b, 1, True)
            d = S + 16 * (b & 1)
            for i in range(8): a(f"v_max3_f32 v4, v4, v{d+2*i}, v{d+2*i+1}")
        a("v_mov_b32 v5, v4\nv_permlane32_swap_b32 v4, v5\nv_max_f32 v4, v4, v5\nv_sub_f32 v4, 0, v4")
        build_masks("v4")
        k_read(0); k_read(1)
        a("s_branch L_a2_gen")
    WA, WA2, WA3, WB, WB3, OA, OB = 52, 53, 54, 55, 56, 57, 58
    RO = 59; STA = 62; OA2 = 63; OB2 = 15
    a(f"""
    v_lshrrev_b32 v2, 4, v1
    v_bfe_u32 v3, v1, 2, 2
    v_and_b32 v4, 3, v1
    s_cmp_ge_u32 s{sWV}, 4
    s_cselect_b32 s{sT0}, 96, 0
    v_lshl_add_u32 v4, v4, 3, s{sT0}
    v_lshrrev_b32 v5, 1, v2
    v_mul_u32_u24 v5, 24, v5
    v_and_b32 v6, 1, v2
    v_lshl_add_u32 v5, v6, 2, v5
    v_add_u32 v5, v5, v3
    v_mul_u32_u24 v5, 160, v5
    v_add_u32 v{WA3}, v5, v4
    v_add_u32 v{WA2}, {L_WO1 + 6*6400}, v{WA3}
    v_add_u32 v{WA}, {L_WO1}, v{WA3}
    v_mul_u32_u24 v5, 40, v2
    v_add3_u32 v5, v5, v3, 16
    v_mul_u32_u24 v5, 160, v5
    v_add_u32 v{WB3}, v5, v4
    v_add_u32 v{WB}, {L_WO1}, v{WB3}
    """)
    if cfg.wbar > 16 and not cfg.wsch: a("s_waitcnt vmcnt(2)\ns_barrier")
    if cfg.wsch:
        for i in wsched[17]: wo_dma(i)
        a(f"s_waitcnt vmcnt({NLATE})"); publish(sA, 4); stamp(3, "g2")
        a("s_waitcnt vmcnt(1)\ns_barrier")
    def fin_addr(n):
        a(f"""
        s_and_b32 s{sT0}, s{sC80}, 3
        s_lshl_b32 s{sT0}, s{sT0}, 1
        v_and_b32 v2, 15, v1
        v_subrev_u32 v2, s{sT0}, v2
        v_cmp_gt_u32 vcc, 10, v2
        v_min_u32 v2, 9, v2
        v_lshlrev_b32 v2, 4, v2
        v_lshrrev_b32 v3, 4, v1
        s_lshl_b32 s{sT0}, s{sWV}, 3
        v_add_u32 v3, s{sT0}, v3
        v_mul_u32_u24 v4, 2560, v3
        v_add_u32 v4, v4, v2
        v_bfrev_b32 v5, 1
        v_cndmask_b32 v{RO}, v5, v4, vcc
        v_mul_u32_u24 v4, {cfg.sstr}, v3
        v_add_u32 v4, {L_ST}, v4
        v_add_u32 v14, v2, v4
        s_mul_i32 s{sT3}, s{sR64}, {64*2560}
        s_add_u32 s{sT3}, s{sT3}, s{sC160}
        s_add_u32 s{sKC}, s{sT3}, {4*2560}
        """)
    def fin_store():
        a(f"""
        ds_read_b128 v[16:19], v14
        ds_read_b128 v[20:23], v14 offset:{4*cfg.sstr}
        s_waitcnt lgkmcnt(1)
        buffer_store_dwordx4 v[16:19], v{RO}, {srd(SOUT)}, s{sT3} offen {cfg.outa}
        s_waitcnt lgkmcnt(0)
        buffer_store_dwordx4 v[20:23], v{RO}, {srd(SOUT)}, s{sKC} offen {cfg.outa}
        """)
    def a3_addr():
        a(f"""
        v_lshrrev_b32 v2, 4, v1
        v_and_b32 v5, 15, v1
        s_lshl_b32 s{sT0}, s{sHW}, 4
        v_add_u32 v5, s{sT0}, v5
        v_lshlrev_b32 v6, 10, v2
        v_lshl_add_u32 v{OA}, v5, 4, v6
        v_add_u32 v{OA2}, {L_OS[2]}, v{OA}
        v_add_u32 v{OA}, {L_OS[0]}, v{OA}
        v_and_b32 v6, 1, v2
        v_lshlrev_b32 v6, 11, v6
        v_lshrrev_b32 v7, 1, v2
        v_lshl_add_u32 v6, v7, 9, v6
        v_lshl_add_u32 v{OB}, v5, 3, v6
        v_add_u32 v{OB2}, {L_OS[2] + 16384}, v{OB}
        v_add_u32 v{OB}, {L_OS[0] + 16384}, v{OB}
        v_mul_u32_u24 v5, {cfg.sstr}, v5
        v_lshl_add_u32 v5, v2, 3, v5
        v_add_u32 v{STA}, {L_ST}, v5
        """)
    def wo_frag(step, ct, d):
        for t in range(2):
            if step < 6: r, o = WA, (40 * step + 8 * t) * 160
            elif step < 12: r, o = WA2, (40 * (step - 6) + 8 * t) * 160
            elif step < 16: r, o = WA3, (40 * (step - 12) + 8 * t) * 160
            elif step < 19: r, o = WB, (160 * (step - 16) + 4 * t) * 160
            else: r, o = WB3, 4 * t * 160
            a(f"ds_read_b64_tr_b16 v[{d+2*t}:{d+2*t+1}], v{r} offset:{o + 32*ct}")
    def o_frag(step, d):
        if step < 16:
            sg = step // 4
            a(f"ds_read_b128 v[{d}:{d+3}], v{OA if sg < 2 else OA2} offset:{20480*(sg & 1) + 4096*(step % 4)}"); return 1
        sg = step - 16
        for t in range(2):
            a(f"ds_read_b64 v[{d+2*t}:{d+2*t+1}], v{OB if sg < 2 else OB2} offset:{20480*(sg & 1) + 1024*t}")
        return 2
    def b3_stores():
        for k in range(3):
            if k == 2: a(f"s_cmp_ge_u32 s{sHW}, 2\ns_cbranch_scc1 L_b3e")
            a(f"buffer_store_dwordx4 v[{QV+4*k}:{QV+4*k+3}], v{ROH+k}, {srd(SOUT)}, s{sT2} offen {cfg.outb}")
        a("L_b3e:")
    def a3_loop(nct, fr, ct0):
        ACC3 = 16
        OFS = [28, 28]
        q.clear()
        stages = [[4 * sg + k for k in range(4)] + [16 + sg] for sg in range(4)]
        seq = [st for sg in stages for st in sg]
        slot = {st: 28 + 4 * (i % 6) for i, st in enumerate(seq)}
        nread = [0]
        bars = [int(ch) for ch in cfg.ebar]
        def reads_upto(i):
            while nread[0] < min(i + cfg.a3la, 20):
                st = seq[nread[0]]
                if nread[0] % 5 == 0 and nread[0] // 5 in bars:
                    if nread[0] >= i + cfg.a3x: break
                    sg = nread[0] // 5
                    nxt = min([b for b in bars if b > sg] + [4])
                    if nct == 3:
                        assert nissued[0] >= 5 * nxt
                        a(f"s_waitcnt vmcnt({nissued[0] - 5*nxt})")
                    a("s_barrier"); stamp(3 + sg, "a3")
                n = o_frag(st, slot[st]); issue(("O", st), n); nread[0] += 1
        for i, st in enumerate(seq):
            reads_upto(i)
            wait_for({("O", st), ("W", st)})
            for ct in range(nct):
                w = fr[(st, ct)]; d = ACC3 + 4 * ct; o = slot[st]
                a(f"v_mfma_f32_16x16x32_bf16 v[{d}:{d+3}], v[{w}:{w+3}], v[{o}:{o+3}], " + ("0" if i == 0 else f"v[{d}:{d+3}]"))
            if nct == 3:
                for _ in range(2):
                    if olate: olate.pop(0)(); nissued[0] += 1
            if nct == 2 and i == cfg.ot3: a(f"s_mov_b32 exec_hi, 0\nbuffer_load_dword v10, v9, {srd(SOUT)}, 0 offen {cfg.otf}\ns_mov_b32 exec_hi, -1")
            if nct == 2 and i == cfg.b3st: b3_stores()
            if nct == 3 and i in (5, 7, 9, 11):
                st2 = 12 + (i - 5) // 2
                for ct in range(3):
                    fr[(st2, ct)] = fr[(st2 - 12, ct)]
                    wo_frag(st2, ct, fr[(st2, ct)]); issue(("W", st2), 2)
        for ct in range(nct):
            d = ACC3 + 4 * ct
            a(f"v_cvt_pk_bf16_f32 v{2+2*ct}, v{d}, v{d+1}\nv_cvt_pk_bf16_f32 v{3+2*ct}, v{d+2}, v{d+3}\nds_write_b64 v{STA}, v[{2+2*ct}:{3+2*ct}] offset:{32*(ct+ct0)}")
        a("s_waitcnt lgkmcnt(0)\ns_barrier"); stamp(7, "a3"); stamp(7, "ar")
    stamp(2, "g2")
    a(f"s_cmp_ge_u32 s{sWV}, 4\ns_cbranch_scc1 L_g2_h")
    a(f"v_mov_b32 v8, v{OFA}")
    must = [0, 1, 2, 3, 4, 5, 6, 16, 17]
    csteps = must + [7, 8, 9, 10, 11, 18, 19]
    cfr = {}
    for n, st in enumerate(csteps):
        for ct in range(3):
            cfr[(st, ct)] = 64 + 4 * (3 * n + ct)
            wo_frag(st, ct, cfr[(st, ct)])
        if n == cfg.cpub and not cfg.wsch:
            a("s_waitcnt vmcnt(0)"); publish(sA, 4); stamp(3, "g2")
        if n == len(must) - 1 + cfg.bdl:
            a(f"s_waitcnt lgkmcnt({6*cfg.bdl})\ns_barrier"); stamp(4, "g2")
    fin_addr(2)
    a3_addr()
    a(f"""
    v_lshlrev_b32 v12, 4, v1
    v_and_b32 v13, 31, v1
    v_lshrrev_b32 v7, 5, v1
    v_lshlrev_b32 v13, 4, v13
    v_lshl_add_u32 v13, v7, 16, v13
    s_lshl_b32 s{sA}, s{sWV}, 16
    s_lshl_b32 s{sT0}, s{sR64}, 10
    s_add_u32 s{sA}, s{sA}, s{sT0}
    s_lshl_b32 s{sB}, s{sWV}, 14
    s_lshl_b32 s{sT0}, s{sR64}, 9
    s_add_u32 s{sB}, s{sB}, s{sT0}
    s_lshl_b32 s{sT4}, s{sWV}, 11
    s_lshl_b32 s{sT5}, s{sWV}, 10
    """)
    if cfg.odelay: a(f"s_sleep {cfg.odelay}")
    poll(8, 10)
    stamp(7); stamp(5, "g2"); stamp(1, "a3"); stamp(1, "ar")
    odma = []
    def o16(g):
        a(f"s_add_u32 s{sT0}, s{sA}, {WS_O + 32768*g}")
        dma(12, SWS, f"s{sT0}", f"s_add_u32 m0, s{sT4}, {L_OS[g // 16] + 1024*(g % 16)}", "sc1")
    def o8(k):
        a(f"s_add_u32 s{sT0}, s{sB}, {WS_O8 + 16384*8*k}")
        dma(13, SWS, f"s{sT0}", f"s_add_u32 m0, s{sT5}, {L_OS[k] + 16384}", "sc1")
    for i in range(8):
        for hh in range(2): odma.append(lambda g=8*i+hh: o16(g))
        if i & 1: odma.append(lambda k=i >> 1: o8(k))
    for i, f in enumerate(odma[:cfg.oup]):
        f()
        if i == cfg.z0 - 1 and not cfg.zsync: a("s_barrier")
    a("s_waitcnt lgkmcnt(0)")
    olate = odma[cfg.oup:]; nissued = [cfg.oup]
    if cfg.grp == "ar":
        stamp(2, "ar")
        for i in range(4):
            a(f"s_waitcnt vmcnt({15-5*i})"); stamp(3 + i, "ar")
    a3_loop(3, cfr, 0)
    fin_store()
    a("s_branch L_fin")
    a("L_g2_h:")
    hfr = {}; ZV = 40
    def zdma():
        check_or_poll(FZA, FZR)
        for k in range(3): a(f"s_mov_b32 m0, s{ZM[k]}\nbuffer_load_dwordx4 v{ZD+k}, {srd(SWS)}, 0 offen sc1 lds")
    if not cfg.zafter:
        a("s_waitcnt vmcnt(2)"); zdma()
    hsteps = must + [st for st in range(20) if st not in must]
    for n, st in enumerate(hsteps):
        for ct in range(2):
            i = 2 * n + ct
            hfr[(st, ct)] = 64 + 4 * i if i < 22 else 184 + 4 * (i - 22)
            wo_frag(st, ct, hfr[(st, ct)])
        if cfg.wsch:
            if n == 0: zdma()
        elif n == cfg.hpub:
            a(f"s_waitcnt vmcnt({0 if cfg.zafter else 3})"); publish(sA, 4); stamp(3, "g2")
            if cfg.zafter: zdma()
        if n == len(must) - 1 + cfg.bdl:
            a(f"s_waitcnt lgkmcnt({4*cfg.bdl})\ns_barrier")
    a3_addr(); fin_addr(1)
    if cfg.ot3 >= 0: ot_addr(9)
    if cfg.zsync:
        a(f"""
        s_lshl_b32 s{sT0}, s{sHW}, 2
        s_add_u32 s{sT0}, s{sT0}, 86784
        v_mov_b32 v2, s{sT0}
        v_mov_b32 v3, s{sN}
        v_and_b32 v4, 3, v1
        v_lshlrev_b32 v4, 2, v4
        v_add_u32 v4, 86784, v4
        s_mov_b32 s{sCNT}, 0
        s_waitcnt vmcnt({0 if cfg.zafter else 1})
        ds_write_b32 v2, v3
        L_zs:
        ds_read_b32 v5, v4
        s_add_u32 s{sCNT}, s{sCNT}, 1
        s_waitcnt lgkmcnt(0)
        v_cmp_ne_u32 vcc, s{sN}, v5
        s_cmp_gt_u32 s{sCNT}, 0x400000
        s_cbranch_scc1 L_zsd
        s_cbranch_vccnz L_zs
        L_zsd:
        """)
    else:
        a(f"s_waitcnt vmcnt({0 if cfg.zafter else 1}) lgkmcnt(0)\ns_barrier")
    stamp(4, "g2"); stamp(7); stamp(1, "a3")
    a(f"s_mul_i32 s{sT2}, s{sR64}, {64*2560}\ns_add_u32 s{sT2}, s{sT2}, s{sC160}\ns_add_u32 s{sT2}, s{sT2}, 1280")
    for k in range(3):
        if k == 2: a(f"s_cmp_ge_u32 s{sHW}, 2\ns_cbranch_scc1 L_b3d")
        for j in range(8): a(f"v_mov_b32 v{ZV+j}, 0")
        for j in range(8): a(f"ds_read_u16_d16_hi v{ZV+j}, v{ZA+k} offset:{128*j}")
        for j in range(4):
            a(f"v_lshlrev_b32 v{ZT+2*j}, 16, v{QV+4*k+j}\nv_and_b32 v{ZT+1+2*j}, 0xffff0000, v{QV+4*k+j}")
        a("s_waitcnt lgkmcnt(0)")
        for j in range(8): a(f"v_mul_f32 v{ZT+j}, v{ZT+j}, v{ZV+j}")
        for j in range(4): a(f"v_cvt_pk_bf16_f32 v{QV+4*k+j}, v{ZT+2*j}, v{ZT+1+2*j}")
        if cfg.b3st < 0: a(f"buffer_store_dwordx4 v[{QV+4*k}:{QV+4*k+3}], v{ROH+k}, {srd(SOUT)}, s{sT2} offen {cfg.outb}")
    a("L_b3d:")
    stamp(5, "g2"); stamp(2, "a3")
    a3_loop(2, hfr, 3)
    fin_store()
    a("L_fin:")
    def diag_wait(tag):
        a(f"L_dw{tag}:\ns_memrealtime s[98:99]\ns_waitcnt lgkmcnt(0)\ns_sub_u32 s98, s98, s{sN if cfg.diagn else 100}\ns_cmp_lt_u32 s98, {cfg.diagd}\ns_cbranch_scc1 L_dw{tag}")
    if cfg.diagd:
        if cfg.diagw >= 0: a(f"s_cmp_lg_u32 s2, {cfg.diagw}\ns_cbranch_scc1 L_exit")
        diag_wait(0)
    if cfg.stamps:
        a("s_waitcnt vmcnt(0)")
        stamp(8)
        if cfg.dbgst:
            a(f"s_cmp_lg_u32 s2, 41\ns_cbranch_scc1 L_exit\ns_cmp_lg_u32 s{sWV}, 0\ns_cbranch_scc1 L_exit\ns_mov_b64 exec, 1\nv_mov_b32 v2, 0")
            for i in range(9):
                a(f"s_sub_u32 s{sT0}, s{sSTAMP+2*i}, s{sSTAMP}\nv_mov_b32 v4, s{sT0}\nbuffer_store_dword v4, v2, {srd(SDBG)}, 0 offen offset:{8+4*i}\ns_waitcnt vmcnt(0)")
            a(f"s_sub_u32 s{sT0}, s{sN}, s{sSTAMP}\nv_mov_b32 v4, s{sT0}\nbuffer_store_dword v4, v2, {srd(SDBG)}, 0 offen offset:48\ns_waitcnt vmcnt(0)")
            a("s_endpgm")
        a(f"s_lshl_b32 s{sT0}, s2, 3\ns_add_u32 s{sT0}, s{sT0}, s{sWV}\ns_lshl_b32 s{sT0}, s{sT0}, 7\ns_add_u32 s{sT0}, s{sT0}, {WS_T}\nv_mov_b32 v2, s{sT0}\ns_mov_b64 exec, 1")
        for i in range(9):
            a(f"v_mov_b32 v4, s{sSTAMP+2*i}\nv_mov_b32 v5, s{sSTAMP+2*i+1}\nbuffer_store_dwordx2 v[4:5], v2, {srd(SWS)}, 0 offen offset:{8*i}\ns_waitcnt vmcnt(0)")
    a("L_exit:\ns_endpgm")
    i = 0
    while i < len(ool):
        ool[i](); i += 1
    a("L_end:")
    fallback(); gen_loop()
    while i < len(ool):
        ool[i](); i += 1
    body = a.finish()
    hdr = open("cdna_kernels/" + NAME + ".s.ref").read().split("; Override launch")[0]
    src = hdr + f"""; Single persistent kernel, one 512-thread workgroup per CU; generated by the author's own script.
; @launch grid=(256,1,1) block=(512,1,1) lds=163840
.amdgcn_target "amdgcn-amd-amdhsa--gfx950"
.text
.globl {NAME}_kernel
.p2align 8
.type {NAME}_kernel,@function
{NAME}_kernel:
{body}.section .rodata,"a"
.p2align 6
.amdhsa_kernel {NAME}_kernel
  .amdhsa_next_free_vgpr 256
  .amdhsa_next_free_sgpr 102
  .amdhsa_accum_offset 256
  .amdhsa_group_segment_fixed_size 0
  .amdhsa_kernarg_size 96
  .amdhsa_user_sgpr_count 2
  .amdhsa_user_sgpr_kernarg_segment_ptr 1
  .amdhsa_system_sgpr_workgroup_id_x 1
.end_amdhsa_kernel
"""
    return src

if __name__ == "__main__":
    cfg = Cfg()
    out = sys.argv[1]
    for kv in sys.argv[2:]:
        k, v = kv.split("=")
        old = getattr(cfg, k)
        setattr(cfg, k, (v == "1") if isinstance(old, bool) else (int(v) if isinstance(old, int) else v))
    open(out, "w").write(gen(cfg))
```

```python
import sys, math, struct
from asmdsl import Asm

NAME = "concat_heads__sliding_block__ssm_conv_h3__prompt"

class Cfg:
    stamps = False
    grp = ""
    stop = 99
    nt_in = ""
    fstr = 128
    slp = 1
    force_fb = False
    ncls = 3
    b1a = -1
    b1b = -1
    b1c = -1
    map2 = "head"
    outa = ""
    outb = "sc1"
    m16 = True
    nfill = 1
    a3la = 5
    a3x = 3
    ebar = "02"
    sstr = 176
    otouch = 0
    dbgst = False
    tmaj = True
    tscale = True
    cprio = 99
    prew = True
    gdelay = 1
    assist = 4
    lset = "s01"
    usplit = True
    upub = 3
    ust = -1
    wdelay = False
    fld = 6
    pre = 4
    uwarm = False
    r1first = True
    cs0 = "maqgw"
    cs1 = ""
    cs2 = ""
    elate = False
    hc = 8
    oc9 = False
    ocs = False
    zst = -1
    pfirst = False
    odelay = 0
    oup = 20
    b3st = 2
    bdl = 2
    z0 = 10
    zafter = True
    zsync = True
    hack1 = 0
    otn = -1
    otb = False
    otf = ""
    ot3 = -1
    wstart = 0
    wsch = ""
    x4 = 0
    bal = 0
    orc = 0
    hl1 = 60
    zfs = 128
    orc2 = 0
    orc3 = 0
    hpre = 0
    wlin = 0
    n3 = 16
    prog = False
    sp1 = True
    nodup = True
    diagd = 0
    diagn = False
    diagw = -1
    xoff = 1
    orc4 = 0
    hs0 = 0
    hsn = 7
    ffl = 0
    mlds = True
    zlate = 0
    opn = -1
    gms = 1
    oms = 2
    qpre = 0
    hop = 0
    cn1 = 9
    hn0 = 2
    fae = True
    hn1 = 5
    hn2 = 5
    hpr = 2
    ha1 = 40
    zfill = True
    zl2 = False
    tlb = 0
    tlball = False
    tlbs = False
    zpub = 1
    early = 20
    wtouch = 0
    wfirst = 2
    qn = -1
    fzn = 12
    wbar = 16
    cpub = 1
    cbar = 3
    pst = 7
    hpub = 1
    prio = 5
    ufs = 8
    wopre = 8
    noread = False; nomfma = False; nowo = False

WS_G = 0x0; WS_U = 0x800000; WS_Z = 0xB00000; WS_O = 0xE00000; WS_O8 = 0x1000000
WS_FG = 0x1100000; WS_FU = 0x1140000; WS_FZ = 0x1180000; WS_FO = 0x11C0000; WS_T = 0x1200000
WS_SIZE = 0x1800000
L_KB = 98304; L_VB = L_KB + 11024
L_H = 119808; HSTR = 8320; HODD = 4160
L_U = 144768; USTR = 4608
L_V = 32768; VSTR = 8256; L_ONES = L_V + 24768 + 512; L_K = 59136; L_Q = 83712
L_WO1 = 87040
L_WO2 = 0
L_ZA = 25600; L_ZB = 83712
L_OS = [32768, 53248, 87040, 107520]; L_ST = 53248
SX, SW, SWO, SQ, SK, SV, SSH, SH, SD, SOUT, SDBG, SWS = [8 + 4 * i for i in range(12)]
def srd(b): return f"s[{b}:{b+3}]"
sWON, sC160 = 6, 7; sKX = 6
sWV, sXC, sJ, sHW = 56, 57, 58, 59
sN = 60
sR64, sC80, sRB, sCT, sCH, sCHV, sHD, sQB = 62, 63, 64, 65, 66, 67, 68, 69
sT0, sT1, sT2, sT3, sT4, sT5 = 70, 71, 72, 73, 74, 75
sCNT, sNV, sFB, sKC = 76, 77, 78, 79
sEX = 80
sA, sB = 82, 83
sSTAMP = 84
WOM = list(range(24, 36))
ZM = [0, 1, 3]
BIGNEG = 0xf149f2ca
vCZ, vCD, vCF = 208, 224, 240
QV = 152; ROH = 164; ZA = 167; FZA = 170; FZR = 172; QA = 174; ZD = 177; ZT = 174; QM2, QM3 = 182, 183
WOV = 208; AVP = 190; AK0, AK1, AVD, AV0, QAD0, QAD1, QM0, QM1, OS0, OS1 = 197, 198, 199, 200, 201, 202, 203, 204, 205, 206

def f2u(x): return struct.unpack("<I", struct.pack("<f", x))[0]
def pr(b): return f"v[{b}:{b+1}]"

def gen(cfg):
    a = Asm()
    FS = cfg.fstr
    NWO = (100 - cfg.early + 7) // 8
    ool = []
    def stamp(i, grp=""):
        if cfg.stamps and (grp == cfg.grp or i in (0, 8) and grp == ""):
            a(f"s_memrealtime s[{sSTAMP+2*i}:{sSTAMP+2*i+1}]\ns_memtime s[4:5]\ns_waitcnt lgkmcnt(0)\ns_mov_b32 s{sSTAMP+2*i+1}, s4")
    def dma(vaddr, s, soff, m0, flags=""):
        if isinstance(m0, int): a(f"s_mov_b32 m0, {m0}")
        else: a(m0)
        a(f"buffer_load_dwordx4 v{vaddr}, {srd(s)}, {soff} offen {flags} lds")
    def cmpflag(t):
        a(f"v_cmp_ne_u32 vcc, s{sN}, v{t}\nv_cmp_ne_u32 s[{sEX}:{sEX+1}], s{sN+1}, v{t+1}\ns_or_b64 vcc, vcc, s[{sEX}:{sEX+1}]")
    def poll(vaddr, t):
        L = a.lab("L_poll"); D = a.lab("L_polld")
        a(f"s_mov_b32 s{sCNT}, 0\n{L}:")
        a(f"buffer_load_dwordx2 v[{t}:{t+1}], v{vaddr}, {srd(SWS)}, 0 offen sc1\ns_waitcnt vmcnt(0)")
        cmpflag(t)
        a(f"s_cbranch_vccz {D}\ns_add_u32 s{sCNT}, s{sCNT}, 1\ns_cmp_lt_u32 s{sCNT}, 0x40000\ns_cbranch_scc0 {D}\ns_sleep {cfg.slp}\ns_branch {L}\n{D}:")
    def check_or_poll(vaddr, t):
        L = a.lab("L_cp"); R = a.lab("L_cpr")
        cmpflag(t)
        a(f"s_cbranch_vccnz {L}\n{R}:")
        def body():
            a(f"{L}:"); poll(vaddr, t); a(f"s_branch {R}")
        ool.append(body)
    def publish(soff_sgpr, t):
        a(f"v_mov_b32 v{t}, s{sN}\nv_mov_b32 v{t+1}, s{sN+1}\nv_mov_b32 v{t+2}, s{soff_sgpr}")
        a(f"s_mov_b64 exec, 1\nbuffer_store_dwordx2 v[{t}:{t+1}], v{t+2}, {srd(SWS)}, 0 offen sc1\ns_mov_b64 exec, -1")
    def nonce_issue(t):
        a(f"v_mov_b32 v{t+2}, 0\nbuffer_load_dwordx2 v[{t}:{t+1}], v{t+2}, {srd(SDBG)}, 0 offen sc1")
    def nonce_take(t):
        L = a.lab("L_non"); R = a.lab("L_nonr"); D = a.lab("L_nond")
        a(f"s_mov_b32 s{sCNT}, 0\n{R}:\nv_readfirstlane_b32 s{sN}, v{t}\nv_readfirstlane_b32 s{sN+1}, v{t+1}")
        a(f"s_cmp_eq_u32 s{sN}, 0\ns_cbranch_scc1 {L}\n{D}:")
        def body():
            a(f"{L}:\ns_add_u32 s{sCNT}, s{sCNT}, 1\ns_cmp_lt_u32 s{sCNT}, 0x40000\ns_cbranch_scc0 {D}")
            a(f"buffer_load_dwordx2 v[{t}:{t+1}], v{t+2}, {srd(SDBG)}, 0 offen sc1\ns_waitcnt vmcnt(0)\ns_branch {R}")
        ool.append(body)
    def build_masks(val):
        a(f"v_and_b32 v2, 31, v1\nv_lshrrev_b32 v3, 5, v1\nv_lshlrev_b32 v3, 2, v3\nv_sub_u32 v2, v2, v3\nv_mov_b32 v3, {BIGNEG:#x}")
        for r in range(0, 16, 2):
            m0 = 8 * (r >> 2) + (r & 3)
            if val is None:
                a(f"v_cmp_gt_i32 vcc, {m0}, v2\nv_cmp_gt_i32 s[{sEX}:{sEX+1}], {m0+1}, v2")
                if r > 0: a(f"v_xor_b32 v{vCF+r-2}, v3, v{vCD+r-2}\nv_xor_b32 v{vCF+r-1}, v3, v{vCD+r-1}")
                a(f"v_cndmask_b32 v{vCD+r}, 0, v3, vcc\nv_cndmask_b32 v{vCD+r+1}, 0, v3, s[{sEX}:{sEX+1}]")
                if r == 14: a(f"v_xor_b32 v{vCF+r}, v3, v{vCD+r}\nv_xor_b32 v{vCF+r+1}, v3, v{vCD+r+1}")
                continue
            a(f"v_cmp_le_i32 vcc, {m0}, v2\nv_cmp_le_i32 s[{sEX}:{sEX+1}], {m0+1}, v2\nv_mov_b32 v{vCZ+r}, {val}\nv_mov_b32 v{vCZ+r+1}, {val}")
            a(f"v_cndmask_b32 v{vCD+r}, v3, v{vCZ+r}, vcc\nv_cndmask_b32 v{vCF+r}, v{vCZ+r}, v3, vcc")
            a(f"v_cndmask_b32 v{vCD+r+1}, v3, v{vCZ+r+1}, s[{sEX}:{sEX+1}]\nv_cndmask_b32 v{vCF+r+1}, v{vCZ+r+1}, v3, s[{sEX}:{sEX+1}]")
    def capture(f):
        n0 = len(a.ins); f(); r = [i.text for i in a.ins[n0:]]; del a.ins[n0:]; return r
    q = []
    def issue(tag, n): q.extend([tag] * n)
    def wait_for(tags):
        last = max((i for i, t in enumerate(q) if t in tags), default=-1)
        if last >= 0:
            a(f"s_waitcnt lgkmcnt({min(len(q) - 1 - last, 15)})")
            del q[:last + 1]

    T2 = 184
    def taps(tp, r):
        a(f"""
        v_lshlrev_b32 v{tp+0}, 16, v{r}
        v_lshlrev_b32 v{tp+1}, 16, v{r+2}
        v_and_b32 v{tp+2}, 0xffff0000, v{r}
        v_and_b32 v{tp+3}, 0xffff0000, v{r+2}
        v_lshlrev_b32 v{tp+4}, 16, v{r+1}
        v_lshlrev_b32 v{tp+5}, 16, v{r+3}
        v_and_b32 v{tp+6}, 0xffff0000, v{r+1}
        v_and_b32 v{tp+7}, 0xffff0000, v{r+3}
        """)
    def b1_compute(B):
        kr = B; rs = B; vv = B + 16; ku = B + 24; tp = B + 46; vu = ku; pk = B + 40
        a(f"""
        v_and_b32 v2, 7, v0
        v_lshrrev_b32 v3, 3, v0
        v_mul_u32_u24 v4, 1296, v2
        v_lshl_add_u32 v4, v3, 2, v4
        v_add_u32 v4, {L_KB}, v4
        """)
        for i in range(-3, 8): a(f"ds_read_b32 v{kr+3+i}, v4 offset:{(640 if i < 0 else 656) + 160*i}")
        for i in range(8): a(f"ds_read_b32 v{vv+i}, v4 offset:{11024 + 160*i}")
        a(f"""
        v_lshlrev_b32 v3, 13, v3
        v_sub_u32 v2, 7, v2
        v_lshl_add_u32 v3, v2, 4, v3
        v_and_b32 v2, 31, v0
        v_lshrrev_b32 v4, 5, v0
        v_mul_u32_u24 v5, 320, v2
        v_lshl_add_u32 v5, v4, 2, v5
        v_add_u32 v5, {L_KB + 128}, v5
        v_add_u32 v6, 3, v2
        v_lshrrev_b32 v6, 2, v6
        v_lshl_add_u32 v6, v6, 4, v5
        v_add_u32 v7, 2, v2
        v_lshrrev_b32 v7, 2, v7
        v_lshl_add_u32 v7, v7, 4, v5
        v_lshrrev_b32 v188, 2, v2
        v_lshl_add_u32 v5, v188, 4, v5
        ds_read_b32 v7, v7 offset:160
        ds_read_b32 v188, v6 offset:320
        ds_read_b32 v6, v6 offset:480
        ds_read_b32 v189, v5 offset:656
        ds_read_b32 v195, v5 offset:816
        ds_read_b32 v196, v5 offset:11024
        ds_read_b32 v5, v5 offset:11184
        v_lshlrev_b32 v2, 2, v2
        v_sub_u32 v2, {32*8192 + 124}, v2
        v_lshl_add_u32 v2, v4, 13, v2
        """)
        taps(tp, 8)
        a(f"""
        s_mul_i32 s{sT0}, s{sC80}, {80*4096}
        s_lshl_b32 s{sT1}, s{sR64}, 7
        s_sub_u32 s{sT0}, s{sT0}, s{sT1}
        s_add_u32 s{sT0}, s{sT0}, {WS_U + 4080 - 112}
        s_waitcnt lgkmcnt(15)
        """)
        def unp(d, r): a(f"v_lshlrev_b32 v{d}, 16, v{r}\nv_and_b32 v{d+1}, 0xffff0000, v{r}")
        for i in range(11): unp(ku + 2 * i, kr + i)
        for i in range(8): a(f"v_pk_mul_f32 {pr(rs+2*i)}, {pr(ku+2*(i+3))}, {pr(tp)}")
        for j in range(1, 4):
            for i in range(8): a(f"v_pk_fma_f32 {pr(rs+2*i)}, {pr(ku+2*(i+3-j))}, {pr(tp+2*j)}, {pr(rs+2*i)}")
        a("s_waitcnt lgkmcnt(7)")
        for i in range(8): unp(vu + 2 * i, vv + i)
        for i in range(8): a(f"v_pk_mul_f32 {pr(rs+2*i)}, {pr(rs+2*i)}, {pr(vu+2*i)}")
        for ch in range(2):
            for d in range(4): a(f"v_cvt_pk_bf16_f32 v{pk+4*ch+d}, v{rs+2*(7-2*d)+ch}, v{rs+2*(6-2*d)+ch}")
        ku = B + 4; tp = B + 18
        taps(tp, T2)
        a("s_waitcnt lgkmcnt(0)")
        for i, r in enumerate((7, 188, 6, 189, 195, 196, 5)): unp(ku + 2 * i, r)
        for i in range(2): a(f"v_pk_mul_f32 {pr(rs+2*i)}, {pr(ku+2*(i+3))}, {pr(tp)}")
        for j in range(1, 4):
            for i in range(2): a(f"v_pk_fma_f32 {pr(rs+2*i)}, {pr(ku+2*(i+3-j))}, {pr(tp+2*j)}, {pr(rs+2*i)}")
        for i in range(2): a(f"v_pk_mul_f32 {pr(rs+2*i)}, {pr(rs+2*i)}, {pr(ku+10+2*i)}")
        a(f"v_cvt_pk_bf16_f32 v{pk+8}, v{rs+2}, v{rs}\nv_cvt_pk_bf16_f32 v{pk+9}, v{rs+3}, v{rs+1}")
        a(f"v_add_u32 v{pk+10}, s{sT0}, v3\nv_add_u32 v{pk+11}, s{sT0}, v2")
    def b1_store(B):
        pk = B + 40
        a(f"""
        s_movk_i32 s{sT1}, 0x1000
        """)
        if cfg.orc4 < 2:
            a(f"buffer_store_dwordx4 v[{pk}:{pk+3}], v{pk+10}, {srd(SWS)}, 0 offen sc1\nbuffer_store_dwordx4 v[{pk+4}:{pk+7}], v{pk+10}, {srd(SWS)}, s{sT1} offen sc1")
        if cfg.orc4 < 1:
            a(f"buffer_store_dword v{pk+8}, v{pk+11}, {srd(SWS)}, 0 offen sc1\nbuffer_store_dword v{pk+9}, v{pk+11}, {srd(SWS)}, s{sT1} offen sc1")
    def shift_load():
        a(f"v_lshrrev_b32 v4, 3, v0\nv_lshlrev_b32 v4, 4, v4\ns_mul_i32 s{sT4}, s{sC80}, 640\nbuffer_load_dwordx4 v[8:11], v4, {srd(SSH)}, s{sT4} offen")
        a(f"v_lshrrev_b32 v4, 5, v0\nv_lshlrev_b32 v4, 4, v4\nbuffer_load_dwordx4 v[{T2}:{T2+3}], v4, {srd(SSH)}, s{sT4} offen offset:512")
    def publish_u(t):
        a(f"s_lshl_b32 s{sT0}, s{sC80}, 2\ns_add_u32 s{sT0}, s{sT0}, s{sWV}\ns_lshl_b32 s{sT0}, s{sT0}, 5\ns_add_u32 s{sT0}, s{sT0}, s{sR64}\ns_mul_i32 s{sT0}, s{sT0}, {cfg.ufs}\ns_add_u32 s{sT0}, s{sT0}, {WS_FU}")
        publish(sT0, t)
    def rounds(RO):
        for k in range(3):
            a(f"""
            s_lshl_b32 s{sT0}, s{sHW}, 6
            s_add_u32 s{sT0}, s{sT0}, {256*k}
            v_add_u32 v2, s{sT0}, v1
            v_mul_u32_u24 v3, 205, v2
            v_lshrrev_b32 v3, 11, v3
            v_mul_u32_u24 v4, 10, v3
            v_sub_u32 v4, v2, v4
            v_mul_u32_u24 v5, 2560, v3
            v_lshl_add_u32 v{RO+k}, v4, 4, v5
            """)
            yield k
    def a2_setup():
        a(f"""
        s_lshl_b32 s{sT0}, s{sWV}, 9
        v_and_b32 v2, 31, v1
        v_lshrrev_b32 v3, 5, v1
        v_lshlrev_b32 v{OS1}, 3, v2
        v_lshlrev_b32 v4, 4, v2
        v_lshl_add_u32 v{OS0}, v3, 15, v4
        v_add_u32 v4, s{sT0}, v4
        v_lshl_add_u32 v5, v3, 12, v4
        v_add_u32 v{QAD0}, {L_Q}, v5
        v_add_u32 v{QAD1}, {L_Q + 8192}, v4
        v_lshl_add_u32 v{AK0}, v3, 13, v4
        v_add_u32 v{AK0}, {L_K}, v{AK0}
        v_lshlrev_b32 v5, 9, v3
        v_sub_u32 v5, v4, v5
        v_add_u32 v{AK1}, {L_K + 16384}, v5
        v_bfe_u32 v4, v1, 2, 2
        v_lshl_add_u32 v4, v3, 2, v4
        v_lshlrev_b32 v4, 4, v4
        v_bfe_u32 v5, v1, 1, 1
        v_mul_u32_u24 v5, {VSTR}, v5
        v_and_b32 v6, 1, v1
        v_lshl_add_u32 v5, v6, 3, v5
        s_and_b32 s{sT1}, s{sHD}, 1
        s_lshl_b32 s{sT2}, s{sT1}, 3
        s_add_u32 s{sT2}, s{sT2}, {2*VSTR}
        v_mov_b32 v6, s{sT2}
        v_and_b32 v7, 16, v1
        v_cmp_ne_u32 vcc, 0, v7
        v_cndmask_b32 v5, v5, v6, vcc
        s_add_u32 s{sT0}, s{sT0}, {L_V + 4096 - 512}
        v_add3_u32 v5, v5, v4, s{sT0}
        v_and_b32 v7, 2, v1
        v_sub_u32 v7, 2, v7
        v_lshl_add_u32 v4, v7, {2 if cfg.sp1 else 31}, v4
        v_and_b32 v7, 19, v1
        v_cmp_lt_u32 vcc, 16, v7
        s_add_u32 s{sT0}, s{sWV}, 1
        s_cmp_eq_u32 s{sQB}, 0
        s_cselect_b32 s{sNV}, s{sT0}, 99
        """)
        for p in range(5):
            a(f"""
            s_cmp_gt_u32 s{sNV}, {2*p}
            s_cselect_b32 s{sT0}, {L_ONES - 512 - (L_V + 192)}, 0
            s_add_u32 s{sT0}, s{sT0}, {L_V + 192}
            s_cmp_gt_u32 s{sNV}, {2*p+1}
            s_cselect_b32 s{sT0}, {L_ONES}, s{sT0}
            v_add_u32 v6, s{sT0}, v4
            v_cndmask_b32 v{AVP+p}, v5, v6, vcc
            v_subrev_u32 v5, 1024, v5
            """)
        a(f"""
        s_mov_b32 s{sFB}, 0
        s_cmp_eq_u32 s{sT1}, 0
        s_cselect_b32 s{sT2}, -1, 0
        s_cselect_b32 s{sT3}, 0, -1
        v_cmp_eq_u32 vcc, 0, v3
        v_mov_b32 v5, s{sT2}
        v_mov_b32 v6, s{sT3}
        v_cndmask_b32 v{QM0}, 0, v5, vcc
        v_cndmask_b32 v{QM1}, 0, v6, vcc
        v_cndmask_b32 v{QM2}, v5, 0, vcc
        v_cndmask_b32 v{QM3}, v6, 0, vcc
        s_mov_b32 s{sT4}, 6554
        """)
        assert cfg.early == 20 and not cfg.bal
        for i in range(5):
            src = "v0" if i == 0 else "v2"
            if i: a(f"v_add_u32 v2, {512*i}, v0")
            a(f"v_mul_u32_u24 v3, s{sT4}, {src}\nv_lshrrev_b32 v3, 16, v3\nv_mul_u32_u24 v3, 1120, v3\nv_lshl_add_u32 v{WOV+i}, {src}, 4, v3")
    def wom_setup():
        a(f"""
        s_lshl_b32 s{sT2}, s{sWV}, 10
        s_add_u32 s24, s{sT2}, {L_WO1}
        s_add_u32 s25, s24, {72*1024}
        s_sub_u32 s{sT2}, s{sT2}, 3072
        s_min_u32 s25, s25, s{sT2}
        s_add_u32 s26, s{sC160}, {256*1280}
        """)
    def wo_early_addr():
        for i in range(5):
            a(f"v_add_u32 v2, {64*i}, v1\nv_mul_u32_u24 v3, 205, v2\nv_lshrrev_b32 v3, 11, v3\nv_mul_u32_u24 v3, 1120, v3\nv_lshl_add_u32 v{32+i}, v2, 4, v3")
    def wo_early():
        lastp = -1
        for n in range(100 - cfg.early, 100):
            if n // 5 != lastp:
                lastp = n // 5; a(f"s_add_u32 s{sT0}, s{sC160}, {lastp*32*1280}")
            dma(32 + n % 5, SWO, f"s{sT0}", L_WO1 + 1024 * n if n < 75 else L_WO2 + 1024 * (n - 75))

    L_SYNC = 119712
    sizes = {SX: 2621440, SW: 2457600, SWO: 819200, SQ: 2621440, SK: 2621440, SV: 2621440, SSH: 5120, SH: 2621440, SD: 1280, SOUT: 5242880, SDBG: 256, SWS: WS_SIZE}
    assert cfg.b1a < 0 and cfg.b1b < 0 and cfg.b1c < 0
    for s, slot in ((SK, 4), (SV, 5), (SSH, 6), (SX, 0), (SW, 1)): a(f"s_load_dwordx2 s[{s}:{s+1}], s[0:1], {slot*8}")
    a("s_cmp_ge_u32 s2, 256\ns_cbranch_scc1 L_exit")
    if cfg.diagd: a("s_memrealtime s[100:101]")
    a(f"""
    v_lshrrev_b32 v2, 6, v0
    v_and_b32 v1, 63, v0
    s_and_b32 s{sXC}, s2, 7
    v_readfirstlane_b32 s{sWV}, v2
    s_lshr_b32 s{sJ}, s2, 3
    v_mul_u32_u24 v2, 26, v1
    s_and_b32 s{sT0}, s{sJ}, 3
    v_lshrrev_b32 v2, 8, v2
    s_lshl2_add_u32 s{sR64}, s{sXC}, s{sT0}
    v_mul_u32_u24 v2, 1120, v2
    s_lshr_b32 s{sC80}, s{sJ}, 2
    v_lshl_add_u32 v12, v1, 4, v2
    s_mul_i32 s{sC160}, s{sC80}, 160
    s_lshl3_add_u32 s{sT1}, s{sR64}, s{sWV}
    s_mul_i32 s{sT1}, s{sT1}, {8*1280}
    s_add_u32 s{sT1}, s{sT1}, s{sC160}
    s_mul_i32 s{sB}, s{sWV}, 1296
    s_mov_b32 s{SK+2}, {sizes[SK]}
    s_mov_b32 s{SK+3}, 0x20000
    s_mov_b32 s{SV+2}, {sizes[SV]}
    s_mov_b32 s{SV+3}, 0x20000
    s_add_u32 s{sT2}, s{sT1}, {4*1280}
    s_cmp_lg_u32 s{sWV}, 7
    s_cbranch_scc1 L_nocp
    s_getpc_b64 s[4:5]
    L_pc:
    s_mul_i32 s3, s{sJ}, 1408
    v_lshl_add_u32 v2, v1, 7, s3
    v_min_u32 v2, L_end-L_pc, v2
    v_mov_b32 v3, {L_SYNC + 16}
    v_mov_b32 v4, 0
    s_mov_b64 exec, 0x7ff
    global_load_dword v62, v2, s[4:5]
    ds_write_b32 v3, v4
    s_mov_b32 exec_lo, -1
    L_nocp:
    s_mov_b32 exec_hi, 0xff
    s_add_u32 m0, s{sB}, {L_KB+656}
    s_waitcnt lgkmcnt(0)
    buffer_load_dwordx4 v12, {srd(SK)}, s{sT1} offen {cfg.nt_in} lds
    """)
    dma(12, SV, f"s{sT1}", f"s_add_u32 m0, s{sB}, {L_VB}", cfg.nt_in)
    dma(12, SK, f"s{sT2}", f"s_add_u32 m0, s{sB}, {L_KB+656+640}", cfg.nt_in)
    dma(12, SV, f"s{sT2}", f"s_add_u32 m0, s{sB}, {L_VB+640}", cfg.nt_in)
    a(f"s_cmp_lg_u32 s{sWV}, 0\ns_cbranch_scc1 L_nohalo\ns_sub_u32 s{sT1}, s{sT1}, {4*1280}\nv_add_u32 v13, s{sT1}, v12")
    dma(13, SK, "0", L_KB, cfg.nt_in)
    a(f"L_nohalo:\ns_mov_b32 exec_hi, -1\ns_mov_b32 s{SSH+2}, {sizes[SSH]}\ns_mov_b32 s{SSH+3}, 0x20000\ns_cmp_ge_u32 s{sWV}, 4\ns_cbranch_scc1 L_nosh")
    shift_load()
    a("L_nosh:")
    stamp(0)
    for s, slot in ((SDBG, 10), (SWS, 11), (SH, 7), (SD, 8), (SWO, 2), (SQ, 3), (SOUT, 9)): a(f"s_load_dwordx2 s[{s}:{s+1}], s[0:1], {slot*8}")
    def srd_consts(lst):
        for s in lst: a(f"s_mov_b32 s{s+2}, {sizes[s]}\ns_mov_b32 s{s+3}, 0x20000")
    a(f"""
    s_and_b32 s{sHW}, s{sWV}, 3
    s_and_b32 s{sT0}, s{sXC}, 1
    s_mul_i32 s{sT0}, s{sT0}, 30
    s_add_u32 s{sT0}, s{sT0}, s{sJ}
    s_lshr_b32 s{sCT}, s{sT0}, 2
    s_cmp_ge_u32 s{sJ}, 30
    s_cselect_b32 s{sCT}, 7, s{sCT}
    s_and_b32 s{sT0}, s{sT0}, 3
    s_lshr_b32 s{sRB}, s{sXC}, 1
    s_lshl2_add_u32 s{sRB}, s{sRB}, s{sT0}
    s_barrier
    """)
    if cfg.map2 == "head": a(f"s_mov_b32 s{sHD}, s{sR64}\ns_mov_b32 s{sQB}, s{sC80}")
    else: a(f"s_mov_b32 s{sHD}, s{sJ}\ns_mov_b32 s{sQB}, s{sXC}")
    a(f"s_cmp_lt_u32 s{sWV}, 4\ns_cbranch_scc1 L_C")

    vX = 16; vW = 20; vW2 = 63; vD = 21; vNH = 22; vHA = 64; vHB = 80
    srd_consts((SX, SW))
    a(f"""
    v_lshrrev_b32 v2, 3, v1
    v_lshrrev_b32 v3, 4, v1
    v_xor_b32 v4, v3, v1
    v_and_b32 v4, 7, v4
    v_mul_u32_u24 v2, 1280, v2
    v_lshl_add_u32 v{vX}, v4, 4, v2
    v_xor_b32 v4, 4, v4
    v_lshl_add_u32 v{vX+1}, v4, 4, v2
    v_add_u32 v{vX+1}, {8*1280}, v{vX+1}
    v_add_u32 v{vX+2}, {16*1280}, v{vX}
    v_add_u32 v{vX+3}, {16*1280}, v{vX+1}
    v_lshlrev_b32 v4, 2, v3
    v_xor_b32 v4, v4, v1
    v_and_b32 v4, 15, v4
    v_mul_u32_u24 v3, 3840, v3
    v_lshl_add_u32 v{vW}, v4, 4, v3
    v_xor_b32 v{vW2}, {32 if cfg.m16 else 0}, v{vW}
    s_mul_i32 s{sA}, s{sRB}, {128*1280}
    s_mul_i32 s{sT0}, s{sHW}, {32*1280}
    s_add_u32 s{sA}, s{sA}, s{sT0}
    s_lshl_b32 s{sB}, s{sCT}, 8
    s_mul_i32 s{sT0}, s{sHW}, {16*3840}
    s_add_u32 s{sB}, s{sB}, s{sT0}
    s_lshl_b32 s{sT5}, s{sHW}, 12
    """)
    if cfg.ncls == 10:
        a(f"s_and_b32 s{sT0}, s{sRB}, 3\ns_mul_i32 s{sT0}, s{sT0}, 5\ns_add_u32 s{sT0}, s{sT0}, 1\ns_lshr_b32 s{sT0}, s{sT0}, 1\ns_lshr_b32 s{sT1}, s{sRB}, 2\ns_add_u32 s{sT0}, s{sT0}, s{sT1}\ns_add_u32 s{sKC}, s{sT0}, s{sCT}")
    elif cfg.ncls == 2:
        a(f"s_add_u32 s{sT0}, s{sRB}, s{sCT}\ns_and_b32 s{sT0}, s{sT0}, 1\ns_mul_i32 s{sT0}, s{sT0}, 5\ns_add_u32 s{sKC}, s{sT0}, s{sXC}")
    elif cfg.ncls == 4:
        a(f"s_add_u32 s{sT0}, s{sRB}, s{sCT}\ns_and_b32 s{sT0}, s{sT0}, 3\ns_mul_i32 s{sT0}, s{sT0}, 5\ns_add_u32 s{sT0}, s{sT0}, 1\ns_lshr_b32 s{sT0}, s{sT0}, 1\ns_mul_i32 s{sT1}, s{sXC}, {cfg.xoff}\ns_add_u32 s{sKC}, s{sT0}, s{sT1}")
    elif cfg.ncls == 3:
        a(f"s_add_u32 s{sT0}, s{sRB}, s{sCT}\ns_mul_i32 s{sT1}, s{sT0}, 86\ns_lshr_b32 s{sT1}, s{sT1}, 8\ns_mul_i32 s{sT1}, s{sT1}, 3\ns_sub_u32 s{sT0}, s{sT0}, s{sT1}\ns_mul_i32 s{sT0}, s{sT0}, 7\ns_lshr_b32 s{sT0}, s{sT0}, 1\ns_mul_i32 s{sT1}, s{sXC}, {cfg.xoff}\ns_add_u32 s{sKC}, s{sT0}, s{sT1}")
    else:
        a(f"s_mov_b32 s{sKC}, s{sXC}")
    a(f"s_mul_i32 s{sT0}, s{sKC}, 205\ns_lshr_b32 s{sT0}, s{sT0}, 11\ns_mul_i32 s{sT0}, s{sT0}, 10\ns_sub_u32 s{sKC}, s{sKC}, s{sT0}")
    def ring_issue(c):
        slot = ((c + 1) % 3) * 32768
        a(f"s_lshl_b32 s{sT0}, s{sKC}, 7\ns_add_u32 s{sT0}, s{sT0}, s{sA}\ns_mul_i32 s{sT1}, s{sKC}, {64*3840}\ns_add_u32 s{sT1}, s{sT1}, s{sB}")
        for i in range(4):
            dma(vX + i, SX, f"s{sT0}", f"s_add_u32 m0, s{sT5}, {slot + i*1024}")
            dma(vW if i < 2 else vW2, SW, f"s{sT1}", f"s_add_u32 m0, s{sT5}, {slot + 16384 + i*1024}")
            if i < 3: a(f"s_add_u32 s{sT1}, s{sT1}, {4*3840}")
        a(f"s_add_u32 s{sKC}, s{sKC}, 1\ns_cmp_eq_u32 s{sKC}, 10\ns_cselect_b32 s{sKC}, 0, s{sKC}")
    def x_issue(c):
        a(f"s_lshl_b32 s{sT0}, s{sKX}, 7\ns_add_u32 s{sT0}, s{sT0}, s{sA}")
        for i in range(4): dma(vX + i, SX, f"s{sT0}", f"s_add_u32 m0, s{sT5}, {(c % 4) * 32768 + i*1024}")
        a(f"s_add_u32 s{sKX}, s{sKX}, 1\ns_cmp_eq_u32 s{sKX}, 10\ns_cselect_b32 s{sKX}, 0, s{sKX}")
    def w_issue(c):
        a(f"s_mul_i32 s{sT1}, s{sKC}, {64*3840}\ns_add_u32 s{sT1}, s{sT1}, s{sB}")
        for i in range(4):
            dma(vW if i < 2 else vW2, SW, f"s{sT1}", f"s_add_u32 m0, s{sT5}, {((c + 1) % 3) * 32768 + 16384 + i*1024}")
            if i < 3: a(f"s_add_u32 s{sT1}, s{sT1}, {4*3840}")
        a(f"s_add_u32 s{sKC}, s{sKC}, 1\ns_cmp_eq_u32 s{sKC}, 10\ns_cselect_b32 s{sKC}, 0, s{sKC}")
    if cfg.x4:
        a(f"s_mov_b32 s{sKX}, s{sKC}")
        def ring_issue(c):
            if c < 2:
                x_issue(c); w_issue(c)
                if c == 1 and cfg.x4 == 1: x_issue(2)
            else:
                if c == 2 and cfg.x4 == 2: x_issue(2)
                w_issue(c)
                if c + 1 <= 9: x_issue(c + 1)
    def h_chan():
        a(f"""
        s_mul_i32 s{sT0}, s{sJ}, 3
        s_lshl_b32 s{sT1}, s{sJ}, 1
        s_add_u32 s{sT1}, s{sT1}, {cfg.n3}
        s_cmp_lt_u32 s{sJ}, {cfg.n3}
        s_cselect_b32 s{sT0}, s{sT0}, s{sT1}
        s_cselect_b32 s{sT1}, 3, 2
        s_cmp_lt_u32 s{sT0}, 80
        s_cselect_b32 s{sT1}, s{sT1}, 0
        s_cselect_b32 s{sT0}, s{sT0}, 0
        s_cmp_lt_u32 s{sHW}, s{sT1}
        s_cselect_b32 s{sCHV}, 1, 0
        s_cselect_b32 s{sT1}, s{sHW}, 0
        s_add_u32 s{sT0}, s{sT0}, s{sT1}
        s_mul_i32 s{sCH}, s{sXC}, 80
        s_add_u32 s{sCH}, s{sCH}, s{sT0}
        s_bfe_u32 s{sT1}, s{sT0}, 0x20002
        s_cmp_lt_u32 s{sT0}, 64
        s_cselect_b32 s{sT2}, 4, 31
        s_cselect_b32 s{sT1}, 0, s{sT1}
        s_lshr_b32 s{sT0}, s{sT0}, s{sT2}
        s_add_u32 s{sT0}, s{sT0}, s{sT1}
        s_lshl_b32 s{sT1}, s{sXC}, 2
        s_add_u32 s{sT0}, s{sT0}, s{sT1}
        s_lshl_b32 s{sT0}, s{sT0}, 5
        v_and_b32 v12, 31, v1
        v_add_u32 v12, s{sT0}, v12
        v_mul_u32_u24 v12, {cfg.ufs}, v12
        v_add_u32 v12, {WS_FU}, v12
        """)
    def f_load():
        a(f"buffer_load_dwordx2 v[14:15], v12, {srd(SWS)}, 0 offen sc1")
    def h_loads():
        a(f"""
        s_mul_i32 s{sT3}, s{sHW}, {HSTR}
        s_mul_i32 s{sT3}, s{sT3}, s{sCHV}
        s_lshl_b32 s{sT0}, s{sCH}, {12 if not cfg.orc3 else 4}
        s_add_u32 m0, s{sT3}, {L_H + 32}
        s_lshl_b32 s{sT4}, s{sCH}, 1
        v_mov_b32 v4, s{sT4}
        """)
        for i in range(4): a(f"buffer_load_dwordx4 v13, {srd(SH if not cfg.orc3 else SW)}, s{sT0} offen offset:{1024*i} {cfg.nt_in} lds")
        a(f"buffer_load_ushort v{vD}, v4, {srd(SD)}, 0 offen")
    def u_loads():
        check_or_poll(12, 14)
        a(f"s_mul_i32 s{sT2}, s{sHW}, {USTR}\ns_lshl_b32 s{sT0}, s{sCH}, 12\ns_add_u32 s{sT1}, s{sT0}, {WS_U}\ns_add_u32 m0, s{sT2}, {L_U}")
        for i in range(4): a(f"buffer_load_dwordx4 v13, {srd(SWS)}, s{sT1} offen offset:{1024*i} sc1 lds")
    def hu_loads():
        h_loads(); a("s_waitcnt vmcnt(5)"); u_loads()
    ZL = 180; ZPA = 171; sZP = 2; WS_FZ2 = WS_FZ + 0x20000
    AA = 26; AB = 30; BACC = 96; BF = 32; AF = 128; NAF = 5; DF = 148
    def sig(k):
        if k == 0: a("v_subrev_u32 v2, 256, v0")
        else: a(f"s_and_b32 s{sT0}, s{sHW}, 1\ns_mul_i32 s{sT0}, s{sT0}, 320\ns_add_u32 s{sT0}, s{sT0}, 256\nv_add_u32 v2, s{sT0}, v1")
        a("v_mul_u32_u24 v3, 205, v2\nv_lshrrev_b32 v3, 11, v3")
    def b3_setup():
        a(f"s_mul_i32 s30, s{sR64}, {64*1280}\ns_add_u32 s30, s30, s{sC160}\ns_add_u32 s31, s30, {32*1280}")
        for k in range(2):
            sig(k); a(f"v_mul_u32_u24 v3, 1120, v3\nv_lshl_add_u32 v{QA+k}, v2, 4, v3")
        a(f"""
        s_cmp_ge_u32 s{sHW}, 2
        s_cselect_b32 s{sT2}, 15, 23
        v_min_u32 v2, s{sT2}, v1
        v_lshrrev_b32 v3, 3, v2
        v_and_b32 v2, 7, v2
        v_lshl_add_u32 v2, v3, 5, v2
        s_mul_i32 s{sT0}, s{sC80}, 80
        s_lshl3_add_u32 s{sT0}, s{sHW}, s{sT0}
        v_add_u32 v2, s{sT0}, v2
        v_mul_u32_u24 v2, {cfg.zfs}, v2
        v_add_u32 v{FZA}, {WS_FZ}, v2
        s_mul_i32 s{sT0}, s{sCH}, {cfg.zfs}
        s_add_u32 s{sT0}, s{sT0}, {WS_FZ}
        v_mov_b32 v{ZPA}, s{sT0}
        """)
    def b3_zaddr():
        a(f"""
        v_lshrrev_b32 v2, 3, v1
        v_and_b32 v3, 7, v1
        v_lshlrev_b32 v2, 12, v2
        v_lshl_add_u32 v2, v3, 4, v2
        s_mul_i32 s{sT0}, s{sC80}, {80*4096}
        s_lshl_b32 s{sT1}, s{sR64}, 7
        s_add_u32 s{sT0}, s{sT0}, s{sT1}
        s_add_u32 s{sT0}, s{sT0}, {WS_Z}
        """)
        for k in range(3):
            a(f"""
            s_add_u32 s{sT1}, s{sHW}, {4*k}
            s_min_u32 s{sT1}, s{sT1}, 9
            s_and_b32 s{sT2}, s{sT1}, 7
            s_lshl_b32 s{sT2}, s{sT2}, 4
            v_xor_b32 v3, s{sT2}, v2
            s_lshl_b32 s{sT2}, s{sT1}, 15
            s_add_u32 s{sT2}, s{sT2}, s{sT0}
            v_add_u32 v{ZD+k}, s{sT2}, v3
            s_lshl_b32 s{sT2}, s{sT1}, 10
            s_cmp_gt_u32 s{sT1}, 6
            s_cselect_b32 s{sT1}, {L_ZB - 7*1024 - L_ZA}, 0
            s_add_u32 s{sT2}, s{sT2}, s{sT1}
            s_add_u32 s{ZM[k]}, s{sT2}, {L_ZA}
            """)
    def b3_raddr():
        for k in range(2):
            sig(k)
            a(f"""
            v_mul_u32_u24 v5, 2400, v3
            v_lshl_add_u32 v{ROH+2*k}, v2, 4, v5
            v_mul_u32_u24 v4, 10, v3
            v_sub_u32 v4, v2, v4
            v_lshlrev_b32 v5, 3, v4
            v_xor_b32 v5, v5, v3
            v_and_b32 v5, 63, v5
            v_lshlrev_b32 v5, 1, v5
            v_lshl_add_u32 v5, v4, 10, v5
            v_cmp_lt_u32 vcc, 6, v4
            v_add_u32 v6, {L_ZA}, v5
            v_add_u32 v5, {L_ZB - 7*1024}, v5
            v_cndmask_b32 v{ZA+2*k}, v6, v5, vcc
            """)
        a(f"v_add_u32 v{ROH+1}, {32*2560}, v{ROH}\nv_xor_b32 v{ZA+1}, 64, v{ZA}")
    def b2_setup():
        a(f"""
        v_and_b32 v2, 15, v1
        v_lshrrev_b32 v3, 4, v1
        v_add_u32 v4, 1, v2
        v_lshrrev_b32 v4, 1, v4
        v_lshl_add_u32 v4, v3, 2, v4
        v_lshlrev_b32 v4, 2, v4
        v_and_b32 v5, 1, v2
        v_cmp_eq_u32 vcc, 0, v5
        v_mov_b32 v5, {HODD}
        v_cndmask_b32 v5, 0, v5, vcc
        s_mul_i32 s{sT1}, s{sHW}, s{sCHV}
        s_mul_i32 s{sT0}, s{sT1}, {HSTR}
        s_add_u32 s{sT0}, s{sT0}, {L_H}
        v_add3_u32 v{AA}, v4, v5, s{sT0}
        v_add_u32 v{AA+1}, 1024, v{AA}
        v_add_u32 v{AA+2}, 2048, v{AA}
        v_add_u32 v{AA+3}, 3072, v{AA}
        v_lshlrev_b32 v13, 4, v1
        v_add_u32 v25, s{sT0}, v13
        v_lshlrev_b32 v4, 5, v2
        v_lshl_add_u32 v4, v3, 3, v4
        s_lshl_b32 s{sT0}, s{sHW}, 12
        s_add_u32 s{sT0}, s{sT0}, {L_KB}
        v_add_u32 v31, s{sT0}, v4
        v_add_u32 v{ZL}, s{sT0}, v13
        v_sub_u32 v4, 15, v2
        v_lshlrev_b32 v4, 5, v4
        v_lshl_add_u32 v4, v3, 4, v4
        s_mul_i32 s{sT1}, s{sT1}, {USTR}
        s_add_u32 s{sT1}, s{sT1}, {L_U}
        v_add_u32 v{AB}, s{sT1}, v4
        v_lshl_add_u32 v2, v1, 3, s{sT1}
        v_mov_b32 v4, 0
        v_mov_b32 v5, 0
        v_mov_b32 v6, 0
        v_mov_b32 v7, 0
        ds_write_b64 v2, v[4:5] offset:4096
        s_mov_b64 exec, 3
        ds_write_b128 v25, v[4:7]
        ds_write_b128 v25, v[4:7] offset:{HODD}
        s_mov_b64 exec, -1
        """)
    def h_late():
        b3_setup(); a2_setup(); wom_setup()
        if cfg.zfill: b3_zaddr()
        if not cfg.mlds: build_masks(None)
    L_MK = L_KB + 12288
    def mask_read():
        a(f"v_add_u32 v2, {L_MK}, v13")
        for i in range(8): a(f"ds_read_b128 v[{vCD+4*i}:{vCD+4*i+3}], v2 offset:{1024*i}")
    def oc_read():
        for i in range(4):
            a(f"ds_read_b128 v[{vHA+6*i}:{vHA+6*i+3}], v25 offset:{32+1024*i}\nds_read_b32 v{vHA+6*i+4}, v25 offset:{48+1024*i}")
    def oc_part(i):
        if i == 0:
            a(f"s_waitcnt lgkmcnt(0)\nv_lshlrev_b32 v11, 16, v{vHA}\ns_mov_b64 exec, 1\nds_write_b32 v25, v11 offset:{HODD+28}\ns_mov_b64 exec, -1")
        for j in range(4): a(f"v_alignbit_b32 v{vHA+6*i+j}, v{vHA+6*i+j+1}, v{vHA+6*i+j}, 16")
        a(f"ds_write_b128 v25, v[{vHA+6*i}:{vHA+6*i+3}] offset:{HODD+32+1024*i}")
    def oc_d():
        a(f"""
        v_and_b32 v2, 15, v1
        v_sub_u32 v2, 15, v2
        v_lshrrev_b32 v3, 4, v1
        v_lshlrev_b32 v3, 2, v3
        v_lshrrev_b32 v4, 1, v2
        v_sub_u32 v4, v4, v3
        v_and_b32 v2, 1, v2
        v_lshlrev_b32 v2, 4, v2
        v_lshlrev_b32 v2, v2, v{vD}
        """)
        for rr in range(4): a(f"v_cmp_eq_u32 vcc, {rr}, v4\nv_cndmask_b32 v{DF+rr}, 0, v2, vcc")
    def odd_copy(nw):
        a(f"s_waitcnt vmcnt({nw}) lgkmcnt(0)"); oc_read(); oc_d()
        for i in range(4): oc_part(i)
    def ifch(f):
        L = a.lab("L_ifch")
        a(f"s_cmp_eq_u32 s{sCHV}, 0\ns_cbranch_scc1 {L}"); f(); a(f"{L}:")
    def b1_arrive(n):
        a(f"v_mov_b32 v2, {L_SYNC + 16}\nv_mov_b32 v3, 1\ns_waitcnt vmcnt({n})\ns_mov_b64 exec, 1\nds_add_u32 v2, v3\ns_mov_b64 exec, -1")
    rest_srd = (SWO, SQ, SH, SD, SOUT, SDBG, SWS)
    a(f"s_cmp_ge_u32 s{sJ}, 30\ns_cbranch_scc1 L_h_idle")
    stamp(1, "st")
    ring_issue(0)
    stamp(2, "st")
    if cfg.grp == "st":
        a("s_waitcnt vmcnt(7)"); stamp(3, "st"); a("s_waitcnt vmcnt(0)"); stamp(4, "st")
    b1_arrive(8)
    if cfg.r1first: ring_issue(1)
    srd_consts(rest_srd)
    h_chan(); b2_setup()
    a("v_mov_b32 v199, 0\nv_mov_b32 v189, 0\ns_waitcnt lgkmcnt(0)")
    if not cfg.nfill:
        for i, f in enumerate((b3_setup, a2_setup, lambda: (build_masks(None), wom_setup()))):
            if cfg.lset[i] == "s": f()
    stamp(5, "st")
    if not cfg.r1first: ring_issue(1)
    stamp(6, "st")
    if cfg.grp == "st":
        a("s_waitcnt vmcnt(0)"); stamp(7, "st")
    pubc = max(cfg.b1c, cfg.ust) + cfg.upub
    for c in range(10):
        w = {1: 9, 7: 9 if cfg.fld == 6 else 8, 9: 9 if cfg.hc == 8 else 4}.get(c, 8)
        if c == cfg.hc + 1 and c < 9: w += 5
        if cfg.x4 and c <= 7 and not (c == 0 and cfg.x4 == 2): w += 4
        a(f"s_waitcnt vmcnt({w})")
        if c == cfg.hc + 1 and c < 8 and cfg.nodup:
            L = a.lab("L_nd"); a(f"s_cmp_lg_u32 s{sCHV}, 0\ns_cbranch_scc1 {L}\ns_waitcnt vmcnt({w - 5})\n{L}:")
        if c in (0, 1, 2, 3, 5, 7, 9): stamp(1 + (0, 1, 2, 3, 5, 7, 9).index(c), "a1")
        a("s_barrier")
        if c == 0: nonce_issue(vNH)
        if c == cfg.fld: f_load()
        if c == cfg.hc and c < 8:
            if cfg.nodup: ifch(h_loads)
            else: h_loads()
        spread = cfg.ocs and cfg.hc <= 4
        if spread and c == 6: oc_read()
        if c + 2 <= 9: ring_issue(c + 2)
        if cfg.hs0 >= 0 and c >= cfg.hs0:
            k = c - cfg.hs0
            if k == 0:
                a(f"""
                s_mul_i32 s{sT1}, s{sHW}, s{sCHV}
                s_sub_u32 s{sT0}, s{sCH}, s{sT1}
                s_lshl_b32 s{sT0}, s{sT0}, 12
                s_lshl_b32 s{sT1}, s{sHW}, 6
                s_add_u32 s{sT0}, s{sT0}, s{sT1}
                s_add_u32 s24, s{SH}, s{sT0}
                s_addc_u32 s25, s{SH+1}, 0
                s_sub_u32 s26, s{SH+2}, s{sT0}
                s_mov_b32 s27, 0x20000
                """)
            for i in range(cfg.hsn * k, min(cfg.hsn * (k + 1), 48)): a(f"s_buffer_load_dword s28, s[24:27], {256*i}")
        if spread and c == 6: ifch(lambda: oc_part(0))
        if c == 2: nonce_take(vNH)
        if c == 7: a(f"s_cmp_eq_u32 s{sCHV}, 0\ns_cbranch_scc1 L_h_nob2a")
        if spread and c == 7: oc_part(1)
        if c == 8:
            if cfg.hc == 8: h_loads()
            u_loads()
            if spread: oc_part(2); oc_part(3)
            elif cfg.hc < 8 and not cfg.oc9: odd_copy(12)
        if spread and c == 9: oc_d()
    a("L_h_post:")
    def h_idle():
        a("L_h_idle:")
        srd_consts(rest_srd)
        h_chan(); b2_setup()
        a("s_waitcnt vmcnt(0) lgkmcnt(0)")
        a("v_mov_b32 v199, 0\nv_mov_b32 v189, 0")
        if not cfg.nfill: h_late()
        if cfg.assist:
            L = a.lab("L_as")
            a(f"""
            s_cmp_ge_u32 s{sHW}, {cfg.assist}
            s_cbranch_scc1 {L}
            s_add_u32 s{sT0}, s{sKC}, s{sHW}
            s_sub_u32 s{sT1}, s{sT0}, 10
            s_min_u32 s{sT0}, s{sT0}, s{sT1}
            s_mul_i32 s{sT0}, s{sT0}, {64*3840}
            s_add_u32 s{sT0}, s{sT0}, {7*256}
            v_mul_u32_u24 v2, 3840, v1
            s_waitcnt vmcnt(0)
            buffer_load_dword v62, v2, {srd(SW)}, s{sT0} offen
            buffer_load_dword v62, v2, {srd(SW)}, s{sT0} offen offset:128
            {L}:
            """)
        a("s_barrier")
        nonce_issue(vNH)
        a("s_barrier\ns_waitcnt vmcnt(0)")
        nonce_take(vNH)
        a(f"s_cmp_eq_u32 s{sCHV}, 0\ns_cbranch_scc1 L_h_nob2")
        f_load()
        hu_loads()
        if cfg.hc < 8 and not cfg.oc9: odd_copy(4)
        if cfg.mlds:
            build_masks(None)
            a(f"v_add_u32 v2, {L_MK}, v13")
            for i in range(8): a(f"ds_write_b128 v2, v[{vCD+4*i}:{vCD+4*i+3}] offset:{1024*i}")
        a("s_branch L_h_post")
    ool.append(h_idle)
    stamp(2)
    if cfg.stop <= 1: a("s_branch L_fin")
    def q_loads():
        for k in range(3): a(f"buffer_load_dwordx4 v[{QV+4*k}:{QV+4*k+3}], v{QA + k//2}, {srd(SQ)}, s{31 if k == 1 else 30} offen {cfg.nt_in}")
    HT, HZ, OZ = {1: ([1, 2, 3], [(512, False), (1536, True)], [(2048, False), (3072, False), (0, True)]),
                  2: ([0, 1, 2], [(0, False), (1024, True)], [(2048, False), (3072, False), (1536, True)]),
                  3: ([0, 1], [(0, False)], [(1024, False), (2048, False), (3072, False)]),
                  4: ([1, 2], [(512, False)], [(2048, False), (3072, False), (0, True), (1536, True)])}[max(cfg.bal, 1)]
    def conv(tiles, fill):
        mus = [mu for mu in range(8) if mu <= max(tiles)]
        order = []
        lo_, hi_ = 0, len(mus) - 1
        while lo_ <= hi_:
            order.append(mus[lo_]); lo_ += 1
            if lo_ <= hi_: order.append(mus[hi_]); hi_ -= 1
        groups = [(r, mu) for r in range(7) for mu in order] + [(7, mu) for mu in reversed(mus)]
        G = len(mus); NG = len(groups); LA = NAF - 1
        def b_read(r, nn):
            d = BF + 32 * (r & 1) + 4 * nn
            return [(f"ds_read_b128 v[{d}:{d+3}], v{AB} offset:{2*(1792 - 32*(8*nn - r))}", ("B", r, nn))]
        def a_read(gi):
            r, mu = groups[gi]; kap = 8 * mu + r
            d = AF + 4 * (gi % NAF); o = 16 * (kap % 16)
            return [(f"ds_read2_b32 v[{d}:{d+1}], v{AA + kap//16} offset0:{o} offset1:{o+1}", ("A", gi)),
                    (f"ds_read2_b32 v[{d+2}:{d+3}], v{AA + kap//16} offset0:{o+2} offset1:{o+3}", ("A", gi))]
        def emit(l):
            for t, tag in l: a(t); issue(tag, 1)
        def fin(j):
            dd = BACC + 4 * j; p = 8 + 2 * (j & 1)
            a(f"v_cvt_pk_bf16_f32 v{p}, v{dd}, v{dd+1}\nv_cvt_pk_bf16_f32 v{p+1}, v{dd+2}, v{dd+3}\nds_write_b64 v31, v[{p}:{p+1}] offset:{512*j}")
        q.clear()
        for nn in tiles + [n_ for n_ in range(G) if n_ not in tiles]: emit(b_read(0, nn))
        for gi in range(3): emit(a_read(gi))
        for i in tiles:
            wait_for({("B", 0, i)})
            d = BACC + 4 * i; f = BF + 4 * i
            a(f"v_mfma_f32_16x16x32_bf16 v[{d}:{d+3}], v[{DF}:{DF+3}], v[{f}:{f+3}], 0")
        for gi in range(3, LA): emit(a_read(gi))
        done = []
        for gi, (r, mu) in enumerate(groups):
            tl = [i for i in tiles if i >= mu]
            wait_for({("A", gi)} | {("B", r, i - mu) for i in tl})
            pend = []
            if gi + LA < NG: pend += a_read(gi + LA)
            if r < 7 and (gi % G) % 2 == 0:
                for nn in (gi % G, gi % G + 1):
                    if nn < G: pend += b_read(r + 1, nn)
            for n, i in enumerate(tl):
                d = BACC + 4 * i; f = BF + 32 * (r & 1) + 4 * (i - mu); s = AF + 4 * (gi % NAF)
                a(f"v_mfma_f32_16x16x32_bf16 v[{d}:{d+3}], v[{s}:{s+3}], v[{f}:{f+3}], v[{d}:{d+3}]")
                k = -(-len(pend) // (len(tl) - n))
                emit(pend[:k]); del pend[:k]
                if gi < NG - 1:
                    nv = k
                    while fill and nv < cfg.nfill:
                        t = fill.pop(0); a(t); nv += 1 if t.startswith("v_") else 0.5
                elif n >= 3:
                    fin(tl[n - 3]); done.append(tl[n - 3])
        for t in fill: a(t)
        for j in tiles:
            if j not in done: fin(j)
    def z_out(pieces):
        for k, (o, half) in enumerate(pieces): a(f"ds_read_b128 v[{32+4*k}:{35+4*k}], v{ZL} offset:{o}")
        for k, (o, half) in enumerate(pieces):
            a(f"s_waitcnt lgkmcnt({len(pieces)-1-k})")
            if half: a("s_mov_b32 exec_hi, 0")
            a(f"buffer_store_dwordx4 v[{32+4*k}:{35+4*k}], v13, {srd(SWS)}, s{sA} offen offset:{o} sc1")
            if half: a("s_mov_b32 exec_hi, -1")
    def h_nob2():
        late = capture(h_late)
        def safe(p):
            while True:
                for t in late[p:]:
                    if t.startswith("s_cselect"): break
                    if t.startswith("s_cmp"): return p
                else: return p
                p += 1
        n1 = safe(cfg.hl1) if cfg.bal else 0
        a("L_h_nob2a:")
        wo_early_addr()
        a("s_waitcnt vmcnt(8)\ns_barrier")
        for t in late[:n1]: a(t)
        a("s_waitcnt vmcnt(0)\ns_barrier\ns_branch L_h_nob2b\nL_h_nob2:")
        wo_early_addr()
        for t in late[:n1]: a(t)
        a("L_h_nob2b:\ns_waitcnt lgkmcnt(0)")
        if cfg.stop <= 1: a("s_branch L_fin")
        a(f"s_lshl_b32 s{sB}, s{sCH}, 1\nv_mov_b32 v12, s{sB}")
        for k in range(3): a(f"buffer_load_ushort v{21+k}, v12, {srd(SD)}, 0 offen offset:{2*k}")
        a(f"s_cmp_lg_u32 s{sWV}, 7\ns_cbranch_scc1 L_h_nob2c")
        sv = capture(wo_early)
        for t in sv: a(t.replace(f"s{sT0},", f"s{sB},").replace(f", s{sT0} ", f", s{sB} "))
        a("L_h_nob2c:")
        for t in late[n1:]: a(t)
        if cfg.mlds: build_masks(None)
        a("s_waitcnt vmcnt(0)")
        if not cfg.bal:
            a("s_branch L_join_a"); return
        a(f"""
        s_cmp_lg_u32 s{sWV}, 7
        s_cbranch_scc1 L_join_a
        s_mov_b32 s{sCHV}, 1
        s_lshl_b32 s{sA}, s{sCH}, 12
        s_add_u32 s{sA}, s{sA}, {WS_Z}
        s_cmp_lt_u32 s{sJ}, 16
        s_cselect_b32 s{sB}, 3, 2
        v_mov_b32 v12, {L_SYNC + 32}
        L_help:
        """)
        oc_d()
        a(f"""
        v_mov_b32 v21, v22
        v_mov_b32 v22, v23
        s_mov_b32 s{sCNT}, 0
        L_hw:
        ds_read_b32 v14, v12
        s_add_u32 s{sCNT}, s{sCNT}, 1
        s_waitcnt lgkmcnt(0)
        v_cmp_ne_u32 vcc, s{sN}, v14
        s_cmp_gt_u32 s{sCNT}, 0x400000
        s_cbranch_scc1 L_hwd
        s_cbranch_vccnz L_hw
        L_hwd:
        """)
        conv(HT, [])
        a(f"v_add_u32 v{AA}, {HSTR}, v{AA}\nv_add_u32 v{AA+1}, {HSTR}, v{AA+1}\nv_add_u32 v{AB}, {USTR}, v{AB}\nv_add_u32 v12, 4, v12")
        z_out(HZ)
        a(f"s_add_u32 s{sA}, s{sA}, 4096\ns_sub_u32 s{sB}, s{sB}, 1\ns_cmp_lg_u32 s{sB}, 0\ns_cbranch_scc1 L_help")
        stamp(4)
        a("s_branch L_join_a")
    ool.append(h_nob2)
    if cfg.hc == 8 or cfg.oc9: odd_copy(4)
    a(f"s_lshl_b32 s{sA}, s{sCH}, 12\ns_add_u32 s{sA}, s{sA}, {WS_Z}")
    a(f"s_lshl_b32 s{sT0}, s{sHW}, 2\ns_add_u32 s{sT0}, s{sT0}, {L_SYNC + 32}\nv_mov_b32 v2, s{sT0}\nv_mov_b32 v3, s{sN}")
    lf = capture(h_late)
    if not cfg.bal:
        for t in lf[:cfg.ffl]: a(t)
        lf = lf[cfg.ffl:]
    a("s_waitcnt vmcnt(0) lgkmcnt(0)")
    if cfg.bal: a("ds_write_b32 v2, v3")
    if cfg.mlds: mask_read()
    stamp(3)
    conv([i for i in range(8) if i not in HT] if cfg.bal else [0, 1, 2, 3, 4, 5] if cfg.orc else list(range(8)), lf)
    stamp(4)
    z_out(OZ if cfg.bal else [(1024 * i, False) for i in range(4)])
    a("s_branch L_join_a")

    a("L_C:")
    vNC = 60
    srd_consts((SX, SW) + rest_srd)
    a(f"s_mov_b32 s{sCHV}, 0\ns_mov_b32 s{sCH}, 0")
    a(f"""
    s_waitcnt lgkmcnt(0)
    s_or_b32 s{sT0}, s2, s{sWV}
    s_cmp_lg_u32 s{sT0}, 0
    s_cbranch_scc1 L_nonon
    s_memrealtime s[{sN}:{sN+1}]
    s_waitcnt lgkmcnt(0)
    s_or_b32 s{sN}, s{sN}, 1
    v_mov_b32 v6, s{sN}
    v_mov_b32 v7, s{sN+1}
    v_mov_b32 v5, 0
    s_mov_b64 exec, 1
    buffer_store_dwordx2 v[6:7], v5, {srd(SDBG)}, 0 offen sc1
    s_mov_b64 exec, -1
    L_nonon:
    s_cmp_ge_u32 s{sJ}, 30
    s_cbranch_scc1 L_c_idle
    """)
    def tlb():
        if not cfg.tlb: return
        L = a.lab("L_tlb")
        a(f"s_cmp_lg_u32 s{sWV}, 1\ns_cbranch_scc1 {L}\nv_lshlrev_b32 v5, {cfg.tlb}, v1")
        for sr in (SWS, SOUT, SQ, SH, SWO, SD): a(f"buffer_load_dword v63, v5, {srd(sr)}, 0 offen")
        a(f"{L}:")
    GFA = 207; OFA = 199; GPA = 200; sGA, sGB = 0, 1; L_SYNC = 119712
    def qkv_addr():
        a(f"""
        s_lshr_b32 s{sT0}, s{sHD}, 1
        s_mul_i32 s{sT0}, s{sT0}, 5
        s_and_b32 s{sT1}, s{sHD}, 1
        s_lshl_b32 s{sT2}, s{sT1}, 1
        s_add_u32 s{sT2}, s{sT2}, s{sT0}
        s_add_u32 s{sT3}, s{sT2}, 2
        s_lshr_b32 s{sT2}, s{sT2}, 3
        s_lshr_b32 s{sT3}, s{sT3}, 3
        s_lshr_b32 s{sT4}, s{sHD}, 2
        s_mul_i32 s{sGA}, s{sT4}, 10
        s_lshr_b32 s{sGA}, s{sGA}, 3
        s_sub_u32 s{sT2}, s{sT2}, s{sGA}
        s_sub_u32 s{sT3}, s{sT3}, s{sGA}
        s_cmp_eq_u32 s{sQB}, 0
        s_cselect_b32 s{sGA}, 2, 4
        v_lshrrev_b32 v2, 1, v1
        v_min_u32 v2, s{sGA}, v2
        v_and_b32 v4, 1, v1
        v_cmp_eq_u32 vcc, 1, v4
        v_mov_b32 v4, s{sT2}
        v_mov_b32 v5, s{sT3}
        v_cndmask_b32 v4, v4, v5, vcc
        v_lshl_add_u32 v2, v2, 1, v4
        s_lshl_b32 s{sGA}, s{sT4}, 5
        s_lshl_b32 s{sT4}, s{sQB}, 2
        s_add_u32 s{sT4}, s{sT4}, s{sWV}
        s_add_u32 s{sGA}, s{sGA}, s{sT4}
        s_lshl_b32 s{sGA}, s{sGA}, {7 + cfg.gms}
        s_add_u32 s{sGA}, s{sGA}, {WS_FG}
        v_lshl_add_u32 v{GFA}, v2, {3 + cfg.gms}, s{sGA}
        s_lshl_b32 s{sGB}, s{sR64}, 2
        s_add_u32 s{sGB}, s{sGB}, s{sWV}
        s_lshl_b32 s{sGB}, s{sGB}, {7 + cfg.oms}
        s_add_u32 s{sGB}, s{sGB}, {WS_FO}
        v_and_b32 v2, 15, v1
        v_lshl_add_u32 v{OFA}, v2, {3 + cfg.oms}, s{sGB}
        s_mul_i32 s{sT1}, s{sT1}, 3
        s_add_u32 s{sGA}, s{sT0}, s{sT1}
        s_add_u32 s{sGB}, s{sT0}, 2
        s_lshl_b32 s{sGA}, s{sGA}, 15
        s_lshl_b32 s{sGB}, s{sGB}, 15
        s_lshl_b32 s{sT4}, s{sT4}, 10
        s_add_u32 s{sGA}, s{sGA}, s{sT4}
        s_add_u32 s{sGB}, s{sGB}, s{sT4}
        v_lshlrev_b32 v14, 4, v1
        v_bfrev_b32 v15, 1
        s_cmp_eq_u32 s{sQB}, 0
        s_cselect_b64 vcc, -1, 0
        v_cndmask_b32 v15, v14, v15, vcc
        s_lshl_b32 s{sT5}, s{sWV}, 10
        """)
    def gpub_addr():
        a(f"""
        s_and_b32 s{sT0}, s{sWV}, 1
        s_lshl_b32 s{sT2}, s{sCT}, 1
        s_add_u32 s{sT2}, s{sT2}, s{sT0}
        s_mul_i32 s{sT0}, s{sT2}, 26
        s_lshr_b32 s{sT0}, s{sT0}, 8
        s_mul_i32 s{sT1}, s{sT0}, 10
        s_sub_u32 s{sT2}, s{sT2}, s{sT1}
        s_cmp_ge_u32 s{sT2}, 5
        s_cselect_b32 s{sT1}, 5, 0
        s_cselect_b32 s{sT4}, 4, 0
        s_sub_u32 s{sT2}, s{sT2}, s{sT1}
        s_lshr_b32 s{sT1}, s{sWV}, 1
        s_lshl_b32 s{sT3}, s{sRB}, 1
        s_add_u32 s{sT3}, s{sT3}, s{sT1}
        v_and_b32 v2, 1, v1
        v_lshrrev_b32 v3, 1, v1
        v_sub_u32 v4, s{sT2}, v2
        v_cmp_gt_u32 vcc, 4, v4
        v_add_u32 v4, s{sT4}, v4
        v_lshl_add_u32 v5, v3, 2, s{sT3}
        v_cmp_gt_u32 s[{sEX}:{sEX+1}], 32, v5
        s_and_b64 vcc, vcc, s[{sEX}:{sEX+1}]
        s_cmp_eq_u32 s{sT0}, 0
        s_cselect_b32 s{sT1}, 3, 15
        s_and_b32 vcc_lo, vcc_lo, s{sT1}
        s_mov_b32 vcc_hi, 0
        v_lshl_add_u32 v4, v4, 5, v5
        v_lshlrev_b32 v4, 7, v4
        v_lshl_add_u32 v5, v3, 1, s{sT0}
        v_lshl_add_u32 v5, v5, 1, v2
        v_lshl_add_u32 v4, v5, 3, v4
        v_lshlrev_b32 v4, {cfg.gms}, v4
        v_add_u32 v4, {WS_FG}, v4
        v_bfrev_b32 v5, 1
        v_cndmask_b32 v{GPA}, v5, v4, vcc
        """)
    OTA = 189
    def ot_addr(OTA):
        a(f"""
        s_lshl2_add_u32 s{sT0}, s{sR64}, s{sHW}
        s_mul_i32 s{sT0}, s{sT0}, {16*2560}
        s_add_u32 s{sT0}, s{sT0}, s{sC160}
        v_bfe_u32 v2, v1, 1, 4
        v_mul_u32_u24 v2, 2560, v2
        v_and_b32 v3, 1, v1
        v_mul_u32_u24 v3, 156, v3
        v_add3_u32 v2, v2, v3, s{sT0}
        v_lshrrev_b32 v3, 5, v1
        v_mul_u32_u24 v3, {1280 if cfg.otb else 0}, v3
        v_add_u32 v{OTA}, v2, v3
        """)
    def mask_write():
        a(f"v_lshlrev_b32 v2, 4, v1\nv_add_u32 v2, {L_MK}, v2")
        for w in range(4):
            L = a.lab("L_mw")
            a(f"s_cmp_lg_u32 s{sWV}, {w}\ns_cbranch_scc1 {L}")
            for i in (2 * w, 2 * w + 1): a(f"ds_write_b128 v2, v[{vCD+4*i}:{vCD+4*i+3}] offset:{1024*i}")
            a(f"{L}:")
        a("s_waitcnt lgkmcnt(0)")
    def prewarm():
        a(f"buffer_load_dword v63, v{GFA}, {srd(SWS)}, 0 offen sc1\nbuffer_load_dword v63, v{OFA}, {srd(SWS)}, 0 offen sc1")
    def c_idle():
        a("L_c_idle:")
        build_masks(None); a2_setup(); qkv_addr(); wom_setup()
        a("s_waitcnt vmcnt(0)\ns_barrier")
        nonce_issue(vNC)
        if cfg.prew: prewarm()
        b1_compute(128); b1_store(128)
        a("s_barrier\ns_waitcnt vmcnt(0)")
        nonce_take(vNC); publish_u(2)
        if cfg.wdelay:
            a(f"v_subrev_u32 v7, {2*cfg.ufs}, v4")
            poll(7, 8)
        tlb()
        if cfg.wopre:
            a(f"""
            s_sub_u32 s{sT0}, s{sJ}, 30
            s_lshl_b32 s{sT0}, s{sT0}, 2
            s_add_u32 s{sT0}, s{sT0}, s{sWV}
            s_lshl_b32 s{sT0}, s{sT0}, 6
            v_add_u32 v4, s{sT0}, v1
            s_lshl_b32 s{sT1}, s{sXC}, 9
            v_add_u32 v2, s{sT1}, v4
            """)
            if cfg.hpre:
                a(f"s_mul_i32 s{sT1}, s{sXC}, {80*4096}\nv_lshlrev_b32 v6, 7, v4")
            for i in range(cfg.hpre):
                a(f"s_waitcnt vmcnt(1)\nbuffer_load_dword v63, v6, {srd(SH)}, s{sT1} offen\ns_add_u32 s{sT1}, s{sT1}, {512*128}")
            for i in range(cfg.wopre + cfg.qpre):
                a("s_waitcnt vmcnt(1)")
                if i >= cfg.wopre:
                    if i == cfg.wopre: a(f"s_mul_i32 s{sT1}, s{sXC}, {256*1280}\nv_lshlrev_b32 v6, 7, v4")
                    a(f"buffer_load_dword v63, v6, {srd(SQ)}, s{sT1} offen\ns_add_u32 s{sT1}, s{sT1}, {512*128}")
                    continue
                if cfg.wlin:
                    a(f"v_add_u32 v3, {cfg.wlin + 512*i}, v4\nv_subrev_u32 v5, 6400, v3\nv_min_u32 v3, v3, v5")
                elif i < 8:
                    a(f"v_and_b32 v2, 4095, v2\nv_add_u32 v3, 4480, v2\nv_subrev_u32 v5, 6400, v3\nv_min_u32 v3, v3, v5\nv_add_u32 v2, 512, v2")
                else:
                    a(f"v_add_u32 v3, {2176 + 512*(i-8)}, v4")
                a(f"v_lshlrev_b32 v3, 7, v3\nbuffer_load_dword v63, v3, {srd(SWO)}, 0 offen")
        a("s_branch L_c_post")
    ool.append(c_idle)
    stamp(1, "st")
    stamp(2, "st")
    if cfg.tlball: tlb()
    if cfg.tlbs:
        L = a.lab("L_tlbs")
        a(f"s_cmp_lg_u32 s{sWV}, 1\ns_cbranch_scc1 {L}")
        for sr, n in ((SWS, 10), (SOUT, 3), (SQ, 2), (SH, 2), (SWO, 1), (SD, 1)):
            for i in range(n):
                a(f"s_mov_b32 s{sT0}, {i << 21}\ns_load_dword s3, s[{sr}:{sr+1}], s{sT0}")
        a(f"{L}:")
    ACC = 64
    FS4 = [128, 144, 16, 32]
    if not cfg.m16:
        AX = 48; AW = 56
        a(f"""
        s_and_b32 s{sT0}, s{sWV}, 1
        s_lshr_b32 s{sT1}, s{sWV}, 1
        v_and_b32 v2, 31, v1
        v_lshrrev_b32 v3, 5, v1
        v_bfe_u32 v4, v2, 1, 3
        v_xor_b32 v4, v4, v3
        s_lshl_b32 s{sT2}, s{sT1}, 13
        v_lshlrev_b32 v5, 7, v2
        v_add_u32 v5, s{sT2}, v5
        """)
        for ks in range(4):
            a(f"v_xor_b32 v6, {2*ks}, v4\nv_lshl_add_u32 v{AX+ks}, v6, 4, v5\nv_add_u32 v{AX+4+ks}, 0x10000, v{AX+ks}")
        a(f"""
        v_bfe_u32 v4, v1, 2, 2
        v_lshl_add_u32 v5, v3, 3, v4
        v_lshlrev_b32 v5, 8, v5
        v_and_b32 v6, 3, v1
        v_lshl_add_u32 v5, v6, 3, v5
        v_and_b32 v6, 16, v1
        v_lshl_add_u32 v5, v6, 1, v5
        v_add_u32 v5, 16384, v5
        s_lshl_b32 s{sT2}, s{sT0}, 1
        """)
        for mt in range(2):
            a(f"s_add_u32 s{sT3}, s{sT2}, {mt}\nv_xor_b32 v6, s{sT3}, v4\nv_lshl_add_u32 v{AW+mt}, v6, 6, v5\nv_add_u32 v{AW+2+mt}, 0x10000, v{AW+mt}")

    else:
        AX = 48; AW = 52
        a(f"""
        s_and_b32 s{sT0}, s{sWV}, 1
        s_lshr_b32 s{sT1}, s{sWV}, 1
        v_and_b32 v2, 15, v1
        v_lshrrev_b32 v3, 4, v1
        v_lshrrev_b32 v4, 1, v2
        v_xor_b32 v4, v4, v3
        s_lshl_b32 s{sT2}, s{sT1}, 13
        v_lshlrev_b32 v5, 7, v2
        v_add_u32 v5, s{sT2}, v5
        """)
        for ks in range(2):
            a(f"v_xor_b32 v6, {4*ks}, v4\nv_lshl_add_u32 v{AX+ks}, v6, 4, v5\nv_add_u32 v{AX+2+ks}, 0x10000, v{AX+ks}")
        a(f"""
        v_bfe_u32 v4, v1, 2, 2
        v_lshl_add_u32 v5, v3, 3, v4
        v_lshlrev_b32 v5, 8, v5
        v_and_b32 v6, 3, v1
        v_lshl_add_u32 v5, v6, 3, v5
        v_and_b32 v6, 16, v1
        v_lshl_add_u32 v5, v6, 1, v5
        v_add_u32 v5, 16384, v5
        s_lshl_b32 s{sT2}, s{sT0}, 1
        """)
        for m2 in range(2):
            a(f"s_add_u32 s{sT3}, s{sT2}, {m2}\nv_xor_b32 v6, s{sT3}, v4\nv_lshl_add_u32 v{AW+2*m2}, v6, 6, v5\nv_xor_b32 v{AW+2*m2+1}, 32, v{AW+2*m2}")
        for mt in range(4): a(f"v_add_u32 v{AW+4+mt}, 0x10000, v{AW+mt}")
    cset = {"m": lambda: build_masks(None), "a": a2_setup, "q": qkv_addr, "g": gpub_addr, "w": wom_setup}
    for k in cfg.cs0: cset[k]()
    stamp(3, "st")
    if cfg.b1c < 0:
        a(f"""
        v_mov_b32 v2, {L_SYNC + 16}
        v_mov_b32 v3, 1
        s_mov_b32 s{sCNT}, 0
        s_waitcnt vmcnt(0)
        s_mov_b64 exec, 1
        ds_add_u32 v2, v3
        s_mov_b64 exec, -1
        """)
        nonce_issue(vNC)
        if cfg.prew: prewarm()
        a(f"""
        L_b1s:
        ds_read_b32 v3, v2
        s_add_u32 s{sCNT}, s{sCNT}, 1
        s_waitcnt lgkmcnt(0)
        v_cmp_ne_u32 vcc, 8, v3
        s_cmp_gt_u32 s{sCNT}, 0x100000
        s_cbranch_scc1 L_b1t
        s_cbranch_vccnz L_b1s
        L_b1t:
        """)
        stamp(1)
        b1_compute(128)
        if cfg.ust < 0: b1_store(128)
    def a1_reads(c, ks):
        F = FS4[ks]
        slot = (c + 1) % 3; hi = slot >> 1; o = (slot & 1) * 32768
        r = []
        for half in range(2):
            for t in range(2):
                r.append(f"ds_read_b64_tr_b16 v[{F+4*half+2*t}:{F+4*half+2*t+1}], v{AW+2*hi+half} offset:{o + (16*ks+4*t)*256}")
            r.append(f"ds_read_b128 v[{F+8+4*half}:{F+8+4*half+3}], v{AX+4*hi+ks} offset:{o + half*4096}")
        return [] if cfg.noread else r
    def a1_mfma(ks, first):
        F = FS4[ks]; r = []
        for mt, nt in ((0, 0), (1, 0), (1, 1), (0, 1)):
            d = ACC + 16 * (2 * mt + nt)
            r.append(f"v_mfma_f32_32x32x16_bf16 v[{d}:{d+15}], v[{F+4*mt}:{F+4*mt+3}], v[{F+8+4*nt}:{F+8+4*nt+3}], " + ("0" if first else f"v[{d}:{d+15}]"))
        return [] if cfg.nomfma else r
    def weave(reads, mf, per):
        reads = list(reads)
        for m in mf:
            for _ in range(per):
                if reads: a(reads.pop(0))
            a(m)
        for r in reads: a(r)
    FS2 = [128, 16]
    def r16(c, ks):
        F = FS2[ks]; slot = (c + 1) % 3; hi = slot >> 1; o = (slot & 1) * 32768; r = []
        for i in range(4):
            for t in range(2):
                r.append(f"ds_read_b64_tr_b16 v[{F+4*i+2*t}:{F+4*i+2*t+1}], v{AW+4*hi+i} offset:{o + (32*ks+4*t)*256}")
            xs = c % 4 if cfg.x4 else slot
            r.append(f"ds_read_b128 v[{F+16+4*i}:{F+16+4*i+3}], v{AX+2*(xs >> 1)+ks} offset:{(xs & 1) * 32768 + i*2048}")
        return r
    def m16(ks, first):
        F = FS2[ks]; r = []
        for mt in range(4):
            for nt in (range(4) if mt % 2 == 0 else range(3, -1, -1)):
                d = ACC + 4 * (4 * mt + nt)
                r.append(f"v_mfma_f32_16x16x32_bf16 v[{d}:{d+3}], v[{F+4*mt}:{F+4*mt+3}], v[{F+16+4*nt}:{F+16+4*nt+3}], " + ("0" if first else f"v[{d}:{d+3}]"))
        if cfg.nomfma: r = ["s_nop 3"] * 16
        return r
    def rd16(c, ks):
        r = r16(c, ks)
        return [(r[3*i+2], ("X", ks)) for i in range(4)] + [(r[3*i+t], ("W", ks, i)) for i in range(4) for t in range(2)]
    def phase(mm, ks, reads, lo, hi):
        for i in range(lo, hi):
            if i % 4 == 0: wait_for({("X", ks), ("W", ks, i // 4)})
            a(mm[i])
            if reads:
                t, tag = reads.pop(0); a(t); issue(tag, 1)
    PRE = cfg.pre
    q.clear()
    for c in range(10):
        if c > 0: phase(m16(1, False), 1, [], 0, PRE)
        a("s_waitcnt lgkmcnt(0)"); q.clear()
        if c > 0 and c - 1 == cfg.b1c:
            stamp(1); nonce_issue(vNC)
            if cfg.prew: prewarm()
            b1_compute(128)
        if c > 0 and c - 1 == max(cfg.ust, cfg.b1c): b1_store(128)
        if c == 2 and cfg.mlds: mask_write()
        if c == 1:
            for k in cfg.cs1: cset[k]()
        if c == 2:
            for k in cfg.cs2: cset[k]()
        if c == pubc + 1:
            a("s_waitcnt vmcnt(0)")
            nonce_take(vNC); publish_u(2)
        if c in (0, 1, 2, 3, 5, 7, 9): stamp(1 + (0, 1, 2, 3, 5, 7, 9).index(c), "a1")
        a("s_barrier")
        if c == cfg.cprio: a("s_setprio 3")
        if c == 9: break
        rd = rd16(c, 0)
        for _ in range(2 if c > 0 else 12):
            t, tag = rd.pop(0); a(t); issue(tag, 1)
        if c > 0: phase(m16(1, False), 1, rd, PRE, 16)
        assert not rd
        phase(m16(0, c == 0), 0, rd16(c, 1), 0, 16)
    qs = f2u(20 ** -0.5 * math.log2(math.e))
    def epi_addr():
        a(f"""
        s_and_b32 s{sT0}, s{sWV}, 1
        s_lshr_b32 s{sT1}, s{sWV}, 1
        s_lshl_b32 s{sT2}, s{sCT}, 1
        s_add_u32 s{sT2}, s{sT2}, s{sT0}
        s_lshl_b32 s{sT3}, s{sRB}, 1
        s_add_u32 s{sT3}, s{sT3}, s{sT1}
        s_lshl_b32 s{sA}, s{sT2}, 18
        s_lshl_b32 s{sT4}, s{sT3}, 10
        s_add_u32 s{sA}, s{sA}, s{sT4}
        s_lshl_b32 s{sB}, s{sT2}, 5
        s_add_u32 s{sB}, s{sB}, s{sT3}
        s_mul_i32 s{sB}, s{sB}, {FS}
        s_add_u32 s{sB}, s{sB}, {WS_FG}
        v_and_b32 v2, 31, v1
        v_lshrrev_b32 v3, 5, v1
        v_lshlrev_b32 v2, 4, v2
        v_lshl_add_u32 v2, v3, 15, v2
        s_mov_b32 s{sT2}, {qs:#x}
        s_mov_b32 s{sT3}, {qs:#x}
        """)
    if cfg.tmaj:
        X2 = 160
        r0 = r16(9, 0); r1 = r16(9, 1)
        xr1 = [r1[3*i+2].replace(f"v[{FS2[1]+16+4*i}:{FS2[1]+16+4*i+3}]", f"v[{X2+4*i}:{X2+4*i+3}]") for i in range(4)]
        wr1 = [r1[3*i:3*i+2] for i in range(4)]
        pm = m16(1, False)
        sc = capture(epi_addr) + [f"s_cmp_lt_u32 s{sCT}, 5", f"s_cselect_b32 s{sT2}, s{sT2}, 1.0", f"s_cselect_b32 s{sT3}, s{sT3}, 1.0"]
        first = [r0[2], r0[5], r0[8], r0[11], r0[0], r0[1]] + xr1
        rest = [r0[3:5], r0[6:8], r0[9:11]]
        q.clear()
        seq = [(t, ("F",)) for t in first[:6]] + [(t, ("W", 0)) for t in wr1[0]] + [(t, ("F",)) for t in first[6:]]
        late = {8: [(t, ("W", 1)) for t in rest[0] + wr1[1]], 12: [(t, ("W", 2)) for t in rest[1] + wr1[2]]}
        assert PRE == 4
        for i in range(PRE, 16):
            seq += late.get(i, [])
            for _ in range(2):
                if seq:
                    t, tag = seq.pop(0); a(t); issue(tag, 1)
            a(pm[i])
            for _ in range(2):
                if sc: a(sc.pop(0))
        for t in rest[2] + wr1[3]: a(t)
        issue(("W", 3), 4)
        for t in sc: a(t)
        def epi_tile(mt):
            r = [f"s_add_u32 s{sT0}, s{sA}, {2*mt*32768}"]
            for n2 in range(2):
                d = ACC + 4 * (4 * mt + 2 * n2); p = 4 + 4 * n2 if mt % 2 == 0 else 176 if n2 == 0 else 48
                if cfg.tscale:
                    for k in range(8): r.append(f"v_mul_f32 v{d+k}, s{sT2}, v{d+k}")
                for k in range(4): r.append(f"v_cvt_pk_bf16_f32 v{p+k}, v{d+2*k}, v{d+2*k+1}")
                r += [f"v_permlane16_swap_b32 v{p}, v{p+2}", f"v_permlane16_swap_b32 v{p+1}, v{p+3}"]
                r.append(f"buffer_store_dwordx4 v[{p}:{p+3}], v2, {srd(SWS)}, s{sT0} offen offset:{n2*512} sc1")
            return r
        pend = []
        for mt in range(4):
            wait_for({("F",), ("W", mt)})
            for ks in range(2):
                for nt in range(4):
                    d = ACC + 4 * (4 * mt + nt); F = FS2[ks]; xb = (F + 16 if ks == 0 else X2) + 4 * nt
                    a(f"v_mfma_f32_16x16x32_bf16 v[{d}:{d+3}], v[{F+4*mt}:{F+4*mt+3}], v[{xb}:{xb+3}], v[{d}:{d+3}]")
                    if ks + nt > 0:
                        for _ in range(5 if cfg.tscale else 3):
                            if pend: a(pend.pop(0))
            for t in pend: a(t)
            pend = epi_tile(mt)
        stamp(2)
        for t in pend: a(t)
    else:
        mlast = m16(1, False) if cfg.m16 else a1_mfma(2, False) + a1_mfma(3, False)
        weave([], mlast[:4], 0)
        epi_addr()
        weave([], mlast[4:], 0)
        stamp(2)
        def a1_epi(scale):
            n = 0
            if cfg.m16:
                for mt in range(4):
                    a(f"s_add_u32 s{sT0}, s{sA}, {2*mt*32768}")
                    for n2 in range(2):
                        d = ACC + 4 * (4 * mt + 2 * n2); p = 128 + 4 * n; n += 1
                        for k in range(4): a(f"v_cvt_pk_bf16_f32 v{p+k}, v{d+2*k}, v{d+2*k+1}")
                        a(f"v_permlane16_swap_b32 v{p}, v{p+2}\nv_permlane16_swap_b32 v{p+1}, v{p+3}")
                        a(f"buffer_store_dwordx4 v[{p}:{p+3}], v2, {srd(SWS)}, s{sT0} offen offset:{n2*512} sc1")
                return
            for mt, nt in ((0, 0), (1, 0), (1, 1), (0, 1)):
                for i in (0, 2):
                    d = ACC + 16 * (2 * mt + nt) + 4 * i
                    p = 128 + 4 * n; n += 1
                    if scale:
                        for k in range(4): a(f"v_pk_mul_f32 {pr(d+2*k)}, {pr(d+2*k)}, s[{sT2}:{sT3}]")
                    for k in range(4): a(f"v_cvt_pk_bf16_f32 v{p+k}, v{d+2*k}, v{d+2*k+1}")
                    a(f"s_add_u32 s{sT0}, s{sA}, {(4*mt+i)*32768}")
                    a(f"v_permlane32_swap_b32 v{p}, v{p+2}\nv_permlane32_swap_b32 v{p+1}, v{p+3}")
                    a(f"buffer_store_dwordx4 v[{p}:{p+3}], v2, {srd(SWS)}, s{sT0} offen offset:{nt*512} sc1")
        a(f"s_cmp_ge_u32 s{sCT}, 5\ns_cbranch_scc1 L_epi_d")
        for mt, nt in ((0, 0), (0, 1), (1, 0), (1, 1)) if cfg.m16 else ((0, 0), (1, 0), (1, 1), (0, 1)):
            for k in range(8):
                d = ACC + 16 * (2 * mt + nt) + 2 * k
                a(f"v_mul_f32 v{d}, s{sT2}, v{d}\nv_mul_f32 v{d+1}, s{sT2}, v{d+1}")
        a("L_epi_d:\ns_nop 6")
        a1_epi(False)
    a(f"""
    v_mov_b32 v16, s{sN}
    v_mov_b32 v17, s{sN+1}
    s_lshl_b32 s{sT0}, s{sWV}, 2
    s_add_u32 s{sT0}, s{sT0}, {L_SYNC}
    v_mov_b32 v18, s{sT0}
    v_and_b32 v19, 3, v1
    v_lshlrev_b32 v19, 2, v19
    v_add_u32 v19, {L_SYNC}, v19
    ds_write_b32 v18, v16
    s_waitcnt vmcnt(0)
    s_mov_b64 exec, 15
    buffer_store_dwordx2 v[16:17], v{GPA}, {srd(SWS)}, 0 offen sc1
    s_mov_b64 exec, -1
    s_mov_b32 s{sCNT}, 0
    L_sync:
    ds_read_b32 v18, v19
    s_add_u32 s{sCNT}, s{sCNT}, 1
    s_waitcnt lgkmcnt(0)
    v_cmp_ne_u32 vcc, s{sN}, v18
    s_cmp_gt_u32 s{sCNT}, 0x100000
    s_cbranch_scc1 L_c_post
    s_cbranch_vccnz L_sync
    """)
    a("L_c_post:")
    stamp(3)
    if cfg.stop <= 1: a("s_branch L_fin")
    if cfg.otn >= 0: ot_addr(OTA)
    if cfg.sp1: a("v_and_b32 v10, 1, v1\nv_subrev_u32 v10, 1, v10\nv_and_b32 v10, 0x3f80, v10\nv_mov_b32 v11, 0")
    else: a("v_mov_b32 v10, 0x3f803f80\nv_mov_b32 v11, 0x3f803f80")
    a("v_mov_b32 v12, 0\nv_mov_b32 v13, 0\nv_lshlrev_b32 v7, 3, v1")
    if cfg.gdelay: a("s_waitcnt vmcnt(0)")
    if cfg.gdelay > 1: a(f"s_sleep {cfg.gdelay}")
    def g_dma(sec, half):
        lds, lstr = ((L_Q, 4096), (L_K, 8192), (L_V, VSTR))[sec]
        for slot in range(3):
            base = (sGA, 32768 * slot) if slot < 2 else (sGB, 0)
            off = base[1] + sec * 80 * 32768 - (0 if half else 4096)
            a(f"s_add_u32 s{sT0}, s{base[0]}, {off}")
            dma(14 if half else 15, SWS, f"s{sT0}", f"s_add_u32 m0, s{sT5}, {lds + slot*lstr + (4096 if (half and sec) else 0)}", "sc1")
    combos = ((0, 1), (1, 1), (2, 1), (1, 0), (2, 0))
    if cfg.prog:
        a(f"s_mov_b32 s{sCNT}, 0\ns_mov_b32 s{sA}, 0\nL_gp:")
        a(f"buffer_load_dwordx2 v[8:9], v{GFA}, {srd(SWS)}, 0 offen sc1\ns_waitcnt vmcnt(0)")
        cmpflag(8)
        a(f"s_add_u32 s{sCNT}, s{sCNT}, 1\ns_cmp_lt_u32 s{sCNT}, 0x40000\ns_cselect_b32 s{sB}, vcc_lo, 0\ns_or_b32 s{sB}, s{sB}, s{sA}")
        for k, (sec, half) in enumerate(combos):
            L = a.lab("L_gs")
            a(f"s_and_b32 s{sT1}, s{sB}, {3 << (2*k)}\ns_cbranch_scc1 {L}\ns_or_b32 s{sA}, s{sA}, {3 << (2*k)}")
            g_dma(sec, half)
            a(f"{L}:")
        a(f"s_cmp_lg_u32 s{sA}, 0x3ff\ns_cbranch_scc1 L_gp")
        stamp(4)
    else:
        poll(GFA, 8)
        stamp(4)
        for sec, half in combos: g_dma(sec, half)
    a(f"ds_write_b64 v7, v[10:11] offset:{L_ONES}\nds_write_b64 v7, v[10:11] offset:{L_ONES + 512}\nds_write_b64 v7, v[12:13] offset:{L_ONES - 512}")
    a("s_setprio 0\ns_waitcnt vmcnt(0) lgkmcnt(0)")

    for r in (FZA, QA, QA + 1, ZPA, ZD, ZD + 1, ZD + 2): a(f"v_mov_b32 v{r}, 0")
    if cfg.qn < 0:
        a("s_branch L_join_b\nL_join_a:\ns_setprio 1\nL_join_b:\ns_barrier")
    elif cfg.prio: a("s_branch L_join_b\nL_join_a:\ns_setprio 1\nL_join_b:\ns_barrier")
    else: a("L_join_a:\ns_barrier")
    stamp(5)
    if cfg.stop <= 2: a("s_branch L_fin")
    Q0, Q1, Q1B = 16, 20, 60; K0F = 24; K1F = 32; VF = 40; AV = 58; S = 64; PP = 96; O = 112
    def wo_dma(i):
        if cfg.nowo: return
        a("s_mov_b32 m0, s25" if i == 9 else f"s_add_u32 m0, s24, {8192*i}")
        a(f"buffer_load_dwordx4 v{WOV + i % 5}, {srd(SWO)}, s{sC160 if i < 5 else 26} offen lds")
    def k_read(b):
        f = K0F + 4 * (b & 1); o = (8 - b) * 512
        a(f"ds_read_b128 v[{f}:{f+3}], v{AK0} offset:{o}")
        if b % 2 == 0:
            f = K1F + 4 * ((b >> 1) & 1)
            a(f"ds_read_b128 v[{f}:{f+3}], v{AK1} offset:{o}")
    def v_read(b):
        f = VF + 8 * (b & 1); o = 0 if b & 1 else 512
        for s in range(2):
            for t in range(2):
                a(f"ds_read_b64_tr_b16 v[{f+4*s+2*t}:{f+4*s+2*t+1}], v{AVP + b//2} offset:{o + (16*s+8*t)*16}")
    def hook(b):
        L = a.lab("L_hook")
        a(f"s_cmp_lg_u32 s{sNV}, {b}\ns_cbranch_scc1 {L}\ns_nop 7")
        for r in range(16): a(f"v_mov_b32 v{vCZ+r}, v59\nv_mov_b32 v{vCF+r}, v59")
        a(f"s_nop 1\n{L}:")
    def qk(b, half, gen_):
        d = S + 16 * (b & 1)
        if half == 0:
            f = K0F + 4 * (b & 1)
            c = vCD if b == 0 else (vCF if b == 8 else vCZ)
            cs = f"v[{c}:{c+15}]" if (gen_ or c != vCZ) else "0"
            a(f"v_mfma_f32_32x32x16_bf16 v[{d}:{d+15}], v[{f}:{f+3}], v[{Q0}:{Q0+3}], {cs}")
        else:
            f = K1F + 4 * ((b >> 1) & 1); qq = Q1B if b & 1 else Q1
            a(f"v_mfma_f32_32x32x16_bf16 v[{d}:{d+15}], v[{f}:{f+3}], v[{qq}:{qq+3}], v[{d}:{d+15}]")
    def pv(b, s):
        p = PP + 8 * (b & 1); f = VF + 8 * (b & 1)
        a(f"v_mfma_f32_32x32x16_bf16 v[{O}:{O+15}], v[{f+4*s}:{f+4*s+3}], v[{p+4*s}:{p+4*s+3}], " + ("0" if (b == 0 and s == 0) else f"v[{O}:{O+15}]"))
    def cv(b, g):
        d = S + 16 * (b & 1) + 4 * g; p = PP + 8 * (b & 1) + 2 * g
        a(f"v_cvt_pk_bf16_f32 v{p}, v{d}, v{d+1}\nv_cvt_pk_bf16_f32 v{p+1}, v{d+2}, v{d+3}")
    def ex(b, g):
        d = S + 16 * (b & 1) + 4 * g
        a(f"v_exp_f32 v{d}, v{d}\nv_exp_f32 v{d+1}, v{d+1}")
        if g > 0: cv(b, g - 1)
        elif b > 0: cv(b - 1, 3)
        a(f"v_exp_f32 v{d+2}, v{d+2}\nv_exp_f32 v{d+3}, v{d+3}")
    wsched = {}
    i = 0
    for n in range(17):
        k = 0 if n < cfg.wstart else cfg.wfirst if n == cfg.wstart else 1
        wsched[n] = list(range(i, min(i + k, NWO))); i += k
    if cfg.wsch:
        i = 0
        for n, ch in enumerate(cfg.wsch):
            wsched[n] = list(range(i, min(i + int(ch), NWO))); i += int(ch)
        assert i >= NWO and len(cfg.wsch) == 18 and cfg.wbar > 16
    NLATE = len(wsched.get(17, []))
    assert (cfg.qn < 0 or cfg.qn >= NWO - cfg.wfirst) and (cfg.fzn > cfg.qn or cfg.qn >= 17) and cfg.wbar >= cfg.fzn
    def side(b, k, gen_):
        n = 2 * b + k - 1
        if gen_ or n < 0: return
        if n == 0: a("s_barrier")
        if n == cfg.zst:
            L4 = a.lab("L_zs")
            a(f"s_cmp_eq_u32 s{sCHV}, 0\ns_cbranch_scc1 {L4}")
            for i in range(4): a(f"buffer_store_dwordx4 v[{128+4*i}:{131+4*i}], v144, {srd(SWS)}, 0 offen offset:{1024*i} sc1")
            a(f"{L4}:")
        if n == cfg.zpub:
            L2 = a.lab("L_zp"); R = a.lab("L_zpr")
            a(f"s_cmp_lg_u32 s{sCHV}, 0\ns_cbranch_scc1 {L2}\n{R}:")
            def body():
                a(f"{L2}:\nv_mov_b32 v4, s{sN}\nv_mov_b32 v5, s{sN+1}\ns_waitcnt vmcnt({0 if cfg.nowo else sum(len(wsched[j]) for j in range(n)) + (3 if cfg.qn < 0 else 0)})")
                a(f"s_mov_b64 exec, 1\nbuffer_store_dwordx2 v[4:5], v{ZPA}, {srd(SWS)}, 0 offen sc1\ns_mov_b64 exec, -1\ns_branch {R}")
            ool.append(body)
        for i in wsched.get(n, []): wo_dma(i)
        if n == cfg.otn:
            L = a.lab("L_ot")
            a(f"s_cmp_ge_u32 s{sWV}, 4\ns_cbranch_scc1 {L}\nbuffer_load_dword v57, v{OTA}, {srd(SOUT)}, 0 offen {cfg.otf}\n{L}:")
        if n == cfg.qn or n == cfg.fzn:
            L = a.lab("L_hq")
            a(f"s_cmp_lt_u32 s{sWV}, 4\ns_cbranch_scc1 {L}")
            if n == cfg.qn: q_loads()
            else: a(f"buffer_load_dwordx2 v[{FZR}:{FZR+1}], v{FZA}, {srd(SWS)}, 0 offen sc1")
            a(f"{L}:")
        if n == cfg.wbar:
            L = a.lab("L_wb")
            a(f"s_waitcnt vmcnt({1 if (cfg.qn < 0 or cfg.qn >= 17) else 4})\ns_cmp_ge_u32 s{sWV}, 4\ns_cbranch_scc1 {L}\ns_waitcnt vmcnt({1 if cfg.otn >= 0 else 0})\n{L}:\ns_barrier")
            if cfg.qn == 17:
                L = a.lab("L_hq"); a(f"s_cmp_lt_u32 s{sWV}, 4\ns_cbranch_scc1 {L}"); q_loads(); a(f"{L}:")
    def a2_loop(gen_):
        if gen_: a(f"v_mov_b32 v59, {BIGNEG:#x}")
        a("s_waitcnt lgkmcnt(1)")
        qk(0, 0, gen_)
        qk(0, 1, gen_)
        for b in range(9):
            if b in (1, 3, 5, 7) and not gen_: stamp(2 + b // 2, "a2")
            if cfg.prio and b == cfg.prio: a("s_setprio 0")
            if b > 0:
                a("s_waitcnt lgkmcnt(0)")
                pv(b - 1, 0)
            v_read(b)
            if b < 7: k_read(b + 2)
            ex(b, 0)
            if b < 8:
                if gen_: hook(b + 1)
                if b == 0: a("s_waitcnt lgkmcnt(6)")
                qk(b + 1, 0, gen_)
            else: pv(b - 1, 1)
            side(b, 0, gen_)
            ex(b, 1)
            if b < 8: qk(b + 1, 1, gen_)
            ex(b, 2)
            if 0 < b < 8: pv(b - 1, 1)
            if b == 8:
                a("s_waitcnt lgkmcnt(0)"); pv(8, 0)
            side(b, 1, gen_)
            ex(b, 3)
        cv(8, 3)
        pv(8, 1)
    a(f"ds_read_b128 v[{Q1}:{Q1+3}], v{QAD1}\nds_read_b128 v[{Q0}:{Q0+3}], v{QAD0}")
    k_read(0); k_read(1)
    if cfg.qn < 0:
        a(f"s_cmp_lt_u32 s{sWV}, 4\ns_cbranch_scc1 L_noq"); q_loads(); a("L_noq:")
    a(f"""
    s_lshl_b32 s{sT0}, s{sQB}, 3
    s_add_u32 s{sT0}, s{sT0}, s{sWV}
    s_lshl_b32 s{sT4}, s{sHD}, 16
    s_lshl_b32 s{sT2}, s{sT0}, 9
    s_add_u32 s{sT4}, s{sT4}, s{sT2}
    s_add_u32 s{sT4}, s{sT4}, {WS_O}
    s_lshl_b32 s{sT5}, s{sHD}, 14
    s_lshl_b32 s{sT3}, s{sT0}, 8
    s_add_u32 s{sT5}, s{sT5}, s{sT3}
    s_add_u32 s{sT5}, s{sT5}, {WS_O8}
    s_lshl_b32 s{sA}, s{sT0}, 5
    s_add_u32 s{sA}, s{sA}, s{sHD}
    s_lshl_b32 s{sA}, s{sA}, {3 + cfg.oms}
    s_add_u32 s{sA}, s{sA}, {WS_FO}
    s_waitcnt lgkmcnt(4)
    v_and_b32 v{Q1B}, v{QM2}, v{Q1}
    v_and_b32 v{Q1B+1}, v{QM2}, v{Q1+1}
    v_and_b32 v{Q1B+2}, v{QM3}, v{Q1+2}
    v_and_b32 v{Q1B+3}, v{QM3}, v{Q1+3}
    v_and_b32 v{Q1}, v{QM0}, v{Q1}
    v_and_b32 v{Q1+1}, v{QM0}, v{Q1+1}
    v_and_b32 v{Q1+2}, v{QM1}, v{Q1+2}
    v_and_b32 v{Q1+3}, v{QM1}, v{Q1+3}
    """)
    stamp(1, "a2")
    a2_loop(False)
    a("L_a2_done:")
    def gen_loop():
        a("L_a2_gen:"); a2_loop(True); a("s_nop 10\ns_branch L_a2_done")
    stamp(6, "a2")
    lo = f2u(2.0 ** -24); hi = f2u(2.0 ** 40); fin = f2u(3.0e38)
    a(f"v_rcp_f32 v2, v{O+12}\nv_mov_b32 v3, v2")
    for i in range(6): a(f"v_pk_mul_f32 {pr(40+2*i)}, {pr(O+2*i)}, v[2:3]")
    for i in range(6): a(f"v_cvt_pk_bf16_f32 v{24+i}, v{40+2*i}, v{41+2*i}")
    a(f"""
    buffer_store_dwordx4 v[24:27], v{OS0}, {srd(SWS)}, s{sT4} offen sc1
    s_mov_b32 exec_hi, 0
    buffer_store_dwordx2 v[28:29], v{OS1}, {srd(SWS)}, s{sT5} offen sc1
    s_mov_b32 exec_hi, -1
    """)
    stamp(6); stamp(7, "a2"); stamp(1, "g2")
    a(f"v_cmp_nle_f32 vcc, {lo:#x}, v{O+12}\ns_mov_b64 s[{sEX}:{sEX+1}], vcc\nv_cmp_nge_f32 vcc, {hi:#x}, v{O+12}\ns_or_b64 s[{sEX}:{sEX+1}], s[{sEX}:{sEX+1}], vcc")
    for i in range(6): a(f"v_add_f32 v{4+i}, abs(v{O+2*i}), abs(v{O+2*i+1})")
    a("v_add_f32 v4, v4, v5\nv_add_f32 v6, v6, v7\nv_add_f32 v8, v8, v9\nv_add_f32 v4, v4, v6\nv_add_f32 v4, v4, v8")
    a(f"v_cmp_nge_f32 vcc, {fin:#x}, v4\ns_or_b64 vcc, s[{sEX}:{sEX+1}], vcc")
    if cfg.force_fb: a("s_mov_b64 vcc, -1")
    a("s_cbranch_vccnz L_a2_fb\nL_a2_ok:")
    def fallback():
        a(f"L_a2_fb:\ns_cmp_lg_u32 s{sFB}, 0\ns_cbranch_scc1 L_a2_ok\ns_mov_b32 s{sFB}, 1\ns_waitcnt vmcnt(0)")
        build_masks("0")
        a(f"v_mov_b32 v4, {BIGNEG:#x}\nv_mov_b32 v59, {BIGNEG:#x}")
        for b in range(9):
            if b > 0: hook(b)
            k_read(b); a("s_waitcnt lgkmcnt(0)"); qk(b, 0, True); qk(b, 1, True)
            d = S + 16 * (b & 1)
            for i in range(8): a(f"v_max3_f32 v4, v4, v{d+2*i}, v{d+2*i+1}")
        a("v_mov_b32 v5, v4\nv_permlane32_swap_b32 v4, v5\nv_max_f32 v4, v4, v5\nv_sub_f32 v4, 0, v4")
        build_masks("v4")
        k_read(0); k_read(1)
        a("s_branch L_a2_gen")
    WM, WM2, WS8, WS8b = 13, 14, 15, 7
    L_P = 32768; L_FL = 86784; ACC3 = 16; OF = 36
    a(f"""
    v_lshrrev_b32 v2, 4, v1
    v_bfe_u32 v3, v1, 2, 2
    v_and_b32 v4, 3, v1
    v_lshlrev_b32 v4, 3, v4
    v_lshrrev_b32 v5, 1, v2
    v_mul_u32_u24 v5, 24, v5
    v_and_b32 v6, 1, v2
    v_lshl_add_u32 v5, v6, 2, v5
    v_add_u32 v5, v5, v3
    v_mul_u32_u24 v5, 160, v5
    v_add_u32 v{WM}, v5, v4
    v_add_u32 v{WM2}, {L_WO1 + 6*6400}, v{WM}
    v_mul_u32_u24 v5, 40, v2
    v_add3_u32 v5, v5, v3, 16
    v_mul_u32_u24 v5, 160, v5
    v_add_u32 v{WS8b}, v5, v4
    v_add_u32 v{WS8}, {L_WO1}, v{WS8b}
    """)
    def wo_frag(step, ct, d):
        for t in range(2):
            if step < 6: r, o = WM, (40 * step + 8 * t) * 160
            elif step < 12: r, o = WM2, (40 * (step - 6) + 8 * t) * 160
            elif step < 16: r, o = WM, (40 * (step - 12) + 8 * t) * 160
            elif step < 19: r, o = WS8, (160 * (step - 16) + 4 * t) * 160
            else: r, o = WS8b, 4 * t * 160
            a(f"ds_read_b64_tr_b16 v[{d+2*t}:{d+2*t+1}], v{r} offset:{o + 32*ct}")
    def o_addr(kh):
        a(f"""
        v_and_b32 v2, 15, v1
        v_lshrrev_b32 v3, 4, v1
        v_lshlrev_b32 v3, 15, v3
        v_lshl_add_u32 v9, v2, 4, v3
        v_lshl_add_u32 v12, v2, 3, v3
        s_lshl2_add_u32 s{sT0}, s{sR64}, s{sHW}
        s_lshl_b32 s{sB}, s{sT0}, 8
        s_lshl_b32 s{sT4}, s{sT0}, 7
        s_and_b32 s{sT0}, s{sT0}, -2
        s_add_u32 s{sT0}, s{sT0}, {kh}
        s_lshl_b32 s{sT0}, s{sT0}, {7 + cfg.oms}
        s_add_u32 s{sT0}, s{sT0}, {WS_FO}
        v_lshl_add_u32 v8, v2, {3 + cfg.oms}, s{sT0}
        """)
    def o_loads(steps):
        cnt = []
        for k, st in enumerate(steps):
            d = OF + 4 * k
            if st < 16:
                a(f"s_add_u32 s{sT0}, s{sB}, {WS_O + 4*st*32768}\nbuffer_load_dwordx4 v[{d}:{d+3}], v9, {srd(SWS)}, s{sT0} offen sc1"); cnt.append(1)
            else:
                for t in range(2):
                    a(f"s_add_u32 s{sT0}, s{sT4}, {WS_O8 + (8*(st-16) + t)*16384}\nbuffer_load_dwordx2 v[{d+2*t}:{d+2*t+1}], v12, {srd(SWS)}, s{sT0} offen sc1")
                cnt.append(2)
        return cnt
    def a3_loop(steps, cnt, fr, npre, hooks):
        q.clear(); extra = 0
        for k, st in enumerate(steps):
            a(f"s_waitcnt vmcnt({sum(cnt[k+1:]) + extra})")
            if k == 0: stamp(3, "a3")
            wait_for({("W", k)})
            for ct in range(5):
                w = fr[(k, ct)]; d = ACC3 + 4 * ct; o = OF + 4 * k
                a(f"v_mfma_f32_16x16x32_bf16 v[{d}:{d+3}], v[{w}:{w+3}], v[{o}:{o+3}], " + ("0" if k == 0 else f"v[{d}:{d+3}]"))
                k2 = npre + k - 1
                if k >= 1 and k2 < 10:
                    fr[(k2, ct)] = fr[(k - 1, ct)]
                    wo_frag(steps[k2], ct, fr[(k2, ct)]); issue(("W", k2), 2)
            if k in hooks: extra += hooks[k]()
    def lds_spin(vaddr, vt):
        L = a.lab("L_sp"); D = a.lab("L_spd")
        a(f"s_mov_b32 s{sCNT}, 0\n{L}:\nds_read_b32 v{vt}, v{vaddr}\ns_add_u32 s{sCNT}, s{sCNT}, 1\ns_waitcnt lgkmcnt(0)")
        a(f"v_cmp_ne_u32 vcc, s{sN}, v{vt}\ns_cmp_gt_u32 s{sCNT}, 0x400000\ns_cbranch_scc1 {D}\ns_cbranch_vccnz {L}\n{D}:")
    stamp(2, "g2")
    a(f"s_cmp_ge_u32 s{sWV}, 4\ns_cbranch_scc1 L_g2_h")
    a(f"v_add_u32 v{WM}, {L_WO1}, v{WM}")
    csteps = [0, 1, 2, 3, 16, 4, 5, 6, 7, 17]
    cfr = {}; STA, FRA, RO = 252, 253, 254
    def fin_addr():
        a(f"""
        s_mul_i32 s{sT0}, s{sHW}, {16*cfg.sstr}
        s_add_u32 s{sT0}, s{sT0}, {L_ST}
        v_and_b32 v2, 15, v1
        v_lshrrev_b32 v3, 4, v1
        v_mul_u32_u24 v4, {cfg.sstr}, v2
        v_lshl_add_u32 v4, v3, 3, v4
        v_add_u32 v{STA}, s{sT0}, v4
        s_and_b32 s{sT1}, s{sC80}, 3
        s_lshl_b32 s{sT1}, s{sT1}, 1
        v_subrev_u32 v2, s{sT1}, v2
        v_cmp_gt_u32 vcc, 10, v2
        v_min_u32 v2, 9, v2
        v_lshlrev_b32 v2, 4, v2
        v_mul_u32_u24 v4, {cfg.sstr}, v3
        v_add3_u32 v{FRA}, v4, v2, s{sT0}
        v_mul_u32_u24 v4, 2560, v3
        v_add_u32 v4, v4, v2
        v_bfrev_b32 v5, 1
        v_cndmask_b32 v{RO}, v5, v4, vcc
        s_lshl2_add_u32 s{sT3}, s{sR64}, s{sHW}
        s_mul_i32 s{sT3}, s{sT3}, {16*2560}
        s_add_u32 s{sT3}, s{sT3}, s{sC160}
        """)
    def part_addr(PA, PF):
        a(f"""
        s_mul_i32 s{sT0}, s{sHW}, 5120
        s_add_u32 s{sT0}, s{sT0}, {L_P}
        v_lshl_add_u32 v{PA}, v1, 4, s{sT0}
        s_lshl_b32 s{sT0}, s{sHW}, 2
        s_add_u32 s{sT0}, s{sT0}, {L_FL + 16}
        v_mov_b32 v{PF}, s{sT0}
        """)
    def c_pre(k):
        for ct in range(5):
            cfr[(k, ct)] = 76 + 4 * (5 * k + ct)
            wo_frag(csteps[k], ct, cfr[(k, ct)])
    for k in range(cfg.cn1):
        c_pre(k)
        if k == cfg.cpub:
            a("s_waitcnt vmcnt(0)"); publish(sA, 4); stamp(3, "g2")
        if k == cfg.cbar: a("s_barrier")
    def finalise(PA, PF):
        stamp(5, "a3")
        a("s_waitcnt lgkmcnt(0)")
        for ct in range(5):
            d = ACC3 + 4 * ct
            for k in range(4): a(f"v_add_f32 v{d+k}, v{d+k}, v{OF+4*ct+k}")
            a(f"v_cvt_pk_bf16_f32 v{2+2*ct}, v{d}, v{d+1}\nv_cvt_pk_bf16_f32 v{3+2*ct}, v{d+2}, v{d+3}\nds_write_b64 v{STA}, v[{2+2*ct}:{3+2*ct}] offset:{32*ct}")
        for k in range(4): a(f"ds_read_b128 v[{56+4*k}:{59+4*k}], v{FRA} offset:{4*k*cfg.sstr}")
        for k in range(4):
            a(f"s_waitcnt lgkmcnt({3-k})\nbuffer_store_dwordx4 v[{56+4*k}:{59+4*k}], v{RO}, {srd(SOUT)}, s{sT3} offen {cfg.outa}\ns_add_u32 s{sT3}, s{sT3}, {4*2560}")
        stamp(7, "a3")
    def get_part(PA, PF):
        lds_spin(PF, 5); q.clear()
        for ct in range(5): a(f"ds_read_b128 v[{OF+4*ct}:{OF+4*ct+3}], v{PA} offset:{1024*ct}")
        return 0
    o_addr(0)
    stamp(4, "g2")
    if cfg.odelay: a(f"s_sleep {cfg.odelay}")
    poll(8, 10)
    stamp(7); stamp(5, "g2"); stamp(1, "a3")
    cnt = o_loads(csteps)
    for k in range(cfg.cn1, 9): c_pre(k)
    part_addr(2, 3)
    a(f"v_mov_b32 v4, s{sN}\ns_waitcnt lgkmcnt(0)")
    a3_loop(csteps, cnt, cfr, 9, {})
    for ct in range(5): a(f"ds_write_b128 v2, v[{ACC3+4*ct}:{ACC3+4*ct+3}] offset:{1024*ct}")
    a("ds_write_b32 v3, v4\ns_waitcnt lgkmcnt(0)")
    stamp(7, "a3")
    a("s_branch L_fin")
    a("L_g2_h:")
    if cfg.hpr: a(f"s_setprio {cfg.hpr}")
    hfr = {}; ZV = 36
    hsteps = [8, 9, 10, 11, 18, 12, 13, 14, 15, 19]
    def zdma():
        check_or_poll(FZA, FZR)
        for k in range(3): a(f"s_mov_b32 m0, s{ZM[k]}\nbuffer_load_dwordx4 v{ZD+k}, {srd(SWS)}, 0 offen sc1 lds")
    if not cfg.zfill: b3_zaddr()
    def h_pre(k):
        for ct in range(5):
            i = 5 * k + ct
            hfr[(k, ct)] = 76 + 4 * i if i < 18 else 184 + 4 * (i - 18)
            wo_frag(hsteps[k], ct, hfr[(k, ct)])
    def h_addr():
        o_addr(1); b3_raddr(); part_addr(148, 149)
        if cfg.fae: fin_addr()
        a(f"""
        v_mov_b32 v150, s{sN}
        v_subrev_u32 v151, 16, v149
        s_mul_i32 s{sT2}, s{sR64}, {64*2560}
        s_add_u32 s{sT2}, s{sT2}, s{sC160}
        s_add_u32 s{sT2}, s{sT2}, 1280
        v_and_b32 v4, 3, v1
        v_lshlrev_b32 v4, 2, v4
        v_add_u32 v4, {L_FL}, v4
        s_cmp_ge_u32 s{sHW}, 2
        s_cselect_b32 s{sT0}, -1, 0
        v_or_b32 v{ROH+2}, s{sT0}, v{ROH+2}
        """)
        for j in range(24): a(f"v_mov_b32 v{ZV+j}, 0")
    rd = capture(lambda: [h_pre(k) for k in range(cfg.hn1)]); ad = capture(h_addr)
    n_ = len(capture(lambda: o_addr(1))) if cfg.ha1 else 0
    for t in rd[:10 * cfg.hn0]: a(t)
    del rd[:10 * cfg.hn0]
    for t in ad[:n_]: a(t)
    del ad[:n_]
    a("s_waitcnt vmcnt(0)"); publish(sA, 32); stamp(3, "g2")
    zdma()
    a("s_barrier")
    while rd or ad:
        for t in rd[:1]: a(t)
        for t in ad[:2]: a(t)
        del rd[:1]; del ad[:2]
    a("s_waitcnt vmcnt(0)\nds_write_b32 v151, v150")
    stamp(4, "g2")
    if cfg.hop == 0: a(f"buffer_load_dwordx2 v[10:11], v8, {srd(SWS)}, 0 offen sc1")
    lds_spin(4, 5)
    for k in range(3):
        for j in range(8): a(f"ds_read_u16_d16_hi v{ZV+8*k+j}, v{ZA+k} offset:{128*j}")
    for k in range(3):
        if cfg.hop == k + 1: a(f"buffer_load_dwordx2 v[10:11], v8, {srd(SWS)}, 0 offen sc1")
        for j in range(4):
            a(f"v_lshlrev_b32 v{ZT+2*j}, 16, v{QV+4*k+j}\nv_and_b32 v{ZT+1+2*j}, 0xffff0000, v{QV+4*k+j}")
        a(f"s_waitcnt lgkmcnt({min(16 - 8*k, 15)})")
        for j in range(8): a(f"v_mul_f32 v{ZT+j}, v{ZT+j}, v{ZV+8*k+j}")
        for j in range(4): a(f"v_cvt_pk_bf16_f32 v{QV+4*k+j}, v{ZT+2*j}, v{ZT+1+2*j}")
    stamp(5, "g2"); stamp(2, "a3")
    if cfg.hop == 4: a(f"buffer_load_dwordx2 v[10:11], v8, {srd(SWS)}, 0 offen sc1")
    for k in range(cfg.hn1, cfg.hn2): h_pre(k)
    a("s_waitcnt vmcnt(0)")
    check_or_poll(8, 10)
    stamp(7); stamp(1, "a3")
    cnt = o_loads(hsteps)
    def b3_stores():
        for k in range(3): a(f"buffer_store_dwordx4 v[{QV+4*k}:{QV+4*k+3}], v{ROH+k}, {srd(SOUT)}, s{sT2} offen {cfg.outb}")
        return 3
    if cfg.hpr: a("s_setprio 0")
    for k in range(cfg.hn2, 7): h_pre(k)
    if not cfg.fae: fin_addr()
    if cfg.b3st < 0: cnt.append(b3_stores())
    a("s_waitcnt lgkmcnt(0)")
    a3_loop(hsteps, cnt, hfr, 7, {cfg.b3st: b3_stores, cfg.pst: lambda: get_part(148, 149)})
    finalise(148, 149)
    a("L_fin:")
    def diag_wait(tag):
        a(f"L_dw{tag}:\ns_memrealtime s[98:99]\ns_waitcnt lgkmcnt(0)\ns_sub_u32 s98, s98, s{sN if cfg.diagn else 100}\ns_cmp_lt_u32 s98, {cfg.diagd}\ns_cbranch_scc1 L_dw{tag}")
    if cfg.diagd:
        if cfg.diagw >= 0: a(f"s_cmp_lg_u32 s2, {cfg.diagw}\ns_cbranch_scc1 L_exit")
        diag_wait(0)
    if cfg.stamps:
        a("s_waitcnt vmcnt(0)")
        stamp(8)
        if cfg.dbgst:
            a(f"s_cmp_lg_u32 s2, 41\ns_cbranch_scc1 L_exit\ns_cmp_lg_u32 s{sWV}, 0\ns_cbranch_scc1 L_exit\ns_mov_b64 exec, 1\nv_mov_b32 v2, 0")
            for i in range(9):
                a(f"s_sub_u32 s{sT0}, s{sSTAMP+2*i}, s{sSTAMP}\nv_mov_b32 v4, s{sT0}\nbuffer_store_dword v4, v2, {srd(SDBG)}, 0 offen offset:{8+4*i}\ns_waitcnt vmcnt(0)")
            a(f"s_sub_u32 s{sT0}, s{sN}, s{sSTAMP}\nv_mov_b32 v4, s{sT0}\nbuffer_store_dword v4, v2, {srd(SDBG)}, 0 offen offset:48\ns_waitcnt vmcnt(0)")
            a("s_endpgm")
        a(f"s_lshl_b32 s{sT0}, s2, 3\ns_add_u32 s{sT0}, s{sT0}, s{sWV}\ns_lshl_b32 s{sT0}, s{sT0}, 7\ns_add_u32 s{sT0}, s{sT0}, {WS_T}\nv_mov_b32 v2, s{sT0}\ns_mov_b64 exec, 1")
        for i in range(9):
            a(f"v_mov_b32 v4, s{sSTAMP+2*i}\nv_mov_b32 v5, s{sSTAMP+2*i+1}\nbuffer_store_dwordx2 v[4:5], v2, {srd(SWS)}, 0 offen offset:{8*i}\ns_waitcnt vmcnt(0)")
    a("L_exit:\ns_endpgm")
    i = 0
    while i < len(ool):
        ool[i](); i += 1
    a("L_end:")
    fallback(); gen_loop()
    while i < len(ool):
        ool[i](); i += 1
    body = a.finish()
    hdr = open("cdna_kernels/" + NAME + ".s.ref").read().split("; Override launch")[0]
    src = hdr + f"""; Single persistent kernel, one 512-thread workgroup per CU; generated by the author's own script.
; @launch grid=(256,1,1) block=(512,1,1) lds=163840
.amdgcn_target "amdgcn-amd-amdhsa--gfx950"
.text
.globl {NAME}_kernel
.p2align 8
.type {NAME}_kernel,@function
{NAME}_kernel:
{body}.section .rodata,"a"
.p2align 6
.amdhsa_kernel {NAME}_kernel
  .amdhsa_next_free_vgpr 256
  .amdhsa_next_free_sgpr 102
  .amdhsa_accum_offset 256
  .amdhsa_group_segment_fixed_size 0
  .amdhsa_kernarg_size 96
  .amdhsa_user_sgpr_count 2
  .amdhsa_user_sgpr_kernarg_segment_ptr 1
  .amdhsa_system_sgpr_workgroup_id_x 1
.end_amdhsa_kernel
"""
    return src

if __name__ == "__main__":
    cfg = Cfg()
    out = sys.argv[1]
    for kv in sys.argv[2:]:
        k, v = kv.split("=")
        old = getattr(cfg, k)
        setattr(cfg, k, (v == "1") if isinstance(old, bool) else (int(v) if isinstance(old, int) else v))
    open(out, "w").write(gen(cfg))
```

```python
import sys, math, struct
from asmdsl import Asm

NAME = "concat_heads__sliding_block__ssm_conv_h3__prompt"

class Cfg:
    stamps = False
    grp = ""
    stop = 99
    nt_in = ""
    fstr = 128
    slp = 1
    force_fb = False
    ncls = 3
    b1a = -1
    b1b = -1
    b1c = -1
    map2 = "head"
    outa = ""
    outb = "sc1"
    m16 = True
    nfill = 1
    a3la = 5
    a3x = 3
    ebar = "02"
    sstr = 176
    otouch = 0
    dbgst = False
    tmaj = True
    tscale = True
    cprio = 99
    prew = True
    gdelay = 1
    assist = 4
    lset = "s01"
    usplit = True
    upub = 3
    ust = -1
    wdelay = False
    fld = 6
    pre = 4
    uwarm = False
    r1first = True
    cs0 = "maqgw"
    cs1 = ""
    cs2 = ""
    elate = False
    hc = 8
    oc9 = False
    ocs = False
    zst = -1
    pfirst = False
    odelay = 0
    oup = 20
    b3st = 1
    bdl = 2
    z0 = 10
    zafter = True
    zsync = True
    hack1 = 0
    otn = -1
    otb = False
    otf = ""
    ot3 = -1
    wstart = 0
    wsch = ""
    x4 = 0
    bal = 0
    orc = 0
    hl1 = 60
    zfs = 128
    orc2 = 0
    orc3 = 0
    hpre = 0
    wlin = 0
    n3 = 16
    prog = False
    sp1 = True
    nodup = True
    diagd = 0
    diagn = False
    diagw = -1
    xoff = 1
    orc4 = 0
    hs0 = 0
    hsn = 7
    ffl = 0
    mlds = True
    zlate = 0
    opn = -1
    gms = 1
    oms = 2
    qpre = 0
    hop = 0
    cn1 = 9
    hn0 = 0
    fae = True
    hn1 = 4
    hn2 = 4
    hpr = 2
    ha1 = 40
    zfill = False
    zl2 = False
    tlb = 0
    tlball = False
    tlbs = False
    zpub = 1
    early = 20
    wtouch = 0
    wfirst = 2
    qn = -1
    fzn = 14
    wbar = 16
    cpub = 1
    cbar = 3
    pst = 7
    hpub = 1
    prio = 5
    ufs = 8
    wopre = 8
    noread = False; nomfma = False; nowo = False

WS_G = 0x0; WS_U = 0x800000; WS_Z = 0xB00000; WS_O = 0xE00000; WS_O8 = 0x1000000
WS_FG = 0x1100000; WS_FU = 0x1140000; WS_FZ = 0x1180000; WS_FO = 0x11C0000; WS_T = 0x1200000
WS_SIZE = 0x1800000
L_KB = 98304; L_VB = L_KB + 11024
L_H = 119808; HSTR = 8320; HODD = 4160
L_U = 144768; USTR = 4608
L_V = 32768; VSTR = 8256; L_ONES = L_V + 24768 + 512; L_K = 59136; L_Q = 83712
L_WO1 = 87040
L_WO2 = 0
L_ZA = 25600; L_ZB = 83712
L_OS = [32768, 53248, 87040, 107520]; L_ST = 53248
SX, SW, SWO, SQ, SK, SV, SSH, SH, SD, SOUT, SDBG, SWS = [8 + 4 * i for i in range(12)]
def srd(b): return f"s[{b}:{b+3}]"
sWON, sC160 = 6, 7; sKX = 6
sWV, sXC, sJ, sHW = 56, 57, 58, 59
sN = 60
sR64, sC80, sRB, sCT, sCH, sCHV, sHD, sQB = 62, 63, 64, 65, 66, 67, 68, 69
sT0, sT1, sT2, sT3, sT4, sT5 = 70, 71, 72, 73, 74, 75
sCNT, sNV, sFB, sKC = 76, 77, 78, 79
sEX = 80
sA, sB = 82, 83
sSTAMP = 84
WOM = list(range(24, 36))
ZM = [0, 1, 3]
BIGNEG = 0xf149f2ca
vCZ, vCD, vCF = 208, 224, 240
QV = 152; ROH = 164; ZA = 167; FZA = 170; FZR = 172; QA = 174; ZD = 177; ZT = 174; QM2, QM3 = 182, 183
WOV = 208; AVP = 190; AK0, AK1, AVD, AV0, QAD0, QAD1, QM0, QM1, OS0, OS1 = 197, 198, 199, 200, 201, 202, 203, 204, 205, 206

def f2u(x): return struct.unpack("<I", struct.pack("<f", x))[0]
def pr(b): return f"v[{b}:{b+1}]"

def gen(cfg):
    a = Asm()
    FS = cfg.fstr
    NWO = (100 - cfg.early + 7) // 8
    ool = []
    def stamp(i, grp=""):
        if cfg.stamps and (grp == cfg.grp or i in (0, 8) and grp == ""):
            a(f"s_memrealtime s[{sSTAMP+2*i}:{sSTAMP+2*i+1}]\ns_memtime s[4:5]\ns_waitcnt lgkmcnt(0)\ns_mov_b32 s{sSTAMP+2*i+1}, s4")
    def dma(vaddr, s, soff, m0, flags=""):
        if isinstance(m0, int): a(f"s_mov_b32 m0, {m0}")
        else: a(m0)
        a(f"buffer_load_dwordx4 v{vaddr}, {srd(s)}, {soff} offen {flags} lds")
    def cmpflag(t):
        a(f"v_cmp_ne_u32 vcc, s{sN}, v{t}\nv_cmp_ne_u32 s[{sEX}:{sEX+1}], s{sN+1}, v{t+1}\ns_or_b64 vcc, vcc, s[{sEX}:{sEX+1}]")
    def poll(vaddr, t):
        L = a.lab("L_poll"); D = a.lab("L_polld")
        a(f"s_mov_b32 s{sCNT}, 0\n{L}:")
        a(f"buffer_load_dwordx2 v[{t}:{t+1}], v{vaddr}, {srd(SWS)}, 0 offen sc1\ns_waitcnt vmcnt(0)")
        cmpflag(t)
        a(f"s_cbranch_vccz {D}\ns_add_u32 s{sCNT}, s{sCNT}, 1\ns_cmp_lt_u32 s{sCNT}, 0x40000\ns_cbranch_scc0 {D}\ns_sleep {cfg.slp}\ns_branch {L}\n{D}:")
    def check_or_poll(vaddr, t):
        L = a.lab("L_cp"); R = a.lab("L_cpr")
        cmpflag(t)
        a(f"s_cbranch_vccnz {L}\n{R}:")
        def body():
            a(f"{L}:"); poll(vaddr, t); a(f"s_branch {R}")
        ool.append(body)
    def publish(soff_sgpr, t):
        a(f"v_mov_b32 v{t}, s{sN}\nv_mov_b32 v{t+1}, s{sN+1}\nv_mov_b32 v{t+2}, s{soff_sgpr}")
        a(f"s_mov_b64 exec, 1\nbuffer_store_dwordx2 v[{t}:{t+1}], v{t+2}, {srd(SWS)}, 0 offen sc1\ns_mov_b64 exec, -1")
    def nonce_issue(t):
        a(f"v_mov_b32 v{t+2}, 0\nbuffer_load_dwordx2 v[{t}:{t+1}], v{t+2}, {srd(SDBG)}, 0 offen sc1")
    def nonce_take(t):
        L = a.lab("L_non"); R = a.lab("L_nonr"); D = a.lab("L_nond")
        a(f"s_mov_b32 s{sCNT}, 0\n{R}:\nv_readfirstlane_b32 s{sN}, v{t}\nv_readfirstlane_b32 s{sN+1}, v{t+1}")
        a(f"s_cmp_eq_u32 s{sN}, 0\ns_cbranch_scc1 {L}\n{D}:")
        def body():
            a(f"{L}:\ns_add_u32 s{sCNT}, s{sCNT}, 1\ns_cmp_lt_u32 s{sCNT}, 0x40000\ns_cbranch_scc0 {D}")
            a(f"buffer_load_dwordx2 v[{t}:{t+1}], v{t+2}, {srd(SDBG)}, 0 offen sc1\ns_waitcnt vmcnt(0)\ns_branch {R}")
        ool.append(body)
    def build_masks(val):
        a(f"v_and_b32 v2, 31, v1\nv_lshrrev_b32 v3, 5, v1\nv_lshlrev_b32 v3, 2, v3\nv_sub_u32 v2, v2, v3\nv_mov_b32 v3, {BIGNEG:#x}")
        for r in range(0, 16, 2):
            m0 = 8 * (r >> 2) + (r & 3)
            if val is None:
                a(f"v_cmp_gt_i32 vcc, {m0}, v2\nv_cmp_gt_i32 s[{sEX}:{sEX+1}], {m0+1}, v2")
                if r > 0: a(f"v_xor_b32 v{vCF+r-2}, v3, v{vCD+r-2}\nv_xor_b32 v{vCF+r-1}, v3, v{vCD+r-1}")
                a(f"v_cndmask_b32 v{vCD+r}, 0, v3, vcc\nv_cndmask_b32 v{vCD+r+1}, 0, v3, s[{sEX}:{sEX+1}]")
                if r == 14: a(f"v_xor_b32 v{vCF+r}, v3, v{vCD+r}\nv_xor_b32 v{vCF+r+1}, v3, v{vCD+r+1}")
                continue
            a(f"v_cmp_le_i32 vcc, {m0}, v2\nv_cmp_le_i32 s[{sEX}:{sEX+1}], {m0+1}, v2\nv_mov_b32 v{vCZ+r}, {val}\nv_mov_b32 v{vCZ+r+1}, {val}")
            a(f"v_cndmask_b32 v{vCD+r}, v3, v{vCZ+r}, vcc\nv_cndmask_b32 v{vCF+r}, v{vCZ+r}, v3, vcc")
            a(f"v_cndmask_b32 v{vCD+r+1}, v3, v{vCZ+r+1}, s[{sEX}:{sEX+1}]\nv_cndmask_b32 v{vCF+r+1}, v{vCZ+r+1}, v3, s[{sEX}:{sEX+1}]")
    def capture(f):
        n0 = len(a.ins); f(); r = [i.text for i in a.ins[n0:]]; del a.ins[n0:]; return r
    q = []
    def issue(tag, n): q.extend([tag] * n)
    def wait_for(tags):
        last = max((i for i, t in enumerate(q) if t in tags), default=-1)
        if last >= 0:
            a(f"s_waitcnt lgkmcnt({min(len(q) - 1 - last, 15)})")
            del q[:last + 1]

    T2 = 184
    def taps(tp, r):
        a(f"""
        v_lshlrev_b32 v{tp+0}, 16, v{r}
        v_lshlrev_b32 v{tp+1}, 16, v{r+2}
        v_and_b32 v{tp+2}, 0xffff0000, v{r}
        v_and_b32 v{tp+3}, 0xffff0000, v{r+2}
        v_lshlrev_b32 v{tp+4}, 16, v{r+1}
        v_lshlrev_b32 v{tp+5}, 16, v{r+3}
        v_and_b32 v{tp+6}, 0xffff0000, v{r+1}
        v_and_b32 v{tp+7}, 0xffff0000, v{r+3}
        """)
    def b1_compute(B):
        kr = B; rs = B; vv = B + 16; ku = B + 24; tp = B + 46; vu = ku; pk = B + 40
        a(f"""
        v_and_b32 v2, 7, v0
        v_lshrrev_b32 v3, 3, v0
        v_mul_u32_u24 v4, 1296, v2
        v_lshl_add_u32 v4, v3, 2, v4
        v_add_u32 v4, {L_KB}, v4
        """)
        for i in range(-3, 8): a(f"ds_read_b32 v{kr+3+i}, v4 offset:{(640 if i < 0 else 656) + 160*i}")
        for i in range(8): a(f"ds_read_b32 v{vv+i}, v4 offset:{11024 + 160*i}")
        a(f"""
        v_lshlrev_b32 v3, 13, v3
        v_sub_u32 v2, 7, v2
        v_lshl_add_u32 v3, v2, 4, v3
        v_and_b32 v2, 31, v0
        v_lshrrev_b32 v4, 5, v0
        v_mul_u32_u24 v5, 320, v2
        v_lshl_add_u32 v5, v4, 2, v5
        v_add_u32 v5, {L_KB + 128}, v5
        v_add_u32 v6, 3, v2
        v_lshrrev_b32 v6, 2, v6
        v_lshl_add_u32 v6, v6, 4, v5
        v_add_u32 v7, 2, v2
        v_lshrrev_b32 v7, 2, v7
        v_lshl_add_u32 v7, v7, 4, v5
        v_lshrrev_b32 v188, 2, v2
        v_lshl_add_u32 v5, v188, 4, v5
        ds_read_b32 v7, v7 offset:160
        ds_read_b32 v188, v6 offset:320
        ds_read_b32 v6, v6 offset:480
        ds_read_b32 v189, v5 offset:656
        ds_read_b32 v195, v5 offset:816
        ds_read_b32 v196, v5 offset:11024
        ds_read_b32 v5, v5 offset:11184
        v_lshlrev_b32 v2, 2, v2
        v_sub_u32 v2, {32*8192 + 124}, v2
        v_lshl_add_u32 v2, v4, 13, v2
        """)
        taps(tp, 8)
        a(f"""
        s_mul_i32 s{sT0}, s{sC80}, {80*4096}
        s_lshl_b32 s{sT1}, s{sR64}, 7
        s_sub_u32 s{sT0}, s{sT0}, s{sT1}
        s_add_u32 s{sT0}, s{sT0}, {WS_U + 4080 - 112}
        s_waitcnt lgkmcnt(15)
        """)
        def unp(d, r): a(f"v_lshlrev_b32 v{d}, 16, v{r}\nv_and_b32 v{d+1}, 0xffff0000, v{r}")
        for i in range(11): unp(ku + 2 * i, kr + i)
        for i in range(8): a(f"v_pk_mul_f32 {pr(rs+2*i)}, {pr(ku+2*(i+3))}, {pr(tp)}")
        for j in range(1, 4):
            for i in range(8): a(f"v_pk_fma_f32 {pr(rs+2*i)}, {pr(ku+2*(i+3-j))}, {pr(tp+2*j)}, {pr(rs+2*i)}")
        a("s_waitcnt lgkmcnt(7)")
        for i in range(8): unp(vu + 2 * i, vv + i)
        for i in range(8): a(f"v_pk_mul_f32 {pr(rs+2*i)}, {pr(rs+2*i)}, {pr(vu+2*i)}")
        for ch in range(2):
            for d in range(4): a(f"v_cvt_pk_bf16_f32 v{pk+4*ch+d}, v{rs+2*(7-2*d)+ch}, v{rs+2*(6-2*d)+ch}")
        ku = B + 4; tp = B + 18
        taps(tp, T2)
        a("s_waitcnt lgkmcnt(0)")
        for i, r in enumerate((7, 188, 6, 189, 195, 196, 5)): unp(ku + 2 * i, r)
        for i in range(2): a(f"v_pk_mul_f32 {pr(rs+2*i)}, {pr(ku+2*(i+3))}, {pr(tp)}")
        for j in range(1, 4):
            for i in range(2): a(f"v_pk_fma_f32 {pr(rs+2*i)}, {pr(ku+2*(i+3-j))}, {pr(tp+2*j)}, {pr(rs+2*i)}")
        for i in range(2): a(f"v_pk_mul_f32 {pr(rs+2*i)}, {pr(rs+2*i)}, {pr(ku+10+2*i)}")
        a(f"v_cvt_pk_bf16_f32 v{pk+8}, v{rs+2}, v{rs}\nv_cvt_pk_bf16_f32 v{pk+9}, v{rs+3}, v{rs+1}")
        a(f"v_add_u32 v{pk+10}, s{sT0}, v3\nv_add_u32 v{pk+11}, s{sT0}, v2")
    def b1_store(B):
        pk = B + 40
        a(f"""
        s_movk_i32 s{sT1}, 0x1000
        """)
        if cfg.orc4 < 2:
            a(f"buffer_store_dwordx4 v[{pk}:{pk+3}], v{pk+10}, {srd(SWS)}, 0 offen sc1\nbuffer_store_dwordx4 v[{pk+4}:{pk+7}], v{pk+10}, {srd(SWS)}, s{sT1} offen sc1")
        if cfg.orc4 < 1:
            a(f"buffer_store_dword v{pk+8}, v{pk+11}, {srd(SWS)}, 0 offen sc1\nbuffer_store_dword v{pk+9}, v{pk+11}, {srd(SWS)}, s{sT1} offen sc1")
    def shift_load():
        a(f"v_lshrrev_b32 v4, 3, v0\nv_lshlrev_b32 v4, 4, v4\ns_mul_i32 s{sT4}, s{sC80}, 640\nbuffer_load_dwordx4 v[8:11], v4, {srd(SSH)}, s{sT4} offen")
        a(f"v_lshrrev_b32 v4, 5, v0\nv_lshlrev_b32 v4, 4, v4\nbuffer_load_dwordx4 v[{T2}:{T2+3}], v4, {srd(SSH)}, s{sT4} offen offset:512")
    def publish_u(t):
        a(f"s_lshl_b32 s{sT0}, s{sC80}, 2\ns_add_u32 s{sT0}, s{sT0}, s{sWV}\ns_lshl_b32 s{sT0}, s{sT0}, 5\ns_add_u32 s{sT0}, s{sT0}, s{sR64}\ns_mul_i32 s{sT0}, s{sT0}, {cfg.ufs}\ns_add_u32 s{sT0}, s{sT0}, {WS_FU}")
        publish(sT0, t)
    def rounds(RO):
        for k in range(3):
            a(f"""
            s_lshl_b32 s{sT0}, s{sHW}, 6
            s_add_u32 s{sT0}, s{sT0}, {256*k}
            v_add_u32 v2, s{sT0}, v1
            v_mul_u32_u24 v3, 205, v2
            v_lshrrev_b32 v3, 11, v3
            v_mul_u32_u24 v4, 10, v3
            v_sub_u32 v4, v2, v4
            v_mul_u32_u24 v5, 2560, v3
            v_lshl_add_u32 v{RO+k}, v4, 4, v5
            """)
            yield k
    def a2_setup():
        a(f"""
        s_lshl_b32 s{sT0}, s{sWV}, 9
        v_and_b32 v2, 31, v1
        v_lshrrev_b32 v3, 5, v1
        v_lshlrev_b32 v{OS1}, 3, v2
        v_lshlrev_b32 v4, 4, v2
        v_lshl_add_u32 v{OS0}, v3, 15, v4
        v_add_u32 v4, s{sT0}, v4
        v_lshl_add_u32 v5, v3, 12, v4
        v_add_u32 v{QAD0}, {L_Q}, v5
        v_add_u32 v{QAD1}, {L_Q + 8192}, v4
        v_lshl_add_u32 v{AK0}, v3, 13, v4
        v_add_u32 v{AK0}, {L_K}, v{AK0}
        v_lshlrev_b32 v5, 9, v3
        v_sub_u32 v5, v4, v5
        v_add_u32 v{AK1}, {L_K + 16384}, v5
        v_bfe_u32 v4, v1, 2, 2
        v_lshl_add_u32 v4, v3, 2, v4
        v_lshlrev_b32 v4, 4, v4
        v_bfe_u32 v5, v1, 1, 1
        v_mul_u32_u24 v5, {VSTR}, v5
        v_and_b32 v6, 1, v1
        v_lshl_add_u32 v5, v6, 3, v5
        s_and_b32 s{sT1}, s{sHD}, 1
        s_lshl_b32 s{sT2}, s{sT1}, 3
        s_add_u32 s{sT2}, s{sT2}, {2*VSTR}
        v_mov_b32 v6, s{sT2}
        v_and_b32 v7, 16, v1
        v_cmp_ne_u32 vcc, 0, v7
        v_cndmask_b32 v5, v5, v6, vcc
        s_add_u32 s{sT0}, s{sT0}, {L_V + 4096 - 512}
        v_add3_u32 v5, v5, v4, s{sT0}
        v_and_b32 v7, 2, v1
        v_sub_u32 v7, 2, v7
        v_lshl_add_u32 v4, v7, {2 if cfg.sp1 else 31}, v4
        v_and_b32 v7, 19, v1
        v_cmp_lt_u32 vcc, 16, v7
        s_add_u32 s{sT0}, s{sWV}, 1
        s_cmp_eq_u32 s{sQB}, 0
        s_cselect_b32 s{sNV}, s{sT0}, 99
        """)
        for p in range(5):
            a(f"""
            s_cmp_gt_u32 s{sNV}, {2*p}
            s_cselect_b32 s{sT0}, {L_ONES - 512 - (L_V + 192)}, 0
            s_add_u32 s{sT0}, s{sT0}, {L_V + 192}
            s_cmp_gt_u32 s{sNV}, {2*p+1}
            s_cselect_b32 s{sT0}, {L_ONES}, s{sT0}
            v_add_u32 v6, s{sT0}, v4
            v_cndmask_b32 v{AVP+p}, v5, v6, vcc
            v_subrev_u32 v5, 1024, v5
            """)
        a(f"""
        s_mov_b32 s{sFB}, 0
        s_cmp_eq_u32 s{sT1}, 0
        s_cselect_b32 s{sT2}, -1, 0
        s_cselect_b32 s{sT3}, 0, -1
        v_cmp_eq_u32 vcc, 0, v3
        v_mov_b32 v5, s{sT2}
        v_mov_b32 v6, s{sT3}
        v_cndmask_b32 v{QM0}, 0, v5, vcc
        v_cndmask_b32 v{QM1}, 0, v6, vcc
        v_cndmask_b32 v{QM2}, v5, 0, vcc
        v_cndmask_b32 v{QM3}, v6, 0, vcc
        s_mov_b32 s{sT4}, 6554
        """)
        assert cfg.early == 20 and not cfg.bal
        for i in range(5):
            src = "v0" if i == 0 else "v2"
            if i: a(f"v_add_u32 v2, {512*i}, v0")
            a(f"v_mul_u32_u24 v3, s{sT4}, {src}\nv_lshrrev_b32 v3, 16, v3\nv_mul_u32_u24 v3, 1120, v3\nv_lshl_add_u32 v{WOV+i}, {src}, 4, v3")
    def wom_setup():
        a(f"""
        s_lshl_b32 s{sT2}, s{sWV}, 10
        s_add_u32 s24, s{sT2}, {L_WO1}
        s_add_u32 s25, s24, {72*1024}
        s_sub_u32 s{sT2}, s{sT2}, 3072
        s_min_u32 s25, s25, s{sT2}
        s_add_u32 s26, s{sC160}, {256*1280}
        """)
    def wo_early_addr():
        for i in range(5):
            a(f"v_add_u32 v2, {64*i}, v1\nv_mul_u32_u24 v3, 205, v2\nv_lshrrev_b32 v3, 11, v3\nv_mul_u32_u24 v3, 1120, v3\nv_lshl_add_u32 v{32+i}, v2, 4, v3")
    def wo_early():
        lastp = -1
        for n in range(100 - cfg.early, 100):
            if n // 5 != lastp:
                lastp = n // 5; a(f"s_add_u32 s{sT0}, s{sC160}, {lastp*32*1280}")
            dma(32 + n % 5, SWO, f"s{sT0}", L_WO1 + 1024 * n if n < 75 else L_WO2 + 1024 * (n - 75))

    L_SYNC = 119712
    sizes = {SX: 2621440, SW: 2457600, SWO: 819200, SQ: 2621440, SK: 2621440, SV: 2621440, SSH: 5120, SH: 2621440, SD: 1280, SOUT: 5242880, SDBG: 256, SWS: WS_SIZE}
    assert cfg.b1a < 0 and cfg.b1b < 0 and cfg.b1c < 0
    for s, slot in ((SK, 4), (SV, 5), (SSH, 6), (SX, 0), (SW, 1)): a(f"s_load_dwordx2 s[{s}:{s+1}], s[0:1], {slot*8}")
    a("s_cmp_ge_u32 s2, 256\ns_cbranch_scc1 L_exit")
    if cfg.diagd: a("s_memrealtime s[100:101]")
    a(f"""
    v_lshrrev_b32 v2, 6, v0
    v_and_b32 v1, 63, v0
    s_and_b32 s{sXC}, s2, 7
    v_readfirstlane_b32 s{sWV}, v2
    s_lshr_b32 s{sJ}, s2, 3
    v_mul_u32_u24 v2, 26, v1
    s_and_b32 s{sT0}, s{sJ}, 3
    v_lshrrev_b32 v2, 8, v2
    s_lshl2_add_u32 s{sR64}, s{sXC}, s{sT0}
    v_mul_u32_u24 v2, 1120, v2
    s_lshr_b32 s{sC80}, s{sJ}, 2
    v_lshl_add_u32 v12, v1, 4, v2
    s_mul_i32 s{sC160}, s{sC80}, 160
    s_lshl3_add_u32 s{sT1}, s{sR64}, s{sWV}
    s_mul_i32 s{sT1}, s{sT1}, {8*1280}
    s_add_u32 s{sT1}, s{sT1}, s{sC160}
    s_mul_i32 s{sB}, s{sWV}, 1296
    s_mov_b32 s{SK+2}, {sizes[SK]}
    s_mov_b32 s{SK+3}, 0x20000
    s_mov_b32 s{SV+2}, {sizes[SV]}
    s_mov_b32 s{SV+3}, 0x20000
    s_add_u32 s{sT2}, s{sT1}, {4*1280}
    s_cmp_lg_u32 s{sWV}, 7
    s_cbranch_scc1 L_nocp
    s_getpc_b64 s[4:5]
    L_pc:
    s_mul_i32 s3, s{sJ}, 1408
    v_lshl_add_u32 v2, v1, 7, s3
    v_min_u32 v2, L_end-L_pc, v2
    v_mov_b32 v3, {L_SYNC + 16}
    v_mov_b32 v4, 0
    s_mov_b64 exec, 0x7ff
    global_load_dword v62, v2, s[4:5]
    ds_write_b32 v3, v4
    s_mov_b32 exec_lo, -1
    L_nocp:
    s_mov_b32 exec_hi, 0xff
    s_add_u32 m0, s{sB}, {L_KB+656}
    s_waitcnt lgkmcnt(0)
    buffer_load_dwordx4 v12, {srd(SK)}, s{sT1} offen {cfg.nt_in} lds
    """)
    dma(12, SV, f"s{sT1}", f"s_add_u32 m0, s{sB}, {L_VB}", cfg.nt_in)
    dma(12, SK, f"s{sT2}", f"s_add_u32 m0, s{sB}, {L_KB+656+640}", cfg.nt_in)
    dma(12, SV, f"s{sT2}", f"s_add_u32 m0, s{sB}, {L_VB+640}", cfg.nt_in)
    a(f"s_cmp_lg_u32 s{sWV}, 0\ns_cbranch_scc1 L_nohalo\ns_sub_u32 s{sT1}, s{sT1}, {4*1280}\nv_add_u32 v13, s{sT1}, v12")
    dma(13, SK, "0", L_KB, cfg.nt_in)
    a(f"L_nohalo:\ns_mov_b32 exec_hi, -1\ns_mov_b32 s{SSH+2}, {sizes[SSH]}\ns_mov_b32 s{SSH+3}, 0x20000\ns_cmp_ge_u32 s{sWV}, 4\ns_cbranch_scc1 L_nosh")
    shift_load()
    a("L_nosh:")
    stamp(0)
    for s, slot in ((SDBG, 10), (SWS, 11), (SH, 7), (SD, 8), (SWO, 2), (SQ, 3), (SOUT, 9)): a(f"s_load_dwordx2 s[{s}:{s+1}], s[0:1], {slot*8}")
    def srd_consts(lst):
        for s in lst: a(f"s_mov_b32 s{s+2}, {sizes[s]}\ns_mov_b32 s{s+3}, 0x20000")
    a(f"""
    s_and_b32 s{sHW}, s{sWV}, 3
    s_and_b32 s{sT0}, s{sXC}, 1
    s_mul_i32 s{sT0}, s{sT0}, 30
    s_add_u32 s{sT0}, s{sT0}, s{sJ}
    s_lshr_b32 s{sCT}, s{sT0}, 2
    s_cmp_ge_u32 s{sJ}, 30
    s_cselect_b32 s{sCT}, 7, s{sCT}
    s_and_b32 s{sT0}, s{sT0}, 3
    s_lshr_b32 s{sRB}, s{sXC}, 1
    s_lshl2_add_u32 s{sRB}, s{sRB}, s{sT0}
    s_barrier
    """)
    if cfg.map2 == "head": a(f"s_mov_b32 s{sHD}, s{sR64}\ns_mov_b32 s{sQB}, s{sC80}")
    else: a(f"s_mov_b32 s{sHD}, s{sJ}\ns_mov_b32 s{sQB}, s{sXC}")
    a(f"s_cmp_lt_u32 s{sWV}, 4\ns_cbranch_scc1 L_C")

    vX = 16; vW = 20; vW2 = 63; vD = 21; vNH = 22; vHA = 64; vHB = 80
    srd_consts((SX, SW))
    a(f"""
    v_lshrrev_b32 v2, 3, v1
    v_lshrrev_b32 v3, 4, v1
    v_xor_b32 v4, v3, v1
    v_and_b32 v4, 7, v4
    v_mul_u32_u24 v2, 1280, v2
    v_lshl_add_u32 v{vX}, v4, 4, v2
    v_xor_b32 v4, 4, v4
    v_lshl_add_u32 v{vX+1}, v4, 4, v2
    v_add_u32 v{vX+1}, {8*1280}, v{vX+1}
    v_add_u32 v{vX+2}, {16*1280}, v{vX}
    v_add_u32 v{vX+3}, {16*1280}, v{vX+1}
    v_lshlrev_b32 v4, 2, v3
    v_xor_b32 v4, v4, v1
    v_and_b32 v4, 15, v4
    v_mul_u32_u24 v3, 3840, v3
    v_lshl_add_u32 v{vW}, v4, 4, v3
    v_xor_b32 v{vW2}, {32 if cfg.m16 else 0}, v{vW}
    s_mul_i32 s{sA}, s{sRB}, {128*1280}
    s_mul_i32 s{sT0}, s{sHW}, {32*1280}
    s_add_u32 s{sA}, s{sA}, s{sT0}
    s_lshl_b32 s{sB}, s{sCT}, 8
    s_mul_i32 s{sT0}, s{sHW}, {16*3840}
    s_add_u32 s{sB}, s{sB}, s{sT0}
    s_lshl_b32 s{sT5}, s{sHW}, 12
    """)
    if cfg.ncls == 10:
        a(f"s_and_b32 s{sT0}, s{sRB}, 3\ns_mul_i32 s{sT0}, s{sT0}, 5\ns_add_u32 s{sT0}, s{sT0}, 1\ns_lshr_b32 s{sT0}, s{sT0}, 1\ns_lshr_b32 s{sT1}, s{sRB}, 2\ns_add_u32 s{sT0}, s{sT0}, s{sT1}\ns_add_u32 s{sKC}, s{sT0}, s{sCT}")
    elif cfg.ncls == 2:
        a(f"s_add_u32 s{sT0}, s{sRB}, s{sCT}\ns_and_b32 s{sT0}, s{sT0}, 1\ns_mul_i32 s{sT0}, s{sT0}, 5\ns_add_u32 s{sKC}, s{sT0}, s{sXC}")
    elif cfg.ncls == 4:
        a(f"s_add_u32 s{sT0}, s{sRB}, s{sCT}\ns_and_b32 s{sT0}, s{sT0}, 3\ns_mul_i32 s{sT0}, s{sT0}, 5\ns_add_u32 s{sT0}, s{sT0}, 1\ns_lshr_b32 s{sT0}, s{sT0}, 1\ns_mul_i32 s{sT1}, s{sXC}, {cfg.xoff}\ns_add_u32 s{sKC}, s{sT0}, s{sT1}")
    elif cfg.ncls == 3:
        a(f"s_add_u32 s{sT0}, s{sRB}, s{sCT}\ns_mul_i32 s{sT1}, s{sT0}, 86\ns_lshr_b32 s{sT1}, s{sT1}, 8\ns_mul_i32 s{sT1}, s{sT1}, 3\ns_sub_u32 s{sT0}, s{sT0}, s{sT1}\ns_mul_i32 s{sT0}, s{sT0}, 7\ns_lshr_b32 s{sT0}, s{sT0}, 1\ns_mul_i32 s{sT1}, s{sXC}, {cfg.xoff}\ns_add_u32 s{sKC}, s{sT0}, s{sT1}")
    else:
        a(f"s_mov_b32 s{sKC}, s{sXC}")
    a(f"s_mul_i32 s{sT0}, s{sKC}, 205\ns_lshr_b32 s{sT0}, s{sT0}, 11\ns_mul_i32 s{sT0}, s{sT0}, 10\ns_sub_u32 s{sKC}, s{sKC}, s{sT0}")
    def ring_issue(c):
        slot = ((c + 1) % 3) * 32768
        a(f"s_lshl_b32 s{sT0}, s{sKC}, 7\ns_add_u32 s{sT0}, s{sT0}, s{sA}\ns_mul_i32 s{sT1}, s{sKC}, {64*3840}\ns_add_u32 s{sT1}, s{sT1}, s{sB}")
        for i in range(4):
            dma(vX + i, SX, f"s{sT0}", f"s_add_u32 m0, s{sT5}, {slot + i*1024}")
            dma(vW if i < 2 else vW2, SW, f"s{sT1}", f"s_add_u32 m0, s{sT5}, {slot + 16384 + i*1024}")
            if i < 3: a(f"s_add_u32 s{sT1}, s{sT1}, {4*3840}")
        a(f"s_add_u32 s{sKC}, s{sKC}, 1\ns_cmp_eq_u32 s{sKC}, 10\ns_cselect_b32 s{sKC}, 0, s{sKC}")
    def x_issue(c):
        a(f"s_lshl_b32 s{sT0}, s{sKX}, 7\ns_add_u32 s{sT0}, s{sT0}, s{sA}")
        for i in range(4): dma(vX + i, SX, f"s{sT0}", f"s_add_u32 m0, s{sT5}, {(c % 4) * 32768 + i*1024}")
        a(f"s_add_u32 s{sKX}, s{sKX}, 1\ns_cmp_eq_u32 s{sKX}, 10\ns_cselect_b32 s{sKX}, 0, s{sKX}")
    def w_issue(c):
        a(f"s_mul_i32 s{sT1}, s{sKC}, {64*3840}\ns_add_u32 s{sT1}, s{sT1}, s{sB}")
        for i in range(4):
            dma(vW if i < 2 else vW2, SW, f"s{sT1}", f"s_add_u32 m0, s{sT5}, {((c + 1) % 3) * 32768 + 16384 + i*1024}")
            if i < 3: a(f"s_add_u32 s{sT1}, s{sT1}, {4*3840}")
        a(f"s_add_u32 s{sKC}, s{sKC}, 1\ns_cmp_eq_u32 s{sKC}, 10\ns_cselect_b32 s{sKC}, 0, s{sKC}")
    if cfg.x4:
        a(f"s_mov_b32 s{sKX}, s{sKC}")
        def ring_issue(c):
            if c < 2:
                x_issue(c); w_issue(c)
                if c == 1 and cfg.x4 == 1: x_issue(2)
            else:
                if c == 2 and cfg.x4 == 2: x_issue(2)
                w_issue(c)
                if c + 1 <= 9: x_issue(c + 1)
    def h_chan():
        a(f"""
        s_mul_i32 s{sT0}, s{sJ}, 3
        s_lshl_b32 s{sT1}, s{sJ}, 1
        s_add_u32 s{sT1}, s{sT1}, {cfg.n3}
        s_cmp_lt_u32 s{sJ}, {cfg.n3}
        s_cselect_b32 s{sT0}, s{sT0}, s{sT1}
        s_cselect_b32 s{sT1}, 3, 2
        s_cmp_lt_u32 s{sT0}, 80
        s_cselect_b32 s{sT1}, s{sT1}, 0
        s_cselect_b32 s{sT0}, s{sT0}, 0
        s_cmp_lt_u32 s{sHW}, s{sT1}
        s_cselect_b32 s{sCHV}, 1, 0
        s_cselect_b32 s{sT1}, s{sHW}, 0
        s_add_u32 s{sT0}, s{sT0}, s{sT1}
        s_mul_i32 s{sCH}, s{sXC}, 80
        s_add_u32 s{sCH}, s{sCH}, s{sT0}
        s_bfe_u32 s{sT1}, s{sT0}, 0x20002
        s_cmp_lt_u32 s{sT0}, 64
        s_cselect_b32 s{sT2}, 4, 31
        s_cselect_b32 s{sT1}, 0, s{sT1}
        s_lshr_b32 s{sT0}, s{sT0}, s{sT2}
        s_add_u32 s{sT0}, s{sT0}, s{sT1}
        s_lshl_b32 s{sT1}, s{sXC}, 2
        s_add_u32 s{sT0}, s{sT0}, s{sT1}
        s_lshl_b32 s{sT0}, s{sT0}, 5
        v_and_b32 v12, 31, v1
        v_add_u32 v12, s{sT0}, v12
        v_mul_u32_u24 v12, {cfg.ufs}, v12
        v_add_u32 v12, {WS_FU}, v12
        """)
    def f_load():
        a(f"buffer_load_dwordx2 v[14:15], v12, {srd(SWS)}, 0 offen sc1")
    def h_loads():
        a(f"""
        s_mul_i32 s{sT3}, s{sHW}, {HSTR}
        s_mul_i32 s{sT3}, s{sT3}, s{sCHV}
        s_lshl_b32 s{sT0}, s{sCH}, {12 if not cfg.orc3 else 4}
        s_add_u32 m0, s{sT3}, {L_H + 32}
        s_lshl_b32 s{sT4}, s{sCH}, 1
        v_mov_b32 v4, s{sT4}
        """)
        for i in range(4): a(f"buffer_load_dwordx4 v13, {srd(SH if not cfg.orc3 else SW)}, s{sT0} offen offset:{1024*i} {cfg.nt_in} lds")
        a(f"buffer_load_ushort v{vD}, v4, {srd(SD)}, 0 offen")
    def u_loads():
        check_or_poll(12, 14)
        a(f"s_mul_i32 s{sT2}, s{sHW}, {USTR}\ns_lshl_b32 s{sT0}, s{sCH}, 12\ns_add_u32 s{sT1}, s{sT0}, {WS_U}\ns_add_u32 m0, s{sT2}, {L_U}")
        for i in range(4): a(f"buffer_load_dwordx4 v13, {srd(SWS)}, s{sT1} offen offset:{1024*i} sc1 lds")
    def hu_loads():
        h_loads(); a("s_waitcnt vmcnt(5)"); u_loads()
    ZL = 180; ZPA = 171; sZP = 2; WS_FZ2 = WS_FZ + 0x20000
    AA = 26; AB = 30; BACC = 96; BF = 32; AF = 128; NAF = 5; DF = 148
    def sig(k):
        if k == 0: a("v_subrev_u32 v2, 256, v0")
        else: a(f"s_and_b32 s{sT0}, s{sHW}, 1\ns_mul_i32 s{sT0}, s{sT0}, 320\ns_add_u32 s{sT0}, s{sT0}, 256\nv_add_u32 v2, s{sT0}, v1")
        a("v_mul_u32_u24 v3, 205, v2\nv_lshrrev_b32 v3, 11, v3")
    def b3_setup():
        a(f"s_mul_i32 s30, s{sR64}, {64*1280}\ns_add_u32 s30, s30, s{sC160}\ns_add_u32 s31, s30, {32*1280}")
        for k in range(2):
            sig(k); a(f"v_mul_u32_u24 v3, 1120, v3\nv_lshl_add_u32 v{QA+k}, v2, 4, v3")
        a(f"""
        s_cmp_ge_u32 s{sHW}, 2
        s_cselect_b32 s{sT2}, 15, 23
        v_min_u32 v2, s{sT2}, v1
        v_lshrrev_b32 v3, 3, v2
        v_and_b32 v2, 7, v2
        v_lshl_add_u32 v2, v3, 5, v2
        s_mul_i32 s{sT0}, s{sC80}, 80
        s_lshl3_add_u32 s{sT0}, s{sHW}, s{sT0}
        v_add_u32 v2, s{sT0}, v2
        v_mul_u32_u24 v2, {cfg.zfs}, v2
        v_add_u32 v{FZA}, {WS_FZ}, v2
        s_mul_i32 s{sT0}, s{sCH}, {cfg.zfs}
        s_add_u32 s{sT0}, s{sT0}, {WS_FZ}
        v_mov_b32 v{ZPA}, s{sT0}
        """)
    def b3_zaddr():
        a(f"""
        v_lshrrev_b32 v2, 3, v1
        v_and_b32 v3, 7, v1
        v_lshlrev_b32 v2, 12, v2
        v_lshl_add_u32 v2, v3, 4, v2
        s_mul_i32 s{sT0}, s{sC80}, {80*4096}
        s_lshl_b32 s{sT1}, s{sR64}, 7
        s_add_u32 s{sT0}, s{sT0}, s{sT1}
        s_add_u32 s{sT0}, s{sT0}, {WS_Z}
        """)
        for k in range(3):
            a(f"""
            s_add_u32 s{sT1}, s{sHW}, {4*k}
            s_min_u32 s{sT1}, s{sT1}, 9
            s_and_b32 s{sT2}, s{sT1}, 7
            s_lshl_b32 s{sT2}, s{sT2}, 4
            v_xor_b32 v3, s{sT2}, v2
            s_lshl_b32 s{sT2}, s{sT1}, 15
            s_add_u32 s{sT2}, s{sT2}, s{sT0}
            v_add_u32 v{ZD+k}, s{sT2}, v3
            s_lshl_b32 s{sT2}, s{sT1}, 10
            s_cmp_gt_u32 s{sT1}, 6
            s_cselect_b32 s{sT1}, {L_ZB - 7*1024 - L_ZA}, 0
            s_add_u32 s{sT2}, s{sT2}, s{sT1}
            s_add_u32 s{ZM[k]}, s{sT2}, {L_ZA}
            """)
    def b3_raddr():
        for k in range(2):
            sig(k)
            a(f"""
            v_mul_u32_u24 v5, 2400, v3
            v_lshl_add_u32 v{ROH+2*k}, v2, 4, v5
            v_mul_u32_u24 v4, 10, v3
            v_sub_u32 v4, v2, v4
            v_lshlrev_b32 v5, 3, v4
            v_xor_b32 v5, v5, v3
            v_and_b32 v5, 63, v5
            v_lshlrev_b32 v5, 1, v5
            v_lshl_add_u32 v5, v4, 10, v5
            v_cmp_lt_u32 vcc, 6, v4
            v_add_u32 v6, {L_ZA}, v5
            v_add_u32 v5, {L_ZB - 7*1024}, v5
            v_cndmask_b32 v{ZA+2*k}, v6, v5, vcc
            """)
        a(f"v_add_u32 v{ROH+1}, {32*2560}, v{ROH}\nv_xor_b32 v{ZA+1}, 64, v{ZA}")
    def b2_setup():
        a(f"""
        v_and_b32 v2, 15, v1
        v_lshrrev_b32 v3, 4, v1
        v_add_u32 v4, 1, v2
        v_lshrrev_b32 v4, 1, v4
        v_lshl_add_u32 v4, v3, 2, v4
        v_lshlrev_b32 v4, 2, v4
        v_and_b32 v5, 1, v2
        v_cmp_eq_u32 vcc, 0, v5
        v_mov_b32 v5, {HODD}
        v_cndmask_b32 v5, 0, v5, vcc
        s_mul_i32 s{sT1}, s{sHW}, s{sCHV}
        s_mul_i32 s{sT0}, s{sT1}, {HSTR}
        s_add_u32 s{sT0}, s{sT0}, {L_H}
        v_add3_u32 v{AA}, v4, v5, s{sT0}
        v_add_u32 v{AA+1}, 1024, v{AA}
        v_add_u32 v{AA+2}, 2048, v{AA}
        v_add_u32 v{AA+3}, 3072, v{AA}
        v_lshlrev_b32 v13, 4, v1
        v_add_u32 v25, s{sT0}, v13
        v_lshlrev_b32 v4, 5, v2
        v_lshl_add_u32 v4, v3, 3, v4
        s_lshl_b32 s{sT0}, s{sHW}, 12
        s_add_u32 s{sT0}, s{sT0}, {L_KB}
        v_add_u32 v31, s{sT0}, v4
        v_add_u32 v{ZL}, s{sT0}, v13
        v_sub_u32 v4, 15, v2
        v_lshlrev_b32 v4, 5, v4
        v_lshl_add_u32 v4, v3, 4, v4
        s_mul_i32 s{sT1}, s{sT1}, {USTR}
        s_add_u32 s{sT1}, s{sT1}, {L_U}
        v_add_u32 v{AB}, s{sT1}, v4
        v_lshl_add_u32 v2, v1, 3, s{sT1}
        v_mov_b32 v4, 0
        v_mov_b32 v5, 0
        v_mov_b32 v6, 0
        v_mov_b32 v7, 0
        ds_write_b64 v2, v[4:5] offset:4096
        s_mov_b64 exec, 3
        ds_write_b128 v25, v[4:7]
        ds_write_b128 v25, v[4:7] offset:{HODD}
        s_mov_b64 exec, -1
        """)
    def h_late():
        b3_setup(); a2_setup(); wom_setup()
        if cfg.zfill: b3_zaddr()
        if not cfg.mlds: build_masks(None)
    L_MK = L_KB + 12288
    def mask_read():
        a(f"v_add_u32 v2, {L_MK}, v13")
        for i in range(8): a(f"ds_read_b128 v[{vCD+4*i}:{vCD+4*i+3}], v2 offset:{1024*i}")
    def oc_read():
        for i in range(4):
            a(f"ds_read_b128 v[{vHA+6*i}:{vHA+6*i+3}], v25 offset:{32+1024*i}\nds_read_b32 v{vHA+6*i+4}, v25 offset:{48+1024*i}")
    def oc_part(i):
        if i == 0:
            a(f"s_waitcnt lgkmcnt(0)\nv_lshlrev_b32 v11, 16, v{vHA}\ns_mov_b64 exec, 1\nds_write_b32 v25, v11 offset:{HODD+28}\ns_mov_b64 exec, -1")
        for j in range(4): a(f"v_alignbit_b32 v{vHA+6*i+j}, v{vHA+6*i+j+1}, v{vHA+6*i+j}, 16")
        a(f"ds_write_b128 v25, v[{vHA+6*i}:{vHA+6*i+3}] offset:{HODD+32+1024*i}")
    def oc_d():
        a(f"""
        v_and_b32 v2, 15, v1
        v_sub_u32 v2, 15, v2
        v_lshrrev_b32 v3, 4, v1
        v_lshlrev_b32 v3, 2, v3
        v_lshrrev_b32 v4, 1, v2
        v_sub_u32 v4, v4, v3
        v_and_b32 v2, 1, v2
        v_lshlrev_b32 v2, 4, v2
        v_lshlrev_b32 v2, v2, v{vD}
        """)
        for rr in range(4): a(f"v_cmp_eq_u32 vcc, {rr}, v4\nv_cndmask_b32 v{DF+rr}, 0, v2, vcc")
    def odd_copy(nw):
        a(f"s_waitcnt vmcnt({nw}) lgkmcnt(0)"); oc_read(); oc_d()
        for i in range(4): oc_part(i)
    def ifch(f):
        L = a.lab("L_ifch")
        a(f"s_cmp_eq_u32 s{sCHV}, 0\ns_cbranch_scc1 {L}"); f(); a(f"{L}:")
    def b1_arrive(n):
        a(f"v_mov_b32 v2, {L_SYNC + 16}\nv_mov_b32 v3, 1\ns_waitcnt vmcnt({n})\ns_mov_b64 exec, 1\nds_add_u32 v2, v3\ns_mov_b64 exec, -1")
    rest_srd = (SWO, SQ, SH, SD, SOUT, SDBG, SWS)
    a(f"s_cmp_ge_u32 s{sJ}, 30\ns_cbranch_scc1 L_h_idle")
    stamp(1, "st")
    ring_issue(0)
    stamp(2, "st")
    if cfg.grp == "st":
        a("s_waitcnt vmcnt(7)"); stamp(3, "st"); a("s_waitcnt vmcnt(0)"); stamp(4, "st")
    b1_arrive(8)
    if cfg.r1first: ring_issue(1)
    srd_consts(rest_srd)
    h_chan(); b2_setup()
    a("v_mov_b32 v199, 0\nv_mov_b32 v189, 0\ns_waitcnt lgkmcnt(0)")
    if not cfg.nfill:
        for i, f in enumerate((b3_setup, a2_setup, lambda: (build_masks(None), wom_setup()))):
            if cfg.lset[i] == "s": f()
    stamp(5, "st")
    if not cfg.r1first: ring_issue(1)
    stamp(6, "st")
    if cfg.grp == "st":
        a("s_waitcnt vmcnt(0)"); stamp(7, "st")
    pubc = max(cfg.b1c, cfg.ust) + cfg.upub
    for c in range(10):
        w = {1: 9, 7: 9 if cfg.fld == 6 else 8, 9: 9 if cfg.hc == 8 else 4}.get(c, 8)
        if c == cfg.hc + 1 and c < 9: w += 5
        if cfg.x4 and c <= 7 and not (c == 0 and cfg.x4 == 2): w += 4
        a(f"s_waitcnt vmcnt({w})")
        if c == cfg.hc + 1 and c < 8 and cfg.nodup:
            L = a.lab("L_nd"); a(f"s_cmp_lg_u32 s{sCHV}, 0\ns_cbranch_scc1 {L}\ns_waitcnt vmcnt({w - 5})\n{L}:")
        if c in (0, 1, 2, 3, 5, 7, 9): stamp(1 + (0, 1, 2, 3, 5, 7, 9).index(c), "a1")
        a("s_barrier")
        if c == 0: nonce_issue(vNH)
        if c == cfg.fld: f_load()
        if c == cfg.hc and c < 8:
            if cfg.nodup: ifch(h_loads)
            else: h_loads()
        spread = cfg.ocs and cfg.hc <= 4
        if spread and c == 6: oc_read()
        if c + 2 <= 9: ring_issue(c + 2)
        if cfg.hs0 >= 0 and c >= cfg.hs0:
            k = c - cfg.hs0
            if k == 0:
                a(f"""
                s_mul_i32 s{sT1}, s{sHW}, s{sCHV}
                s_sub_u32 s{sT0}, s{sCH}, s{sT1}
                s_lshl_b32 s{sT0}, s{sT0}, 12
                s_lshl_b32 s{sT1}, s{sHW}, 6
                s_add_u32 s{sT0}, s{sT0}, s{sT1}
                s_add_u32 s24, s{SH}, s{sT0}
                s_addc_u32 s25, s{SH+1}, 0
                s_sub_u32 s26, s{SH+2}, s{sT0}
                s_mov_b32 s27, 0x20000
                """)
            for i in range(cfg.hsn * k, min(cfg.hsn * (k + 1), 48)): a(f"s_buffer_load_dword s28, s[24:27], {256*i}")
        if spread and c == 6: ifch(lambda: oc_part(0))
        if c == 2: nonce_take(vNH)
        if c == 7: a(f"s_cmp_eq_u32 s{sCHV}, 0\ns_cbranch_scc1 L_h_nob2a")
        if spread and c == 7: oc_part(1)
        if c == 8:
            if cfg.hc == 8: h_loads()
            u_loads()
            if spread: oc_part(2); oc_part(3)
            elif cfg.hc < 8 and not cfg.oc9: odd_copy(12)
        if spread and c == 9: oc_d()
    a("L_h_post:")
    def h_idle():
        a("L_h_idle:")
        srd_consts(rest_srd)
        h_chan(); b2_setup()
        a("s_waitcnt vmcnt(0) lgkmcnt(0)")
        a("v_mov_b32 v199, 0\nv_mov_b32 v189, 0")
        if not cfg.nfill: h_late()
        if cfg.assist:
            L = a.lab("L_as")
            a(f"""
            s_cmp_ge_u32 s{sHW}, {cfg.assist}
            s_cbranch_scc1 {L}
            s_add_u32 s{sT0}, s{sKC}, s{sHW}
            s_sub_u32 s{sT1}, s{sT0}, 10
            s_min_u32 s{sT0}, s{sT0}, s{sT1}
            s_mul_i32 s{sT0}, s{sT0}, {64*3840}
            s_add_u32 s{sT0}, s{sT0}, {7*256}
            v_mul_u32_u24 v2, 3840, v1
            s_waitcnt vmcnt(0)
            buffer_load_dword v62, v2, {srd(SW)}, s{sT0} offen
            buffer_load_dword v62, v2, {srd(SW)}, s{sT0} offen offset:128
            {L}:
            """)
        a("s_barrier")
        nonce_issue(vNH)
        a("s_barrier\ns_waitcnt vmcnt(0)")
        nonce_take(vNH)
        a(f"s_cmp_eq_u32 s{sCHV}, 0\ns_cbranch_scc1 L_h_nob2")
        f_load()
        hu_loads()
        if cfg.hc < 8 and not cfg.oc9: odd_copy(4)
        if cfg.mlds:
            build_masks(None)
            a(f"v_add_u32 v2, {L_MK}, v13")
            for i in range(8): a(f"ds_write_b128 v2, v[{vCD+4*i}:{vCD+4*i+3}] offset:{1024*i}")
        a("s_branch L_h_post")
    ool.append(h_idle)
    stamp(2)
    if cfg.stop <= 1: a("s_branch L_fin")
    def q_loads():
        for k in range(3): a(f"buffer_load_dwordx4 v[{QV+4*k}:{QV+4*k+3}], v{QA + k//2}, {srd(SQ)}, s{31 if k == 1 else 30} offen {cfg.nt_in}")
    HT, HZ, OZ = {1: ([1, 2, 3], [(512, False), (1536, True)], [(2048, False), (3072, False), (0, True)]),
                  2: ([0, 1, 2], [(0, False), (1024, True)], [(2048, False), (3072, False), (1536, True)]),
                  3: ([0, 1], [(0, False)], [(1024, False), (2048, False), (3072, False)]),
                  4: ([1, 2], [(512, False)], [(2048, False), (3072, False), (0, True), (1536, True)])}[max(cfg.bal, 1)]
    def conv(tiles, fill):
        mus = [mu for mu in range(8) if mu <= max(tiles)]
        order = []
        lo_, hi_ = 0, len(mus) - 1
        while lo_ <= hi_:
            order.append(mus[lo_]); lo_ += 1
            if lo_ <= hi_: order.append(mus[hi_]); hi_ -= 1
        groups = [(r, mu) for r in range(7) for mu in order] + [(7, mu) for mu in reversed(mus)]
        G = len(mus); NG = len(groups); LA = NAF - 1
        def b_read(r, nn):
            d = BF + 32 * (r & 1) + 4 * nn
            return [(f"ds_read_b128 v[{d}:{d+3}], v{AB} offset:{2*(1792 - 32*(8*nn - r))}", ("B", r, nn))]
        def a_read(gi):
            r, mu = groups[gi]; kap = 8 * mu + r
            d = AF + 4 * (gi % NAF); o = 16 * (kap % 16)
            return [(f"ds_read2_b32 v[{d}:{d+1}], v{AA + kap//16} offset0:{o} offset1:{o+1}", ("A", gi)),
                    (f"ds_read2_b32 v[{d+2}:{d+3}], v{AA + kap//16} offset0:{o+2} offset1:{o+3}", ("A", gi))]
        def emit(l):
            for t, tag in l: a(t); issue(tag, 1)
        def fin(j):
            dd = BACC + 4 * j; p = 8 + 2 * (j & 1)
            a(f"v_cvt_pk_bf16_f32 v{p}, v{dd}, v{dd+1}\nv_cvt_pk_bf16_f32 v{p+1}, v{dd+2}, v{dd+3}\nds_write_b64 v31, v[{p}:{p+1}] offset:{512*j}")
        q.clear()
        for nn in tiles + [n_ for n_ in range(G) if n_ not in tiles]: emit(b_read(0, nn))
        for gi in range(3): emit(a_read(gi))
        for i in tiles:
            wait_for({("B", 0, i)})
            d = BACC + 4 * i; f = BF + 4 * i
            a(f"v_mfma_f32_16x16x32_bf16 v[{d}:{d+3}], v[{DF}:{DF+3}], v[{f}:{f+3}], 0")
        for gi in range(3, LA): emit(a_read(gi))
        done = []
        for gi, (r, mu) in enumerate(groups):
            tl = [i for i in tiles if i >= mu]
            wait_for({("A", gi)} | {("B", r, i - mu) for i in tl})
            pend = []
            if gi + LA < NG: pend += a_read(gi + LA)
            if r < 7 and (gi % G) % 2 == 0:
                for nn in (gi % G, gi % G + 1):
                    if nn < G: pend += b_read(r + 1, nn)
            for n, i in enumerate(tl):
                d = BACC + 4 * i; f = BF + 32 * (r & 1) + 4 * (i - mu); s = AF + 4 * (gi % NAF)
                a(f"v_mfma_f32_16x16x32_bf16 v[{d}:{d+3}], v[{s}:{s+3}], v[{f}:{f+3}], v[{d}:{d+3}]")
                k = -(-len(pend) // (len(tl) - n))
                emit(pend[:k]); del pend[:k]
                if gi < NG - 1:
                    nv = k
                    while fill and nv < cfg.nfill:
                        t = fill.pop(0); a(t); nv += 1 if t.startswith("v_") else 0.5
                elif n >= 3:
                    fin(tl[n - 3]); done.append(tl[n - 3])
        for t in fill: a(t)
        for j in tiles:
            if j not in done: fin(j)
    def z_out(pieces):
        for k, (o, half) in enumerate(pieces): a(f"ds_read_b128 v[{32+4*k}:{35+4*k}], v{ZL} offset:{o}")
        for k, (o, half) in enumerate(pieces):
            a(f"s_waitcnt lgkmcnt({len(pieces)-1-k})")
            if half: a("s_mov_b32 exec_hi, 0")
            a(f"buffer_store_dwordx4 v[{32+4*k}:{35+4*k}], v13, {srd(SWS)}, s{sA} offen offset:{o} sc1")
            if half: a("s_mov_b32 exec_hi, -1")
    def h_nob2():
        late = capture(h_late)
        def safe(p):
            while True:
                for t in late[p:]:
                    if t.startswith("s_cselect"): break
                    if t.startswith("s_cmp"): return p
                else: return p
                p += 1
        n1 = safe(cfg.hl1) if cfg.bal else 0
        a("L_h_nob2a:")
        wo_early_addr()
        a("s_waitcnt vmcnt(8)\ns_barrier")
        for t in late[:n1]: a(t)
        a("s_waitcnt vmcnt(0)\ns_barrier\ns_branch L_h_nob2b\nL_h_nob2:")
        wo_early_addr()
        for t in late[:n1]: a(t)
        a("L_h_nob2b:\ns_waitcnt lgkmcnt(0)")
        if cfg.stop <= 1: a("s_branch L_fin")
        a(f"s_lshl_b32 s{sB}, s{sCH}, 1\nv_mov_b32 v12, s{sB}")
        for k in range(3): a(f"buffer_load_ushort v{21+k}, v12, {srd(SD)}, 0 offen offset:{2*k}")
        a(f"s_cmp_lg_u32 s{sWV}, 7\ns_cbranch_scc1 L_h_nob2c")
        sv = capture(wo_early)
        for t in sv: a(t.replace(f"s{sT0},", f"s{sB},").replace(f", s{sT0} ", f", s{sB} "))
        a("L_h_nob2c:")
        for t in late[n1:]: a(t)
        if cfg.mlds: build_masks(None)
        a("s_waitcnt vmcnt(0)")
        if not cfg.bal:
            a("s_branch L_join_a"); return
        a(f"""
        s_cmp_lg_u32 s{sWV}, 7
        s_cbranch_scc1 L_join_a
        s_mov_b32 s{sCHV}, 1
        s_lshl_b32 s{sA}, s{sCH}, 12
        s_add_u32 s{sA}, s{sA}, {WS_Z}
        s_cmp_lt_u32 s{sJ}, 16
        s_cselect_b32 s{sB}, 3, 2
        v_mov_b32 v12, {L_SYNC + 32}
        L_help:
        """)
        oc_d()
        a(f"""
        v_mov_b32 v21, v22
        v_mov_b32 v22, v23
        s_mov_b32 s{sCNT}, 0
        L_hw:
        ds_read_b32 v14, v12
        s_add_u32 s{sCNT}, s{sCNT}, 1
        s_waitcnt lgkmcnt(0)
        v_cmp_ne_u32 vcc, s{sN}, v14
        s_cmp_gt_u32 s{sCNT}, 0x400000
        s_cbranch_scc1 L_hwd
        s_cbranch_vccnz L_hw
        L_hwd:
        """)
        conv(HT, [])
        a(f"v_add_u32 v{AA}, {HSTR}, v{AA}\nv_add_u32 v{AA+1}, {HSTR}, v{AA+1}\nv_add_u32 v{AB}, {USTR}, v{AB}\nv_add_u32 v12, 4, v12")
        z_out(HZ)
        a(f"s_add_u32 s{sA}, s{sA}, 4096\ns_sub_u32 s{sB}, s{sB}, 1\ns_cmp_lg_u32 s{sB}, 0\ns_cbranch_scc1 L_help")
        stamp(4)
        a("s_branch L_join_a")
    ool.append(h_nob2)
    if cfg.hc == 8 or cfg.oc9: odd_copy(4)
    a(f"s_lshl_b32 s{sA}, s{sCH}, 12\ns_add_u32 s{sA}, s{sA}, {WS_Z}")
    a(f"s_lshl_b32 s{sT0}, s{sHW}, 2\ns_add_u32 s{sT0}, s{sT0}, {L_SYNC + 32}\nv_mov_b32 v2, s{sT0}\nv_mov_b32 v3, s{sN}")
    lf = capture(h_late)
    if not cfg.bal:
        for t in lf[:cfg.ffl]: a(t)
        lf = lf[cfg.ffl:]
    a("s_waitcnt vmcnt(0) lgkmcnt(0)")
    if cfg.bal: a("ds_write_b32 v2, v3")
    if cfg.mlds: mask_read()
    stamp(3)
    conv([i for i in range(8) if i not in HT] if cfg.bal else [0, 1, 2, 3, 4, 5] if cfg.orc else list(range(8)), lf)
    stamp(4)
    z_out(OZ if cfg.bal else [(1024 * i, False) for i in range(4)])
    a("s_branch L_join_a")

    a("L_C:")
    vNC = 60
    srd_consts((SX, SW) + rest_srd)
    a(f"s_mov_b32 s{sCHV}, 0\ns_mov_b32 s{sCH}, 0")
    a(f"""
    s_waitcnt lgkmcnt(0)
    s_or_b32 s{sT0}, s2, s{sWV}
    s_cmp_lg_u32 s{sT0}, 0
    s_cbranch_scc1 L_nonon
    s_memrealtime s[{sN}:{sN+1}]
    s_waitcnt lgkmcnt(0)
    s_or_b32 s{sN}, s{sN}, 1
    v_mov_b32 v6, s{sN}
    v_mov_b32 v7, s{sN+1}
    v_mov_b32 v5, 0
    s_mov_b64 exec, 1
    buffer_store_dwordx2 v[6:7], v5, {srd(SDBG)}, 0 offen sc1
    s_mov_b64 exec, -1
    L_nonon:
    s_cmp_ge_u32 s{sJ}, 30
    s_cbranch_scc1 L_c_idle
    """)
    def tlb():
        if not cfg.tlb: return
        L = a.lab("L_tlb")
        a(f"s_cmp_lg_u32 s{sWV}, 1\ns_cbranch_scc1 {L}\nv_lshlrev_b32 v5, {cfg.tlb}, v1")
        for sr in (SWS, SOUT, SQ, SH, SWO, SD): a(f"buffer_load_dword v63, v5, {srd(sr)}, 0 offen")
        a(f"{L}:")
    GFA = 207; OFA = 199; GPA = 200; sGA, sGB = 0, 1; L_SYNC = 119712
    def qkv_addr():
        a(f"""
        s_lshr_b32 s{sT0}, s{sHD}, 1
        s_mul_i32 s{sT0}, s{sT0}, 5
        s_and_b32 s{sT1}, s{sHD}, 1
        s_lshl_b32 s{sT2}, s{sT1}, 1
        s_add_u32 s{sT2}, s{sT2}, s{sT0}
        s_add_u32 s{sT3}, s{sT2}, 2
        s_lshr_b32 s{sT2}, s{sT2}, 3
        s_lshr_b32 s{sT3}, s{sT3}, 3
        s_lshr_b32 s{sT4}, s{sHD}, 2
        s_mul_i32 s{sGA}, s{sT4}, 10
        s_lshr_b32 s{sGA}, s{sGA}, 3
        s_sub_u32 s{sT2}, s{sT2}, s{sGA}
        s_sub_u32 s{sT3}, s{sT3}, s{sGA}
        s_cmp_eq_u32 s{sQB}, 0
        s_cselect_b32 s{sGA}, 2, 4
        v_lshrrev_b32 v2, 1, v1
        v_min_u32 v2, s{sGA}, v2
        v_and_b32 v4, 1, v1
        v_cmp_eq_u32 vcc, 1, v4
        v_mov_b32 v4, s{sT2}
        v_mov_b32 v5, s{sT3}
        v_cndmask_b32 v4, v4, v5, vcc
        v_lshl_add_u32 v2, v2, 1, v4
        s_lshl_b32 s{sGA}, s{sT4}, 5
        s_lshl_b32 s{sT4}, s{sQB}, 2
        s_add_u32 s{sT4}, s{sT4}, s{sWV}
        s_add_u32 s{sGA}, s{sGA}, s{sT4}
        s_lshl_b32 s{sGA}, s{sGA}, {7 + cfg.gms}
        s_add_u32 s{sGA}, s{sGA}, {WS_FG}
        v_lshl_add_u32 v{GFA}, v2, {3 + cfg.gms}, s{sGA}
        s_lshl_b32 s{sGB}, s{sR64}, 2
        s_add_u32 s{sGB}, s{sGB}, s{sWV}
        s_lshl_b32 s{sGB}, s{sGB}, {7 + cfg.oms}
        s_add_u32 s{sGB}, s{sGB}, {WS_FO}
        v_and_b32 v2, 15, v1
        v_lshl_add_u32 v{OFA}, v2, {3 + cfg.oms}, s{sGB}
        s_mul_i32 s{sT1}, s{sT1}, 3
        s_add_u32 s{sGA}, s{sT0}, s{sT1}
        s_add_u32 s{sGB}, s{sT0}, 2
        s_lshl_b32 s{sGA}, s{sGA}, 15
        s_lshl_b32 s{sGB}, s{sGB}, 15
        s_lshl_b32 s{sT4}, s{sT4}, 10
        s_add_u32 s{sGA}, s{sGA}, s{sT4}
        s_add_u32 s{sGB}, s{sGB}, s{sT4}
        v_lshlrev_b32 v14, 4, v1
        v_bfrev_b32 v15, 1
        s_cmp_eq_u32 s{sQB}, 0
        s_cselect_b64 vcc, -1, 0
        v_cndmask_b32 v15, v14, v15, vcc
        s_lshl_b32 s{sT5}, s{sWV}, 10
        """)
    def gpub_addr():
        a(f"""
        s_and_b32 s{sT0}, s{sWV}, 1
        s_lshl_b32 s{sT2}, s{sCT}, 1
        s_add_u32 s{sT2}, s{sT2}, s{sT0}
        s_mul_i32 s{sT0}, s{sT2}, 26
        s_lshr_b32 s{sT0}, s{sT0}, 8
        s_mul_i32 s{sT1}, s{sT0}, 10
        s_sub_u32 s{sT2}, s{sT2}, s{sT1}
        s_cmp_ge_u32 s{sT2}, 5
        s_cselect_b32 s{sT1}, 5, 0
        s_cselect_b32 s{sT4}, 4, 0
        s_sub_u32 s{sT2}, s{sT2}, s{sT1}
        s_lshr_b32 s{sT1}, s{sWV}, 1
        s_lshl_b32 s{sT3}, s{sRB}, 1
        s_add_u32 s{sT3}, s{sT3}, s{sT1}
        v_and_b32 v2, 1, v1
        v_lshrrev_b32 v3, 1, v1
        v_sub_u32 v4, s{sT2}, v2
        v_cmp_gt_u32 vcc, 4, v4
        v_add_u32 v4, s{sT4}, v4
        v_lshl_add_u32 v5, v3, 2, s{sT3}
        v_cmp_gt_u32 s[{sEX}:{sEX+1}], 32, v5
        s_and_b64 vcc, vcc, s[{sEX}:{sEX+1}]
        s_cmp_eq_u32 s{sT0}, 0
        s_cselect_b32 s{sT1}, 3, 15
        s_and_b32 vcc_lo, vcc_lo, s{sT1}
        s_mov_b32 vcc_hi, 0
        v_lshl_add_u32 v4, v4, 5, v5
        v_lshlrev_b32 v4, 7, v4
        v_lshl_add_u32 v5, v3, 1, s{sT0}
        v_lshl_add_u32 v5, v5, 1, v2
        v_lshl_add_u32 v4, v5, 3, v4
        v_lshlrev_b32 v4, {cfg.gms}, v4
        v_add_u32 v4, {WS_FG}, v4
        v_bfrev_b32 v5, 1
        v_cndmask_b32 v{GPA}, v5, v4, vcc
        """)
    OTA = 189
    def ot_addr(OTA):
        a(f"""
        s_lshl2_add_u32 s{sT0}, s{sR64}, s{sHW}
        s_mul_i32 s{sT0}, s{sT0}, {16*2560}
        s_add_u32 s{sT0}, s{sT0}, s{sC160}
        v_bfe_u32 v2, v1, 1, 4
        v_mul_u32_u24 v2, 2560, v2
        v_and_b32 v3, 1, v1
        v_mul_u32_u24 v3, 156, v3
        v_add3_u32 v2, v2, v3, s{sT0}
        v_lshrrev_b32 v3, 5, v1
        v_mul_u32_u24 v3, {1280 if cfg.otb else 0}, v3
        v_add_u32 v{OTA}, v2, v3
        """)
    def mask_write():
        a(f"v_lshlrev_b32 v2, 4, v1\nv_add_u32 v2, {L_MK}, v2")
        for w in range(4):
            L = a.lab("L_mw")
            a(f"s_cmp_lg_u32 s{sWV}, {w}\ns_cbranch_scc1 {L}")
            for i in (2 * w, 2 * w + 1): a(f"ds_write_b128 v2, v[{vCD+4*i}:{vCD+4*i+3}] offset:{1024*i}")
            a(f"{L}:")
        a("s_waitcnt lgkmcnt(0)")
    def prewarm():
        a(f"buffer_load_dword v63, v{GFA}, {srd(SWS)}, 0 offen sc1\nbuffer_load_dword v63, v{OFA}, {srd(SWS)}, 0 offen sc1")
    def c_idle():
        a("L_c_idle:")
        build_masks(None); a2_setup(); qkv_addr(); wom_setup()
        a("s_waitcnt vmcnt(0)\ns_barrier")
        nonce_issue(vNC)
        if cfg.prew: prewarm()
        b1_compute(128); b1_store(128)
        a("s_barrier\ns_waitcnt vmcnt(0)")
        nonce_take(vNC); publish_u(2)
        if cfg.wdelay:
            a(f"v_subrev_u32 v7, {2*cfg.ufs}, v4")
            poll(7, 8)
        tlb()
        if cfg.wopre:
            a(f"""
            s_sub_u32 s{sT0}, s{sJ}, 30
            s_lshl_b32 s{sT0}, s{sT0}, 2
            s_add_u32 s{sT0}, s{sT0}, s{sWV}
            s_lshl_b32 s{sT0}, s{sT0}, 6
            v_add_u32 v4, s{sT0}, v1
            s_lshl_b32 s{sT1}, s{sXC}, 9
            v_add_u32 v2, s{sT1}, v4
            """)
            if cfg.hpre:
                a(f"s_mul_i32 s{sT1}, s{sXC}, {80*4096}\nv_lshlrev_b32 v6, 7, v4")
            for i in range(cfg.hpre):
                a(f"s_waitcnt vmcnt(1)\nbuffer_load_dword v63, v6, {srd(SH)}, s{sT1} offen\ns_add_u32 s{sT1}, s{sT1}, {512*128}")
            for i in range(cfg.wopre + cfg.qpre):
                a("s_waitcnt vmcnt(1)")
                if i >= cfg.wopre:
                    if i == cfg.wopre: a(f"s_mul_i32 s{sT1}, s{sXC}, {256*1280}\nv_lshlrev_b32 v6, 7, v4")
                    a(f"buffer_load_dword v63, v6, {srd(SQ)}, s{sT1} offen\ns_add_u32 s{sT1}, s{sT1}, {512*128}")
                    continue
                if cfg.wlin:
                    a(f"v_add_u32 v3, {cfg.wlin + 512*i}, v4\nv_subrev_u32 v5, 6400, v3\nv_min_u32 v3, v3, v5")
                elif i < 8:
                    a(f"v_and_b32 v2, 4095, v2\nv_add_u32 v3, 4480, v2\nv_subrev_u32 v5, 6400, v3\nv_min_u32 v3, v3, v5\nv_add_u32 v2, 512, v2")
                else:
                    a(f"v_add_u32 v3, {2176 + 512*(i-8)}, v4")
                a(f"v_lshlrev_b32 v3, 7, v3\nbuffer_load_dword v63, v3, {srd(SWO)}, 0 offen")
        a("s_branch L_c_post")
    ool.append(c_idle)
    stamp(1, "st")
    stamp(2, "st")
    if cfg.tlball: tlb()
    if cfg.tlbs:
        L = a.lab("L_tlbs")
        a(f"s_cmp_lg_u32 s{sWV}, 1\ns_cbranch_scc1 {L}")
        for sr, n in ((SWS, 10), (SOUT, 3), (SQ, 2), (SH, 2), (SWO, 1), (SD, 1)):
            for i in range(n):
                a(f"s_mov_b32 s{sT0}, {i << 21}\ns_load_dword s3, s[{sr}:{sr+1}], s{sT0}")
        a(f"{L}:")
    ACC = 64
    FS4 = [128, 144, 16, 32]
    if not cfg.m16:
        AX = 48; AW = 56
        a(f"""
        s_and_b32 s{sT0}, s{sWV}, 1
        s_lshr_b32 s{sT1}, s{sWV}, 1
        v_and_b32 v2, 31, v1
        v_lshrrev_b32 v3, 5, v1
        v_bfe_u32 v4, v2, 1, 3
        v_xor_b32 v4, v4, v3
        s_lshl_b32 s{sT2}, s{sT1}, 13
        v_lshlrev_b32 v5, 7, v2
        v_add_u32 v5, s{sT2}, v5
        """)
        for ks in range(4):
            a(f"v_xor_b32 v6, {2*ks}, v4\nv_lshl_add_u32 v{AX+ks}, v6, 4, v5\nv_add_u32 v{AX+4+ks}, 0x10000, v{AX+ks}")
        a(f"""
        v_bfe_u32 v4, v1, 2, 2
        v_lshl_add_u32 v5, v3, 3, v4
        v_lshlrev_b32 v5, 8, v5
        v_and_b32 v6, 3, v1
        v_lshl_add_u32 v5, v6, 3, v5
        v_and_b32 v6, 16, v1
        v_lshl_add_u32 v5, v6, 1, v5
        v_add_u32 v5, 16384, v5
        s_lshl_b32 s{sT2}, s{sT0}, 1
        """)
        for mt in range(2):
            a(f"s_add_u32 s{sT3}, s{sT2}, {mt}\nv_xor_b32 v6, s{sT3}, v4\nv_lshl_add_u32 v{AW+mt}, v6, 6, v5\nv_add_u32 v{AW+2+mt}, 0x10000, v{AW+mt}")

    else:
        AX = 48; AW = 52
        a(f"""
        s_and_b32 s{sT0}, s{sWV}, 1
        s_lshr_b32 s{sT1}, s{sWV}, 1
        v_and_b32 v2, 15, v1
        v_lshrrev_b32 v3, 4, v1
        v_lshrrev_b32 v4, 1, v2
        v_xor_b32 v4, v4, v3
        s_lshl_b32 s{sT2}, s{sT1}, 13
        v_lshlrev_b32 v5, 7, v2
        v_add_u32 v5, s{sT2}, v5
        """)
        for ks in range(2):
            a(f"v_xor_b32 v6, {4*ks}, v4\nv_lshl_add_u32 v{AX+ks}, v6, 4, v5\nv_add_u32 v{AX+2+ks}, 0x10000, v{AX+ks}")
        a(f"""
        v_bfe_u32 v4, v1, 2, 2
        v_lshl_add_u32 v5, v3, 3, v4
        v_lshlrev_b32 v5, 8, v5
        v_and_b32 v6, 3, v1
        v_lshl_add_u32 v5, v6, 3, v5
        v_and_b32 v6, 16, v1
        v_lshl_add_u32 v5, v6, 1, v5
        v_add_u32 v5, 16384, v5
        s_lshl_b32 s{sT2}, s{sT0}, 1
        """)
        for m2 in range(2):
            a(f"s_add_u32 s{sT3}, s{sT2}, {m2}\nv_xor_b32 v6, s{sT3}, v4\nv_lshl_add_u32 v{AW+2*m2}, v6, 6, v5\nv_xor_b32 v{AW+2*m2+1}, 32, v{AW+2*m2}")
        for mt in range(4): a(f"v_add_u32 v{AW+4+mt}, 0x10000, v{AW+mt}")
    cset = {"m": lambda: build_masks(None), "a": a2_setup, "q": qkv_addr, "g": gpub_addr, "w": wom_setup}
    for k in cfg.cs0: cset[k]()
    stamp(3, "st")
    if cfg.b1c < 0:
        a(f"""
        v_mov_b32 v2, {L_SYNC + 16}
        v_mov_b32 v3, 1
        s_mov_b32 s{sCNT}, 0
        s_waitcnt vmcnt(0)
        s_mov_b64 exec, 1
        ds_add_u32 v2, v3
        s_mov_b64 exec, -1
        """)
        nonce_issue(vNC)
        if cfg.prew: prewarm()
        a(f"""
        L_b1s:
        ds_read_b32 v3, v2
        s_add_u32 s{sCNT}, s{sCNT}, 1
        s_waitcnt lgkmcnt(0)
        v_cmp_ne_u32 vcc, 8, v3
        s_cmp_gt_u32 s{sCNT}, 0x100000
        s_cbranch_scc1 L_b1t
        s_cbranch_vccnz L_b1s
        L_b1t:
        """)
        stamp(1)
        b1_compute(128)
        if cfg.ust < 0: b1_store(128)
    def a1_reads(c, ks):
        F = FS4[ks]
        slot = (c + 1) % 3; hi = slot >> 1; o = (slot & 1) * 32768
        r = []
        for half in range(2):
            for t in range(2):
                r.append(f"ds_read_b64_tr_b16 v[{F+4*half+2*t}:{F+4*half+2*t+1}], v{AW+2*hi+half} offset:{o + (16*ks+4*t)*256}")
            r.append(f"ds_read_b128 v[{F+8+4*half}:{F+8+4*half+3}], v{AX+4*hi+ks} offset:{o + half*4096}")
        return [] if cfg.noread else r
    def a1_mfma(ks, first):
        F = FS4[ks]; r = []
        for mt, nt in ((0, 0), (1, 0), (1, 1), (0, 1)):
            d = ACC + 16 * (2 * mt + nt)
            r.append(f"v_mfma_f32_32x32x16_bf16 v[{d}:{d+15}], v[{F+4*mt}:{F+4*mt+3}], v[{F+8+4*nt}:{F+8+4*nt+3}], " + ("0" if first else f"v[{d}:{d+15}]"))
        return [] if cfg.nomfma else r
    def weave(reads, mf, per):
        reads = list(reads)
        for m in mf:
            for _ in range(per):
                if reads: a(reads.pop(0))
            a(m)
        for r in reads: a(r)
    FS2 = [128, 16]
    def r16(c, ks):
        F = FS2[ks]; slot = (c + 1) % 3; hi = slot >> 1; o = (slot & 1) * 32768; r = []
        for i in range(4):
            for t in range(2):
                r.append(f"ds_read_b64_tr_b16 v[{F+4*i+2*t}:{F+4*i+2*t+1}], v{AW+4*hi+i} offset:{o + (32*ks+4*t)*256}")
            xs = c % 4 if cfg.x4 else slot
            r.append(f"ds_read_b128 v[{F+16+4*i}:{F+16+4*i+3}], v{AX+2*(xs >> 1)+ks} offset:{(xs & 1) * 32768 + i*2048}")
        return r
    def m16(ks, first):
        F = FS2[ks]; r = []
        for mt in range(4):
            for nt in (range(4) if mt % 2 == 0 else range(3, -1, -1)):
                d = ACC + 4 * (4 * mt + nt)
                r.append(f"v_mfma_f32_16x16x32_bf16 v[{d}:{d+3}], v[{F+4*mt}:{F+4*mt+3}], v[{F+16+4*nt}:{F+16+4*nt+3}], " + ("0" if first else f"v[{d}:{d+3}]"))
        if cfg.nomfma: r = ["s_nop 3"] * 16
        return r
    def rd16(c, ks):
        r = r16(c, ks)
        return [(r[3*i+2], ("X", ks)) for i in range(4)] + [(r[3*i+t], ("W", ks, i)) for i in range(4) for t in range(2)]
    def phase(mm, ks, reads, lo, hi):
        for i in range(lo, hi):
            if i % 4 == 0: wait_for({("X", ks), ("W", ks, i // 4)})
            a(mm[i])
            if reads:
                t, tag = reads.pop(0); a(t); issue(tag, 1)
    PRE = cfg.pre
    q.clear()
    for c in range(10):
        if c > 0: phase(m16(1, False), 1, [], 0, PRE)
        a("s_waitcnt lgkmcnt(0)"); q.clear()
        if c > 0 and c - 1 == cfg.b1c:
            stamp(1); nonce_issue(vNC)
            if cfg.prew: prewarm()
            b1_compute(128)
        if c > 0 and c - 1 == max(cfg.ust, cfg.b1c): b1_store(128)
        if c == 2 and cfg.mlds: mask_write()
        if c == 1:
            for k in cfg.cs1: cset[k]()
        if c == 2:
            for k in cfg.cs2: cset[k]()
        if c == pubc + 1:
            a("s_waitcnt vmcnt(0)")
            nonce_take(vNC); publish_u(2)
        if c in (0, 1, 2, 3, 5, 7, 9): stamp(1 + (0, 1, 2, 3, 5, 7, 9).index(c), "a1")
        a("s_barrier")
        if c == cfg.cprio: a("s_setprio 3")
        if c == 9: break
        rd = rd16(c, 0)
        for _ in range(2 if c > 0 else 12):
            t, tag = rd.pop(0); a(t); issue(tag, 1)
        if c > 0: phase(m16(1, False), 1, rd, PRE, 16)
        assert not rd
        phase(m16(0, c == 0), 0, rd16(c, 1), 0, 16)
    qs = f2u(20 ** -0.5 * math.log2(math.e))
    def epi_addr():
        a(f"""
        s_and_b32 s{sT0}, s{sWV}, 1
        s_lshr_b32 s{sT1}, s{sWV}, 1
        s_lshl_b32 s{sT2}, s{sCT}, 1
        s_add_u32 s{sT2}, s{sT2}, s{sT0}
        s_lshl_b32 s{sT3}, s{sRB}, 1
        s_add_u32 s{sT3}, s{sT3}, s{sT1}
        s_lshl_b32 s{sA}, s{sT2}, 18
        s_lshl_b32 s{sT4}, s{sT3}, 10
        s_add_u32 s{sA}, s{sA}, s{sT4}
        s_lshl_b32 s{sB}, s{sT2}, 5
        s_add_u32 s{sB}, s{sB}, s{sT3}
        s_mul_i32 s{sB}, s{sB}, {FS}
        s_add_u32 s{sB}, s{sB}, {WS_FG}
        v_and_b32 v2, 31, v1
        v_lshrrev_b32 v3, 5, v1
        v_lshlrev_b32 v2, 4, v2
        v_lshl_add_u32 v2, v3, 15, v2
        s_mov_b32 s{sT2}, {qs:#x}
        s_mov_b32 s{sT3}, {qs:#x}
        """)
    if cfg.tmaj:
        X2 = 160
        r0 = r16(9, 0); r1 = r16(9, 1)
        xr1 = [r1[3*i+2].replace(f"v[{FS2[1]+16+4*i}:{FS2[1]+16+4*i+3}]", f"v[{X2+4*i}:{X2+4*i+3}]") for i in range(4)]
        wr1 = [r1[3*i:3*i+2] for i in range(4)]
        pm = m16(1, False)
        sc = capture(epi_addr) + [f"s_cmp_lt_u32 s{sCT}, 5", f"s_cselect_b32 s{sT2}, s{sT2}, 1.0", f"s_cselect_b32 s{sT3}, s{sT3}, 1.0"]
        first = [r0[2], r0[5], r0[8], r0[11], r0[0], r0[1]] + xr1
        rest = [r0[3:5], r0[6:8], r0[9:11]]
        q.clear()
        seq = [(t, ("F",)) for t in first[:6]] + [(t, ("W", 0)) for t in wr1[0]] + [(t, ("F",)) for t in first[6:]]
        late = {8: [(t, ("W", 1)) for t in rest[0] + wr1[1]], 12: [(t, ("W", 2)) for t in rest[1] + wr1[2]]}
        assert PRE == 4
        for i in range(PRE, 16):
            seq += late.get(i, [])
            for _ in range(2):
                if seq:
                    t, tag = seq.pop(0); a(t); issue(tag, 1)
            a(pm[i])
            for _ in range(2):
                if sc: a(sc.pop(0))
        for t in rest[2] + wr1[3]: a(t)
        issue(("W", 3), 4)
        for t in sc: a(t)
        def epi_tile(mt):
            r = [f"s_add_u32 s{sT0}, s{sA}, {2*mt*32768}"]
            for n2 in range(2):
                d = ACC + 4 * (4 * mt + 2 * n2); p = 4 + 4 * n2 if mt % 2 == 0 else 176 if n2 == 0 else 48
                if cfg.tscale:
                    for k in range(8): r.append(f"v_mul_f32 v{d+k}, s{sT2}, v{d+k}")
                for k in range(4): r.append(f"v_cvt_pk_bf16_f32 v{p+k}, v{d+2*k}, v{d+2*k+1}")
                r += [f"v_permlane16_swap_b32 v{p}, v{p+2}", f"v_permlane16_swap_b32 v{p+1}, v{p+3}"]
                r.append(f"buffer_store_dwordx4 v[{p}:{p+3}], v2, {srd(SWS)}, s{sT0} offen offset:{n2*512} sc1")
            return r
        pend = []
        for mt in range(4):
            wait_for({("F",), ("W", mt)})
            for ks in range(2):
                for nt in range(4):
                    d = ACC + 4 * (4 * mt + nt); F = FS2[ks]; xb = (F + 16 if ks == 0 else X2) + 4 * nt
                    a(f"v_mfma_f32_16x16x32_bf16 v[{d}:{d+3}], v[{F+4*mt}:{F+4*mt+3}], v[{xb}:{xb+3}], v[{d}:{d+3}]")
                    if ks + nt > 0:
                        for _ in range(5 if cfg.tscale else 3):
                            if pend: a(pend.pop(0))
            for t in pend: a(t)
            pend = epi_tile(mt)
        stamp(2)
        for t in pend: a(t)
    else:
        mlast = m16(1, False) if cfg.m16 else a1_mfma(2, False) + a1_mfma(3, False)
        weave([], mlast[:4], 0)
        epi_addr()
        weave([], mlast[4:], 0)
        stamp(2)
        def a1_epi(scale):
            n = 0
            if cfg.m16:
                for mt in range(4):
                    a(f"s_add_u32 s{sT0}, s{sA}, {2*mt*32768}")
                    for n2 in range(2):
                        d = ACC + 4 * (4 * mt + 2 * n2); p = 128 + 4 * n; n += 1
                        for k in range(4): a(f"v_cvt_pk_bf16_f32 v{p+k}, v{d+2*k}, v{d+2*k+1}")
                        a(f"v_permlane16_swap_b32 v{p}, v{p+2}\nv_permlane16_swap_b32 v{p+1}, v{p+3}")
                        a(f"buffer_store_dwordx4 v[{p}:{p+3}], v2, {srd(SWS)}, s{sT0} offen offset:{n2*512} sc1")
                return
            for mt, nt in ((0, 0), (1, 0), (1, 1), (0, 1)):
                for i in (0, 2):
                    d = ACC + 16 * (2 * mt + nt) + 4 * i
                    p = 128 + 4 * n; n += 1
                    if scale:
                        for k in range(4): a(f"v_pk_mul_f32 {pr(d+2*k)}, {pr(d+2*k)}, s[{sT2}:{sT3}]")
                    for k in range(4): a(f"v_cvt_pk_bf16_f32 v{p+k}, v{d+2*k}, v{d+2*k+1}")
                    a(f"s_add_u32 s{sT0}, s{sA}, {(4*mt+i)*32768}")
                    a(f"v_permlane32_swap_b32 v{p}, v{p+2}\nv_permlane32_swap_b32 v{p+1}, v{p+3}")
                    a(f"buffer_store_dwordx4 v[{p}:{p+3}], v2, {srd(SWS)}, s{sT0} offen offset:{nt*512} sc1")
        a(f"s_cmp_ge_u32 s{sCT}, 5\ns_cbranch_scc1 L_epi_d")
        for mt, nt in ((0, 0), (0, 1), (1, 0), (1, 1)) if cfg.m16 else ((0, 0), (1, 0), (1, 1), (0, 1)):
            for k in range(8):
                d = ACC + 16 * (2 * mt + nt) + 2 * k
                a(f"v_mul_f32 v{d}, s{sT2}, v{d}\nv_mul_f32 v{d+1}, s{sT2}, v{d+1}")
        a("L_epi_d:\ns_nop 6")
        a1_epi(False)
    a(f"""
    v_mov_b32 v16, s{sN}
    v_mov_b32 v17, s{sN+1}
    s_lshl_b32 s{sT0}, s{sWV}, 2
    s_add_u32 s{sT0}, s{sT0}, {L_SYNC}
    v_mov_b32 v18, s{sT0}
    v_and_b32 v19, 3, v1
    v_lshlrev_b32 v19, 2, v19
    v_add_u32 v19, {L_SYNC}, v19
    ds_write_b32 v18, v16
    s_waitcnt vmcnt(0)
    s_mov_b64 exec, 15
    buffer_store_dwordx2 v[16:17], v{GPA}, {srd(SWS)}, 0 offen sc1
    s_mov_b64 exec, -1
    s_mov_b32 s{sCNT}, 0
    L_sync:
    ds_read_b32 v18, v19
    s_add_u32 s{sCNT}, s{sCNT}, 1
    s_waitcnt lgkmcnt(0)
    v_cmp_ne_u32 vcc, s{sN}, v18
    s_cmp_gt_u32 s{sCNT}, 0x100000
    s_cbranch_scc1 L_c_post
    s_cbranch_vccnz L_sync
    """)
    a("L_c_post:")
    stamp(3)
    if cfg.stop <= 1: a("s_branch L_fin")
    if cfg.otn >= 0: ot_addr(OTA)
    if cfg.sp1: a("v_and_b32 v10, 1, v1\nv_subrev_u32 v10, 1, v10\nv_and_b32 v10, 0x3f80, v10\nv_mov_b32 v11, 0")
    else: a("v_mov_b32 v10, 0x3f803f80\nv_mov_b32 v11, 0x3f803f80")
    a("v_mov_b32 v12, 0\nv_mov_b32 v13, 0\nv_lshlrev_b32 v7, 3, v1")
    if cfg.gdelay: a("s_waitcnt vmcnt(0)")
    if cfg.gdelay > 1: a(f"s_sleep {cfg.gdelay}")
    def g_dma(sec, half):
        lds, lstr = ((L_Q, 4096), (L_K, 8192), (L_V, VSTR))[sec]
        for slot in range(3):
            base = (sGA, 32768 * slot) if slot < 2 else (sGB, 0)
            off = base[1] + sec * 80 * 32768 - (0 if half else 4096)
            a(f"s_add_u32 s{sT0}, s{base[0]}, {off}")
            dma(14 if half else 15, SWS, f"s{sT0}", f"s_add_u32 m0, s{sT5}, {lds + slot*lstr + (4096 if (half and sec) else 0)}", "sc1")
    combos = ((0, 1), (1, 1), (2, 1), (1, 0), (2, 0))
    if cfg.prog:
        a(f"s_mov_b32 s{sCNT}, 0\ns_mov_b32 s{sA}, 0\nL_gp:")
        a(f"buffer_load_dwordx2 v[8:9], v{GFA}, {srd(SWS)}, 0 offen sc1\ns_waitcnt vmcnt(0)")
        cmpflag(8)
        a(f"s_add_u32 s{sCNT}, s{sCNT}, 1\ns_cmp_lt_u32 s{sCNT}, 0x40000\ns_cselect_b32 s{sB}, vcc_lo, 0\ns_or_b32 s{sB}, s{sB}, s{sA}")
        for k, (sec, half) in enumerate(combos):
            L = a.lab("L_gs")
            a(f"s_and_b32 s{sT1}, s{sB}, {3 << (2*k)}\ns_cbranch_scc1 {L}\ns_or_b32 s{sA}, s{sA}, {3 << (2*k)}")
            g_dma(sec, half)
            a(f"{L}:")
        a(f"s_cmp_lg_u32 s{sA}, 0x3ff\ns_cbranch_scc1 L_gp")
        stamp(4)
    else:
        poll(GFA, 8)
        stamp(4)
        for sec, half in combos: g_dma(sec, half)
    a(f"ds_write_b64 v7, v[10:11] offset:{L_ONES}\nds_write_b64 v7, v[10:11] offset:{L_ONES + 512}\nds_write_b64 v7, v[12:13] offset:{L_ONES - 512}")
    a("s_setprio 0\ns_waitcnt vmcnt(0) lgkmcnt(0)")

    for r in (FZA, QA, QA + 1, ZPA, ZD, ZD + 1, ZD + 2): a(f"v_mov_b32 v{r}, 0")
    if cfg.qn < 0:
        a("s_branch L_join_b\nL_join_a:\ns_setprio 1\nL_join_b:\ns_barrier")
    elif cfg.prio: a("s_branch L_join_b\nL_join_a:\ns_setprio 1\nL_join_b:\ns_barrier")
    else: a("L_join_a:\ns_barrier")
    stamp(5)
    if cfg.stop <= 2: a("s_branch L_fin")
    Q0, Q1, Q1B = 16, 20, 60; K0F = 24; K1F = 32; VF = 40; AV = 58; S = 64; PP = 96; O = 112
    def wo_dma(i):
        if cfg.nowo: return
        a("s_mov_b32 m0, s25" if i == 9 else f"s_add_u32 m0, s24, {8192*i}")
        a(f"buffer_load_dwordx4 v{WOV + i % 5}, {srd(SWO)}, s{sC160 if i < 5 else 26} offen lds")
    def k_read(b):
        f = K0F + 4 * (b & 1); o = (8 - b) * 512
        a(f"ds_read_b128 v[{f}:{f+3}], v{AK0} offset:{o}")
        if b % 2 == 0:
            f = K1F + 4 * ((b >> 1) & 1)
            a(f"ds_read_b128 v[{f}:{f+3}], v{AK1} offset:{o}")
    def v_read(b):
        f = VF + 8 * (b & 1); o = 0 if b & 1 else 512
        for s in range(2):
            for t in range(2):
                a(f"ds_read_b64_tr_b16 v[{f+4*s+2*t}:{f+4*s+2*t+1}], v{AVP + b//2} offset:{o + (16*s+8*t)*16}")
    def hook(b):
        L = a.lab("L_hook")
        a(f"s_cmp_lg_u32 s{sNV}, {b}\ns_cbranch_scc1 {L}\ns_nop 7")
        for r in range(16): a(f"v_mov_b32 v{vCZ+r}, v59\nv_mov_b32 v{vCF+r}, v59")
        a(f"s_nop 1\n{L}:")
    def qk(b, half, gen_):
        d = S + 16 * (b & 1)
        if half == 0:
            f = K0F + 4 * (b & 1)
            c = vCD if b == 0 else (vCF if b == 8 else vCZ)
            cs = f"v[{c}:{c+15}]" if (gen_ or c != vCZ) else "0"
            a(f"v_mfma_f32_32x32x16_bf16 v[{d}:{d+15}], v[{f}:{f+3}], v[{Q0}:{Q0+3}], {cs}")
        else:
            f = K1F + 4 * ((b >> 1) & 1); qq = Q1B if b & 1 else Q1
            a(f"v_mfma_f32_32x32x16_bf16 v[{d}:{d+15}], v[{f}:{f+3}], v[{qq}:{qq+3}], v[{d}:{d+15}]")
    def pv(b, s):
        p = PP + 8 * (b & 1); f = VF + 8 * (b & 1)
        a(f"v_mfma_f32_32x32x16_bf16 v[{O}:{O+15}], v[{f+4*s}:{f+4*s+3}], v[{p+4*s}:{p+4*s+3}], " + ("0" if (b == 0 and s == 0) else f"v[{O}:{O+15}]"))
    def cv(b, g):
        d = S + 16 * (b & 1) + 4 * g; p = PP + 8 * (b & 1) + 2 * g
        a(f"v_cvt_pk_bf16_f32 v{p}, v{d}, v{d+1}\nv_cvt_pk_bf16_f32 v{p+1}, v{d+2}, v{d+3}")
    def ex(b, g):
        d = S + 16 * (b & 1) + 4 * g
        a(f"v_exp_f32 v{d}, v{d}\nv_exp_f32 v{d+1}, v{d+1}")
        if g > 0: cv(b, g - 1)
        elif b > 0: cv(b - 1, 3)
        a(f"v_exp_f32 v{d+2}, v{d+2}\nv_exp_f32 v{d+3}, v{d+3}")
    wsched = {}
    i = 0
    for n in range(17):
        k = 0 if n < cfg.wstart else cfg.wfirst if n == cfg.wstart else 1
        wsched[n] = list(range(i, min(i + k, NWO))); i += k
    if cfg.wsch:
        i = 0
        for n, ch in enumerate(cfg.wsch):
            wsched[n] = list(range(i, min(i + int(ch), NWO))); i += int(ch)
        assert i >= NWO and len(cfg.wsch) == 18 and cfg.wbar > 16
    NLATE = len(wsched.get(17, []))
    assert (cfg.qn < 0 or cfg.qn >= NWO - cfg.wfirst) and (cfg.fzn > cfg.qn or cfg.qn >= 17) and cfg.wbar >= cfg.fzn
    def side(b, k, gen_):
        n = 2 * b + k - 1
        if gen_ or n < 0: return
        if n == 0: a("s_barrier")
        if n == cfg.zst:
            L4 = a.lab("L_zs")
            a(f"s_cmp_eq_u32 s{sCHV}, 0\ns_cbranch_scc1 {L4}")
            for i in range(4): a(f"buffer_store_dwordx4 v[{128+4*i}:{131+4*i}], v144, {srd(SWS)}, 0 offen offset:{1024*i} sc1")
            a(f"{L4}:")
        if n == cfg.zpub:
            L2 = a.lab("L_zp"); R = a.lab("L_zpr")
            a(f"s_cmp_lg_u32 s{sCHV}, 0\ns_cbranch_scc1 {L2}\n{R}:")
            def body():
                a(f"{L2}:\nv_mov_b32 v4, s{sN}\nv_mov_b32 v5, s{sN+1}\ns_waitcnt vmcnt({0 if cfg.nowo else sum(len(wsched[j]) for j in range(n)) + (3 if cfg.qn < 0 else 0)})")
                a(f"s_mov_b64 exec, 1\nbuffer_store_dwordx2 v[4:5], v{ZPA}, {srd(SWS)}, 0 offen sc1\ns_mov_b64 exec, -1\ns_branch {R}")
            ool.append(body)
        for i in wsched.get(n, []): wo_dma(i)
        if n == cfg.otn:
            L = a.lab("L_ot")
            a(f"s_cmp_ge_u32 s{sWV}, 4\ns_cbranch_scc1 {L}\nbuffer_load_dword v57, v{OTA}, {srd(SOUT)}, 0 offen {cfg.otf}\n{L}:")
        if n == cfg.qn or n == cfg.fzn:
            L = a.lab("L_hq")
            a(f"s_cmp_lt_u32 s{sWV}, 4\ns_cbranch_scc1 {L}")
            if n == cfg.qn: q_loads()
            else: a(f"buffer_load_dwordx2 v[{FZR}:{FZR+1}], v{FZA}, {srd(SWS)}, 0 offen sc1")
            a(f"{L}:")
        if n == cfg.wbar:
            L = a.lab("L_wb")
            a(f"s_waitcnt vmcnt({1 if (cfg.qn < 0 or cfg.qn >= 17) else 4})\ns_cmp_ge_u32 s{sWV}, 4\ns_cbranch_scc1 {L}\ns_waitcnt vmcnt({1 if cfg.otn >= 0 else 0})\n{L}:\ns_barrier")
            if cfg.qn == 17:
                L = a.lab("L_hq"); a(f"s_cmp_lt_u32 s{sWV}, 4\ns_cbranch_scc1 {L}"); q_loads(); a(f"{L}:")
    def a2_loop(gen_):
        if gen_: a(f"v_mov_b32 v59, {BIGNEG:#x}")
        a("s_waitcnt lgkmcnt(1)")
        qk(0, 0, gen_)
        qk(0, 1, gen_)
        for b in range(9):
            if b in (1, 3, 5, 7) and not gen_: stamp(2 + b // 2, "a2")
            if cfg.prio and b == cfg.prio: a("s_setprio 0")
            if b > 0:
                a("s_waitcnt lgkmcnt(0)")
                pv(b - 1, 0)
            v_read(b)
            if b < 7: k_read(b + 2)
            ex(b, 0)
            if b < 8:
                if gen_: hook(b + 1)
                if b == 0: a("s_waitcnt lgkmcnt(6)")
                qk(b + 1, 0, gen_)
            else: pv(b - 1, 1)
            side(b, 0, gen_)
            ex(b, 1)
            if b < 8: qk(b + 1, 1, gen_)
            ex(b, 2)
            if 0 < b < 8: pv(b - 1, 1)
            if b == 8:
                a("s_waitcnt lgkmcnt(0)"); pv(8, 0)
            side(b, 1, gen_)
            ex(b, 3)
        cv(8, 3)
        pv(8, 1)
    a(f"ds_read_b128 v[{Q1}:{Q1+3}], v{QAD1}\nds_read_b128 v[{Q0}:{Q0+3}], v{QAD0}")
    k_read(0); k_read(1)
    if cfg.qn < 0:
        a(f"s_cmp_lt_u32 s{sWV}, 4\ns_cbranch_scc1 L_noq"); q_loads(); a("L_noq:")
    a(f"""
    s_lshl_b32 s{sT0}, s{sQB}, 3
    s_add_u32 s{sT0}, s{sT0}, s{sWV}
    s_lshl_b32 s{sT4}, s{sHD}, 16
    s_lshl_b32 s{sT2}, s{sT0}, 9
    s_add_u32 s{sT4}, s{sT4}, s{sT2}
    s_add_u32 s{sT4}, s{sT4}, {WS_O}
    s_lshl_b32 s{sT5}, s{sHD}, 14
    s_lshl_b32 s{sT3}, s{sT0}, 8
    s_add_u32 s{sT5}, s{sT5}, s{sT3}
    s_add_u32 s{sT5}, s{sT5}, {WS_O8}
    s_lshl_b32 s{sA}, s{sT0}, 5
    s_add_u32 s{sA}, s{sA}, s{sHD}
    s_lshl_b32 s{sA}, s{sA}, {3 + cfg.oms}
    s_add_u32 s{sA}, s{sA}, {WS_FO}
    s_waitcnt lgkmcnt(4)
    v_and_b32 v{Q1B}, v{QM2}, v{Q1}
    v_and_b32 v{Q1B+1}, v{QM2}, v{Q1+1}
    v_and_b32 v{Q1B+2}, v{QM3}, v{Q1+2}
    v_and_b32 v{Q1B+3}, v{QM3}, v{Q1+3}
    v_and_b32 v{Q1}, v{QM0}, v{Q1}
    v_and_b32 v{Q1+1}, v{QM0}, v{Q1+1}
    v_and_b32 v{Q1+2}, v{QM1}, v{Q1+2}
    v_and_b32 v{Q1+3}, v{QM1}, v{Q1+3}
    """)
    stamp(1, "a2")
    a2_loop(False)
    a("L_a2_done:")
    def gen_loop():
        a("L_a2_gen:"); a2_loop(True); a("s_nop 10\ns_branch L_a2_done")
    stamp(6, "a2")
    lo = f2u(2.0 ** -24); hi = f2u(2.0 ** 40); fin = f2u(3.0e38)
    a(f"v_rcp_f32 v2, v{O+12}\nv_mov_b32 v3, v2")
    for i in range(6): a(f"v_pk_mul_f32 {pr(40+2*i)}, {pr(O+2*i)}, v[2:3]")
    for i in range(6): a(f"v_cvt_pk_bf16_f32 v{24+i}, v{40+2*i}, v{41+2*i}")
    a(f"""
    buffer_store_dwordx4 v[24:27], v{OS0}, {srd(SWS)}, s{sT4} offen sc1
    s_mov_b32 exec_hi, 0
    buffer_store_dwordx2 v[28:29], v{OS1}, {srd(SWS)}, s{sT5} offen sc1
    s_mov_b32 exec_hi, -1
    """)
    stamp(6); stamp(7, "a2"); stamp(1, "g2")
    a(f"v_cmp_nle_f32 vcc, {lo:#x}, v{O+12}\ns_mov_b64 s[{sEX}:{sEX+1}], vcc\nv_cmp_nge_f32 vcc, {hi:#x}, v{O+12}\ns_or_b64 s[{sEX}:{sEX+1}], s[{sEX}:{sEX+1}], vcc")
    for i in range(6): a(f"v_add_f32 v{4+i}, abs(v{O+2*i}), abs(v{O+2*i+1})")
    a("v_add_f32 v4, v4, v5\nv_add_f32 v6, v6, v7\nv_add_f32 v8, v8, v9\nv_add_f32 v4, v4, v6\nv_add_f32 v4, v4, v8")
    a(f"v_cmp_nge_f32 vcc, {fin:#x}, v4\ns_or_b64 vcc, s[{sEX}:{sEX+1}], vcc")
    if cfg.force_fb: a("s_mov_b64 vcc, -1")
    a("s_cbranch_vccnz L_a2_fb\nL_a2_ok:")
    def fallback():
        a(f"L_a2_fb:\ns_cmp_lg_u32 s{sFB}, 0\ns_cbranch_scc1 L_a2_ok\ns_mov_b32 s{sFB}, 1\ns_waitcnt vmcnt(0)")
        build_masks("0")
        a(f"v_mov_b32 v4, {BIGNEG:#x}\nv_mov_b32 v59, {BIGNEG:#x}")
        for b in range(9):
            if b > 0: hook(b)
            k_read(b); a("s_waitcnt lgkmcnt(0)"); qk(b, 0, True); qk(b, 1, True)
            d = S + 16 * (b & 1)
            for i in range(8): a(f"v_max3_f32 v4, v4, v{d+2*i}, v{d+2*i+1}")
        a("v_mov_b32 v5, v4\nv_permlane32_swap_b32 v4, v5\nv_max_f32 v4, v4, v5\nv_sub_f32 v4, 0, v4")
        build_masks("v4")
        k_read(0); k_read(1)
        a("s_branch L_a2_gen")
    WM, WM2, WS8, WS8b = 13, 14, 15, 7
    L_P = 32768; L_FL = 86784; ACC3 = 16; OF = 36
    a(f"""
    v_lshrrev_b32 v2, 4, v1
    v_bfe_u32 v3, v1, 2, 2
    v_and_b32 v4, 3, v1
    v_lshlrev_b32 v4, 3, v4
    v_lshrrev_b32 v5, 1, v2
    v_mul_u32_u24 v5, 24, v5
    v_and_b32 v6, 1, v2
    v_lshl_add_u32 v5, v6, 2, v5
    v_add_u32 v5, v5, v3
    v_mul_u32_u24 v5, 160, v5
    v_add_u32 v{WM}, v5, v4
    v_add_u32 v{WM2}, {L_WO1 + 6*6400}, v{WM}
    v_mul_u32_u24 v5, 40, v2
    v_add3_u32 v5, v5, v3, 16
    v_mul_u32_u24 v5, 160, v5
    v_add_u32 v{WS8b}, v5, v4
    v_add_u32 v{WS8}, {L_WO1}, v{WS8b}
    """)
    def wo_frag(step, ct, d):
        for t in range(2):
            if step < 6: r, o = WM, (40 * step + 8 * t) * 160
            elif step < 12: r, o = WM2, (40 * (step - 6) + 8 * t) * 160
            elif step < 16: r, o = WM, (40 * (step - 12) + 8 * t) * 160
            elif step < 19: r, o = WS8, (160 * (step - 16) + 4 * t) * 160
            else: r, o = WS8b, 4 * t * 160
            a(f"ds_read_b64_tr_b16 v[{d+2*t}:{d+2*t+1}], v{r} offset:{o + 32*ct}")
    def o_addr(kh):
        a(f"""
        v_and_b32 v2, 15, v1
        v_lshrrev_b32 v3, 4, v1
        v_lshlrev_b32 v3, 15, v3
        v_lshl_add_u32 v9, v2, 4, v3
        v_lshl_add_u32 v12, v2, 3, v3
        s_lshl2_add_u32 s{sT0}, s{sR64}, s{sHW}
        s_lshl_b32 s{sB}, s{sT0}, 8
        s_lshl_b32 s{sT4}, s{sT0}, 7
        s_and_b32 s{sT0}, s{sT0}, -2
        s_add_u32 s{sT0}, s{sT0}, {kh}
        s_lshl_b32 s{sT0}, s{sT0}, {7 + cfg.oms}
        s_add_u32 s{sT0}, s{sT0}, {WS_FO}
        v_lshl_add_u32 v8, v2, {3 + cfg.oms}, s{sT0}
        """)
    def o_loads(steps):
        cnt = []
        for k, st in enumerate(steps):
            d = OF + 4 * k
            if st < 16:
                a(f"s_add_u32 s{sT0}, s{sB}, {WS_O + 4*st*32768}\nbuffer_load_dwordx4 v[{d}:{d+3}], v9, {srd(SWS)}, s{sT0} offen sc1"); cnt.append(1)
            else:
                for t in range(2):
                    a(f"s_add_u32 s{sT0}, s{sT4}, {WS_O8 + (8*(st-16) + t)*16384}\nbuffer_load_dwordx2 v[{d+2*t}:{d+2*t+1}], v12, {srd(SWS)}, s{sT0} offen sc1")
                cnt.append(2)
        return cnt
    def a3_loop(steps, cnt, fr, npre, hooks):
        q.clear(); extra = 0
        for k, st in enumerate(steps):
            a(f"s_waitcnt vmcnt({sum(cnt[k+1:]) + extra})")
            if k == 0: stamp(3, "a3")
            wait_for({("W", k)})
            for ct in range(5):
                w = fr[(k, ct)]; d = ACC3 + 4 * ct; o = OF + 4 * k
                a(f"v_mfma_f32_16x16x32_bf16 v[{d}:{d+3}], v[{w}:{w+3}], v[{o}:{o+3}], " + ("0" if k == 0 else f"v[{d}:{d+3}]"))
                k2 = npre + k - 1
                if k >= 1 and k2 < 10:
                    fr[(k2, ct)] = fr[(k - 1, ct)]
                    wo_frag(steps[k2], ct, fr[(k2, ct)]); issue(("W", k2), 2)
            if k in hooks: extra += hooks[k]()
    def lds_spin(vaddr, vt):
        L = a.lab("L_sp"); D = a.lab("L_spd")
        a(f"s_mov_b32 s{sCNT}, 0\n{L}:\nds_read_b32 v{vt}, v{vaddr}\ns_add_u32 s{sCNT}, s{sCNT}, 1\ns_waitcnt lgkmcnt(0)")
        a(f"v_cmp_ne_u32 vcc, s{sN}, v{vt}\ns_cmp_gt_u32 s{sCNT}, 0x400000\ns_cbranch_scc1 {D}\ns_cbranch_vccnz {L}\n{D}:")
    stamp(2, "g2")
    a(f"s_cmp_ge_u32 s{sWV}, 4\ns_cbranch_scc1 L_g2_h")
    a(f"v_add_u32 v{WM}, {L_WO1}, v{WM}")
    csteps = [0, 1, 2, 3, 16, 4, 5, 6, 7, 17]
    cfr = {}; STA, FRA, RO = 252, 253, 254
    def fin_addr():
        a(f"""
        s_mul_i32 s{sT0}, s{sHW}, {16*cfg.sstr}
        s_add_u32 s{sT0}, s{sT0}, {L_ST}
        v_and_b32 v2, 15, v1
        v_lshrrev_b32 v3, 4, v1
        v_mul_u32_u24 v4, {cfg.sstr}, v2
        v_lshl_add_u32 v4, v3, 3, v4
        v_add_u32 v{STA}, s{sT0}, v4
        s_and_b32 s{sT1}, s{sC80}, 3
        s_lshl_b32 s{sT1}, s{sT1}, 1
        v_subrev_u32 v2, s{sT1}, v2
        v_cmp_gt_u32 vcc, 10, v2
        v_min_u32 v2, 9, v2
        v_lshlrev_b32 v2, 4, v2
        v_mul_u32_u24 v4, {cfg.sstr}, v3
        v_add3_u32 v{FRA}, v4, v2, s{sT0}
        v_mul_u32_u24 v4, 2560, v3
        v_add_u32 v4, v4, v2
        v_bfrev_b32 v5, 1
        v_cndmask_b32 v{RO}, v5, v4, vcc
        s_lshl2_add_u32 s{sT3}, s{sR64}, s{sHW}
        s_mul_i32 s{sT3}, s{sT3}, {16*2560}
        s_add_u32 s{sT3}, s{sT3}, s{sC160}
        """)
    def part_addr(PA, PF):
        a(f"""
        s_mul_i32 s{sT0}, s{sHW}, 5120
        s_add_u32 s{sT0}, s{sT0}, {L_P}
        v_lshl_add_u32 v{PA}, v1, 4, s{sT0}
        s_lshl_b32 s{sT0}, s{sHW}, 2
        s_add_u32 s{sT0}, s{sT0}, {L_FL + 16}
        v_mov_b32 v{PF}, s{sT0}
        """)
    def c_pre(k):
        for ct in range(5):
            cfr[(k, ct)] = 76 + 4 * (5 * k + ct)
            wo_frag(csteps[k], ct, cfr[(k, ct)])
    for k in range(cfg.cn1):
        c_pre(k)
        if k == cfg.cpub:
            a("s_waitcnt vmcnt(0)"); publish(sA, 4); stamp(3, "g2")
        if k == cfg.cbar: a("s_barrier")
    def finalise(PA, PF):
        stamp(5, "a3")
        a("s_waitcnt lgkmcnt(0)")
        for ct in range(5):
            d = ACC3 + 4 * ct
            for k in range(4): a(f"v_add_f32 v{d+k}, v{d+k}, v{OF+4*ct+k}")
            a(f"v_cvt_pk_bf16_f32 v{2+2*ct}, v{d}, v{d+1}\nv_cvt_pk_bf16_f32 v{3+2*ct}, v{d+2}, v{d+3}\nds_write_b64 v{STA}, v[{2+2*ct}:{3+2*ct}] offset:{32*ct}")
        for k in range(4): a(f"ds_read_b128 v[{56+4*k}:{59+4*k}], v{FRA} offset:{4*k*cfg.sstr}")
        for k in range(4):
            a(f"s_waitcnt lgkmcnt({3-k})\nbuffer_store_dwordx4 v[{56+4*k}:{59+4*k}], v{RO}, {srd(SOUT)}, s{sT3} offen {cfg.outa}\ns_add_u32 s{sT3}, s{sT3}, {4*2560}")
        stamp(7, "a3")
    def get_part(PA, PF):
        lds_spin(PF, 5); q.clear()
        for ct in range(5): a(f"ds_read_b128 v[{OF+4*ct}:{OF+4*ct+3}], v{PA} offset:{1024*ct}")
        return 0
    o_addr(0)
    stamp(4, "g2")
    if cfg.odelay: a(f"s_sleep {cfg.odelay}")
    poll(8, 10)
    stamp(7); stamp(5, "g2"); stamp(1, "a3")
    cnt = o_loads(csteps)
    for k in range(cfg.cn1, 9): c_pre(k)
    part_addr(2, 3)
    a(f"v_mov_b32 v4, s{sN}\ns_waitcnt lgkmcnt(0)")
    a3_loop(csteps, cnt, cfr, 9, {})
    for ct in range(5): a(f"ds_write_b128 v2, v[{ACC3+4*ct}:{ACC3+4*ct+3}] offset:{1024*ct}")
    a("ds_write_b32 v3, v4\ns_waitcnt lgkmcnt(0)")
    stamp(7, "a3")
    a("s_branch L_fin")
    a("L_g2_h:")
    if cfg.hpr: a(f"s_setprio {cfg.hpr}")
    hfr = {}; ZV = 36
    hsteps = [8, 9, 10, 11, 18, 12, 13, 14, 15, 19]
    def zdma():
        check_or_poll(FZA, FZR)
        for k in range(3): a(f"s_mov_b32 m0, s{ZM[k]}\nbuffer_load_dwordx4 v{ZD+k}, {srd(SWS)}, 0 offen sc1 lds")
    if not cfg.zfill: b3_zaddr()
    def h_pre(k):
        for ct in range(5):
            i = 5 * k + ct
            hfr[(k, ct)] = 76 + 4 * i if i < 18 else 184 + 4 * (i - 18)
            wo_frag(hsteps[k], ct, hfr[(k, ct)])
    def h_addr():
        o_addr(1); b3_raddr(); part_addr(148, 149)
        if cfg.fae: fin_addr()
        a(f"""
        v_mov_b32 v150, s{sN}
        v_subrev_u32 v151, 16, v149
        s_mul_i32 s{sT2}, s{sR64}, {64*2560}
        s_add_u32 s{sT2}, s{sT2}, s{sC160}
        s_add_u32 s{sT2}, s{sT2}, 1280
        v_and_b32 v4, 3, v1
        v_lshlrev_b32 v4, 2, v4
        v_add_u32 v4, {L_FL}, v4
        s_cmp_ge_u32 s{sHW}, 2
        s_cselect_b32 s{sT0}, -1, 0
        v_or_b32 v{ROH+2}, s{sT0}, v{ROH+2}
        """)
        for j in range(24): a(f"v_mov_b32 v{ZV+j}, 0")
    rd = capture(lambda: [h_pre(k) for k in range(cfg.hn1)]); ad = capture(h_addr)
    n_ = len(capture(lambda: o_addr(1))) if cfg.ha1 else 0
    for t in rd[:10 * cfg.hn0]: a(t)
    del rd[:10 * cfg.hn0]
    for t in ad[:n_]: a(t)
    del ad[:n_]
    a("s_waitcnt vmcnt(0)"); publish(sA, 32); stamp(3, "g2")
    zdma()
    a("s_barrier")
    while rd or ad:
        for t in rd[:1]: a(t)
        for t in ad[:2]: a(t)
        del rd[:1]; del ad[:2]
    a("s_waitcnt vmcnt(0)\nds_write_b32 v151, v150")
    stamp(4, "g2")
    if cfg.hop == 0: a(f"buffer_load_dwordx2 v[10:11], v8, {srd(SWS)}, 0 offen sc1")
    lds_spin(4, 5)
    for k in range(3):
        for j in range(8): a(f"ds_read_u16_d16_hi v{ZV+8*k+j}, v{ZA+k} offset:{128*j}")
    for k in range(3):
        if cfg.hop == k + 1: a(f"buffer_load_dwordx2 v[10:11], v8, {srd(SWS)}, 0 offen sc1")
        for j in range(4):
            a(f"v_lshlrev_b32 v{ZT+2*j}, 16, v{QV+4*k+j}\nv_and_b32 v{ZT+1+2*j}, 0xffff0000, v{QV+4*k+j}")
        a(f"s_waitcnt lgkmcnt({min(16 - 8*k, 15)})")
        for j in range(8): a(f"v_mul_f32 v{ZT+j}, v{ZT+j}, v{ZV+8*k+j}")
        for j in range(4): a(f"v_cvt_pk_bf16_f32 v{QV+4*k+j}, v{ZT+2*j}, v{ZT+1+2*j}")
    stamp(5, "g2"); stamp(2, "a3")
    if cfg.hop == 4: a(f"buffer_load_dwordx2 v[10:11], v8, {srd(SWS)}, 0 offen sc1")
    for k in range(cfg.hn1, cfg.hn2): h_pre(k)
    a("s_waitcnt vmcnt(0)")
    check_or_poll(8, 10)
    stamp(7); stamp(1, "a3")
    cnt = o_loads(hsteps)
    def b3_stores():
        for k in range(3): a(f"buffer_store_dwordx4 v[{QV+4*k}:{QV+4*k+3}], v{ROH+k}, {srd(SOUT)}, s{sT2} offen {cfg.outb}")
        return 3
    if cfg.hpr: a("s_setprio 0")
    for k in range(cfg.hn2, 7): h_pre(k)
    if not cfg.fae: fin_addr()
    if cfg.b3st < 0: cnt.append(b3_stores())
    a("s_waitcnt lgkmcnt(0)")
    a3_loop(hsteps, cnt, hfr, 7, {cfg.b3st: b3_stores, cfg.pst: lambda: get_part(148, 149)})
    finalise(148, 149)
    a("L_fin:")
    def diag_wait(tag):
        a(f"L_dw{tag}:\ns_memrealtime s[98:99]\ns_waitcnt lgkmcnt(0)\ns_sub_u32 s98, s98, s{sN if cfg.diagn else 100}\ns_cmp_lt_u32 s98, {cfg.diagd}\ns_cbranch_scc1 L_dw{tag}")
    if cfg.diagd:
        if cfg.diagw >= 0: a(f"s_cmp_lg_u32 s2, {cfg.diagw}\ns_cbranch_scc1 L_exit")
        diag_wait(0)
    if cfg.stamps:
        a("s_waitcnt vmcnt(0)")
        stamp(8)
        if cfg.dbgst:
            a(f"s_cmp_lg_u32 s2, 41\ns_cbranch_scc1 L_exit\ns_cmp_lg_u32 s{sWV}, 0\ns_cbranch_scc1 L_exit\ns_mov_b64 exec, 1\nv_mov_b32 v2, 0")
            for i in range(9):
                a(f"s_sub_u32 s{sT0}, s{sSTAMP+2*i}, s{sSTAMP}\nv_mov_b32 v4, s{sT0}\nbuffer_store_dword v4, v2, {srd(SDBG)}, 0 offen offset:{8+4*i}\ns_waitcnt vmcnt(0)")
            a(f"s_sub_u32 s{sT0}, s{sN}, s{sSTAMP}\nv_mov_b32 v4, s{sT0}\nbuffer_store_dword v4, v2, {srd(SDBG)}, 0 offen offset:48\ns_waitcnt vmcnt(0)")
            a("s_endpgm")
        a(f"s_lshl_b32 s{sT0}, s2, 3\ns_add_u32 s{sT0}, s{sT0}, s{sWV}\ns_lshl_b32 s{sT0}, s{sT0}, 7\ns_add_u32 s{sT0}, s{sT0}, {WS_T}\nv_mov_b32 v2, s{sT0}\ns_mov_b64 exec, 1")
        for i in range(9):
            a(f"v_mov_b32 v4, s{sSTAMP+2*i}\nv_mov_b32 v5, s{sSTAMP+2*i+1}\nbuffer_store_dwordx2 v[4:5], v2, {srd(SWS)}, 0 offen offset:{8*i}\ns_waitcnt vmcnt(0)")
    a("L_exit:\ns_endpgm")
    i = 0
    while i < len(ool):
        ool[i](); i += 1
    a("L_end:")
    fallback(); gen_loop()
    while i < len(ool):
        ool[i](); i += 1
    body = a.finish()
    hdr = open("cdna_kernels/" + NAME + ".s.ref").read().split("; Override launch")[0]
    src = hdr + f"""; Single persistent kernel, one 512-thread workgroup per CU; generated by the author's own script.
; @launch grid=(256,1,1) block=(512,1,1) lds=163840
.amdgcn_target "amdgcn-amd-amdhsa--gfx950"
.text
.globl {NAME}_kernel
.p2align 8
.type {NAME}_kernel,@function
{NAME}_kernel:
{body}.section .rodata,"a"
.p2align 6
.amdhsa_kernel {NAME}_kernel
  .amdhsa_next_free_vgpr 256
  .amdhsa_next_free_sgpr 102
  .amdhsa_accum_offset 256
  .amdhsa_group_segment_fixed_size 0
  .amdhsa_kernarg_size 96
  .amdhsa_user_sgpr_count 2
  .amdhsa_user_sgpr_kernarg_segment_ptr 1
  .amdhsa_system_sgpr_workgroup_id_x 1
.end_amdhsa_kernel
"""
    return src

if __name__ == "__main__":
    cfg = Cfg()
    out = sys.argv[1]
    for kv in sys.argv[2:]:
        k, v = kv.split("=")
        old = getattr(cfg, k)
        setattr(cfg, k, (v == "1") if isinstance(old, bool) else (int(v) if isinstance(old, int) else v))
    open(out, "w").write(gen(cfg))
```
